```python
import torch

def _softmax(x, axis=-1):
    return torch.softmax(x, dim=axis)
def _gelu(x):
    return torch.nn.functional.gelu(x, approximate="tanh")
def _silu(x):
    return torch.nn.functional.silu(x)
def _sigmoid(x):
    return torch.sigmoid(x)
def _layernorm(x, axis=-1, eps=1e-5):
    m = x.mean(dim=axis, keepdim=True)
    v = x.var(dim=axis, keepdim=True, unbiased=False)
    return (x - m) / torch.sqrt(v + eps)
def _scatter_add(tgt, idx, src, axis=0):
    return tgt.clone().index_add_(axis, idx, src)
def _segment_sum(src, seg, n):
    out = torch.zeros((n,) + src.shape[1:], dtype=src.dtype)
    return out.index_add_(0, seg, src)
def _pad(x, pw):
    flat = tuple(v for pair in reversed(pw) for v in pair)
    return torch.nn.functional.pad(x, flat)

kernel_name = 'sequential_preLN__compressed_kv_cla__dense_activation_relu__decode'

def setup_inputs():

    _w = (lambda a: (lambda t: t.to(torch.bfloat16) if t.is_floating_point() else t)(torch.as_tensor(a)))
    def _A_setup():
        B, H, Sq, Sk, D, M = 1, 32, 1, 8192, 128, 640
        Dc = 4 * D
        return {
            "x": _w((lambda *s: torch.randn(*s, dtype=torch.bfloat16) * 0.05)(B, Sq, M)),
            "c_kv": _w((lambda *s: torch.randn(*s, dtype=torch.bfloat16) * 0.4)(B, Sk, Dc)),
            "w_q": _w((lambda *s: torch.randn(*s, dtype=torch.bfloat16) * 3.2)(M, H, D) * (M ** -0.5)),
            "w_uk": _w((lambda *s: torch.randn(*s, dtype=torch.bfloat16) * 3.2)(Dc, H, D) * (Dc ** -0.5)),
            "w_uv": _w((lambda *s: torch.randn(*s, dtype=torch.bfloat16) * 0.4)(Dc, H, D) * (Dc ** -0.5)),
            "w_o": _w((lambda *s: torch.randn(*s, dtype=torch.bfloat16) * 0.4)(H, D, M) * ((H * D) ** -0.5)),
        }
    _A_in = _A_setup()

    def _B_setup():
        B, S, D, Dff = 1, 1, 640, 1728
        return {
            "x": _w((lambda *s: torch.randn(*s, dtype=torch.bfloat16) * 0.05)(B, S, D)),
            "w1": _w((lambda *s: torch.randn(*s, dtype=torch.bfloat16) * 0.05)(D, Dff)),
            "w2": _w((lambda *s: torch.randn(*s, dtype=torch.bfloat16) * 0.05)(Dff, D)),
        }
    _B_in = _B_setup()

    return {
        "A_x": _A_in["x"],
        "A_c_kv": _A_in["c_kv"],
        "A_w_q": _A_in["w_q"],
        "A_w_uk": _A_in["w_uk"],
        "A_w_uv": _A_in["w_uv"],
        "A_w_o": _A_in["w_o"],
        "B_x": _B_in["x"],
        "B_w1": _B_in["w1"],
        "B_w2": _B_in["w2"],
    }

def reference(A_x, A_c_kv, A_w_q, A_w_uk, A_w_uv, A_w_o, B_x, B_w1, B_w2):
    def _A_ref(x, c_kv, w_q, w_uk, w_uv, w_o):
        B, Sq, M = x.shape[0], x.shape[1], x.shape[2]
        Sk = c_kv.shape[1]
        H, D = w_q.shape[1], w_q.shape[2]
        q = torch.einsum("bqm,mhd->bhqd", x, w_q)
        k = torch.einsum("bkc,chd->bhkd", c_kv, w_uk)
        v = torch.einsum("bkc,chd->bhkd", c_kv, w_uv)
        scores = torch.einsum("bhqd,bhkd->bhqk", q, k) * (D ** -0.5)
        off = Sk - Sq
        qi = torch.arange(Sq)[:, None]
        kj = torch.arange(Sk)[None, :]
        cmask = kj <= (qi + off)
        scores = torch.where(cmask[None, None], scores, -1e9)
        p = _softmax(scores, axis=-1)
        ctx = torch.einsum("bhqk,bhkd->bhqd", p, v)
        return torch.einsum("bhqd,hdm->bqm", ctx, w_o)

    def _B_ref(x, w1, w2):
        h = torch.einsum("bsd,df->bsf", x, w1)
        zero = torch.zeros_like(h)
        h = torch.maximum(h, zero)
        return torch.einsum("bsf,fd->bsd", h, w2)

    x = A_x
    h = x + _A_ref(_layernorm(x, axis=-1), A_c_kv, A_w_q, A_w_uk, A_w_uv, A_w_o)
    h2 = h + _B_ref(_layernorm(h, axis=-1), B_w1, B_w2)
    return h2
```

```python
import re

TRANS = ("v_exp_f32", "v_log_f32", "v_rcp_f32", "v_rsq_f32", "v_sqrt_f32", "v_sin_f32", "v_cos_f32")

def regs_of(tok):
    tok = tok.strip()
    out = set()
    tok = tok.replace("-", "").replace("abs(", "").replace("|", "").replace(")", "") if tok.startswith(("-v", "abs(", "|v", "-abs(", "-|")) else tok
    m = re.fullmatch(r"([vsa])(\d+)", tok)
    if m:
        out.add((m.group(1), int(m.group(2)))); return out
    m = re.fullmatch(r"([vsa])\[(\d+):(\d+)\]", tok)
    if m:
        for i in range(int(m.group(2)), int(m.group(3)) + 1):
            out.add((m.group(1), i))
        return out
    if tok in ("vcc", "vcc_lo", "vcc_hi"): out.add(("vcc", 0))
    if tok in ("exec", "exec_lo", "exec_hi"): out.add(("exec", 0))
    if tok == "m0": out.add(("m0", 0))
    return out

class Ins:
    __slots__ = ("text", "op", "kind", "w", "r", "trans", "dpp", "perm", "rdlane", "lanesel", "states", "widestore", "ldsdma", "srcc", "passes", "srcab", "constreads")

def parse(text):
    t = text.split(";")[0].strip()
    i = Ins(); i.text = text
    parts = t.split(None, 1)
    op = parts[0]; i.op = op
    rest = parts[1] if len(parts) > 1 else ""
    ops = [o.strip() for o in re.split(r",(?![^\[]*\])", rest)] if rest else []
    mods = ""
    if ops:
        last = ops[-1].split(None, 1)
        ops[-1] = last[0]
        mods = last[1] if len(last) > 1 else ""
    i.w = set(); i.r = set(); i.trans = op.replace("_e32", "").replace("_e64", "") in TRANS
    i.dpp = "_dpp" in op; i.perm = op.startswith("v_permlane"); i.rdlane = op.startswith(("v_readlane", "v_readfirstlane"))
    i.lanesel = set(); i.states = 1; i.widestore = set(); i.ldsdma = False; i.srcc = set(); i.passes = 0; i.srcab = set(); i.constreads = set()
    if op == "s_nop":
        i.kind = "nop"; i.states = int(ops[0], 0) + 1; return i
    if op.startswith("v_mfma"):
        i.kind = "mfma"; i.passes = 4 if "16x16x32" in op else 8
        i.w = regs_of(ops[0]); i.srcab = regs_of(ops[1]) | regs_of(ops[2]); i.srcc = regs_of(ops[3]); i.r = i.srcab | i.srcc
        return i
    if op.startswith("v_"):
        i.kind = "valu"
        if i.perm:
            i.w = regs_of(ops[0]) | regs_of(ops[1]); i.r = set(i.w)
        elif op.startswith(("v_add_co", "v_sub_co", "v_addc_co", "v_subb_co", "v_div_scale")):
            i.w = regs_of(ops[0]) | regs_of(ops[1])
            for o in ops[2:]: i.r |= regs_of(o)
        else:
            i.w = regs_of(ops[0])
            for o in ops[1:]: i.r |= regs_of(o)
            if op.startswith(("v_fmac", "v_writelane", "v_dot2c")) or i.dpp: i.r |= regs_of(ops[0])
            if op.startswith("v_cndmask") and len(ops) == 3: i.r.add(("vcc", 0))
        if op.startswith(("v_readlane", "v_writelane")): i.lanesel = regs_of(ops[2])
        i.constreads = {x for x in i.r if x[0] in ("s", "vcc")}
        return i
    if op.startswith(("buffer_", "global_")):
        i.kind = "vmem"
        if " lds" in (" " + mods) and "load" in op:
            i.ldsdma = True
            for o in ops: i.r |= regs_of(o)
            i.r.add(("m0", 0))
        elif "load" in op:
            i.w = regs_of(ops[0])
            for o in ops[1:]: i.r |= regs_of(o)
        else:
            for o in ops: i.r |= regs_of(o)
            if "x4" in op or "x3" in op:
                i.widestore = regs_of(ops[0]) if op.startswith("buffer_") else regs_of(ops[1])
        return i
    if op.startswith("ds_"):
        i.kind = "ds"
        if op.startswith(("ds_read", "ds_bpermute", "ds_permute", "ds_swizzle")):
            i.w = regs_of(ops[0])
            for o in ops[1:]: i.r |= regs_of(o)
        else:
            for o in ops: i.r |= regs_of(o)
        return i
    if op.startswith("s_"):
        i.kind = "salu"
        if op.startswith(("s_cmp", "s_cbranch", "s_branch", "s_waitcnt", "s_barrier", "s_sleep", "s_endpgm", "s_setprio")):
            for o in ops: i.r |= regs_of(o)
        elif ops:
            i.w = regs_of(ops[0])
            for o in ops[1:]: i.r |= regs_of(o)
            if "saveexec" in op: i.w.add(("exec", 0))
        return i
    raise ValueError("unknown instr: " + text)

class Emitter:
    def __init__(self):
        self.lines = []
        self.hist = []
        self.nlabel = 0
    def raw(self, s):
        self.lines.append(s)
    def comment(self, s):
        self.lines.append("    ; " + s)
    def label(self, name):
        self.lines.append(name + ":")
    def newlabel(self, base="L"):
        self.nlabel += 1
        return "%s_%d" % (base, self.nlabel)
    def need(self, c):
        need = 0
        dist = 0
        for p in reversed(self.hist[-24:]):
            req = 0
            vw = {x for x in p.w if x[0] in ("v", "a")}
            sw = {x for x in p.w if x[0] in ("s", "vcc")}
            if p.kind == "valu":
                if c.kind == "valu":
                    if c.dpp and vw & c.r: req = max(req, 2)
                    if c.perm and vw & c.r: req = max(req, 2)
                    if c.rdlane and vw & c.r: req = max(req, 1)
                    if sw & c.constreads: req = max(req, 2)
                    if sw & c.lanesel: req = max(req, 4)
                    if p.trans and not c.trans and vw & c.r: req = max(req, 1)
                    if p.trans and c.trans and vw & c.r: req = max(req, 1)
                if c.kind == "vmem" and sw & c.r: req = max(req, 5)
                if c.kind == "mfma" and vw & c.r: req = max(req, 2)
                if c.kind in ("vmem", "ds") and p.trans and vw & c.r: req = max(req, 1)
            if p.kind == "salu" and ("m0", 0) in p.w and c.ldsdma: req = max(req, 1)
            if p.kind == "vmem" and p.widestore and (p.widestore & c.w): req = max(req, 2)
            if p.kind == "mfma":
                big = 8 if p.passes == 4 else 12
                if c.kind == "mfma":
                    if p.w & c.srcab: req = max(req, big)
                    if p.w & c.srcc and p.w != c.srcc: req = max(req, big - 2)
                elif c.kind in ("valu", "vmem", "ds"):
                    if p.w & (c.r | c.w): req = max(req, big)
                    if c.kind == "valu" and (p.srcc & c.w): req = max(req, 3 if p.passes == 4 else 7)
            need = max(need, req - dist)
            dist += p.states
            if dist >= 20: break
        return need
    def __call__(self, text):
        for line in text.strip().split("\n"):
            line = line.strip()
            if not line: continue
            if line.startswith(";"):
                self.lines.append("    " + line); continue
            if line.endswith(":"):
                self.label(line[:-1]); continue
            c = parse(line)
            n = self.need(c)
            while n > 0:
                k = min(n, 16)
                nop = parse("s_nop %d" % (k - 1))
                self.lines.append("    " + nop.text); self.hist.append(nop); n -= k
            self.lines.append("    " + line)
            self.hist.append(c)
    def text(self):
        return "\n".join(self.lines) + "\n"
```

```python
import sys
sys.path.insert(0, "gen")
from emit import Emitter

KN = "sequential_preLN__compressed_kv_cla__dense_activation_relu__decode_kernel"
DIAG = "--diag" in sys.argv
OUTF = [a for a in sys.argv[1:] if not a.startswith("--")][0]

QP, QA, CP, HP, STAT, OP, PART, DIAGO = 0x0, 0x20000, 0x30000, 0x40000, 0x48000, 0x50000, 0x100000, 0x800000
WS_BYTES = 0x900000
RS = 1040
SSR = 144
L_RED = 0
L_RED2 = L_RED + 8192
L_H = L_RED2 + 4096
L_SS = L_H + 2560
L_CK = L_SS + 32 * SSR
L_QS = L_CK + 64 * RS
LDS_BYTES = L_QS + 32 * RS
SPIN = 200000

S_X, S_CKV, S_WQ, S_WUK, S_WUV, S_WO, S_W1, S_W2, S_OUT, S_DBG, S_WS = [4 + 4 * i for i in range(11)]
def srd(b): return "s[%d:%d]" % (b, b + 3)
sW, sH, sJ, sCNT, sT0, sT1, sT2, sT3 = 48, 49, 50, 51, 52, 53, 54, 55
sRD, sISD, sFIN = 56, 57, 58
sM = [60, 62, 64, 66, 68, 70, 72, 74]
sTM, sOR = 76, 78
sF = 80
sTS = 96
def sp(b): return "s[%d:%d]" % (b, b + 1)

e = Emitter()
def vr(b, n): return "v[%d:%d]" % (b, b + n - 1) if n > 1 else "v%d" % b

vTID, vLANE, vN, vG = 0, 1, 2, 3
vA0, vA1, vA2, vA3 = 4, 5, 6, 7
vT = 8
vTSV = 40
vCL = 44
vXF = 48
vXR = 54
vWQ = 60
vWUK = 72
vG0 = 88
vW = 120
vU = 152
vCA = 120
vCB = 184
vACC = 88
NVGPR = 248

nts = [0]
def stamp(idx):
    if not DIAG: return
    e("s_memrealtime %s" % sp(sTS))
    e("s_waitcnt lgkmcnt(0)")
    e("v_writelane_b32 v%d, s%d, %d" % (vTSV, sTS, idx))

def setexec(m):
    e("s_mov_b32 exec_lo, 0x%x" % (m & 0xffffffff))
    e("s_mov_b32 exec_hi, 0x%x" % (m >> 32))

def rbf(dst, src, tmp=None):
    e("v_cvt_pk_bf16_f32 v%d, v%d, v%d" % (dst, src, src))
    e("v_lshlrev_b32 v%d, 16, v%d" % (dst, dst))

def wave_sum(v, sdst, op="v_add_f32"):
    for sh in (1, 2, 4, 8):
        e("%s_dpp v%d, v%d, v%d row_shr:%d row_mask:0xf bank_mask:0xf bound_ctrl:0" % (op, v, v, v, sh))
    e("%s_dpp v%d, v%d, v%d row_bcast:15 row_mask:0xa bank_mask:0xf" % (op, v, v, v))
    e("%s_dpp v%d, v%d, v%d row_bcast:31 row_mask:0xc bank_mask:0xf" % (op, v, v, v))
    e("v_readlane_b32 s%d, v%d, 63" % (sdst, v))

def wave_max(v, sdst):
    e("v_mov_b32 v%d, v%d" % (vT + 30, v))
    for sh in (1, 2, 4, 8):
        e("v_max_f32_dpp v%d, v%d, v%d row_shr:%d row_mask:0xf bank_mask:0xf" % (v, v, v, sh))
    e("v_max_f32_dpp v%d, v%d, v%d row_bcast:15 row_mask:0xa bank_mask:0xf" % (v, v, v))
    e("v_max_f32_dpp v%d, v%d, v%d row_bcast:31 row_mask:0xc bank_mask:0xf" % (v, v, v))
    e("v_readlane_b32 s%d, v%d, 63" % (sdst, v))

def unpack(dst, src, n):
    for i in range(n):
        e("v_lshlrev_b32 v%d, 16, v%d" % (dst + 2 * i, src + i))
        e("v_and_b32 v%d, 0xffff0000, v%d" % (dst + 2 * i + 1, src + i))

def poll(loads, sleep=1, init_masks=None):
    lp = e.newlabel("L_poll"); dn = e.newlabel("L_polld")
    for k in range(len(loads)):
        e("s_mov_b64 %s, %s" % (sp(sM[k]), "-1" if not init_masks or init_masks[k] is None else init_masks[k]))
    e("s_mov_b32 s%d, 0" % sCNT)
    e(lp + ":")
    for k, (txt, d, n) in enumerate(loads):
        e("s_mov_b64 exec, %s" % sp(sM[k]))
        e(txt)
    e("s_mov_b64 exec, -1")
    e("s_waitcnt vmcnt(0)")
    for k, (txt, d, n) in enumerate(loads):
        t = vT + 31
        if n == 1:
            e("v_cmp_eq_u32 %s, -1, v%d" % (sp(sTM), d))
        else:
            e("v_max_u32 v%d, v%d, v%d" % (t, d, d + 1))
            if n == 4: e("v_max3_u32 v%d, v%d, v%d, v%d" % (t, t, d + 2, d + 3))
            e("v_cmp_eq_u32 %s, -1, v%d" % (sp(sTM), t))
        e("s_and_b64 %s, %s, %s" % (sp(sM[k]), sp(sM[k]), sp(sTM)))
        if k == 0: e("s_mov_b64 %s, %s" % (sp(sOR), sp(sM[k])))
        else: e("s_or_b64 %s, %s, %s" % (sp(sOR), sp(sOR), sp(sM[k])))
    e("s_cmp_eq_u64 %s, 0" % sp(sOR))
    e("s_cbranch_scc1 %s" % dn)
    e("s_add_u32 s%d, s%d, 1" % (sCNT, sCNT))
    e("s_cmp_gt_u32 s%d, %d" % (sCNT, SPIN))
    e("s_cbranch_scc1 %s" % dn)
    if sleep: e("s_sleep %d" % sleep)
    e("s_branch %s" % lp)
    e(dn + ":")

def rs_8to2(b):
    for i in range(4):
        e("v_permlane32_swap_b32 v%d, v%d" % (b + i, b + 4 + i))
    for i in range(4):
        e("v_add_f32 v%d, v%d, v%d" % (b + i, b + i, b + 4 + i))
    for i in range(2):
        e("v_permlane16_swap_b32 v%d, v%d" % (b + i, b + 2 + i))
    for i in range(2):
        e("v_add_f32 v%d, v%d, v%d" % (b + i, b + i, b + 2 + i))

def rs_4to1(b):
    for i in range(2):
        e("v_permlane32_swap_b32 v%d, v%d" % (b + i, b + 2 + i))
    for i in range(2):
        e("v_add_f32 v%d, v%d, v%d" % (b + i, b + i, b + 2 + i))
    e("v_permlane16_swap_b32 v%d, v%d" % (b, b + 1))
    e("v_add_f32 v%d, v%d, v%d" % (b, b, b + 1))

def allred_g(v, tmp, op="v_add_f32"):
    e("v_mov_b32 v%d, v%d" % (tmp, v))
    e("v_permlane32_swap_b32 v%d, v%d" % (v, tmp))
    e("%s v%d, v%d, v%d" % (op, v, v, tmp))
    e("v_mov_b32 v%d, v%d" % (tmp, v))
    e("v_permlane16_swap_b32 v%d, v%d" % (v, tmp))
    e("%s v%d, v%d, v%d" % (op, v, v, tmp))

def layernorm_stats(vals, n, vM, vS):
    a = vT + 28
    e("v_add_f32 v%d, v%d, v%d" % (a, vals[0], vals[1]))
    for v in vals[2:]: e("v_add_f32 v%d, v%d, v%d" % (a, a, v))
    wave_sum(a, sT0)
    e("s_mov_b32 s%d, 0x3acccccd" % sT1)
    e("v_mov_b32 v%d, s%d" % (vM, sT0))
    e("v_mul_f32 v%d, s%d, v%d" % (vM, sT1, vM))
    b = vT + 29
    e("v_sub_f32 v%d, v%d, v%d" % (b, vals[0], vM))
    e("v_mul_f32 v%d, v%d, v%d" % (a, b, b))
    for v in vals[1:]:
        e("v_sub_f32 v%d, v%d, v%d" % (b, v, vM))
        e("v_fmac_f32 v%d, v%d, v%d" % (a, b, b))
    wave_sum(a, sT0)
    e("v_mov_b32 v%d, s%d" % (vS, sT0))
    e("v_mul_f32 v%d, s%d, v%d" % (vS, sT1, vS))
    rbf(vM, vM)
    rbf(vS, vS)
    e("v_add_f32 v%d, 0x3727c5ac, v%d" % (vS, vS))
    rbf(vS, vS)
    e("v_sqrt_f32 v%d, v%d" % (vS, vS))
    rbf(vS, vS)
    e("v_rcp_f32 v%d, v%d" % (vS + 1, vS))

def ln_apply(v, vM, vS):
    a, q = vT + 28, vT + 29
    e("v_sub_f32 v%d, v%d, v%d" % (v, v, vM))
    rbf(v, v)
    e("v_mul_f32 v%d, v%d, v%d" % (q, v, vS + 1))
    e("v_fma_f32 v%d, -v%d, v%d, v%d" % (a, q, vS, v))
    e("v_fmac_f32 v%d, v%d, v%d" % (q, a, vS + 1))
    rbf(v, q)

e.raw("""; persistent MLA decode + FFN kernel (generated by gen/gen1.py)
; @launch grid=(256,1,1) block=(512,1,1) lds=%d
.amdgcn_target "amdgcn-amd-amdhsa--gfx950"
.text
.globl %s
.p2align 8
.type %s,@function
%s:""" % (LDS_BYTES, KN, KN, KN))
e("s_cmp_ge_u32 s2, 256")
e("s_cbranch_scc1 L_end")
e("s_load_dwordx16 s[64:79], s[0:1], 0")
e("s_load_dwordx8 s[80:87], s[0:1], 64")
if DIAG:
    e("v_mov_b32 v%d, 0" % vTSV)
    stamp(0)
e("v_and_b32 v%d, 63, v0" % vLANE)
e("v_lshrrev_b32 v%d, 6, v0" % vA0)
e("v_and_b32 v%d, 15, v0" % vN)
e("v_bfe_u32 v%d, v0, 4, 2" % vG)
e("v_readfirstlane_b32 s%d, v%d" % (sW, vA0))
for i in range(4): e("v_mov_b32 v%d, -1" % (vCL + i))
e("s_lshr_b32 s%d, s2, 3" % sH)
e("s_and_b32 s%d, s2, 7" % sJ)
e("s_sub_u32 s%d, 31, s%d" % (sT0, sH))
e("s_lshr_b32 s%d, s%d, 2" % (sT1, sT0))
e("s_lshl_b32 s%d, s%d, 3" % (sT1, sT1))
e("s_add_u32 s%d, s%d, s%d" % (sT1, sT1, sJ))
e("s_and_b32 s%d, s%d, 3" % (sT0, sT0))
e("s_lshl_b32 s%d, s%d, 2" % (sRD, sT1))
e("s_add_u32 s%d, s%d, s%d" % (sRD, sRD, sT0))
e("s_cmp_lt_u32 s%d, 27" % sT1)
e("s_cselect_b32 s%d, 1, 0" % sISD)
e("s_cmp_lt_u32 s%d, 20" % sT1)
e("s_cselect_b32 s%d, 1, 0" % sFIN)
e("s_cmp_eq_u32 s%d, 0" % sT0)
e("s_cselect_b32 s%d, s%d, 0" % (sFIN, sFIN))
e("s_waitcnt lgkmcnt(0)")
sizes = {S_X: 1280, S_CKV: 8388608, S_WQ: 5242880, S_WUK: 4194304, S_WUV: 4194304, S_WO: 5242880, S_W1: 2211840, S_W2: 2211840, S_OUT: 1280, S_DBG: 256, S_WS: WS_BYTES}
src = {S_X: 64, S_CKV: 66, S_WQ: 68, S_WUK: 70, S_WUV: 72, S_WO: 74, S_W1: 78, S_W2: 80, S_OUT: 82, S_DBG: 84, S_WS: 86}
for b in (S_X, S_WS, S_WQ, S_WUK, S_CKV, S_DBG, S_WUV, S_WO, S_W1, S_W2, S_OUT):
    e("s_mov_b32 s%d, s%d" % (b, src[b]))
    e("s_mov_b32 s%d, s%d" % (b + 1, src[b] + 1))
    e("s_mov_b32 s%d, %d" % (b + 2, sizes[b]))
    e("s_mov_b32 s%d, 0x00020000" % (b + 3))

e("v_lshlrev_b32 v%d, 2, v%d" % (vA0, vLANE))
for i in range(5):
    e("buffer_load_dword v%d, v%d, %s, 0 offen offset:%d" % (vXF + i, vA0, srd(S_X), 256 * i))
e("s_mul_i32 s%d, s%d, 160" % (sT0, sJ))
e("s_mul_i32 s%d, s%d, 20" % (sT1, sW))
e("s_add_u32 s%d, s%d, s%d" % (sT0, sT0, sT1))
e("v_lshrrev_b32 v%d, 5, v%d" % (vA1, vLANE))
e("v_lshlrev_b32 v%d, 1, v%d" % (vA2, vA1))
for i in range(5):
    e("buffer_load_ushort v%d, v%d, %s, s%d offen offset:%d" % (vXR + i, vA2, srd(S_X), sT0, 4 * i))

e("v_lshlrev_b32 v%d, 4, v%d" % (vA2, vLANE))
e("v_lshlrev_b32 v%d, 4, v0" % vA3)
LBL_Y = e.newlabel("L_clrY"); LBL_C = e.newlabel("L_clrD")
e("s_cmp_ge_u32 s2, 128")
e("s_cbranch_scc1 %s" % LBL_Y)
l1 = e.newlabel("L_c");
e("s_cmp_lg_u32 s%d, 0" % sW)
e("s_cbranch_scc1 %s" % l1)
e("s_lshl_b32 s%d, s2, 9" % sT1)
e("s_add_u32 s%d, s%d, %d" % (sT1, sT1, CP))
setexec(0xffffffff)
e("buffer_store_dwordx4 %s, v%d, %s, s%d offen sc1" % (vr(vCL, 4), vA2, srd(S_WS), sT1))
e("s_mov_b64 exec, -1")
e(l1 + ":")
e("s_branch %s" % LBL_C)
e(LBL_Y + ":")
e("s_sub_u32 s%d, s2, 128" % sT1)
e("s_lshl_b32 s%d, s%d, 15" % (sT2, sT1))
e("s_add_u32 s%d, s%d, %d" % (sT2, sT2, PART))
for i in range(4):
    e("buffer_store_dwordx4 %s, v%d, %s, s%d offen sc1" % (vr(vCL, 4), vA3, srd(S_WS), sT2))
    if i < 3: e("s_add_u32 s%d, s%d, 8192" % (sT2, sT2))
l2 = e.newlabel("L_c")
e("s_cmp_lg_u32 s%d, 0" % sW)
e("s_cbranch_scc1 %s" % l2)
e("s_lshl_b32 s%d, s%d, 8" % (sT2, sT1))
e("s_add_u32 s%d, s%d, %d" % (sT2, sT2, STAT))
setexec(0xffff)
e("buffer_store_dwordx4 %s, v%d, %s, s%d offen sc1" % (vr(vCL, 4), vA2, srd(S_WS), sT2))
e("s_mov_b64 exec, -1")
e(l2 + ":")
l3 = e.newlabel("L_c")
e("s_cmp_eq_u32 s%d, 0" % sISD)
e("s_cbranch_scc1 %s" % l3)
e("s_cmp_gt_u32 s%d, 2" % sW)
e("s_cbranch_scc1 %s" % l3)
e("s_mul_i32 s%d, s%d, 2560" % (sT2, sRD))
e("s_add_u32 s%d, s%d, %d" % (sT2, sT2, OP))
e("v_cmp_gt_u32 vcc, 160, v0")
e("s_mov_b64 exec, vcc")
e("buffer_store_dwordx4 %s, v%d, %s, s%d offen sc1" % (vr(vCL, 4), vA3, srd(S_WS), sT2))
e("s_mov_b64 exec, -1")
e(l3 + ":")
e(LBL_C + ":")
l4 = e.newlabel("L_c")
e("s_cmp_ge_u32 s2, 160")
e("s_cbranch_scc1 %s" % l4)
e("s_cmp_lg_u32 s%d, 1" % sW)
e("s_cbranch_scc1 %s" % l4)
e("s_mul_i32 s%d, s%d, 2560" % (sT2, sJ))
e("s_lshl_b32 s%d, s%d, 7" % (sT3, sH))
e("s_add_u32 s%d, s%d, s%d" % (sT2, sT2, sT3))
e("s_add_u32 s%d, s%d, %d" % (sT2, sT2, HP))
setexec(0xff)
e("buffer_store_dwordx4 %s, v%d, %s, s%d offen sc1" % (vr(vCL, 4), vA2, srd(S_WS), sT2))
e("s_mov_b64 exec, -1")
e(l4 + ":")
l5 = e.newlabel("L_c")
sLEAD = 59
e("s_mov_b32 s%d, 0" % sLEAD)
e("s_cmp_ge_u32 s2, 128")
e("s_cbranch_scc1 %s" % l5)
e("s_cmp_lg_u32 s%d, 7" % sW)
e("s_cbranch_scc1 %s" % l5)
e("s_and_b32 s%d, s%d, 7" % (sT2, sH))
e("s_cmp_lg_u32 s%d, s%d" % (sT2, sJ))
e("s_cbranch_scc1 %s" % l5)
e("s_mov_b32 s%d, 1" % sLEAD)
e("s_lshl_b32 s%d, s%d, 13" % (sT2, sH))
for i in range(8):
    e("buffer_store_dwordx4 %s, v%d, %s, s%d offen offset:%d sc1" % (vr(vCL, 4), vA2, srd(S_WS), sT2, (i & 3) * 1024))
    if i == 3: e("s_add_u32 s%d, s%d, 4096" % (sT2, sT2))
e("s_lshl_b32 s%d, s%d, 11" % (sT2, sH))
e("s_add_u32 s%d, s%d, %d" % (sT2, sT2, QA))
for i in range(2):
    e("buffer_store_dwordx4 %s, v%d, %s, s%d offen offset:%d sc1" % (vr(vCL, 4), vA2, srd(S_WS), sT2, i * 1024))
e(l5 + ":")

e("v_and_b32 v%d, 31, v%d" % (vA0, vLANE))
e("v_lshlrev_b32 v%d, 3, v%d" % (vA0, vA0))
e("v_lshl_add_u32 v%d, v%d, 13, v%d" % (vA0, vA1, vA0))
e("s_lshl_b32 s%d, s%d, 12" % (sT0, sT0))
e("s_lshl_b32 s%d, s%d, 8" % (sT1, sH))
e("s_add_u32 s%d, s%d, s%d" % (sT0, sT0, sT1))
for i in range(5):
    e("buffer_load_dwordx2 %s, v%d, %s, s%d offen" % (vr(vWQ + 2 * i, 2), vA0, srd(S_WQ), sT0))
    if i < 4: e("s_add_u32 s%d, s%d, 16384" % (sT0, sT0))
lB = e.newlabel("L_w47"); lC = e.newlabel("L_wdone")
e("s_cmp_ge_u32 s%d, 4" % sW)
e("s_cbranch_scc1 %s" % lB)
e("v_lshlrev_b32 v%d, 14, v%d" % (vA0, vG))
e("v_lshl_add_u32 v%d, v%d, 4, v%d" % (vA0, vN, vA0))
e("s_lshl_b32 s%d, s%d, 6" % (sT0, sJ))
e("s_lshl_b32 s%d, s%d, 4" % (sT2, sW))
e("s_add_u32 s%d, s%d, s%d" % (sT0, sT0, sT2))
e("s_lshl_b32 s%d, s%d, 13" % (sT0, sT0))
e("s_add_u32 s%d, s%d, s%d" % (sT0, sT0, sT1))
for i in range(4):
    e("buffer_load_dwordx4 %s, v%d, %s, s%d offen" % (vr(vWUK + 4 * i, 4), vA0, srd(S_WUK), sT0))
    if i < 3: e("s_add_u32 s%d, s%d, %d" % (sT0, sT0, 8192 if i % 2 == 0 else 57344))
e("s_waitcnt vmcnt(9)")
e("s_branch %s" % lC)
e(lB + ":")
lX = e.newlabel("L_w47x")
e("s_cmp_lt_u32 s2, 128")
e("s_cbranch_scc1 %s" % lX)
e("s_sub_u32 s%d, s2, 128" % sT0)
e("s_lshl_b32 s%d, s%d, 6" % (sT0, sT0))
e("s_sub_u32 s%d, s%d, 4" % (sT2, sW))
e("s_lshl_b32 s%d, s%d, 4" % (sT2, sT2))
e("s_add_u32 s%d, s%d, s%d" % (sT0, sT0, sT2))
e("s_lshl_b32 s%d, s%d, 10" % (sT0, sT0))
e("s_mul_i32 s%d, s%d, %d" % (sT2, sT2, RS))
e("s_add_u32 s%d, s%d, %d" % (sT2, sT2, L_CK))
for i in range(16):
    e("s_mov_b32 m0, s%d" % sT2)
    e("buffer_load_dwordx4 v%d, %s, s%d offen lds" % (vA2, srd(S_CKV), sT0))
    if i < 15:
        e("s_add_u32 s%d, s%d, 1024" % (sT0, sT0))
        e("s_add_u32 s%d, s%d, %d" % (sT2, sT2, RS))
e("s_waitcnt vmcnt(21)")
e("s_branch %s" % lC)
e(lX + ":")
e("s_waitcnt vmcnt(5)")
lL = e.newlabel("L_lead")
e("s_cmp_eq_u32 s%d, 0" % sLEAD)
e("s_cbranch_scc1 %s" % lL)
e("s_lshl_b32 s%d, s%d, 4" % (sT0, sH))
e("v_mov_b32 v%d, 1" % vA3)
setexec(0x1)
e("buffer_store_dword v%d, v%d, %s, s%d offen sc1" % (vA3, vA2, srd(S_DBG), sT0))
e("s_mov_b64 exec, -1")
e(lL + ":")
e(lC + ":")
stamp(1)
unpack(vT, vXF, 5)
vLM, vLS = vT + 24, vT + 25
layernorm_stats([vT + i for i in range(10)], 10, vLM, vLS)
for i in range(5):
    e("v_lshlrev_b32 v%d, 16, v%d" % (vXR + i, vXR + i))
    ln_apply(vXR + i, vLM, vLS)
stamp(2)
lB = e.newlabel("L_a1b"); lC = e.newlabel("L_a1c"); lX = e.newlabel("L_a1x")
e("s_cmp_ge_u32 s%d, 4" % sW)
e("s_cbranch_scc1 %s" % lB)
e("s_waitcnt vmcnt(4)")
e("s_branch %s" % lC)
e(lB + ":")
e("s_cmp_lt_u32 s2, 128")
e("s_cbranch_scc1 %s" % lX)
e("s_waitcnt vmcnt(16)")
e("s_branch %s" % lC)
e(lX + ":")
e("s_waitcnt vmcnt(0)")
e(lC + ":")
stamp(3)
acc = vT
for i in range(5):
    unpack(vT + 8, vWQ + 2 * i, 2)
    for k in range(4):
        if i == 0: e("v_mul_f32 v%d, v%d, v%d" % (acc + k, vXR + i, vT + 8 + k))
        else: e("v_fmac_f32 v%d, v%d, v%d" % (acc + k, vXR + i, vT + 8 + k))
e("v_lshlrev_b32 v%d, 4, v0" % vA0)
e("ds_write_b128 v%d, %s offset:%d" % (vA0, vr(acc, 4), L_RED))
e("s_waitcnt lgkmcnt(0)")
e("s_barrier")
lW = e.newlabel("L_a1w")
e("s_cmp_lg_u32 s%d, 0" % sW)
e("s_cbranch_scc1 %s" % lW)
e("v_lshlrev_b32 v%d, 3, v%d" % (vA0, vLANE))
for i in range(16):
    e("ds_read_b64 %s, v%d offset:%d" % (vr(vG0 + 2 * i, 2), vA0, L_RED + 512 * i))
lp = e.newlabel("L_fl"); ld = e.newlabel("L_fld")
e("s_mov_b32 s%d, 0" % sCNT)
e(lp + ":")
setexec(0xffff)
e("buffer_load_dword v%d, v%d, %s, 0 offen sc1" % (vA3, vA2, srd(S_DBG)))
e("s_waitcnt vmcnt(0)")
e("v_cmp_eq_u32 vcc, 0, v%d" % vA3)
e("s_mov_b64 exec, -1")
e("s_cbranch_vccz %s" % ld)
e("s_add_u32 s%d, s%d, 1" % (sCNT, sCNT))
e("s_cmp_gt_u32 s%d, %d" % (sCNT, SPIN))
e("s_cbranch_scc1 %s" % ld)
e("s_sleep 4")
e("s_branch %s" % lp)
e(ld + ":")
e("s_waitcnt lgkmcnt(0)")
for st in (8, 4, 2, 1):
    for i in range(st):
        for k in range(2):
            e("v_add_f32 v%d, v%d, v%d" % (vG0 + 2 * i + k, vG0 + 2 * i + k, vG0 + 2 * (i + st) + k))
e("v_min_u32 v%d, -2, v%d" % (vG0, vG0))
e("v_min_u32 v%d, -2, v%d" % (vG0 + 1, vG0 + 1))
e("s_lshl_b32 s%d, s2, 9" % sT0)
e("buffer_store_dwordx2 %s, v%d, %s, s%d offen sc1" % (vr(vG0, 2), vA0, srd(S_WS), sT0))
e(lW + ":")
e("s_barrier")
stamp(4)
lA2 = e.newlabel("L_a2skip")
e("s_cmp_ge_u32 s%d, 4" % sW)
e("s_cbranch_scc1 %s" % lA2)
e("v_lshlrev_b32 v%d, 10, v%d" % (vA0, vG))
e("v_lshl_add_u32 v%d, v%d, 5, v%d" % (vA0, vN, vA0))
e("s_lshl_b32 s%d, s%d, 12" % (sT0, sH))
poll([("buffer_load_dwordx4 %s, v%d, %s, s%d offen offset:%d sc1" % (vr(vG0 + 4 * k, 4), vA0, srd(S_WS), sT0, (k >> 1) * 512 + (k & 1) * 16), vG0 + 4 * k, 4) for k in range(4)])
stamp(5)
q = vT
for k in range(8):
    e("v_add_f32 v%d, v%d, v%d" % (q + k, vG0 + k, vG0 + 8 + k))
for k in range(8):
    allred_g(q + k, vT + 8 + k)
for k in range(8):
    rbf(q + k, q + k)
r = vT + 16
for i in range(4):
    unpack(vT + 8, vWUK + 4 * i, 4)
    e("v_mul_f32 v%d, v%d, v%d" % (r + i, q, vT + 8))
    for k in range(1, 8):
        e("v_fmac_f32 v%d, v%d, v%d" % (r + i, q + k, vT + 8 + k))
for sh in (1, 2, 4, 8):
    for i in range(4):
        e("v_add_f32_dpp v%d, v%d, v%d row_shr:%d row_mask:0xf bank_mask:0xf bound_ctrl:0" % (r + i, r + i, r + i, sh))
e("v_cvt_pk_bf16_f32 v%d, v%d, v%d" % (r, r, r + 1))
e("v_cvt_pk_bf16_f32 v%d, v%d, v%d" % (r + 1, r + 2, r + 3))
e("v_min_u32 v%d, -2, v%d" % (r, r))
e("v_min_u32 v%d, -2, v%d" % (r + 1, r + 1))
e("v_lshlrev_b32 v%d, 2, v%d" % (vA0, vG))
e("s_lshl_b32 s%d, s%d, 5" % (sT0, sW))
e("v_add_u32 v%d, s%d, v%d" % (vA0, sT0, vA0))
setexec(0x8000800080008000)
e("ds_write_b32 v%d, v%d offset:%d" % (vA0, r, L_RED2))
e("ds_write_b32 v%d, v%d offset:%d" % (vA0, r + 1, L_RED2 + 16))
e("s_mov_b64 exec, -1")
e("s_waitcnt lgkmcnt(0)")
e(lA2 + ":")
e("s_barrier")
lP = e.newlabel("L_a2pub")
e("s_cmp_lg_u32 s%d, 0" % sW)
e("s_cbranch_scc1 %s" % lP)
e("ds_read_b128 %s, v%d offset:%d" % (vr(vG0, 4), vA2, L_RED2))
e("s_lshl_b32 s%d, s2, 7" % sT0)
e("s_add_u32 s%d, s%d, %d" % (sT0, sT0, QA))
e("s_waitcnt lgkmcnt(0)")
setexec(0xff)
e("buffer_store_dwordx4 %s, v%d, %s, s%d offen sc1" % (vr(vG0, 4), vA2, srd(S_WS), sT0))
e("s_mov_b64 exec, -1")
e(lP + ":")
stamp(6)
e("s_cmp_ge_u32 s2, 128")
e("s_cbranch_scc1 L_stageB")

def c2_weight_loads():
    e("v_lshrrev_b32 v%d, 2, v%d" % (vA0, vLANE))
    e("v_mul_u32_u24 v%d, 5120, v%d" % (vA0, vA0))
    e("v_and_b32 v%d, 3, v%d" % (vA1, vLANE))
    e("v_lshl_add_u32 v%d, v%d, 4, v%d" % (vA0, vA1, vA0))
    e("s_lshl_b32 s%d, s%d, 9" % (sT0, sJ))
    e("s_lshl_b32 s%d, s%d, 6" % (sT1, sW))
    e("s_add_u32 s%d, s%d, s%d" % (sT0, sT0, sT1))
    e("s_mul_i32 s%d, s%d, 1280" % (sT0, sT0))
    e("s_lshl_b32 s%d, s%d, 6" % (sT1, sH))
    e("s_add_u32 s%d, s%d, s%d" % (sT0, sT0, sT1))
    for i in range(4):
        e("buffer_load_dwordx4 %s, v%d, %s, s%d offen offset:%d" % (vr(vW + 16 + 4 * i, 4), vA0, srd(S_WO), sT0, 1280 * i))

sH1, sCQ = 88, 89
e("s_lshr_b32 s%d, s2, 2" % sH1)
e("s_and_b32 s%d, s2, 3" % sCQ)
e("v_lshlrev_b32 v%d, 13, v%d" % (vA0, vG))
e("v_lshl_add_u32 v%d, v%d, 4, v%d" % (vA0, vN, vA0))
e("s_lshl_b32 s%d, s%d, 7" % (sT0, sCQ))
e("s_lshl_b32 s%d, s%d, 4" % (sT1, sW))
e("s_add_u32 s%d, s%d, s%d" % (sT0, sT0, sT1))
e("s_lshl_b32 s%d, s%d, 13" % (sT0, sT0))
e("s_lshl_b32 s%d, s%d, 8" % (sT1, sH1))
e("s_add_u32 s%d, s%d, s%d" % (sT0, sT0, sT1))
for i in range(4):
    e("buffer_load_dwordx4 %s, v%d, %s, s%d offen" % (vr(vW + 4 * i, 4), vA0, srd(S_WUV), sT0))
    if i < 3: e("s_add_u32 s%d, s%d, 32768" % (sT0, sT0))
c2_weight_loads()
lq = e.newlabel("L_xq")
e("s_cmp_ge_u32 s%d, 4" % sW)
e("s_cbranch_scc1 %s" % lq)
e("v_lshlrev_b32 v%d, 7, v0" % vA0)
e("s_mov_b32 s%d, %d" % (sT0, QA))
poll([("buffer_load_dword v%d, v%d, %s, s%d offen sc1" % (vG0, vA0, srd(S_WS), sT0), vG0, 1)], sleep=2)
e(lq + ":")
e("s_waitcnt vmcnt(0)")
unpack(vU, vW, 16)
unpack(vU + 32, vW + 16, 16)
e("s_barrier")
stamp(7)
e("v_lshlrev_b32 v%d, 15, v%d" % (vA0, vG))
e("v_lshl_add_u32 v%d, v%d, 4, v%d" % (vA0, vN, vA0))
e("s_lshl_b32 s%d, s%d, 19" % (sT0, sW))
e("s_lshl_b32 s%d, s2, 8" % sT1)
e("s_add_u32 s%d, s%d, s%d" % (sT0, sT0, sT1))
e("s_add_u32 s%d, s%d, %d" % (sT0, sT0, PART))
e("s_add_u32 s%d, s%d, 0x20000" % (sT1, sT0))
e("s_add_u32 s%d, s%d, 0x40000" % (sT2, sT0))
e("s_add_u32 s%d, s%d, 0x60000" % (sT3, sT0))
e("v_lshlrev_b32 v%d, 8, v%d" % (vA1, vLANE))
sS0, sS1 = 90, 91
e("s_lshl_b32 s%d, s%d, 3" % (sS0, sH1))
e("s_add_u32 s%d, s%d, %d" % (sS0, sS0, STAT))
e("s_add_u32 s%d, s%d, 16384" % (sS1, sS0))
poll([("buffer_load_dwordx4 %s, v%d, %s, s%d offen sc1" % (vr(vG0 + 4 * k, 4), vA0, srd(S_WS), [sT0, sT1, sT2, sT3][k]), vG0 + 4 * k, 4) for k in range(4)]
     + [("buffer_load_dwordx2 %s, v%d, %s, s%d offen sc1" % (vr(vG0 + 16 + 2 * k, 2), vA1, srd(S_WS), [sS0, sS1][k]), vG0 + 16 + 2 * k, 2) for k in range(2)], sleep=2)
stamp(8)
mA, lA, mB, lB_ = vG0 + 16, vG0 + 17, vG0 + 18, vG0 + 19
e("v_max_f32 v%d, v%d, v%d" % (vT, mA, mB))
wave_max(vT, sT0)
e("s_mov_b32 s%d, 0x3fb8aa3b" % sT1)
e("v_subrev_f32 v%d, s%d, v%d" % (mA, sT0, mA))
e("v_subrev_f32 v%d, s%d, v%d" % (mB, sT0, mB))
e("v_mul_f32 v%d, s%d, v%d" % (mA, sT1, mA))
e("v_mul_f32 v%d, s%d, v%d" % (mB, sT1, mB))
e("v_exp_f32 v%d, v%d" % (mA, mA))
e("v_exp_f32 v%d, v%d" % (mB, mB))
e("v_mul_f32 v%d, v%d, v%d" % (vT, mA, lA))
e("v_fmac_f32 v%d, v%d, v%d" % (vT, mB, lB_))
wave_sum(vT, sT2)
e("s_cmp_ge_u32 s%d, 4" % sW)
e("s_cselect_b64 vcc, -1, 0")
e("v_cndmask_b32 v%d, v%d, v%d, vcc" % (mA, mA, mB))
e("s_and_b32 s%d, s%d, 3" % (sT0, sW))
e("s_lshl_b32 s%d, s%d, 6" % (sT0, sT0))
e("v_lshlrev_b32 v%d, 2, v%d" % (vA0, vG))
e("v_add_u32 v%d, s%d, v%d" % (vA0, sT0, vA0))
for i in range(4):
    e("ds_bpermute_b32 v%d, v%d, v%d offset:%d" % (vT + 16 + i, vA0, mA, 16 * i))
e("v_mov_b32 v%d, s%d" % (vT + 20, sT2))
e("v_rcp_f32 v%d, v%d" % (vT + 20, vT + 20))
e("s_waitcnt lgkmcnt(0)")
for i in range(4):
    unpack(vT + 8, vG0 + 4 * i, 4)
    for k in range(8):
        if i == 0: e("v_mul_f32 v%d, v%d, v%d" % (vT + k, vT + 16, vT + 8 + k))
        else: e("v_fmac_f32 v%d, v%d, v%d" % (vT + k, vT + 16 + i, vT + 8 + k))
rs_8to2(vT)
e("v_lshlrev_b32 v%d, 10, v%d" % (vA0, vG))
e("v_lshl_add_u32 v%d, v%d, 5, v%d" % (vA0, vN, vA0))
e("s_lshl_b32 s%d, s%d, 2" % (sT0, sW))
e("v_add_u32 v%d, s%d, v%d" % (vA0, sT0, vA0))
e("v_mul_f32 v%d, v%d, v%d" % (vT, vT, vT + 20))
e("v_mul_f32 v%d, v%d, v%d" % (vT + 1, vT + 1, vT + 20))
e("ds_write_b32 v%d, v%d offset:%d" % (vA0, vT, L_RED))
e("ds_write_b32 v%d, v%d offset:%d" % (vA0, vT + 1, L_RED + 512))
e("s_waitcnt lgkmcnt(0)")
e("s_barrier")
e("v_lshlrev_b32 v%d, 5, v%d" % (vA0, vG))
e("s_lshl_b32 s%d, s%d, 9" % (sT0, sW))
e("v_add_u32 v%d, s%d, v%d" % (vA0, sT0, vA0))
for i in range(4):
    for u in range(2):
        e("ds_read_b128 %s, v%d offset:%d" % (vr(vG0 + 8 * i + 4 * u, 4), vA0, L_RED + 128 * i + 16 * u))
e("s_waitcnt lgkmcnt(0)")
for i in range(4):
    b = vG0 + 8 * i
    for st in (4, 2, 1):
        for k in range(st):
            e("v_add_f32 v%d, v%d, v%d" % (b + k, b + k, b + k + st))
for i in range(4):
    for k in range(8):
        if i == 0: e("v_mul_f32 v%d, v%d, v%d" % (vT + k, vG0, vU + k))
        else: e("v_fmac_f32 v%d, v%d, v%d" % (vT + k, vG0 + 8 * i, vU + 8 * i + k))
rs_8to2(vT)
e("v_lshlrev_b32 v%d, 3, v%d" % (vA0, vG))
e("v_lshl_add_u32 v%d, v%d, 5, v%d" % (vA0, vN, vA0))
e("v_add_u32 v%d, s%d, v%d" % (vA0, sT0, vA0))
e("ds_write_b64 v%d, %s offset:%d" % (vA0, vr(vT, 2), L_RED2))
e("s_waitcnt lgkmcnt(0)")
e("s_barrier")
lc = e.newlabel("L_c1pub")
e("s_cmp_lg_u32 s%d, 0" % sW)
e("s_cbranch_scc1 %s" % lc)
e("v_lshlrev_b32 v%d, 3, v%d" % (vA0, vLANE))
for i in range(8):
    e("ds_read_b64 %s, v%d offset:%d" % (vr(vG0 + 2 * i, 2), vA0, L_RED2 + 512 * i))
e("s_waitcnt lgkmcnt(0)")
for st in (4, 2, 1):
    for i in range(st):
        for k in range(2):
            e("v_add_f32 v%d, v%d, v%d" % (vG0 + 2 * i + k, vG0 + 2 * i + k, vG0 + 2 * (i + st) + k))
e("v_min_u32 v%d, -2, v%d" % (vG0, vG0))
e("v_min_u32 v%d, -2, v%d" % (vG0 + 1, vG0 + 1))
e("s_lshl_b32 s%d, s2, 9" % sT0)
e("s_add_u32 s%d, s%d, %d" % (sT0, sT0, CP))
e("buffer_store_dwordx2 %s, v%d, %s, s%d offen sc1" % (vr(vG0, 2), vA0, srd(S_WS), sT0))
e(lc + ":")
stamp(9)
e("s_branch L_stageC2")

e("L_stageB:")
e("s_waitcnt vmcnt(0)")
e("s_barrier")
stamp(7)
sKT, sHF = 88, 89
e("s_and_b32 s%d, s%d, 3" % (sKT, sW))
e("s_lshr_b32 s%d, s%d, 2" % (sHF, sW))
e("v_mul_u32_u24 v%d, %d, v%d" % (vA0, RS, vN))
e("v_lshl_add_u32 v%d, v%d, 4, v%d" % (vA0, vG, vA0))
e("s_mul_i32 s%d, s%d, %d" % (sT0, sKT, 16 * RS))
e("v_add_u32 v%d, s%d, v%d" % (vA1, sT0, vA0))
for ks in range(16):
    e("ds_read_b128 %s, v%d offset:%d" % (vr(vCA + 4 * ks, 4), vA1, L_CK + 64 * ks))
    if ks % 8 == 7: e("s_waitcnt lgkmcnt(0)")
e("v_lshrrev_b32 v%d, 2, v%d" % (vA1, vN))
e("v_lshl_add_u32 v%d, v%d, 3, v%d" % (vA1, vG, vA1))
e("v_mul_u32_u24 v%d, %d, v%d" % (vA1, RS, vA1))
e("v_and_b32 v%d, 3, v%d" % (vA3, vN))
e("v_lshl_add_u32 v%d, v%d, 3, v%d" % (vA1, vA3, vA1))
e("s_lshl_b32 s%d, s%d, 8" % (sT0, sKT))
e("v_add_u32 v%d, s%d, v%d" % (vA1, sT0, vA1))
cnt = 0
for t in range(8):
    for kk in range(2):
        for u in range(2):
            e("ds_read_b64_tr_b16 %s, v%d offset:%d" % (vr(vCB + 8 * t + 4 * kk + 2 * u, 2), vA1, L_CK + (32 * kk + 4 * u) * RS + 32 * t))
            cnt += 1
            if cnt % 8 == 0: e("s_waitcnt lgkmcnt(0)")
e("s_lshl_b32 s%d, s%d, 10" % (sT0, sW))
e("s_add_u32 s%d, s%d, %d" % (sT0, sT0, QA))
e("s_add_u32 s%d, s%d, 8192" % (sT1, sT0))
e("s_add_u32 s%d, s%d, 16384" % (sT2, sT0))
e("s_add_u32 s%d, s%d, 24576" % (sT3, sT0))
poll([("buffer_load_dwordx4 %s, v%d, %s, s%d offen sc1" % (vr(vG0 + 4 * k, 4), vA2, srd(S_WS), [sT0, sT1, sT2, sT3][k]), vG0 + 4 * k, 4) for k in range(4)])
stamp(8)
e("s_mul_i32 s%d, s%d, %d" % (sT0, sW, RS))
e("v_add_u32 v%d, s%d, v%d" % (vA1, sT0, vA2))
e("v_add_u32 v%d, %d, v%d" % (vA1, L_QS, vA1))
for k in range(4):
    e("ds_write_b128 v%d, %s offset:%d" % (vA1, vr(vG0 + 4 * k, 4), 8 * RS * k))
e("s_waitcnt lgkmcnt(0)")
e("s_barrier")
e("s_mul_i32 s%d, s%d, %d" % (sT0, sHF, 16 * RS))
e("s_add_u32 s%d, s%d, %d" % (sT0, sT0, L_QS))
e("v_add_u32 v%d, s%d, v%d" % (vA1, sT0, vA0))
vQB = vG0
sacc = vT
for half in range(2):
    for k in range(8):
        e("ds_read_b128 %s, v%d offset:%d" % (vr(vQB + 4 * k, 4), vA1, 64 * (8 * half + k)))
    for k in range(8):
        ks = 8 * half + k
        e("s_waitcnt lgkmcnt(%d)" % (7 - k))
        a = sacc + 4 * (k & 1)
        c = "0" if ks < 2 else vr(a, 4)
        e("v_mfma_f32_16x16x32_bf16 %s, %s, %s, %s" % (vr(a, 4), vr(vCA + 4 * ks, 4), vr(vQB + 4 * k, 4), c))
for i in range(4):
    e("v_add_f32 v%d, v%d, v%d" % (sacc + i, sacc + i, sacc + 4 + i))
e("s_mov_b32 s%d, 0x3db504f3" % sT0)
for i in range(4):
    rbf(sacc + i, sacc + i)
    e("v_mul_f32 v%d, s%d, v%d" % (sacc + i, sT0, sacc + i))
e("v_cvt_pk_bf16_f32 v%d, v%d, v%d" % (sacc, sacc, sacc + 1))
e("v_cvt_pk_bf16_f32 v%d, v%d, v%d" % (sacc + 1, sacc + 2, sacc + 3))
e("v_mul_u32_u24 v%d, %d, v%d" % (vA1, SSR, vN))
e("s_mul_i32 s%d, s%d, %d" % (sT0, sHF, 16 * SSR))
e("s_add_u32 s%d, s%d, %d" % (sT0, sT0, L_SS))
e("v_add_u32 v%d, s%d, v%d" % (vA1, sT0, vA1))
e("v_lshl_add_u32 v%d, v%d, 3, v%d" % (vA3, vG, vA1))
e("s_lshl_b32 s%d, s%d, 5" % (sT0, sKT))
e("v_add_u32 v%d, s%d, v%d" % (vA3, sT0, vA3))
e("ds_write_b64 v%d, %s" % (vA3, vr(sacc, 2)))
e("s_waitcnt lgkmcnt(0)")
e("s_barrier")
stamp(9)
e("v_lshl_add_u32 v%d, v%d, 4, v%d" % (vA3, vG, vA1))
vP = vWUK
e("ds_read_b128 %s, v%d" % (vr(vP, 4), vA3))
e("ds_read_b128 %s, v%d offset:64" % (vr(vP + 4, 4), vA3))
e("s_waitcnt lgkmcnt(0)")
sv = vT
unpack(sv, vP, 8)
mx = vT + 16
e("v_max3_f32 v%d, v%d, v%d, v%d" % (mx, sv, sv + 1, sv + 2))
for k in range(3, 15, 2):
    e("v_max3_f32 v%d, v%d, v%d, v%d" % (mx, mx, sv + k, sv + k + 1))
e("v_max_f32 v%d, v%d, v%d" % (mx, mx, sv + 15))
allred_g(mx, vT + 17, "v_max_f32")
e("s_mov_b32 s%d, 0x3fb8aa3b" % sT1)
e("v_mul_f32 v%d, s%d, v%d" % (vT + 18, sT1, mx))
for k in range(16):
    e("v_fma_f32 v%d, v%d, s%d, -v%d" % (sv + k, sv + k, sT1, vT + 18))
for k in range(16):
    e("v_exp_f32 v%d, v%d" % (sv + k, sv + k))
for k in range(8):
    e("v_cvt_pk_bf16_f32 v%d, v%d, v%d" % (vP + k, sv + 2 * k, sv + 2 * k + 1))
for t in range(8):
    for kk in range(2):
        a = vACC + 4 * t
        e("v_mfma_f32_16x16x32_bf16 %s, %s, %s, %s" % (vr(a, 4), vr(vP + 4 * kk, 4), vr(vCB + 8 * t + 4 * kk, 4), "0" if kk == 0 else vr(a, 4)))
ls = vT + 17
e("v_add_f32 v%d, v%d, v%d" % (ls, sv, sv + 1))
for k in range(2, 16):
    e("v_add_f32 v%d, v%d, v%d" % (ls, ls, sv + k))
allred_g(ls, vT + 18)
e("v_min_u32 v%d, -2, v%d" % (mx, mx))
e("v_min_u32 v%d, -2, v%d" % (ls, ls))
e("v_lshlrev_b32 v%d, 12, v%d" % (vA1, vG))
e("v_lshl_add_u32 v%d, v%d, 4, v%d" % (vA1, vN, vA1))
e("s_sub_u32 s%d, s2, 128" % sT2)
e("s_lshl_b32 s%d, s%d, 15" % (sT0, sT2))
e("s_lshl_b32 s%d, s%d, 14" % (sT1, sHF))
e("s_add_u32 s%d, s%d, s%d" % (sT0, sT0, sT1))
e("s_lshl_b32 s%d, s%d, 8" % (sT1, sKT))
e("s_add_u32 s%d, s%d, s%d" % (sT0, sT0, sT1))
e("s_add_u32 s%d, s%d, %d" % (sT0, sT0, PART))
for i in range(4):
    o = vT + 4 * (i & 1) if False else vCA + 4 * i
    for k in range(4):
        e("v_cvt_pk_bf16_f32 v%d, v%d, v%d" % (o + k, vACC + 4 * (2 * k) + i, vACC + 4 * (2 * k + 1) + i))
        e("v_min_u32 v%d, -2, v%d" % (o + k, o + k))
    e("buffer_store_dwordx4 %s, v%d, %s, s%d offen offset:%d sc1" % (vr(o, 4), vA1, srd(S_WS), sT0, 1024 * i))
ls_ = e.newlabel("L_st")
e("s_cmp_lg_u32 s%d, 0" % sKT)
e("s_cbranch_scc1 %s" % ls_)
e("s_lshl_b32 s%d, s%d, 8" % (sT0, sT2))
e("s_lshl_b32 s%d, s%d, 7" % (sT1, sHF))
e("s_add_u32 s%d, s%d, s%d" % (sT0, sT0, sT1))
e("s_add_u32 s%d, s%d, %d" % (sT0, sT0, STAT))
e("v_lshlrev_b32 v%d, 3, v%d" % (vA1, vN))
setexec(0xffff)
e("buffer_store_dwordx2 %s, v%d, %s, s%d offen sc1" % (vr(mx, 2), vA1, srd(S_WS), sT0))
e("s_mov_b64 exec, -1")
e(ls_ + ":")
stamp(10)
vW1, vW2 = 216, 226
vU1, vU2 = 120, 140
ld = e.newlabel("L_noD")
e("s_cmp_eq_u32 s%d, 0" % sISD)
e("s_cbranch_scc1 %s" % ld)
e("v_lshrrev_b32 v%d, 2, v%d" % (vA0, vLANE))
e("v_mul_u32_u24 v%d, 3456, v%d" % (vA0, vA0))
e("v_and_b32 v%d, 3, v%d" % (vA1, vLANE))
e("v_lshl_add_u32 v%d, v%d, 3, v%d" % (vA0, vA1, vA0))
e("s_mul_i32 s%d, s%d, %d" % (sT0, sW, 80 * 3456))
e("s_lshl_b32 s%d, s%d, 5" % (sT1, sRD))
e("s_add_u32 s%d, s%d, s%d" % (sT0, sT0, sT1))
for i in range(5):
    e("buffer_load_dwordx2 %s, v%d, %s, s%d offen" % (vr(vW1 + 2 * i, 2), vA0, srd(S_W1), sT0))
    if i < 4: e("s_add_u32 s%d, s%d, %d" % (sT0, sT0, 16 * 3456))
e("v_lshlrev_b32 v%d, 2, v0" % vA0)
e("s_mul_i32 s%d, s%d, %d" % (sT0, sRD, 16 * 1280))
lw = e.newlabel("L_now2")
e("s_cmp_ge_u32 s%d, 5" % sW)
e("s_cbranch_scc1 %s" % lw)
for r in range(16):
    e("buffer_load_dword v%d, v%d, %s, s%d offen offset:%d" % (vW2 + r, vA0, srd(S_W2), sT0, (r % 3) * 1280))
    if r % 3 == 2: e("s_add_u32 s%d, s%d, 3840" % (sT0, sT0))
e(lw + ":")
e(ld + ":")
e("s_cmp_ge_u32 s2, 160")
e("s_cbranch_scc1 L_stageD")
c2_weight_loads()
e("s_waitcnt vmcnt(0)")
unpack(vU + 32, vW + 16, 16)

e("L_stageC2:")
e("v_and_b32 v%d, 3, v%d" % (vA1, vLANE))
e("v_lshlrev_b32 v%d, 9, v%d" % (vA0, vA1))
e("v_and_b32 v%d, 0x3c, v%d" % (vA1, vLANE))
e("v_lshl_add_u32 v%d, v%d, 2, v%d" % (vA0, vA1, vA0))
e("s_lshl_b32 s%d, s%d, 13" % (sT0, sJ))
e("s_lshr_b32 s%d, s%d, 1" % (sT1, sW))
e("s_lshl_b32 s%d, s%d, 11" % (sT1, sT1))
e("s_add_u32 s%d, s%d, s%d" % (sT0, sT0, sT1))
e("s_and_b32 s%d, s%d, 1" % (sT1, sW))
e("s_lshl_b32 s%d, s%d, 8" % (sT1, sT1))
e("s_add_u32 s%d, s%d, s%d" % (sT0, sT0, sT1))
e("s_add_u32 s%d, s%d, %d" % (sT0, sT0, CP))
poll([("buffer_load_dwordx4 %s, v%d, %s, s%d offen sc1" % (vr(vG0, 4), vA0, srd(S_WS), sT0), vG0, 4)], sleep=2)
stamp(11)
for qp in ("[1,0,3,2]", "[2,3,0,1]"):
    for i in range(4):
        e("v_add_f32_dpp v%d, v%d, v%d quad_perm:%s row_mask:0xf bank_mask:0xf" % (vG0 + 4 + i, vG0 + i, vG0 + i, qp))
    for i in range(4):
        e("v_mov_b32 v%d, v%d" % (vG0 + i, vG0 + 4 + i))
for i in range(4):
    rbf(vG0 + i, vG0 + i)
for i in range(4):
    for k in range(8):
        if i == 0: e("v_mul_f32 v%d, v%d, v%d" % (vT + k, vG0, vU + 32 + k))
        else: e("v_fmac_f32 v%d, v%d, v%d" % (vT + k, vG0 + i, vU + 32 + 8 * i + k))
rs_8to2(vT)
for rot in (8, 4):
    for k in range(2):
        e("v_add_f32_dpp v%d, v%d, v%d row_ror:%d row_mask:0xf bank_mask:0xf" % (vT + 2 + k, vT + k, vT + k, rot))
    for k in range(2):
        e("v_mov_b32 v%d, v%d" % (vT + k, vT + 2 + k))
e("v_and_b32 v%d, 3, v%d" % (vA1, vLANE))
e("v_lshlrev_b32 v%d, 5, v%d" % (vA1, vA1))
e("v_lshl_add_u32 v%d, v%d, 3, v%d" % (vA1, vG, vA1))
e("s_lshl_b32 s%d, s%d, 7" % (sT0, sW))
e("v_add_u32 v%d, s%d, v%d" % (vA1, sT0, vA1))
e("s_barrier")
setexec(0xf000f000f000f)
e("ds_write_b64 v%d, %s offset:%d" % (vA1, vr(vT, 2), L_RED))
e("s_mov_b64 exec, -1")
e("s_waitcnt lgkmcnt(0)")
e("s_barrier")
lc = e.newlabel("L_c2pub")
e("s_cmp_lg_u32 s%d, 0" % sW)
e("s_cbranch_scc1 %s" % lc)
e("v_lshlrev_b32 v%d, 2, v%d" % (vA0, vLANE))
setexec(0xffffffff)
for i in range(8):
    e("ds_read_b32 v%d, v%d offset:%d" % (vG0 + i, vA0, L_RED + 128 * i))
e("s_waitcnt lgkmcnt(0)")
for st in (4, 2, 1):
    for i in range(st):
        e("v_add_f32 v%d, v%d, v%d" % (vG0 + i, vG0 + i, vG0 + i + st))
e("v_min_u32 v%d, -2, v%d" % (vG0, vG0))
e("s_mul_i32 s%d, s%d, 2560" % (sT0, sJ))
e("s_lshl_b32 s%d, s%d, 7" % (sT1, sH))
e("s_add_u32 s%d, s%d, s%d" % (sT0, sT0, sT1))
e("s_add_u32 s%d, s%d, %d" % (sT0, sT0, HP))
e("buffer_store_dword v%d, v%d, %s, s%d offen sc1" % (vG0, vA0, srd(S_WS), sT0))
e("s_mov_b64 exec, -1")
e(lc + ":")
stamp(12)

e("L_stageD:")
e("s_cmp_eq_u32 s%d, 0" % sISD)
e("s_cbranch_scc1 L_fin")
e("s_waitcnt vmcnt(0)")
vU1, vU2 = 120, 140
unpack(vU1, vW1, 10)
unpack(vU2, vW2, 16)
lh = e.newlabel("L_dh")
e("s_cmp_ge_u32 s%d, 5" % sW)
e("s_cbranch_scc1 %s" % lh)
e("v_lshlrev_b32 v%d, 2, v0" % vA0)
e("buffer_load_dword v%d, v%d, %s, 0 offen" % (vXF, vA0, srd(S_X)))
e("v_lshlrev_b32 v%d, 3, v0" % vA0)
e("s_mov_b32 s%d, %d" % (sT0, HP))
e("s_mov_b32 s%d, %d" % (sT1, HP + 2 * 2560))
e("s_mov_b32 s%d, %d" % (sT2, HP + 4 * 2560))
e("s_mov_b32 s%d, %d" % (sT3, HP + 6 * 2560))
poll([("buffer_load_dwordx2 %s, v%d, %s, s%d offen offset:%d sc1" % (vr(vG0 + 2 * k, 2), vA0, srd(S_WS), [sT0, sT1, sT2, sT3][k >> 1], (k & 1) * 2560), vG0 + 2 * k, 2) for k in range(8)], sleep=2)
for st in (4, 2, 1):
    for i in range(st):
        for k in range(2):
            e("v_add_f32 v%d, v%d, v%d" % (vG0 + 2 * i + k, vG0 + 2 * i + k, vG0 + 2 * (i + st) + k))
unpack(vT, vXF, 1)
for k in range(2):
    rbf(vG0 + k, vG0 + k)
    e("v_add_f32 v%d, v%d, v%d" % (vG0 + k, vG0 + k, vT + k))
    rbf(vG0 + k, vG0 + k)
e("ds_write_b64 v%d, %s offset:%d" % (vA0, vr(vG0, 2), L_H))
e("s_waitcnt lgkmcnt(0)")
e(lh + ":")
e("s_barrier")
stamp(13)
e("v_lshlrev_b32 v%d, 3, v%d" % (vA0, vLANE))
for i in range(5):
    e("ds_read_b64 %s, v%d offset:%d" % (vr(vT + 2 * i, 2), vA0, L_H + 512 * i))
e("v_lshrrev_b32 v%d, 2, v%d" % (vA1, vLANE))
e("v_lshlrev_b32 v%d, 2, v%d" % (vA1, vA1))
e("s_mul_i32 s%d, s%d, 320" % (sT0, sW))
e("v_add_u32 v%d, s%d, v%d" % (vA1, sT0, vA1))
for i in range(5):
    e("ds_read_b32 v%d, v%d offset:%d" % (vXR + i, vA1, L_H + 64 * i))
e("s_waitcnt lgkmcnt(0)")
layernorm_stats([vT + i for i in range(10)], 10, vLM, vLS)
for i in range(5):
    ln_apply(vXR + i, vLM, vLS)
for i in range(5):
    for k in range(4):
        if i == 0: e("v_mul_f32 v%d, v%d, v%d" % (vT + k, vXR, vU1 + k))
        else: e("v_fmac_f32 v%d, v%d, v%d" % (vT + k, vXR + i, vU1 + 4 * i + k))
rs_4to1(vT)
for rot in (8, 4):
    e("v_add_f32_dpp v%d, v%d, v%d row_ror:%d row_mask:0xf bank_mask:0xf" % (vT + 1, vT, vT, rot))
    e("v_mov_b32 v%d, v%d" % (vT, vT + 1))
e("v_and_b32 v%d, 3, v%d" % (vA1, vLANE))
e("v_lshlrev_b32 v%d, 4, v%d" % (vA1, vA1))
e("v_lshl_add_u32 v%d, v%d, 2, v%d" % (vA1, vG, vA1))
e("s_lshl_b32 s%d, s%d, 6" % (sT0, sW))
e("v_add_u32 v%d, s%d, v%d" % (vA1, sT0, vA1))
setexec(0xf000f000f000f)
e("ds_write_b32 v%d, v%d offset:%d" % (vA1, vT, L_RED2))
e("s_mov_b64 exec, -1")
e("s_waitcnt lgkmcnt(0)")
e("s_barrier")
ld2 = e.newlabel("L_d2")
e("s_cmp_ge_u32 s%d, 5" % sW)
e("s_cbranch_scc1 %s" % ld2)
e("v_lshlrev_b32 v%d, 7, v%d" % (vA1, vG))
e("v_lshl_add_u32 v%d, v%d, 2, v%d" % (vA1, vN, vA1))
e("ds_read_b32 v%d, v%d offset:%d" % (vT, vA1, L_RED2))
e("ds_read_b32 v%d, v%d offset:%d" % (vT + 1, vA1, L_RED2 + 64))
e("s_waitcnt lgkmcnt(0)")
e("v_add_f32 v%d, v%d, v%d" % (vT, vT, vT + 1))
allred_g(vT, vT + 1)
rbf(vT, vT)
e("v_max_f32 v%d, 0, v%d" % (vT, vT))
for r in range(16):
    e("v_readlane_b32 s%d, v%d, %d" % (sF + r, vT, r))
for r in range(16):
    for k in range(2):
        if r == 0: e("v_mul_f32 v%d, s%d, v%d" % (vT + 2 + k, sF, vU2 + k))
        else: e("v_fmac_f32 v%d, s%d, v%d" % (vT + 2 + k, sF + r, vU2 + 2 * r + k))
e("v_min_u32 v%d, -2, v%d" % (vT + 2, vT + 2))
e("v_min_u32 v%d, -2, v%d" % (vT + 3, vT + 3))
e("v_lshlrev_b32 v%d, 3, v0" % vA0)
e("s_mul_i32 s%d, s%d, 2560" % (sT0, sRD))
e("s_add_u32 s%d, s%d, %d" % (sT0, sT0, OP))
e("buffer_store_dwordx2 %s, v%d, %s, s%d offen sc1" % (vr(vT + 2, 2), vA0, srd(S_WS), sT0))
e(ld2 + ":")
stamp(14)
e("s_cmp_eq_u32 s%d, 0" % sFIN)
e("s_cbranch_scc1 L_fin")
e("v_lshrrev_b32 v%d, 3, v%d" % (vA1, vLANE))
e("v_mul_u32_u24 v%d, 2560, v%d" % (vA0, vA1))
e("v_and_b32 v%d, 7, v%d" % (vA3, vLANE))
e("v_lshl_add_u32 v%d, v%d, 4, v%d" % (vA0, vA3, vA0))
e("s_mul_i32 s%d, s%d, %d" % (sT0, sW, 16 * 2560))
e("s_lshl_b32 s%d, s%d, 5" % (sT1, sRD))
e("s_add_u32 s%d, s%d, s%d" % (sT0, sT0, sT1))
e("s_add_u32 s%d, s%d, %d" % (sT0, sT0, OP))
e("s_add_u32 s%d, s%d, %d" % (sT2, sT0, 8 * 2560))
e("s_lshl_b32 s%d, s%d, 4" % (sT3, sW))
e("v_add_u32 v%d, s%d, v%d" % (vA1, sT3, vA1))
for k in range(8): e("v_mov_b32 v%d, 0" % (vG0 + k))
e("v_cmp_gt_u32 vcc, 108, v%d" % vA1)
e("s_mov_b64 s[90:91], vcc")
e("v_cmp_gt_u32 vcc, 100, v%d" % vA1)
e("s_mov_b64 s[92:93], vcc")
poll([("buffer_load_dwordx4 %s, v%d, %s, s%d offen sc1" % (vr(vG0 + 4 * k, 4), vA0, srd(S_WS), [sT0, sT2][k]), vG0 + 4 * k, 4) for k in range(2)], sleep=1, init_masks=["s[90:91]", "s[92:93]"])
stamp(15)
for k in range(4):
    e("v_add_f32 v%d, v%d, v%d" % (vT + k, vG0 + k, vG0 + 4 + k))
rs_4to1(vT)
e("v_add_f32_dpp v%d, v%d, v%d row_ror:8 row_mask:0xf bank_mask:0xf" % (vT + 1, vT, vT))
e("v_lshlrev_b32 v%d, 4, v%d" % (vA1, vA3))
e("v_lshl_add_u32 v%d, v%d, 2, v%d" % (vA1, vG, vA1))
e("s_lshl_b32 s%d, s%d, 7" % (sT0, sW))
e("v_add_u32 v%d, s%d, v%d" % (vA1, sT0, vA1))
setexec(0xff00ff00ff00ff)
e("ds_write_b32 v%d, v%d offset:%d" % (vA1, vT + 1, L_RED))
e("s_mov_b64 exec, -1")
e("s_waitcnt lgkmcnt(0)")
e("s_barrier")
e("s_cmp_lg_u32 s%d, 0" % sW)
e("s_cbranch_scc1 L_fin")
e("v_lshlrev_b32 v%d, 2, v%d" % (vA0, vLANE))
e("v_add_u32 v%d, s%d, v%d" % (vA1, sT1, vA0))
setexec(0xffffffff)
for i in range(8):
    e("ds_read_b32 v%d, v%d offset:%d" % (vG0 + i, vA0, L_RED + 128 * i))
e("ds_read_b32 v%d, v%d offset:%d" % (vG0 + 8, vA1, L_H))
e("s_waitcnt lgkmcnt(0)")
for st in (4, 2, 1):
    for i in range(st):
        e("v_add_f32 v%d, v%d, v%d" % (vG0 + i, vG0 + i, vG0 + i + st))
rbf(vG0, vG0)
e("v_add_f32 v%d, v%d, v%d" % (vG0, vG0, vG0 + 8))
e("v_cvt_pk_bf16_f32 v%d, v%d, v%d" % (vG0, vG0, vG0))
e("v_lshrrev_b32 v%d, 1, v%d" % (vA1, vA1))
e("buffer_store_short v%d, v%d, %s, 0 offen" % (vG0, vA1, srd(S_OUT)))
e("s_mov_b64 exec, -1")
e("L_fin:")
if DIAG:
    stamp(16)
    e("s_cmp_lg_u32 s%d, 0" % sW)
    e("s_cbranch_scc1 L_end")
    e("v_lshlrev_b32 v%d, 2, v%d" % (vA0, vLANE))
    e("s_lshl_b32 s%d, s2, 8" % sT0)
    e("s_add_u32 s%d, s%d, %d" % (sT0, sT0, DIAGO))
    e("buffer_store_dword v%d, v%d, %s, s%d offen" % (vTSV, vA0, srd(S_WS), sT0))
e("L_end:")
e("s_endpgm")
e.raw(""".section .rodata,"a"
.p2align 6
.amdhsa_kernel %s
  .amdhsa_next_free_vgpr %d
  .amdhsa_next_free_sgpr 102
  .amdhsa_accum_offset %d
  .amdhsa_group_segment_fixed_size 0
  .amdhsa_kernarg_size 96
  .amdhsa_user_sgpr_count 2
  .amdhsa_user_sgpr_kernarg_segment_ptr 1
  .amdhsa_system_sgpr_workgroup_id_x 1
.end_amdhsa_kernel""" % (KN, NVGPR, NVGPR))
open(OUTF, "w").write(e.text())
```

```python
import re

TRANS = ("v_exp_f32", "v_log_f32", "v_rcp_f32", "v_rsq_f32", "v_sqrt_f32", "v_sin_f32", "v_cos_f32")

def regs_of(tok):
    tok = tok.strip()
    out = set()
    tok = tok.replace("-", "").replace("abs(", "").replace("|", "").replace(")", "") if tok.startswith(("-v", "abs(", "|v", "-abs(", "-|")) else tok
    m = re.fullmatch(r"([vsa])(\d+)", tok)
    if m:
        out.add((m.group(1), int(m.group(2)))); return out
    m = re.fullmatch(r"([vsa])\[(\d+):(\d+)\]", tok)
    if m:
        for i in range(int(m.group(2)), int(m.group(3)) + 1):
            out.add((m.group(1), i))
        return out
    if tok in ("vcc", "vcc_lo", "vcc_hi"): out.add(("vcc", 0))
    if tok in ("exec", "exec_lo", "exec_hi"): out.add(("exec", 0))
    if tok == "m0": out.add(("m0", 0))
    return out

class Ins:
    __slots__ = ("text", "op", "kind", "w", "r", "trans", "dpp", "perm", "rdlane", "lanesel", "states", "widestore", "ldsdma", "srcc", "passes", "srcab", "constreads", "dotab")

def parse(text):
    t = text.split(";")[0].strip()
    i = Ins(); i.text = text
    parts = t.split(None, 1)
    op = parts[0]; i.op = op
    rest = parts[1] if len(parts) > 1 else ""
    ops = [o.strip() for o in re.split(r",(?![^\[]*\])", rest)] if rest else []
    mods = ""
    if ops:
        last = ops[-1].split(None, 1)
        ops[-1] = last[0]
        mods = last[1] if len(last) > 1 else ""
    i.w = set(); i.r = set(); i.trans = op.replace("_e32", "").replace("_e64", "") in TRANS
    i.dpp = "_dpp" in op; i.perm = op.startswith("v_permlane"); i.rdlane = op.startswith(("v_readlane", "v_readfirstlane"))
    i.lanesel = set(); i.states = 1; i.widestore = set(); i.ldsdma = False; i.srcc = set(); i.passes = 0; i.srcab = set(); i.constreads = set(); i.dotab = set()
    if op == "s_nop":
        i.kind = "nop"; i.states = int(ops[0], 0) + 1; return i
    if op.startswith("v_mfma"):
        i.kind = "mfma"; i.passes = 4 if "16x16x32" in op else 8
        i.w = regs_of(ops[0]); i.srcab = regs_of(ops[1]) | regs_of(ops[2]); i.srcc = regs_of(ops[3]); i.r = i.srcab | i.srcc
        return i
    if op.startswith("v_"):
        i.kind = "valu"
        if i.perm:
            i.w = regs_of(ops[0]) | regs_of(ops[1]); i.r = set(i.w)
        elif op.startswith(("v_add_co", "v_sub_co", "v_addc_co", "v_subb_co", "v_div_scale")):
            i.w = regs_of(ops[0]) | regs_of(ops[1])
            for o in ops[2:]: i.r |= regs_of(o)
        else:
            i.w = regs_of(ops[0])
            for o in ops[1:]: i.r |= regs_of(o)
            if op.startswith(("v_fmac", "v_writelane", "v_dot2c")) or i.dpp: i.r |= regs_of(ops[0])
            if op.startswith("v_cndmask") and len(ops) == 3: i.r.add(("vcc", 0))
        if op.startswith("v_dot"): i.dotab = regs_of(ops[1]) | regs_of(ops[2])
        if op.startswith(("v_readlane", "v_writelane")): i.lanesel = regs_of(ops[2])
        i.constreads = {x for x in i.r if x[0] in ("s", "vcc")}
        return i
    if op.startswith(("buffer_", "global_")):
        i.kind = "vmem"
        if " lds" in (" " + mods) and "load" in op:
            i.ldsdma = True
            for o in ops: i.r |= regs_of(o)
            i.r.add(("m0", 0))
        elif "load" in op:
            i.w = regs_of(ops[0])
            for o in ops[1:]: i.r |= regs_of(o)
        else:
            for o in ops: i.r |= regs_of(o)
            if "x4" in op or "x3" in op:
                i.widestore = regs_of(ops[0]) if op.startswith("buffer_") else regs_of(ops[1])
        return i
    if op.startswith("ds_"):
        i.kind = "ds"
        if op.startswith(("ds_read", "ds_bpermute", "ds_permute", "ds_swizzle")):
            i.w = regs_of(ops[0])
            for o in ops[1:]: i.r |= regs_of(o)
        else:
            for o in ops: i.r |= regs_of(o)
        return i
    if op.startswith("s_"):
        i.kind = "salu"
        if op.startswith(("s_cmp", "s_cbranch", "s_branch", "s_waitcnt", "s_barrier", "s_sleep", "s_endpgm", "s_setprio")):
            for o in ops: i.r |= regs_of(o)
        elif ops:
            i.w = regs_of(ops[0])
            for o in ops[1:]: i.r |= regs_of(o)
            if "saveexec" in op: i.w.add(("exec", 0))
        return i
    raise ValueError("unknown instr: " + text)

class Emitter:
    def __init__(self):
        self.lines = []
        self.hist = []
        self.nlabel = 0
    def raw(self, s):
        self.lines.append(s)
    def comment(self, s):
        self.lines.append("    ; " + s)
    def label(self, name):
        self.lines.append(name + ":")
    def newlabel(self, base="L"):
        self.nlabel += 1
        return "%s_%d" % (base, self.nlabel)
    def need(self, c):
        need = 0
        dist = 0
        for p in reversed(self.hist[-24:]):
            req = 0
            vw = {x for x in p.w if x[0] in ("v", "a")}
            sw = {x for x in p.w if x[0] in ("s", "vcc")}
            if p.kind == "valu" and p.op.startswith("v_dot"):
                if c.op != p.op:
                    if vw & (c.r | c.w): req = max(req, 3)
                elif vw & c.dotab: req = max(req, 3)
            if p.kind == "valu":
                if c.kind == "valu":
                    if c.dpp and vw & c.r: req = max(req, 2)
                    if c.perm and vw & c.r: req = max(req, 2)
                    if c.rdlane and vw & c.r: req = max(req, 1)
                    if sw & c.constreads: req = max(req, 2)
                    if sw & c.lanesel: req = max(req, 4)
                    if p.trans and not c.trans and vw & c.r: req = max(req, 1)
                    if p.trans and c.trans and vw & c.r: req = max(req, 1)
                if c.kind == "vmem" and sw & c.r: req = max(req, 5)
                if c.kind == "mfma" and vw & c.r: req = max(req, 2)
                if c.kind in ("vmem", "ds") and p.trans and vw & c.r: req = max(req, 1)
            if p.kind == "salu" and ("m0", 0) in p.w and c.ldsdma: req = max(req, 1)
            if p.kind == "vmem" and p.widestore and (p.widestore & c.w): req = max(req, 2)
            if p.kind == "mfma":
                big = 8 if p.passes == 4 else 12
                if c.kind == "mfma":
                    if p.w & c.srcab: req = max(req, big)
                    if p.w & c.srcc and p.w != c.srcc: req = max(req, big - 2)
                elif c.kind in ("valu", "vmem", "ds"):
                    if p.w & (c.r | c.w): req = max(req, big)
                    if c.kind == "valu" and (p.srcc & c.w): req = max(req, 3 if p.passes == 4 else 7)
            need = max(need, req - dist)
            dist += p.states
            if dist >= 20: break
        return need
    def __call__(self, text):
        for line in text.strip().split("\n"):
            line = line.strip()
            if not line: continue
            if line.startswith(";"):
                self.lines.append("    " + line); continue
            if line.endswith(":"):
                self.label(line[:-1]); continue
            c = parse(line)
            n = self.need(c)
            while n > 0:
                k = min(n, 16)
                nop = parse("s_nop %d" % (k - 1))
                self.lines.append("    " + nop.text); self.hist.append(nop); n -= k
            self.lines.append("    " + line)
            self.hist.append(c)
    def text(self):
        return "\n".join(self.lines) + "\n"
```

```python
import sys
sys.path.insert(0, "gen")
from emit import Emitter

KN = "sequential_preLN__compressed_kv_cla__dense_activation_relu__decode_kernel"
DIAG = "--diag" in sys.argv
OUTF = [a for a in sys.argv[1:] if not a.startswith("--")][0]
def opt(name, default):
    for a in sys.argv:
        if a.startswith("--%s=" % name): return int(a.split("=")[1])
    return default
EWA_AT = opt("ewa", 16)
FLAG_AT = opt("flag", 8)

QA, CP, EWA, QP = 0x0, 0x8000, 0x10000, 0x12000
HP, EWC, STAT, OP, PART, DIAGO = 0x90000, 0x9E000, 0x24000, 0x30000, 0x100000, 0x800000
RDY = 0
NT = " nt" if opt("nt", 1) else ""
NTC = " nt" if opt("ntc", 1) else ""
WS_BYTES = 0x900000
RS = 1040
L_RED = 0
L_QL = 4096
L_LN = 8448
L_MX = 4096
L_SUM = 4608
L_P = 6656
PRS = 272
L_HB = 4096
L_ONES = 5376
L_ST = 6656
L_HF = 7168
L_QS = 12288
L_CK = L_QS + 16 * RS
LDS_BYTES = L_CK + 128 * RS
L_WUV = 12288
L_WO = L_WUV + 32768
L_W1 = 12288
SPIN = 200000

S_X, S_CKV, S_WQ, S_WUK, S_WUV, S_WO, S_W1, S_W2, S_OUT, S_DBG, S_WS = [4 + 4 * i for i in range(11)]
def srd(b): return "s[%d:%d]" % (b, b + 3)
sW, sA, sB, sCNT, sT0, sT1, sT2, sT3 = 48, 49, 50, 51, 52, 53, 54, 55
sH, sCQ, sXI = 56, 57, 58
sKS, sHF, sYI = 56, 57, 58
sRD, sISD, sFIN = 59, 88, 89
sM = [60, 62, 64, 66, 68, 70, 72, 74]
sTM, sOR = 76, 78
sF = 80
sE0, sE1 = 90, 92
sL2E, sT4 = 94, 95
sTS = 96
def sp(b): return "s[%d:%d]" % (b, b + 1)
e = Emitter()
def vr(b, n): return "v[%d:%d]" % (b, b + n - 1) if n > 1 else "v%d" % b

vLANE, vN, vG = 1, 2, 3
vA0, vA1, vA2, vA3 = 4, 5, 6, 7
vT = 8
vTSV = 40
vL16 = 41
vCL = 44
NVGPR = 240

def stamp(idx):
    if not DIAG: return
    e("s_memrealtime %s" % sp(sTS))
    e("s_waitcnt lgkmcnt(0)")
    e("v_writelane_b32 v%d, s%d, %d" % (vTSV, sTS, idx))
def setexec(m):
    if m == -1: e("s_mov_b64 exec, -1"); return
    e("s_mov_b32 exec_lo, 0x%x" % (m & 0xffffffff))
    e("s_mov_b32 exec_hi, 0x%x" % (m >> 32))
def rbf(dst, src):
    e("v_cvt_pk_bf16_f32 v%d, v%d, v%d" % (dst, src, src))
    e("v_lshlrev_b32 v%d, 16, v%d" % (dst, dst))
def wave_red(vs, sdsts, op="v_add_f32"):
    bc = " bound_ctrl:0" if op == "v_add_f32" else ""
    for sh in (1, 2, 4, 8):
        for v in vs: e("%s_dpp v%d, v%d, v%d row_shr:%d row_mask:0xf bank_mask:0xf%s" % (op, v, v, v, sh, bc))
    for v in vs: e("%s_dpp v%d, v%d, v%d row_bcast:15 row_mask:0xa bank_mask:0xf" % (op, v, v, v))
    for v in vs: e("%s_dpp v%d, v%d, v%d row_bcast:31 row_mask:0xc bank_mask:0xf" % (op, v, v, v))
    for v, s in zip(vs, sdsts): e("v_readlane_b32 s%d, v%d, 63" % (s, v))
def unpack(dst, src, n):
    for i in range(n):
        e("v_lshlrev_b32 v%d, 16, v%d" % (dst + 2 * i, src + i))
        e("v_and_b32 v%d, 0xffff0000, v%d" % (dst + 2 * i + 1, src + i))
def poll(loads, sleep=1, init_masks=None):
    lp = e.newlabel("L_poll"); dn = e.newlabel("L_polld")
    for k in range(len(loads)):
        e("s_mov_b64 %s, %s" % (sp(sM[k]), "-1" if not init_masks or init_masks[k] is None else init_masks[k]))
    e("s_mov_b32 s%d, 0" % sCNT)
    e(lp + ":")
    for k, (txt, d, n) in enumerate(loads):
        e("s_mov_b64 exec, %s" % sp(sM[k]))
        e(txt)
    e("s_mov_b64 exec, -1")
    e("s_waitcnt vmcnt(0)")
    for k, (txt, d, n) in enumerate(loads):
        t = vT + 31
        if n == 1:
            e("v_cmp_eq_u32 %s, -1, v%d" % (sp(sTM), d))
        else:
            e("v_max_u32 v%d, v%d, v%d" % (t, d, d + 1))
            if n == 4: e("v_max3_u32 v%d, v%d, v%d, v%d" % (t, t, d + 2, d + 3))
            e("v_cmp_eq_u32 %s, -1, v%d" % (sp(sTM), t))
        e("s_and_b64 %s, %s, %s" % (sp(sM[k]), sp(sM[k]), sp(sTM)))
        if k == 1: e("s_or_b64 %s, %s, %s" % (sp(sOR), sp(sM[0]), sp(sM[k])))
        elif k > 1: e("s_or_b64 %s, %s, %s" % (sp(sOR), sp(sOR), sp(sM[k])))
    e("s_cbranch_scc0 %s" % dn)
    e("s_add_u32 s%d, s%d, 1" % (sCNT, sCNT))
    e("s_cmp_gt_u32 s%d, %d" % (sCNT, SPIN))
    e("s_cbranch_scc1 %s" % dn)
    if sleep: e("s_sleep %d" % sleep)
    e("s_branch %s" % lp)
    e(dn + ":")
def rs_8to2(b):
    for i in range(4): e("v_permlane32_swap_b32 v%d, v%d" % (b + i, b + 4 + i))
    for i in range(4): e("v_add_f32 v%d, v%d, v%d" % (b + i, b + i, b + 4 + i))
    for i in range(2): e("v_permlane16_swap_b32 v%d, v%d" % (b + i, b + 2 + i))
    for i in range(2): e("v_add_f32 v%d, v%d, v%d" % (b + i, b + i, b + 2 + i))
def rs_4to1(b):
    for i in range(2): e("v_permlane32_swap_b32 v%d, v%d" % (b + i, b + 2 + i))
    for i in range(2): e("v_add_f32 v%d, v%d, v%d" % (b + i, b + i, b + 2 + i))
    e("v_permlane16_swap_b32 v%d, v%d" % (b, b + 1))
    e("v_add_f32 v%d, v%d, v%d" % (b, b, b + 1))
def allred_g(v, tmp, op="v_add_f32"):
    e("v_mov_b32 v%d, v%d" % (tmp, v))
    e("v_permlane32_swap_b32 v%d, v%d" % (v, tmp))
    e("%s v%d, v%d, v%d" % (op, v, v, tmp))
    e("v_mov_b32 v%d, v%d" % (tmp, v))
    e("v_permlane16_swap_b32 v%d, v%d" % (v, tmp))
    e("%s v%d, v%d, v%d" % (op, v, v, tmp))
def hilo_write(v, vaddr):
    h, a, b = v + 2, v + 3, v + 4
    e("v_cvt_pk_bf16_f32 v%d, v%d, v%d" % (h, v, v + 1))
    e("v_lshlrev_b32 v%d, 16, v%d" % (a, h))
    e("v_and_b32 v%d, 0xffff0000, v%d" % (b, h))
    e("v_sub_f32 v%d, v%d, v%d" % (v, v, a))
    e("v_sub_f32 v%d, v%d, v%d" % (v + 1, v + 1, b))
    e("v_cvt_pk_bf16_f32 v%d, v%d, v%d" % (a, v, v + 1))
    e("ds_write2_b32 v%d, v%d, v%d offset0:0 offset1:68" % (vaddr, h, a))
def rows_gemv_publish(vB, vQLr, vOut, sOut):
    f = vT + 8
    for ks in range(4):
        e("ds_read_b128 %s, v%d offset:%d" % (vr(f + 4 * ks, 4), vQLr, 64 * ks))
    for ks in range(4):
        e("s_waitcnt lgkmcnt(%d)" % (3 - ks))
        e("v_mfma_f32_16x16x32_bf16 %s, %s, %s, %s" % (vr(vT, 4), vr(f + 4 * ks, 4), vr(vB + 4 * ks, 4), "0" if ks == 0 else vr(vT, 4)))
    e("v_add_f32 v%d, v%d, v%d" % (vT, vT, vT + 1))
    e("v_add_f32 v%d, v%d, v%d" % (vT + 2, vT + 2, vT + 3))
    e("v_add_f32 v%d, v%d, v%d" % (vT, vT, vT + 2))
    allred_g(vT, vT + 1)
    e("v_mov_b32_dpp v%d, v%d row_shl:1 row_mask:0xf bank_mask:0xf bound_ctrl:0" % (vT + 1, vT))
    e("v_cvt_pk_bf16_f32 v%d, v%d, v%d" % (vT, vT, vT + 1))
    e("v_min_u32 v%d, -2, v%d" % (vT, vT))
    setexec(0x5555)
    e("buffer_store_dword v%d, v%d, %s, s%d offen sc1" % (vT, vOut, srd(S_WS), sOut))
    setexec(-1)
def flag_check(first_loaded=None):
    lp = e.newlabel("L_fl"); ld = e.newlabel("L_fld"); l1 = e.newlabel("L_fl1")
    e("s_mov_b32 s%d, 0" % sCNT)
    if first_loaded is not None: e("s_branch %s" % l1)
    e(lp + ":")
    setexec(0xff)
    e("v_lshlrev_b32 v%d, 5, v%d" % (vA3, vLANE))
    e("buffer_load_dword v%d, v%d, %s, 0 offen sc1" % (vL16 + 1, vA3, srd(S_DBG)))
    setexec(-1)
    e(l1 + ":")
    e("s_waitcnt vmcnt(0)")
    setexec(0xff)
    e("v_cmp_eq_u32 vcc, 0, v%d" % (vL16 + 1))
    setexec(-1)
    e("s_cbranch_vccz %s" % ld)
    e("s_add_u32 s%d, s%d, 1" % (sCNT, sCNT))
    e("s_cmp_gt_u32 s%d, %d" % (sCNT, SPIN))
    e("s_cbranch_scc1 %s" % ld)
    e("s_sleep 8")
    e("s_branch %s" % lp)
    e(ld + ":")
def store1(soff, val=1):
    e("v_mov_b32 v%d, %d" % (vA3, val))
    e("v_mov_b32 v%d, 0" % (vT + 30))
    setexec(1)
    e("buffer_store_dword v%d, v%d, %s, s%d offen sc1" % (vA3, vT + 30, srd(S_WS), soff))
    setexec(-1)
def rdy_write():
    e("s_lshl_b32 s%d, s2, 6" % sT0)
    e("s_add_u32 s%d, s%d, %d" % (sT0, sT0, RDY))
    store1(sT0)
def rdy_check(dst):
    l = e.newlabel("L_rdy")
    e("s_cmp_ge_u32 s%d, 4" % sW)
    e("s_cbranch_scc1 %s" % l)
    e("v_lshlrev_b32 v%d, 6, v0" % vA0)
    e("s_mov_b32 s%d, %d" % (sT0, RDY))
    poll([("buffer_load_dword v%d, v%d, %s, s%d offen sc1" % (dst, vA0, srd(S_WS), sT0), dst, 1)], sleep=8)
    e(l + ":")
def hint_wait(soff, dst, sleep):
    e("v_mov_b32 v%d, 0" % vA3)
    poll([("buffer_load_dword v%d, v%d, %s, s%d offen sc1" % (dst, vA3, srd(S_WS), soff), dst, 1)], sleep=sleep, init_masks=["1"])

e.raw("""; persistent MLA decode + FFN kernel (generated by gen/gen6.py)
; @launch grid=(256,1,1) block=(512,1,1) lds=%d
.amdgcn_target "amdgcn-amd-amdhsa--gfx950"
.text
.globl %s
.p2align 8
.type %s,@function
%s:""" % (LDS_BYTES, KN, KN, KN))
e("s_cmp_ge_u32 s2, 256")
e("s_cbranch_scc1 L_end")
e("s_load_dwordx16 s[64:79], s[0:1], 0")
e("s_add_u32 s2, s2, 248")
e("s_and_b32 s2, s2, 255")
e("s_load_dwordx8 s[80:87], s[0:1], 64")
if DIAG:
    e("v_mov_b32 v%d, 0" % vTSV)
    stamp(0)
e("v_and_b32 v%d, 63, v0" % vLANE)
e("v_lshrrev_b32 v%d, 6, v0" % vA0)
e("v_and_b32 v%d, 15, v0" % vN)
e("v_bfe_u32 v%d, v0, 4, 2" % vG)
e("v_readfirstlane_b32 s%d, v%d" % (sW, vA0))
for i in range(4): e("v_mov_b32 v%d, -1" % (vCL + i))
e("v_lshlrev_b32 v%d, 4, v%d" % (vL16, vLANE))
e("s_bfe_u32 s%d, s2, 0x40003" % sA)
e("s_and_b32 s%d, s2, 7" % sB)
e("s_mov_b32 s%d, 0x3fb8aa3b" % sL2E)
e("s_waitcnt lgkmcnt(0)")
sizes = {S_X: 1280, S_CKV: 8388608, S_WQ: 5242880, S_WUK: 4194304, S_WUV: 4194304, S_WO: 5242880, S_W1: 2211840, S_W2: 2211840, S_OUT: 1280, S_DBG: 256, S_WS: WS_BYTES}
src = {S_X: 64, S_CKV: 66, S_WQ: 68, S_WUK: 70, S_WUV: 72, S_WO: 74, S_W1: 78, S_W2: 80, S_OUT: 82, S_DBG: 84, S_WS: 86}
for b in (S_WS, S_X, S_WQ, S_CKV, S_WUK, S_DBG, S_WUV, S_WO, S_W1, S_W2, S_OUT):
    e("s_mov_b32 s%d, s%d" % (b, src[b]))
    e("s_mov_b32 s%d, s%d" % (b + 1, src[b] + 1))
    e("s_mov_b32 s%d, %d" % (b + 2, sizes[b]))
    e("s_mov_b32 s%d, 0x00020000" % (b + 3))
e("s_cmp_ge_u32 s2, 128")
e("s_cbranch_scc1 L_Y")

vWQ, vWUK, vL1, vL0, vXF, vXR = 48, 148, 164, 170, 184, 190
vBUV, vBO, vG0 = 48, 64, 96
vQLw, vQLr, vOutA = 192, 193, 194
e("s_lshl_b32 s%d, s%d, 2" % (sH, sB))
e("s_lshr_b32 s%d, s%d, 2" % (sT0, sA))
e("s_add_u32 s%d, s%d, s%d" % (sH, sH, sT0))
e("s_and_b32 s%d, s%d, 3" % (sCQ, sA))
e("s_lshl_b32 s%d, s%d, 2" % (sXI, sH))
e("s_add_u32 s%d, s%d, s%d" % (sXI, sXI, sCQ))
sST, sKQ, sUS, sNU = 98, 99, 100, 101
e("s_mul_i32 s%d, s2, 205" % sKQ)
e("s_lshr_b32 s%d, s%d, 11" % (sKQ, sKQ))
e("s_mul_i32 s%d, s%d, 10" % (sT0, sKQ))
e("s_sub_u32 s%d, s2, s%d" % (sST, sT0))
e("s_mul_i32 s%d, s%d, 11" % (sUS, sKQ))
e("s_max_u32 s%d, s%d, 8" % (sT0, sKQ))
e("s_sub_u32 s%d, s%d, 8" % (sT0, sT0))
e("s_sub_u32 s%d, s%d, s%d" % (sUS, sUS, sT0))
e("s_cmp_lt_u32 s%d, 8" % sKQ)
e("s_cselect_b32 s%d, 11, 10" % sNU)
l1 = e.newlabel("L_c")
e("s_cmp_lg_u32 s%d, 1" % sW)
e("s_cbranch_scc1 %s" % l1)
e("s_lshl_b32 s%d, s2, 8" % sT0)
e("s_add_u32 s%d, s%d, %d" % (sT0, sT0, HP))
setexec(0xffff)
e("buffer_store_dwordx4 %s, v%d, %s, s%d offen sc1" % (vr(vCL, 4), vL16, srd(S_WS), sT0))
e("s_lshl_b32 s%d, s2, 6" % sT0)
e("s_add_u32 s%d, s%d, %d" % (sT0, sT0, EWC))
setexec(0xf)
e("buffer_store_dwordx4 %s, v%d, %s, s%d offen sc1" % (vr(vCL, 4), vL16, srd(S_WS), sT0))
e("s_lshr_b32 s%d, s%d, 4" % (sT0, sH))
e("s_lshl_b32 s%d, s%d, 7" % (sT0, sT0))
e("s_and_b32 s%d, s%d, 15" % (sT1, sH))
e("s_lshl_b32 s%d, s%d, 3" % (sT1, sT1))
e("s_add_u32 s%d, s%d, s%d" % (sT0, sT0, sT1))
e("s_lshl_b32 s%d, s%d, 12" % (sT1, sCQ))
e("s_add_u32 s%d, s%d, s%d" % (sT0, sT0, sT1))
e("s_add_u32 s%d, s%d, %d" % (sT0, sT0, STAT))
setexec(0xffff)
e("v_lshlrev_b32 v%d, 8, v%d" % (vA0, vLANE))
e("buffer_store_dwordx2 %s, v%d, %s, s%d offen sc1" % (vr(vCL, 2), vA0, srd(S_WS), sT0))
setexec(-1)
e(l1 + ":")
e("v_lshlrev_b32 v%d, 2, v%d" % (vA0, vLANE))
for i in range(5):
    e("buffer_load_dword v%d, v%d, %s, 0 offen offset:%d" % (vXF + i, vA0, srd(S_X), 256 * i))
e("v_lshlrev_b32 v%d, 1, v%d" % (vA1, vG))
e("s_mul_i32 s%d, s%d, 160" % (sT0, sCQ))
e("s_mul_i32 s%d, s%d, 20" % (sT1, sW))
e("s_add_u32 s%d, s%d, s%d" % (sT0, sT0, sT1))
e("s_lshl_b32 s%d, s%d, 1" % (sT1, sT0))
for i in range(5):
    e("buffer_load_ushort v%d, v%d, %s, s%d offen offset:%d" % (vL1 + i, vA1, srd(S_X), sT1, 8 * i))
if opt("xbar", 1): e("s_barrier")
e("v_lshlrev_b32 v%d, 13, v%d" % (vA0, vG))
e("v_lshl_add_u32 v%d, v%d, 4, v%d" % (vA0, vN, vA0))
e("s_lshl_b32 s%d, s%d, 13" % (sT0, sT0))
e("s_lshl_b32 s%d, s%d, 8" % (sT1, sH))
e("s_add_u32 s%d, s%d, s%d" % (sT0, sT0, sT1))
for i in range(5):
    e("buffer_load_dwordx4 %s, v%d, %s, s%d offen%s" % (vr(vWQ + 4 * i, 4), vA0, srd(S_WQ), sT0, NT))
    if i < 4: e("s_add_u32 s%d, s%d, 32768" % (sT0, sT0))
L_WUK = L_WO + 45056
e("s_waitcnt vmcnt(5)")
stamp(1)
unpack(vT, vXF, 5)
a, b_, vM, vS = vT + 10, vT + 11, vT + 12, vT + 13
e("v_add_f32 v%d, v%d, v%d" % (a, vT, vT + 1))
for k in range(2, 10): e("v_add_f32 v%d, v%d, v%d" % (a, a, vT + k))
wave_red([a], [sT0])
e("s_mov_b32 s%d, 0x3acccccd" % sT1)
e("v_mov_b32 v%d, s%d" % (vM, sT0))
e("v_mul_f32 v%d, s%d, v%d" % (vM, sT1, vM))
e("v_sub_f32 v%d, v%d, v%d" % (b_, vT, vM))
e("v_mul_f32 v%d, v%d, v%d" % (a, b_, b_))
for k in range(1, 10):
    e("v_sub_f32 v%d, v%d, v%d" % (b_, vT + k, vM))
    e("v_fmac_f32 v%d, v%d, v%d" % (a, b_, b_))
wave_red([a], [sT0])
e("v_mov_b32 v%d, s%d" % (vS, sT0))
e("v_mul_f32 v%d, s%d, v%d" % (vS, sT1, vS))
rbf(vM, vM); rbf(vS, vS)
e("v_add_f32 v%d, 0x3727c5ac, v%d" % (vS, vS))
rbf(vS, vS)
e("v_sqrt_f32 v%d, v%d" % (vS, vS))
rbf(vS, vS)
e("v_rcp_f32 v%d, v%d" % (vS + 1, vS))
e("s_lshl_b32 s%d, s%d, 5" % (sF + 3, sB))
lf = e.newlabel("L_f")
e("s_cmp_lg_u32 s%d, 4" % sW)
e("s_cbranch_scc1 %s" % lf)
e("v_mov_b32 v%d, 0" % (vT + 20))
setexec(1)
e("buffer_load_dword v%d, v%d, %s, s%d offen sc1" % (vL16 + 1, vT + 20, srd(S_DBG), sF + 3))
setexec(-1)
e(lf + ":")
for k in range(5):
    v = vL1 + k
    e("v_lshlrev_b32 v%d, 16, v%d" % (v, v))
    e("v_sub_f32 v%d, v%d, v%d" % (v, v, vM))
    rbf(v, v)
    e("v_mul_f32 v%d, v%d, v%d" % (b_, v, vS + 1))
    e("v_fma_f32 v%d, -v%d, v%d, v%d" % (a, b_, vS, v))
    e("v_fmac_f32 v%d, v%d, v%d" % (b_, a, vS + 1))
    e("v_cvt_pk_bf16_f32 v%d, v%d, v%d" % (v, b_, b_))
    e("v_and_b32 v%d, 0xffff, v%d" % (vL0 + k, v))
    e("v_and_b32 v%d, 0xffff0000, v%d" % (v, v))
e("v_lshlrev_b32 v%d, 4, v%d" % (vQLw, vN))
e("v_lshl_add_u32 v%d, v%d, 2, v%d" % (vQLw, vG, vQLw))
e("v_lshlrev_b32 v%d, 1, v%d" % (vA1, vQLw))
e("s_lshl_b32 s%d, s%d, 9" % (sT0, sW))
e("v_add_u32 v%d, s%d, v%d" % (vA1, sT0, vA1))
e("s_mul_i32 s%d, s%d, 544" % (sT0, sW))
e("s_add_u32 s%d, s%d, %d" % (sT0, sT0, L_QL))
e("v_add_u32 v%d, s%d, v%d" % (vQLw, sT0, vQLw))
e("v_mul_u32_u24 v%d, 272, v%d" % (vQLr, vN))
e("v_lshl_add_u32 v%d, v%d, 4, v%d" % (vQLr, vG, vQLr))
e("v_add_u32 v%d, %d, v%d" % (vQLr, L_QL, vQLr))
e("v_lshlrev_b32 v%d, 1, v%d" % (vOutA, vN))
e("v_lshlrev_b32 v%d, 3, v%d" % (vA2, vLANE))
e("v_lshlrev_b32 v%d, 2, v%d" % (vA3, vLANE))
vUKa = 196
e("s_lshl_b32 s%d, s%d, 13" % (sT0, sW))
e("s_add_u32 s%d, s%d, %d" % (sT0, sT0, L_WUK))
e("v_xor_b32 v%d, v%d, v%d" % (vA0, vN, vG))
for ks in range(4):
    e("v_xor_b32 v%d, %d, v%d" % (vUKa + ks, 4 * ks, vA0))
    e("v_lshlrev_b32 v%d, 4, v%d" % (vUKa + ks, vUKa + ks))
    e("v_lshl_add_u32 v%d, v%d, 8, v%d" % (vUKa + ks, vN, vUKa + ks))
    e("v_add_u32 v%d, s%d, v%d" % (vUKa + ks, sT0, vUKa + ks))
e("v_lshlrev_b32 v%d, 8, v%d" % (vA0, vN))
e("v_lshl_add_u32 v%d, v%d, 4, v%d" % (vA0, vG, vA0))
for k in range(8): e("v_mov_b32 v%d, 0" % (vT + k))
for k in range(16): e("v_mov_b32 v%d, 0" % (vG0 + 32 + k))
e("s_mov_b32 s%d, 0x00ff00ff" % sE0)
e("s_mov_b32 s%d, 0x00ff00ff" % (sE0 + 1))
e("s_lshl_b32 s%d, s%d, 9" % (sT2, sXI))
e("s_add_u32 s%d, s%d, %d" % (sT2, sT2, QP))
e("s_lshl_b32 s%d, s%d, 11" % (sT3, sH))
e("s_add_u32 s%d, s%d, %d" % (sT3, sT3, QP))
lk = e.newlabel("L_k"); lk2 = e.newlabel("L_k")
e("s_cmp_ge_u32 s%d, 4" % sW)
e("s_cbranch_scc1 %s" % lk)
e("s_lshl_b32 s%d, s%d, 8" % (sF + 2, sH))
e("s_lshl_b32 s%d, s%d, 7" % (sF, sCQ))
e("s_lshl_b32 s%d, s%d, 5" % ((sF + 1), sW))
e("s_add_u32 s%d, s%d, s%d" % (sF, sF, (sF + 1)))
e("s_lshl_b32 s%d, s%d, 13" % (sF, sF))
e("s_add_u32 s%d, s%d, s%d" % (sF, sF, (sF + 2)))
e("s_lshl_b32 s%d, s%d, 13" % ((sF + 1), sW))
e("s_add_u32 s%d, s%d, %d" % ((sF + 1), (sF + 1), L_WUK))
e("v_xor_b32 v%d, v%d, v%d" % ((vT + 21), vN, vG))
for k in range(8):
    e("v_xor_b32 v%d, %d, v%d" % ((vT + 20), 4 * (k & 3), (vT + 21)))
    e("v_lshlrev_b32 v%d, 4, v%d" % ((vT + 20), (vT + 20)))
    e("v_lshl_add_u32 v%d, v%d, 13, v%d" % ((vT + 20), vG, (vT + 20)))
    e("s_mov_b32 m0, s%d" % (sF + 1))
    e("buffer_load_dwordx4 v%d, %s, s%d offen%s lds" % ((vT + 20), srd(S_WUK), sF, NT))
    if k < 7:
        e("s_add_u32 s%d, s%d, 32768" % (sF, sF))
        e("s_add_u32 s%d, s%d, 1024" % ((sF + 1), (sF + 1)))
e(lk + ":")
stamp(2)
def a1(extra):
    for i in range(5):
        e("s_waitcnt vmcnt(%d)" % (4 - i + extra))
        for k in range(4):
            e("v_dot2c_f32_bf16 v%d, v%d, v%d" % (vT + 2 * k, vWQ + 4 * i + k, vL0 + i))
            e("v_dot2c_f32_bf16 v%d, v%d, v%d" % (vT + 2 * k + 1, vWQ + 4 * i + k, vL1 + i))
    e("s_nop 3")
la = e.newlabel("L_a1"); lb = e.newlabel("L_a1"); lc = e.newlabel("L_a1")
e("s_cmp_ge_u32 s%d, 4" % sW)
e("s_cbranch_scc1 %s" % la)
a1(8)
e("s_branch %s" % lc)
e(la + ":")
e("s_cmp_eq_u32 s%d, 4" % sW)
e("s_cbranch_scc1 %s" % lb)
a1(0)
e("s_branch %s" % lc)
e(lb + ":")
a1(1)
e(lc + ":")
rs_8to2(vT)
e("ds_write_b64 v%d, %s offset:%d" % (vA1, vr(vT, 2), L_RED))
e("s_waitcnt lgkmcnt(0)")
e("s_barrier")
stamp(3)
lw = e.newlabel("L_a1w")
e("s_cmp_lg_u32 s%d, 4" % sW)
e("s_cbranch_scc1 %s" % lw)
for i in range(8):
    e("ds_read_b64 %s, v%d offset:%d" % (vr(vG0 + 2 * i, 2), vA2, L_RED + 512 * i))
e("v_mov_b32 v%d, v%d" % (vT + 29, vA3))
lfo = e.newlabel("L_fo"); lfp = e.newlabel("L_fp")
e("s_mov_b32 s%d, 0" % sCNT)
lf1 = e.newlabel("L_f1")
e("v_mov_b32 v%d, 0" % vA3)
setexec(1)
e("s_branch %s" % lf1)
e(lfp + ":")
setexec(1)
e("buffer_load_dword v%d, v%d, %s, s%d offen sc1" % (vL16 + 1, vA3, srd(S_DBG), sF + 3))
e(lf1 + ":")
e("s_waitcnt vmcnt(0)")
e("v_cmp_eq_u32 vcc, 0, v%d" % (vL16 + 1))
setexec(-1)
e("s_cbranch_vccz %s" % lfo)
e("s_add_u32 s%d, s%d, 1" % (sCNT, sCNT))
e("s_cmp_gt_u32 s%d, %d" % (sCNT, SPIN))
e("s_cbranch_scc1 %s" % lfo)
e("s_sleep 2")
e("s_branch %s" % lfp)
e(lfo + ":")
stamp(14)
if DIAG: e("v_writelane_b32 v%d, s%d, 20" % (vTSV, sCNT))
e("s_waitcnt lgkmcnt(0)")
for st in (4, 2, 1):
    for i in range(st):
        e("v_pk_add_f32 %s, %s, %s" % (vr(vG0 + 2 * i, 2), vr(vG0 + 2 * i, 2), vr(vG0 + 2 * (i + st), 2)))
v = vG0
e("v_cvt_pk_bf16_f32 v%d, v%d, v%d" % (v + 2, v, v + 1))
e("v_lshlrev_b32 v%d, 16, v%d" % (v + 4, v + 2))
e("v_and_b32 v%d, 0xffff0000, v%d" % (v + 5, v + 2))
e("v_min_u32 v%d, -2, v%d" % (v + 2, v + 2))
e("buffer_store_dword v%d, v%d, %s, s%d offen sc1" % (v + 2, vT + 29, srd(S_WS), sT2))
e("v_pk_add_f32 %s, %s, %s neg_lo:[0,1] neg_hi:[0,1]" % (vr(v, 2), vr(v, 2), vr(v + 4, 2)))
e("v_cvt_pk_bf16_f32 v%d, v%d, v%d" % (v + 3, v, v + 1))
e("v_min_u32 v%d, -2, v%d" % (v + 3, v + 3))
e("buffer_store_dword v%d, v%d, %s, s%d offen offset:256 sc1" % (v + 3, vT + 29, srd(S_WS), sT2))
e(lw + ":")
e("s_barrier")
stamp(16)
lc1 = e.newlabel("L_c1"); lld = e.newlabel("L_ld")
vQF = vG0 + 32
vCF = vG0 + 32
vC2a, vC1a = 200, 201
e("s_cmp_ge_u32 s%d, 4" % sW)
e("s_cbranch_scc1 %s" % lld)
if opt("d1", 0): e("s_sleep %d" % opt("d1", 0))
poll([("buffer_load_dwordx4 %s, v%d, %s, s%d offen offset:%d sc1" % (vr(vQF + 4 * ks, 4), vA0, srd(S_WS), sT3, 64 * ks), vQF + 4 * ks, 4) for ks in range(4)], sleep=1, init_masks=[sp(sE0)] * 4)
stamp(15)
if DIAG: e("v_writelane_b32 v%d, s%d, 21" % (vTSV, sCNT))
vUK = 48
for t in range(2):
    for ks in range(4):
        e("ds_read_b128 %s, v%d offset:%d" % (vr(vUK + 16 * t + 4 * ks, 4), vUKa + ks, 4096 * t))
lr = e.newlabel("L_ew")
e("s_cmp_lg_u32 s%d, 1" % sW)
e("s_cbranch_scc1 %s" % lr)
e("s_lshl_b32 s%d, s%d, 6" % (sT0, sXI))
e("s_add_u32 s%d, s%d, %d" % (sT0, sT0, EWA))
store1(sT0)
e(lr + ":")
for t in range(2):
    for ks in range(4):
        e("s_waitcnt lgkmcnt(%d)" % (7 - 4 * t - ks))
        e("v_mfma_f32_16x16x32_bf16 %s, %s, %s, %s" % (vr(vT + 4 * t, 4), vr(vQF + 4 * ks, 4), vr(vUK + 16 * t + 4 * ks, 4), "0" if ks == 0 else vr(vT + 4 * t, 4)))
e("s_lshl_b32 s%d, s%d, 8" % (sT0, sXI))
e("s_lshl_b32 s%d, s%d, 6" % (sT1, sW))
e("s_add_u32 s%d, s%d, s%d" % (sT0, sT0, sT1))
e("v_lshlrev_b32 v%d, 1, v%d" % (vA1, vLANE))
for t in range(2):
    b = vT + 4 * t
    e("v_add_f32 v%d, v%d, v%d" % (b, b, b + 1))
    e("v_add_f32 v%d, v%d, v%d" % (b + 2, b + 2, b + 3))
    e("v_add_f32 v%d, v%d, v%d" % (b, b, b + 2))
e("v_permlane16_swap_b32 v%d, v%d" % (vT, vT + 4))
e("v_add_f32 v%d, v%d, v%d" % (vT, vT, vT + 4))
e("v_mov_b32_dpp v%d, v%d row_shl:1 row_mask:0xf bank_mask:0xf bound_ctrl:0" % (vT + 1, vT))
e("v_cvt_pk_bf16_f32 v%d, v%d, v%d" % (vT, vT, vT + 1))
e("v_min_u32 v%d, -2, v%d" % (vT, vT))
setexec(0x55555555)
e("buffer_store_dword v%d, v%d, %s, s%d offen sc1" % (vT, vA1, srd(S_WS), sT0))
setexec(-1)
stamp(4)
e("s_barrier")
e("v_lshlrev_b32 v%d, 8, v%d" % (vA0, vG))
e("s_lshr_b32 s%d, s%d, 4" % (sT0, sH))
e("s_lshl_b32 s%d, s%d, 7" % (sT0, sT0))
e("s_and_b32 s%d, s%d, 15" % (sT1, sH))
e("s_lshl_b32 s%d, s%d, 3" % (sT1, sT1))
e("s_add_u32 s%d, s%d, s%d" % (sT0, sT0, sT1))
e("s_add_u32 s%d, s%d, %d" % (sT0, sT0, STAT))
e("s_lshl_b32 s%d, s%d, 12" % (sT1, sW))
e("s_add_u32 s%d, s%d, s%d" % (sT1, sT1, sT0))
e("v_lshlrev_b32 v%d, 8, v%d" % (vA1, vLANE))
e("v_lshlrev_b32 v%d, 15, v%d" % (vA2, vG))
e("v_lshl_add_u32 v%d, v%d, 4, v%d" % (vA2, vN, vA2))
e("s_lshl_b32 s%d, s%d, 19" % (sT2, sW))
e("s_lshl_b32 s%d, s%d, 8" % (sT3, sXI))
e("s_add_u32 s%d, s%d, s%d" % (sT2, sT2, sT3))
e("s_add_u32 s%d, s%d, %d" % (sT2, sT2, PART))
e("s_add_u32 s%d, s%d, 0x20000" % (sT3, sT2))
e("s_add_u32 s%d, s%d, 0x40000" % (sT4, sT2))
e("s_add_u32 s%d, s%d, 0x60000" % (sF, sT2))
vSo, vSa, vD = vG0, vG0 + 8, vG0 + 12
poll([("buffer_load_dwordx2 %s, v%d, %s, s%d offen offset:%d sc1" % (vr(vSo + 2 * i, 2), vA0, srd(S_WS), sT1, 1024 * i), vSo + 2 * i, 2) for i in range(4)], sleep=opt("sl3", 3))
stamp(6)
poll([("buffer_load_dwordx4 %s, v%d, %s, s%d offen sc1" % (vr(vD + 4 * i, 4), vA2, srd(S_WS), [sT2, sT3, sT4, sF][i]), vD + 4 * i, 4) for i in range(4)]
     + [("buffer_load_dwordx2 %s, v%d, %s, s%d offen sc1" % (vr(vSa, 2), vA1, srd(S_WS), sT0), vSa, 2)], sleep=1)
stamp(7)
e("v_mov_b32 v%d, v%d" % (vT + 8, vSa))
wave_red([vT + 8], [sT0], "v_max_f32")
e("v_mov_b32 v%d, s%d" % (vT + 9, sT0))
e("v_mul_f32 v%d, s%d, v%d" % (vT + 9, sL2E, vT + 9))
ws_ = (vSo, vSo + 2, vSo + 4, vSo + 6, vSa)
for v in ws_: e("v_fma_f32 v%d, v%d, s%d, -v%d" % (v, v, sL2E, vT + 9))
for v in ws_: e("v_exp_f32 v%d, v%d" % (v, v))
for v in ws_: e("v_cvt_pk_bf16_f32 v%d, v%d, v%d" % (v, v, v))
for v in ws_[:4]:
    e("v_and_b32 v%d, 0xffff0000, v%d" % (v + 1, v))
    e("v_and_b32 v%d, 0xffff, v%d" % (v, v))
e("v_lshlrev_b32 v%d, 16, v%d" % (vSa, vSa))
e("v_mul_f32 v%d, v%d, v%d" % (vSa, vSa, vSa + 1))
for k in range(8): e("v_mov_b32 v%d, 0" % (vT + k))
for i in range(4):
    for k in range(4):
        e("v_dot2c_f32_bf16 v%d, v%d, v%d" % (vT + 2 * k, vD + 4 * i + k, vSo + 2 * i))
        e("v_dot2c_f32_bf16 v%d, v%d, v%d" % (vT + 2 * k + 1, vD + 4 * i + k, vSo + 2 * i + 1))
wave_red([vSa], [sT0])
rs_8to2(vT)
e("v_rcp_f32 v%d, s%d" % (vT + 8, sT0))
e("v_mul_f32 v%d, v%d, v%d" % (vT, vT, vT + 8))
e("v_mul_f32 v%d, v%d, v%d" % (vT + 1, vT + 1, vT + 8))
hilo_write(vT, vQLw)
e("s_branch %s" % lc1)
e(lld + ":")
e("s_barrier")
e("s_sub_u32 s%d, s%d, 4" % (sT3, sW))
e("v_lshlrev_b32 v%d, 13, v%d" % (vA0, vG))
e("v_lshl_add_u32 v%d, v%d, 4, v%d" % (vA0, vN, vA0))
e("s_lshl_b32 s%d, s%d, 7" % (sT0, sCQ))
e("s_lshl_b32 s%d, s%d, 5" % (sT1, sT3))
e("s_add_u32 s%d, s%d, s%d" % (sT0, sT0, sT1))
e("s_lshl_b32 s%d, s%d, 13" % (sT0, sT0))
e("s_lshl_b32 s%d, s%d, 8" % (sT1, sH))
e("s_add_u32 s%d, s%d, s%d" % (sT0, sT0, sT1))
e("s_lshl_b32 s%d, s%d, 13" % (sT2, sT3))
e("s_add_u32 s%d, s%d, %d" % (sT2, sT2, L_WUV))
DEPTH = opt("depth", 8)
for k in range(8):
    if k >= DEPTH: e("s_waitcnt vmcnt(%d)" % (DEPTH - 1))
    e("s_mov_b32 m0, s%d" % sT2)
    e("buffer_load_dwordx4 v%d, %s, s%d offen%s lds" % (vA0, srd(S_WUV), sT0, NT))
    if k < 7:
        e("s_add_u32 s%d, s%d, 32768" % (sT0, sT0))
        e("s_add_u32 s%d, s%d, 1024" % (sT2, sT2))
lno = e.newlabel("L_no")
e("s_cmp_ge_u32 s2, 120")
e("s_cbranch_scc1 %s" % lno)
e("v_lshrrev_b32 v%d, 3, v%d" % (vA0, vLANE))
e("v_mul_u32_u24 v%d, 1280, v%d" % (vA0, vA0))
e("v_and_b32 v%d, 7, v%d" % (vA1, vLANE))
e("v_lshl_add_u32 v%d, v%d, 4, v%d" % (vA0, vA1, vA0))
e("s_lshl_b32 s%d, s%d, 2" % (sT0, sUS))
e("s_add_u32 s%d, s%d, s%d" % (sT0, sT0, sT3))
e("s_mul_i32 s%d, s%d, 10240" % (sT0, sT0))
e("s_lshl_b32 s%d, s%d, 7" % (sT1, sST))
e("s_add_u32 s%d, s%d, s%d" % (sT0, sT0, sT1))
e("s_lshl_b32 s%d, s%d, 10" % (sT2, sT3))
e("s_add_u32 s%d, s%d, %d" % (sT2, sT2, L_WO))
for k in range(11):
    if k == 10:
        e("s_cmp_lt_u32 s%d, 11" % sNU)
        e("s_cbranch_scc1 %s" % lno)
    e("s_mov_b32 m0, s%d" % sT2)
    e("buffer_load_dwordx4 v%d, %s, s%d offen%s lds" % (vA0, srd(S_WO), sT0, NT))
    if k < 10:
        e("s_add_u32 s%d, s%d, 40960" % (sT0, sT0))
        e("s_add_u32 s%d, s%d, 4096" % (sT2, sT2))
e(lno + ":")
e("s_waitcnt vmcnt(0)")
if DIAG:
    e("s_memrealtime %s" % sp(sTS))
    e("s_waitcnt lgkmcnt(0)")
    e("v_mov_b32 v%d, s%d" % (vA0, sTS))
    e("v_mov_b32 v%d, 0" % vA1)
    e("ds_write_b32 v%d, v%d offset:%d" % (vA1, vA0, L_LN))
e(lc1 + ":")
e("v_lshrrev_b32 v%d, 2, v%d" % (vC1a, vN))
e("v_lshlrev_b32 v%d, 4, v%d" % (vC1a, vC1a))
e("v_lshl_add_u32 v%d, v%d, 1, v%d" % (vC1a, vG, vC1a))
e("v_lshlrev_b32 v%d, 8, v%d" % (vC1a, vC1a))
e("v_and_b32 v%d, 3, v%d" % (vA1, vN))
e("v_lshl_add_u32 v%d, v%d, 3, v%d" % (vC1a, vA1, vC1a))
e("s_lshl_b32 s%d, s%d, 5" % (sT1, sW))
e("v_add_u32 v%d, s%d, v%d" % (vC1a, sT1, vC1a))
e("s_lshl_b32 s%d, s%d, 8" % (sT0, sXI))
e("s_add_u32 s%d, s%d, s%d" % (sT0, sT0, sT1))
e("s_add_u32 s%d, s%d, %d" % (sT0, sT0, CP))
e("s_waitcnt lgkmcnt(0)")
e("s_barrier")
for ks in range(4):
    for u in range(2):
        e("ds_read_b64_tr_b16 %s, v%d offset:%d" % (vr(vBUV + 4 * ks + 2 * u, 2), vC1a, L_WUV + (64 * (ks >> 1) + 8 * (ks & 1) + u) * 256))
setexec(0x00ff00ff00ff00ff)
for ks in range(4):
    e("ds_read_b128 %s, v%d offset:%d" % (vr(vCF + 4 * ks, 4), vQLr, 64 * ks))
setexec(-1)
for ks in range(4):
    e("s_waitcnt lgkmcnt(%d)" % (3 - ks))
    e("v_mfma_f32_16x16x32_bf16 %s, %s, %s, %s" % (vr(vT, 4), vr(vCF + 4 * ks, 4), vr(vBUV + 4 * ks, 4), "0" if ks == 0 else vr(vT, 4)))
e("v_add_f32 v%d, v%d, v%d" % (vT, vT, vT + 1))
e("v_add_f32 v%d, v%d, v%d" % (vT + 2, vT + 2, vT + 3))
e("v_add_f32 v%d, v%d, v%d" % (vT, vT, vT + 2))
e("v_mov_b32 v%d, v%d" % (vT + 1, vT))
e("v_permlane16_swap_b32 v%d, v%d" % (vT, vT + 1))
e("v_add_f32 v%d, v%d, v%d" % (vT, vT, vT + 1))
e("v_mov_b32_dpp v%d, v%d row_shl:1 row_mask:0xf bank_mask:0xf bound_ctrl:0" % (vT + 1, vT))
e("v_cvt_pk_bf16_f32 v%d, v%d, v%d" % (vT, vT, vT + 1))
e("v_min_u32 v%d, -2, v%d" % (vT, vT))
setexec(0x5555)
e("buffer_store_dword v%d, v%d, %s, s%d offen sc1" % (vT, vOutA, srd(S_WS), sT0))
setexec(-1)
stamp(8)
if DIAG:
    e("v_mov_b32 v%d, 0" % vA0)
    e("ds_read_b32 v%d, v%d offset:%d" % (vA0, vA0, L_LN))
    e("s_waitcnt lgkmcnt(0)")
    e("v_readfirstlane_b32 s%d, v%d" % (sTS, vA0))
    e("s_nop 3")
    e("v_writelane_b32 v%d, s%d, 11" % (vTSV, sTS))
e("s_cmp_ge_u32 s2, 120")
e("s_cbranch_scc1 L_fin")
e("v_lshrrev_b32 v%d, 2, v%d" % (vC2a, vN))
e("v_lshl_add_u32 v%d, v%d, 3, v%d" % (vC2a, vG, vC2a))
e("v_lshlrev_b32 v%d, 7, v%d" % (vC2a, vC2a))
e("v_lshl_add_u32 v%d, v%d, 3, v%d" % (vC2a, vA1, vC2a))
e("s_lshl_b32 s%d, s%d, 12" % (sT0, sW))
e("s_add_u32 s%d, s%d, %d" % (sT0, sT0, L_WO))
e("v_add_u32 v%d, s%d, v%d" % (vC2a, sT0, vC2a))
vBO = 48
for j in range(2):
    for t in range(4):
        for u in range(2):
            e("ds_read_b64_tr_b16 %s, v%d offset:%d" % (vr(vBO + 16 * j + 4 * t + 2 * u, 2), vC2a, 32768 * j + 512 * u + 32 * t))
    if j == 0: e("s_waitcnt lgkmcnt(0)")
e("v_lshlrev_b32 v%d, 8, v%d" % (vA0, vN))
e("v_lshl_add_u32 v%d, v%d, 4, v%d" % (vA0, vG, vA0))
e("s_add_u32 s%d, s%d, s%d" % (sT1, sUS, sW))
e("s_lshr_b32 s%d, s%d, 2" % (sT0, sT1))
e("s_lshl_b32 s%d, s%d, 10" % (sT0, sT0))
e("s_and_b32 s%d, s%d, 3" % (sT1, sT1))
e("s_lshl_b32 s%d, s%d, 6" % (sT1, sT1))
e("s_add_u32 s%d, s%d, s%d" % (sT0, sT0, sT1))
e("s_add_u32 s%d, s%d, %d" % (sT0, sT0, CP))
for k in range(8): e("v_mov_b32 v%d, 0" % (vG0 + k))
e("s_mov_b32 s%d, 0x000f000f" % sE0)
e("s_mov_b32 s%d, 0x000f000f" % (sE0 + 1))
e("s_add_u32 s%d, s%d, 8" % (sT1, sW))
e("s_cmp_lt_u32 s%d, s%d" % (sT1, sNU))
e("s_cselect_b64 %s, %s, 0" % (sp(sE1), sp(sE0)))
e("s_cselect_b32 s%d, 1, 0" % sT4)
e("v_lshlrev_b32 v%d, 2, v%d" % (vA1, vLANE))
e("s_lshl_b32 s%d, s%d, 8" % (sT1, sW))
e("v_add_u32 v%d, s%d, v%d" % (vA2, sT1, vA1))
e("s_lshl_b32 s%d, s2, 6" % sT2)
e("s_add_u32 s%d, s%d, %d" % (sT2, sT2, EWC))
if opt("d4", 0): e("s_sleep %d" % opt("d4", 0))
poll([("buffer_load_dwordx4 %s, v%d, %s, s%d offen offset:%d sc1" % (vr(vG0 + 4 * j, 4), vA0, srd(S_WS), sT0, 2048 * j), vG0 + 4 * j, 4) for j in range(2)], sleep=1, init_masks=[sp(sE0), sp(sE1)])
lr = e.newlabel("L_ew")
e("s_cmp_lg_u32 s%d, 0" % sW)
e("s_cbranch_scc1 %s" % lr)
store1(sT2)
e(lr + ":")
stamp(9)
e("s_waitcnt lgkmcnt(0)")
for t in range(4):
    e("v_mfma_f32_16x16x32_bf16 %s, %s, %s, 0" % (vr(vT + 4 * t, 4), vr(vG0, 4), vr(vBO + 4 * t, 4)))
l2u = e.newlabel("L_2u")
e("s_cmp_eq_u32 s%d, 0" % sT4)
e("s_cbranch_scc1 %s" % l2u)
for t in range(4):
    e("v_mfma_f32_16x16x32_bf16 %s, %s, %s, %s" % (vr(vT + 4 * t, 4), vr(vG0 + 4, 4), vr(vBO + 16 + 4 * t, 4), vr(vT + 4 * t, 4)))
e(l2u + ":")
e("s_lshl_b32 s%d, s2, 8" % sT0)
e("s_add_u32 s%d, s%d, %d" % (sT0, sT0, HP))
setexec(0xffff)
e("s_nop 4")
for t in range(4):
    b = vT + 4 * t
    e("v_add_f32 v%d, v%d, v%d" % (b, b, b + 1))
    e("v_add_f32 v%d, v%d, v%d" % (b + 2, b + 2, b + 3))
    e("v_add_f32 v%d, v%d, v%d" % (b, b, b + 2))
    e("ds_write_b32 v%d, v%d offset:%d" % (vA2, b, L_RED + 64 * t))
setexec(-1)
e("s_waitcnt lgkmcnt(0)")
e("s_barrier")
e("s_cmp_lg_u32 s%d, 0" % sW)
e("s_cbranch_scc1 L_fin")
for i in range(8):
    e("ds_read_b32 v%d, v%d offset:%d" % (vG0 + i, vA1, L_RED + 256 * i))
e("s_waitcnt lgkmcnt(0)")
for st in (4, 2, 1):
    for i in range(st):
        e("v_add_f32 v%d, v%d, v%d" % (vG0 + i, vG0 + i, vG0 + i + st))
e("v_min_u32 v%d, -2, v%d" % (vG0, vG0))
e("buffer_store_dword v%d, v%d, %s, s%d offen sc1" % (vG0, vA1, srd(S_WS), sT0))
stamp(10)
e("s_branch L_fin")

vCA, vCB, vGQ, vACC, vP = 48, 112, 176, 208, 224
e("L_Y:")
l5 = e.newlabel("L_c"); l6 = e.newlabel("L_c"); l7 = e.newlabel("L_c")
e("s_cmp_lt_u32 s2, 248")
e("s_cbranch_scc1 %s" % l5)
e("s_lshl_b32 s%d, s%d, 13" % (sT2, sB))
e("s_lshl_b32 s%d, s%d, 10" % (sT3, sW))
e("s_add_u32 s%d, s%d, s%d" % (sT2, sT2, sT3))
e("s_add_u32 s%d, s%d, %d" % (sT2, sT2, QP))
e("buffer_store_dwordx4 %s, v%d, %s, s%d offen sc1" % (vr(vCL, 4), vL16, srd(S_WS), sT2))
e("s_lshl_b32 s%d, s%d, 12" % (sT2, sB))
e("s_and_b32 s%d, s%d, 3" % (sT3, sW))
e("s_lshl_b32 s%d, s%d, 10" % (sT3, sT3))
e("s_add_u32 s%d, s%d, s%d" % (sT2, sT2, sT3))
e("s_lshr_b32 s%d, s%d, 2" % (sT3, sW))
e("s_lshl_b32 s%d, s%d, 15" % (sT3, sT3))
e("s_add_u32 s%d, s%d, s%d" % (sT2, sT2, sT3))
e("buffer_store_dwordx4 %s, v%d, %s, s%d offen sc1" % (vr(vCL, 4), vL16, srd(S_WS), sT2))
e("s_cmp_lg_u32 s%d, 7" % sW)
e("s_cbranch_scc1 %s" % l6)
e("s_lshl_b32 s%d, s%d, 10" % (sT2, sB))
e("s_add_u32 s%d, s%d, %d" % (sT2, sT2, EWA))
e("buffer_store_dwordx4 %s, v%d, %s, s%d offen sc1" % (vr(vCL, 4), vL16, srd(S_WS), sT2))
e(l6 + ":")
e("s_waitcnt vmcnt(0)")
e("s_barrier")
e("s_cmp_lg_u32 s%d, 0" % sW)
e("s_cbranch_scc1 %s" % l7)
e("s_lshl_b32 s%d, s%d, 5" % (sT2, sB))
e("v_mov_b32 v%d, 1" % vA3)
setexec(1)
e("buffer_store_dword v%d, v%d, %s, s%d offen sc1" % (vA3, vL16, srd(S_DBG), sT2))
setexec(-1)
stamp(17)
e(l7 + ":")
e("s_barrier")
e(l5 + ":")
e("s_lshl_b32 s%d, s%d, 3" % (sKS, sB))
e("s_lshr_b32 s%d, s%d, 1" % (sT0, sA))
e("s_add_u32 s%d, s%d, s%d" % (sKS, sKS, sT0))
e("s_and_b32 s%d, s%d, 1" % (sHF, sA))
e("s_lshl_b32 s%d, s%d, 1" % (sYI, sKS))
e("s_add_u32 s%d, s%d, s%d" % (sYI, sYI, sHF))
e("s_lshr_b32 s%d, s%d, 2" % (sT1, sA))
e("s_lshl_b32 s%d, s%d, 3" % (sT1, sT1))
e("s_add_u32 s%d, s%d, s%d" % (sT1, sT1, sB))
e("s_and_b32 s%d, s%d, 3" % (sT0, sA))
e("s_lshl_b32 s%d, s%d, 2" % (sRD, sT1))
e("s_add_u32 s%d, s%d, s%d" % (sRD, sRD, sT0))
e("s_cmp_lt_u32 s%d, 27" % sT1)
e("s_cselect_b32 s%d, 1, 0" % sISD)
e("s_cmp_lt_u32 s%d, 20" % sT1)
e("s_cselect_b32 s%d, 1, 0" % sFIN)
e("s_cmp_eq_u32 s%d, 0" % sT0)
e("s_cselect_b32 s%d, s%d, 0" % (sFIN, sFIN))
def y_dma():
    e("s_lshl_b32 s%d, s%d, 7" % (sT0, sKS))
    e("s_lshl_b32 s%d, s%d, 4" % (sT2, sW))
    e("s_add_u32 s%d, s%d, s%d" % (sT0, sT0, sT2))
    e("s_lshl_b32 s%d, s%d, 10" % (sT0, sT0))
    e("s_mul_i32 s%d, s%d, %d" % (sT2, sT2, RS))
    e("s_add_u32 s%d, s%d, %d" % (sT2, sT2, L_CK))
    for j in range(2):
        e("s_xor_b32 s%d, s%d, %d" % (sT3, sHF, j))
        e("s_lshl_b32 s%d, s%d, 13" % (sT1, sT3))
        e("s_add_u32 s%d, s%d, s%d" % (sT1, sT1, sT0))
        e("s_mul_i32 s%d, s%d, %d" % (sT3, sT3, 8 * RS))
        e("s_add_u32 s%d, s%d, s%d" % (sT3, sT3, sT2))
        for i in range(8):
            e("s_mov_b32 m0, s%d" % sT3)
            e("buffer_load_dwordx4 v%d, %s, s%d offen%s lds" % (vL16, srd(S_CKV), sT1, NTC))
            if i < 7:
                e("s_add_u32 s%d, s%d, 1024" % (sT1, sT1))
                e("s_add_u32 s%d, s%d, %d" % (sT3, sT3, RS))
def y_pclr():
    e("s_lshl_b32 s%d, s%d, 14" % (sT0, sYI))
    e("s_lshl_b32 s%d, s%d, 11" % (sT1, sW))
    e("s_add_u32 s%d, s%d, s%d" % (sT0, sT0, sT1))
    e("s_add_u32 s%d, s%d, %d" % (sT0, sT0, PART))
    for i in range(2):
        e("buffer_store_dwordx4 %s, v%d, %s, s%d offen offset:%d sc1" % (vr(vCL, 4), vL16, srd(S_WS), sT0, 1024 * i))
def y_clr():
    if not opt("ypc", 1): y_pclr()
    l3 = e.newlabel("L_c")
    e("s_cmp_eq_u32 s%d, 0" % sISD)
    e("s_cbranch_scc1 %s" % l3)
    e("s_cmp_gt_u32 s%d, 2" % sW)
    e("s_cbranch_scc1 %s" % l3)
    e("s_mul_i32 s%d, s%d, 2560" % (sT0, sRD))
    e("s_add_u32 s%d, s%d, %d" % (sT0, sT0, OP))
    e("v_lshlrev_b32 v%d, 4, v0" % vA3)
    e("v_cmp_gt_u32 vcc, 160, v0")
    e("s_mov_b64 exec, vcc")
    e("buffer_store_dwordx4 %s, v%d, %s, s%d offen sc1" % (vr(vCL, 4), vA3, srd(S_WS), sT0))
    setexec(-1)
    e(l3 + ":")
if opt("yord", 0):
    y_clr()
    e("s_waitcnt vmcnt(0)")
    for _ in range(opt("ydel", 0)): e("s_sleep 16")
    y_dma()
else:
    for _ in range(opt("ydel", 0)): e("s_sleep 16")
    y_dma()
    y_clr()
vFr = 43
e("v_mul_u32_u24 v%d, %d, v%d" % (vFr, RS, vN))
e("v_lshl_add_u32 v%d, v%d, 4, v%d" % (vFr, vG, vFr))
e("s_mul_i32 s%d, s%d, %d" % (sT0, sW, 16 * RS))
e("s_add_u32 s%d, s%d, %d" % (sT0, sT0, L_CK))
e("v_add_u32 v%d, s%d, v%d" % (vA1, sT0, vFr))
lr = e.newlabel("L_r")
e("s_cmp_lg_u32 s%d, 0" % sW)
e("s_cbranch_scc1 %s" % lr)
flag_check()
e(lr + ":")
e("s_waitcnt vmcnt(0)")
stamp(1)
if opt("ypc", 1): y_pclr()
for ks in range(16):
    e("ds_read_b128 %s, v%d offset:%d" % (vr(vCA + 4 * ks, 4), vA1, 64 * ks))
    if ks == 7: e("s_waitcnt lgkmcnt(0)")
e("s_barrier")
stamp(2)
e("s_lshl_b32 s%d, s%d, 4" % (sT0, sHF))
e("s_lshl_b32 s%d, s%d, 1" % (sT1, sW))
e("s_add_u32 s%d, s%d, s%d" % (sT0, sT0, sT1))
e("s_lshl_b32 s%d, s%d, 10" % (sT2, sT0))
for k in range(2):
    e("buffer_load_dwordx4 %s, v%d, %s, s%d offen offset:%d sc1" % (vr(vGQ + 4 * k, 4), vL16, srd(S_WS), sT2, 1024 * k))
e("v_lshrrev_b32 v%d, 2, v%d" % (vA1, vN))
e("v_lshl_add_u32 v%d, v%d, 3, v%d" % (vA1, vG, vA1))
e("v_mul_u32_u24 v%d, %d, v%d" % (vA1, RS, vA1))
e("v_and_b32 v%d, 3, v%d" % (vA3, vN))
e("v_lshl_add_u32 v%d, v%d, 3, v%d" % (vA1, vA3, vA1))
e("s_lshl_b32 s%d, s%d, 7" % (sT0, sW))
e("s_add_u32 s%d, s%d, %d" % (sT0, sT0, L_CK))
e("v_add_u32 v%d, s%d, v%d" % (vA1, sT0, vA1))
e("v_add_u32 v%d, %d, v%d" % (vA2, 64 * RS, vA1))
e("s_waitcnt lgkmcnt(0)")
cnt = 0
for t in range(4):
    for kk in range(4):
        for u in range(2):
            e("ds_read_b64_tr_b16 %s, v%d offset:%d" % (vr(vCB + 16 * t + 4 * kk + 2 * u, 2), vA1 if kk < 2 else vA2, (32 * (kk & 1) + 4 * u) * RS + 32 * t))
            cnt += 1
            if cnt % 8 == 0: e("s_waitcnt lgkmcnt(0)")
vQSw, vQSr, vMXa, vPw, vPr, vPo = 240 - 16 + 16, 0, 0, 0, 0, 0
vQSw, vQSr, vMXa, vPw, vPr, vPo = vT + 20, vT + 21, vT + 22, vT + 23, vT + 24, vT + 25
e("s_mul_i32 s%d, s%d, %d" % (sT0, sW, 2 * RS))
e("s_add_u32 s%d, s%d, %d" % (sT0, sT0, L_QS))
e("v_add_u32 v%d, s%d, v%d" % (vQSw, sT0, vL16))
e("v_add_u32 v%d, %d, v%d" % (vQSr, L_QS, vFr))
e("v_lshlrev_b32 v%d, 5, v%d" % (vMXa, vN))
e("v_mul_u32_u24 v%d, %d, v%d" % (vPr, PRS, vN))
e("v_lshl_add_u32 v%d, v%d, 3, v%d" % (vPw, vG, vPr))
e("s_lshl_b32 s%d, s%d, 5" % (sT0, sW))
e("v_add_u32 v%d, s%d, v%d" % (vPw, sT0, vPw))
e("v_lshl_add_u32 v%d, v%d, 4, v%d" % (vPr, vG, vPr))
e("v_lshlrev_b32 v%d, 12, v%d" % (vPo, vG))
e("v_lshl_add_u32 v%d, v%d, 3, v%d" % (vPo, vN, vPo))
e("s_lshl_b32 s%d, s%d, 2" % (sT4, sW))
e("v_add_u32 v%d, s%d, v%d" % (vT + 26, sT4, vMXa))
e("v_lshlrev_b32 v%d, 7, v%d" % (vT + 27, vN))
e("v_lshl_add_u32 v%d, v%d, 2, v%d" % (vT + 27, vG, vT + 27))
e("s_lshl_b32 s%d, s%d, 4" % (sT4, sW))
e("v_add_u32 v%d, s%d, v%d" % (vT + 27, sT4, vT + 27))
e("s_lshl_b32 s%d, s%d, 4" % (sT0, sHF))
e("s_lshl_b32 s%d, s%d, 1" % (sT1, sW))
e("s_add_u32 s%d, s%d, s%d" % (sT0, sT0, sT1))
e("s_lshl_b32 s%d, s%d, 10" % (sT2, sT0))
e("s_lshl_b32 s%d, s%d, 2" % (sT0, sT0))
e("s_and_b32 s%d, s%d, 7" % (sT1, sKS))
e("s_add_u32 s%d, s%d, s%d" % (sT0, sT0, sT1))
e("s_lshl_b32 s%d, s%d, 6" % (sT0, sT0))
e("s_add_u32 s%d, s%d, %d" % (sT0, sT0, EWA))
lq = e.newlabel("L_qok")
e("s_waitcnt vmcnt(0)")
e("v_max3_u32 v%d, v%d, v%d, v%d" % (vT, vGQ, vGQ + 1, vGQ + 2))
e("v_max3_u32 v%d, v%d, v%d, v%d" % (vT, vT, vGQ + 3, vGQ + 4))
e("v_max3_u32 v%d, v%d, v%d, v%d" % (vT, vT, vGQ + 5, vGQ + 6))
e("v_max_u32 v%d, v%d, v%d" % (vT, vT, vGQ + 7))
e("v_cmp_eq_u32 vcc, -1, v%d" % vT)
e("s_cbranch_vccz %s" % lq)
hint_wait(sT0, vGQ, opt("sl2", 3))
stamp(3)
poll([("buffer_load_dwordx4 %s, v%d, %s, s%d offen offset:%d sc1" % (vr(vGQ + 4 * k, 4), vL16, srd(S_WS), sT2, 1024 * k), vGQ + 4 * k, 4) for k in range(2)], sleep=1)
e(lq + ":")
stamp(4)
for k in range(2):
    e("ds_write_b128 v%d, %s offset:%d" % (vQSw, vr(vGQ + 4 * k, 4), RS * k))
e("s_waitcnt lgkmcnt(0)")
e("s_barrier")
sacc = vT
for half in range(2):
    for k in range(8):
        e("ds_read_b128 %s, v%d offset:%d" % (vr(vGQ + 4 * k, 4), vQSr, 64 * (8 * half + k)))
    for k in range(8):
        ks = 8 * half + k
        e("s_waitcnt lgkmcnt(%d)" % (7 - k))
        e("v_mfma_f32_16x16x32_bf16 %s, %s, %s, %s" % (vr(sacc, 4), vr(vCA + 4 * ks, 4), vr(vGQ + 4 * k, 4), "0" if ks == 0 else vr(sacc, 4)))
e("s_mov_b32 s%d, 0x3db504f3" % sT0)
e("v_cvt_pk_bf16_f32 v%d, v%d, v%d" % (vT + 4, sacc, sacc + 1))
e("v_cvt_pk_bf16_f32 v%d, v%d, v%d" % (vT + 5, sacc + 2, sacc + 3))
unpack(sacc, vT + 4, 2)
for i in range(4): e("v_mul_f32 v%d, s%d, v%d" % (sacc + i, sT0, sacc + i))
e("v_cvt_pk_bf16_f32 v%d, v%d, v%d" % (vT + 4, sacc, sacc + 1))
e("v_cvt_pk_bf16_f32 v%d, v%d, v%d" % (vT + 5, sacc + 2, sacc + 3))
unpack(sacc, vT + 4, 2)
mx = vT + 4
e("v_max3_f32 v%d, v%d, v%d, v%d" % (mx, sacc, sacc + 1, sacc + 2))
e("v_max_f32 v%d, v%d, v%d" % (mx, mx, sacc + 3))
allred_g(mx, vT + 5, "v_max_f32")
e("ds_write_b32 v%d, v%d offset:%d" % (vT + 26, mx, L_MX))
e("s_waitcnt lgkmcnt(0)")
e("s_barrier")
stamp(5)
e("ds_read_b128 %s, v%d offset:%d" % (vr(vT + 8, 4), vMXa, L_MX))
e("ds_read_b128 %s, v%d offset:%d" % (vr(vT + 12, 4), vMXa, L_MX + 16))
e("s_waitcnt lgkmcnt(0)")
e("v_max3_f32 v%d, v%d, v%d, v%d" % (mx, vT + 8, vT + 9, vT + 10))
e("v_max3_f32 v%d, v%d, v%d, v%d" % (vT + 5, vT + 11, vT + 12, vT + 13))
e("v_max3_f32 v%d, v%d, v%d, v%d" % (mx, mx, vT + 14, vT + 15))
e("v_max_f32 v%d, v%d, v%d" % (mx, mx, vT + 5))
e("v_mul_f32 v%d, s%d, v%d" % (vT + 6, sL2E, mx))
for i in range(4): e("v_fma_f32 v%d, v%d, s%d, -v%d" % (sacc + i, sacc + i, sL2E, vT + 6))
for i in range(4): e("v_exp_f32 v%d, v%d" % (sacc + i, sacc + i))
e("v_cvt_pk_bf16_f32 v%d, v%d, v%d" % (vT + 8, sacc, sacc + 1))
e("v_cvt_pk_bf16_f32 v%d, v%d, v%d" % (vT + 9, sacc + 2, sacc + 3))
e("ds_write_b64 v%d, %s offset:%d" % (vPw, vr(vT + 8, 2), L_P))
e("v_add_f32 v%d, v%d, v%d" % (sacc, sacc, sacc + 1))
e("v_add_f32 v%d, v%d, v%d" % (sacc + 2, sacc + 2, sacc + 3))
e("v_add_f32 v%d, v%d, v%d" % (sacc, sacc, sacc + 2))
e("ds_write_b32 v%d, v%d offset:%d" % (vT + 27, sacc, L_SUM))
e("s_waitcnt lgkmcnt(0)")
e("s_barrier")
for kk in range(4):
    e("ds_read_b128 %s, v%d offset:%d" % (vr(vP + 4 * kk, 4), vPr, L_P + 64 * kk))
ls_ = e.newlabel("L_st")
e("s_cmp_lg_u32 s%d, 7" % sW)
e("s_cbranch_scc1 %s" % ls_)
e("v_lshlrev_b32 v%d, 7, v%d" % (vA1, vN))
e("v_lshl_add_u32 v%d, v%d, 5, v%d" % (vA1, vG, vA1))
e("ds_read_b128 %s, v%d offset:%d" % (vr(vT + 8, 4), vA1, L_SUM))
e("ds_read_b128 %s, v%d offset:%d" % (vr(vT + 12, 4), vA1, L_SUM + 16))
e("s_lshl_b32 s%d, s%d, 7" % (sT0, sYI))
e("s_add_u32 s%d, s%d, %d" % (sT0, sT0, STAT))
e("v_lshlrev_b32 v%d, 3, v%d" % (vA1, vN))
e("s_waitcnt lgkmcnt(0)")
for st in (4, 2, 1):
    for i in range(st): e("v_add_f32 v%d, v%d, v%d" % (vT + 8 + i, vT + 8 + i, vT + 8 + i + st))
allred_g(vT + 8, vT + 9)
e("v_min_u32 v%d, -2, v%d" % (mx, mx))
e("v_min_u32 v%d, -2, v%d" % (mx + 1, vT + 8))
setexec(0xffff)
e("buffer_store_dwordx2 %s, v%d, %s, s%d offen sc1" % (vr(mx, 2), vA1, srd(S_WS), sT0))
setexec(-1)
e(ls_ + ":")
e("s_lshl_b32 s%d, s%d, 14" % (sT0, sYI))
e("s_lshl_b32 s%d, s%d, 7" % (sT1, sW))
e("s_add_u32 s%d, s%d, s%d" % (sT0, sT0, sT1))
e("s_add_u32 s%d, s%d, %d" % (sT0, sT0, PART))
for kk in range(4):
    e("s_waitcnt lgkmcnt(%d)" % (3 - kk))
    for t in range(4):
        a = vACC + 4 * t
        e("v_mfma_f32_16x16x32_bf16 %s, %s, %s, %s" % (vr(a, 4), vr(vP + 4 * kk, 4), vr(vCB + 16 * t + 4 * kk, 4), "0" if kk == 0 else vr(a, 4)))
for i in range(4):
    o = vT + 8 + 2 * i
    e("v_cvt_pk_bf16_f32 v%d, v%d, v%d" % (o, vACC + i, vACC + 4 + i))
    e("v_cvt_pk_bf16_f32 v%d, v%d, v%d" % (o + 1, vACC + 8 + i, vACC + 12 + i))
    e("v_min_u32 v%d, -2, v%d" % (o, o))
    e("v_min_u32 v%d, -2, v%d" % (o + 1, o + 1))
    e("buffer_store_dwordx2 %s, v%d, %s, s%d offen offset:%d sc1" % (vr(o, 2), vPo, srd(S_WS), sT0, 1024 * i))
stamp(6)
e("s_cmp_eq_u32 s%d, 0" % sISD)
e("s_cbranch_scc1 L_fin")
vW2, vW2p, vB1, vXD, vGH = 48, 64, 80, 110, 112
e("s_barrier")
lw1 = e.newlabel("L_w1")
e("s_cmp_ge_u32 s%d, 4" % sW)
e("s_cbranch_scc1 %s" % lw1)
e("v_lshrrev_b32 v%d, 1, v%d" % (vA0, vLANE))
e("v_mul_u32_u24 v%d, 3456, v%d" % (vA0, vA0))
e("v_and_b32 v%d, 1, v%d" % (vA1, vLANE))
e("v_lshl_add_u32 v%d, v%d, 4, v%d" % (vA0, vA1, vA0))
e("s_mul_i32 s%d, s%d, %d" % (sT0, sW, 160 * 3456))
e("s_lshl_b32 s%d, s%d, 5" % (sT1, sRD))
e("s_add_u32 s%d, s%d, s%d" % (sT0, sT0, sT1))
e("s_mul_i32 s%d, s%d, 5120" % (sT2, sW))
e("s_add_u32 s%d, s%d, %d" % (sT2, sT2, L_W1))
for k in range(5):
    e("s_mov_b32 m0, s%d" % sT2)
    e("buffer_load_dwordx4 v%d, %s, s%d offen lds" % (vA0, srd(S_W1), sT0))
    if k < 4:
        e("s_add_u32 s%d, s%d, %d" % (sT0, sT0, 32 * 3456))
        e("s_add_u32 s%d, s%d, 1024" % (sT2, sT2))
e(lw1 + ":")
lw2 = e.newlabel("L_w2")
e("v_lshlrev_b32 v%d, 2, v0" % vA0)
e("s_cmp_ge_u32 s%d, 5" % sW)
e("s_cbranch_scc1 %s" % lw2)
e("s_mul_i32 s%d, s%d, %d" % (sT0, sRD, 16 * 1280))
for r in range(16):
    e("buffer_load_dword v%d, v%d, %s, s%d offen offset:%d%s" % (vW2 + r, vA0, srd(S_W2), sT0, (r % 3) * 1280, NT))
    if r % 3 == 2: e("s_add_u32 s%d, s%d, 3840" % (sT0, sT0))
e("buffer_load_dword v%d, v%d, %s, 0 offen" % (vXD, vA0, srd(S_X)))
e("v_mov_b32 v%d, 0x3f803f80" % vA1)
e("ds_write_b32 v%d, v%d offset:%d" % (vA0, vA1, L_ONES))
e(lw2 + ":")
lo = e.newlabel("L_oh")
e("s_cmp_lg_u32 s%d, 7" % sW)
e("s_cbranch_scc1 %s" % lo)
e("v_lshlrev_b32 v%d, 8, v%d" % (vA0, vLANE))
e("s_xor_b32 s%d, s%d, 1" % (sT0, sHF))
e("s_lshl_b32 s%d, s%d, 14" % (sT0, sT0))
poll([("buffer_load_dword v%d, v%d, %s, s%d offen sc1" % (vGH, vA0, srd(S_WS), sT0), vGH, 1)], sleep=8)
e(lo + ":")
e("v_lshlrev_b32 v%d, 2, v0" % vA0)
e("s_waitcnt vmcnt(0) lgkmcnt(0)")
e("s_barrier")
lp5 = e.newlabel("L_p5"); lpd = e.newlabel("L_pd")
e("s_cmp_ge_u32 s%d, 5" % sW)
e("s_cbranch_scc1 %s" % lp5)
e("s_mov_b32 s%d, 0x05040100" % sT0)
e("s_mov_b32 s%d, 0x07060302" % sT1)
for j in range(8):
    e("v_perm_b32 v%d, v%d, v%d, s%d" % (vW2p + 2 * j, vW2 + 2 * j + 1, vW2 + 2 * j, sT0))
    e("v_perm_b32 v%d, v%d, v%d, s%d" % (vW2p + 2 * j + 1, vW2 + 2 * j + 1, vW2 + 2 * j, sT1))
unpack(vXD, vXD, 1) if False else None
e("v_and_b32 v%d, 0xffff0000, v%d" % (vXD + 1, vXD))
e("v_lshlrev_b32 v%d, 16, v%d" % (vXD, vXD))
e("s_branch %s" % lpd)
e(lp5 + ":")
e("v_lshrrev_b32 v%d, 2, v%d" % (vA1, vN))
e("v_lshl_add_u32 v%d, v%d, 3, v%d" % (vA1, vG, vA1))
e("v_lshlrev_b32 v%d, 5, v%d" % (vA1, vA1))
e("v_and_b32 v%d, 3, v%d" % (vA2, vN))
e("v_lshl_add_u32 v%d, v%d, 3, v%d" % (vA1, vA2, vA1))
e("s_sub_u32 s%d, s%d, 5" % (sT0, sW))
e("s_mul_i32 s%d, s%d, 7168" % (sT1, sT0))
e("v_add_u32 v%d, s%d, v%d" % (vA1, sT1, vA1))
for j in range(7):
    for u in range(2):
        e("ds_read_b64_tr_b16 %s, v%d offset:%d" % (vr(vB1 + 4 * j + 2 * u, 2), vA1, L_W1 + 1024 * j + 128 * u))
e("v_lshlrev_b32 v%d, 4, v%d" % (vA2, vG))
e("s_mul_i32 s%d, s%d, 448" % (sT1, sT0))
e("v_add_u32 v%d, s%d, v%d" % (vA2, sT1, vA2))
e("v_add_u32 v%d, %d, v%d" % (vA3, L_ONES - L_HB, vA2))
e("v_cmp_eq_u32 vcc, 1, v%d" % vN)
e("v_cndmask_b32 v%d, v%d, v%d, vcc" % (vA2, vA2, vA3))
e("s_waitcnt lgkmcnt(0)")
e(lpd + ":")
stamp(7)
lh = e.newlabel("L_dh")
e("s_cmp_ge_u32 s%d, 5" % sW)
e("s_cbranch_scc1 %s" % lh)
e("s_lshl_b32 s%d, s%d, 6" % (sT0, sRD))
e("s_add_u32 s%d, s%d, %d" % (sT0, sT0, EWC))
hint_wait(sT0, vGH, opt("sl5", 4))
stamp(8)
e("v_lshlrev_b32 v%d, 3, v0" % vA1)
for k in range(6): e("s_mov_b32 s%d, %d" % (sF + k, HP + 2 * 2560 * k))
if opt("d5", 0): e("s_sleep %d" % opt("d5", 0))
poll([("buffer_load_dwordx2 %s, v%d, %s, s%d offen sc1\nbuffer_load_dwordx2 %s, v%d, %s, s%d offen offset:2560 sc1" % (vr(vGH + 4 * k, 2), vA1, srd(S_WS), sF + k, vr(vGH + 4 * k + 2, 2), vA1, srd(S_WS), sF + k), vGH + 4 * k, 4) for k in range(6)], sleep=1)
stamp(9)
for i in range(6):
    e("v_pk_add_f32 %s, %s, %s" % (vr(vGH + 2 * i, 2), vr(vGH + 2 * i, 2), vr(vGH + 2 * (i + 6), 2)))
for i in range(3):
    e("v_pk_add_f32 %s, %s, %s" % (vr(vGH + 2 * i, 2), vr(vGH + 2 * i, 2), vr(vGH + 2 * (i + 3), 2)))
e("v_pk_add_f32 %s, %s, %s" % (vr(vGH, 2), vr(vGH, 2), vr(vGH + 2, 2)))
e("v_pk_add_f32 %s, %s, %s" % (vr(vGH, 2), vr(vGH, 2), vr(vGH + 4, 2)))
e("v_cvt_pk_bf16_f32 v%d, v%d, v%d" % (vT, vGH, vGH + 1))
unpack(vGH, vT, 1)
e("v_pk_add_f32 %s, %s, %s" % (vr(vGH, 2), vr(vGH, 2), vr(vXD, 2)))
e("v_cvt_pk_bf16_f32 v%d, v%d, v%d" % (vT, vGH, vGH + 1))
e("ds_write_b32 v%d, v%d offset:%d" % (vA0, vT, L_HB))
unpack(vGH, vT, 1)
e("s_waitcnt lgkmcnt(0)")
e(lh + ":")
e("s_barrier")
lm = e.newlabel("L_dm"); lj = e.newlabel("L_dj")
e("s_cmp_ge_u32 s%d, 5" % sW)
e("s_cbranch_scc1 %s" % lm)
e("ds_write_b64 v%d, %s offset:%d" % (vA1, vr(vGH, 2), L_HF))
e("v_add_f32 v%d, v%d, v%d" % (vT, vGH, vGH + 1))
wave_red([vT], [sT0])
e("v_mov_b32 v%d, s%d" % (vT + 2, sT0))
e("v_mul_f32 v%d, 0x3c000000, v%d" % (vT + 2, vT + 2))
e("v_sub_f32 v%d, v%d, v%d" % (vT, vGH, vT + 2))
e("v_sub_f32 v%d, v%d, v%d" % (vT + 1, vGH + 1, vT + 2))
e("v_mul_f32 v%d, v%d, v%d" % (vT, vT, vT))
e("v_fmac_f32 v%d, v%d, v%d" % (vT, vT + 1, vT + 1))
wave_red([vT], [sT0])
e("v_mov_b32 v%d, s%d" % (vT + 3, sT0))
e("s_lshl_b32 s%d, s%d, 3" % (sT0, sW))
e("v_mov_b32 v%d, s%d" % (vT + 4, sT0))
setexec(1)
e("ds_write_b64 v%d, %s offset:%d" % (vT + 4, vr(vT + 2, 2), L_ST))
setexec(-1)
e("s_branch %s" % lj)
e(lm + ":")
for j in range(7):
    e("ds_read_b128 %s, v%d offset:%d" % (vr(vGH + 4 * j, 4), vA2, L_HB + 64 * j))
lz = e.newlabel("L_z")
for j in range(7):
    if j == 6:
        e("s_cmp_eq_u32 s%d, 7" % sW)
        e("s_cbranch_scc1 %s" % lz)
    e("s_waitcnt lgkmcnt(%d)" % (6 - j))
    e("v_mfma_f32_16x16x32_bf16 %s, %s, %s, %s" % (vr(vT, 4), vr(vGH + 4 * j, 4), vr(vB1 + 4 * j, 4), "0" if j == 0 else vr(vT, 4)))
e(lz + ":")
e("v_lshlrev_b32 v%d, 3, v%d" % (vA1, vN))
e("s_sub_u32 s%d, s%d, 5" % (sT0, sW))
e("s_lshl_b32 s%d, s%d, 7" % (sT0, sT0))
e("v_add_u32 v%d, s%d, v%d" % (vA1, sT0, vA1))
setexec(0xffff)
e("ds_write_b64 v%d, %s offset:%d" % (vA1, vr(vT, 2), L_RED))
setexec(-1)
e(lj + ":")
e("s_waitcnt lgkmcnt(0)")
e("s_barrier")
stamp(10)
ld2 = e.newlabel("L_d2")
e("s_cmp_ge_u32 s%d, 5" % sW)
e("s_cbranch_scc1 %s" % ld2)
e("v_mov_b32 v%d, 0" % vA2)
e("v_lshlrev_b32 v%d, 3, v%d" % (vA3, vN))
st_ = vT + 8
e("ds_read_b128 %s, v%d offset:%d" % (vr(st_, 4), vA2, L_ST))
e("ds_read_b128 %s, v%d offset:%d" % (vr(st_ + 4, 4), vA2, L_ST + 16))
e("ds_read_b64 %s, v%d offset:%d" % (vr(st_ + 8, 2), vA2, L_ST + 32))
for k in range(3):
    e("ds_read_b64 %s, v%d offset:%d" % (vr(vT + 20 + 2 * k, 2), vA3, L_RED + 128 * k))
e("s_waitcnt lgkmcnt(3)")
mean, m2 = vT, vT + 1
e("v_pk_add_f32 %s, %s, %s" % (vr(vT, 2), vr(st_, 2), vr(st_ + 2, 2)))
e("v_pk_add_f32 %s, %s, %s" % (vr(vT + 2, 2), vr(st_ + 4, 2), vr(st_ + 6, 2)))
e("v_pk_add_f32 %s, %s, %s" % (vr(vT, 2), vr(vT, 2), vr(st_ + 8, 2)))
e("v_pk_add_f32 %s, %s, %s" % (vr(vT, 2), vr(vT, 2), vr(vT + 2, 2)))
e("v_mul_f32 v%d, 0x3e4ccccd, v%d" % (mean, mean))
e("v_mov_b32 v%d, 0" % (vT + 2))
for k in range(5):
    e("v_sub_f32 v%d, v%d, v%d" % (vT + 3, st_ + 2 * k, mean))
    e("v_fmac_f32 v%d, v%d, v%d" % (vT + 2, vT + 3, vT + 3))
e("v_fmac_f32 v%d, 0x43000000, v%d" % (m2, vT + 2))
e("v_mul_f32 v%d, 0x3acccccd, v%d" % (m2, m2))
rbf(mean, mean); rbf(m2, m2)
e("v_add_f32 v%d, 0x3727c5ac, v%d" % (m2, m2))
rbf(m2, m2)
e("v_sqrt_f32 v%d, v%d" % (m2, m2))
rbf(m2, m2)
e("v_rcp_f32 v%d, v%d" % (m2, m2))
e("s_waitcnt lgkmcnt(0)")
e("v_pk_add_f32 %s, %s, %s" % (vr(vT + 20, 2), vr(vT + 20, 2), vr(vT + 22, 2)))
e("v_pk_add_f32 %s, %s, %s" % (vr(vT + 20, 2), vr(vT + 20, 2), vr(vT + 24, 2)))
e("v_fma_f32 v%d, -v%d, v%d, v%d" % (vT + 20, mean, vT + 21, vT + 20))
e("v_mul_f32 v%d, v%d, v%d" % (vT + 20, vT + 20, m2))
e("v_max_f32 v%d, 0, v%d" % (vT + 20, vT + 20))
e("v_mov_b32_dpp v%d, v%d row_shl:1 row_mask:0xf bank_mask:0xf bound_ctrl:0" % (vT + 21, vT + 20))
e("v_cvt_pk_bf16_f32 v%d, v%d, v%d" % (vT + 20, vT + 20, vT + 21))
for j in range(8):
    e("v_readlane_b32 s%d, v%d, %d" % (sF + j, vT + 20, 2 * j))
e("v_mov_b32 v%d, 0" % (vT + 2))
e("v_mov_b32 v%d, 0" % (vT + 3))
for j in range(8):
    for k in range(2):
        e("v_dot2c_f32_bf16 v%d, s%d, v%d" % (vT + 2 + k, sF + j, vW2p + 2 * j + k))
e("s_mul_i32 s%d, s%d, 2560" % (sT0, sRD))
e("s_add_u32 s%d, s%d, %d" % (sT0, sT0, OP))
e("v_min_u32 v%d, -2, v%d" % (vT + 2, vT + 2))
e("v_min_u32 v%d, -2, v%d" % (vT + 3, vT + 3))
e("buffer_store_dwordx2 %s, v%d, %s, s%d offen sc1" % (vr(vT + 2, 2), vA1, srd(S_WS), sT0))
e(ld2 + ":")
stamp(11)
e("s_cmp_eq_u32 s%d, 0" % sFIN)
e("s_cbranch_scc1 L_fin")
e("v_lshrrev_b32 v%d, 3, v%d" % (vA1, vLANE))
e("v_mul_u32_u24 v%d, 2560, v%d" % (vA0, vA1))
e("v_and_b32 v%d, 7, v%d" % (vA3, vLANE))
e("v_lshl_add_u32 v%d, v%d, 4, v%d" % (vA0, vA3, vA0))
e("s_mul_i32 s%d, s%d, %d" % (sT0, sW, 16 * 2560))
e("s_lshl_b32 s%d, s%d, 5" % (sT1, sRD))
e("s_add_u32 s%d, s%d, s%d" % (sT0, sT0, sT1))
e("s_add_u32 s%d, s%d, %d" % (sT0, sT0, OP))
e("s_add_u32 s%d, s%d, %d" % (sT2, sT0, 8 * 2560))
e("s_lshl_b32 s%d, s%d, 4" % (sT3, sW))
e("v_add_u32 v%d, s%d, v%d" % (vA1, sT3, vA1))
for k in range(8): e("v_mov_b32 v%d, 0" % (vGH + k))
e("v_cmp_gt_u32 vcc, 108, v%d" % vA1)
e("s_mov_b64 %s, vcc" % sp(sE0))
e("v_cmp_gt_u32 vcc, 100, v%d" % vA1)
e("s_mov_b64 %s, vcc" % sp(sE1))
e("v_lshlrev_b32 v%d, 4, v%d" % (vA1, vA3))
e("v_lshl_add_u32 v%d, v%d, 2, v%d" % (vA1, vG, vA1))
e("s_lshl_b32 s%d, s%d, 7" % (sT3, sW))
e("v_add_u32 v%d, s%d, v%d" % (vA1, sT3, vA1))
if opt("d6", 0): e("s_sleep %d" % opt("d6", 0))
poll([("buffer_load_dwordx4 %s, v%d, %s, s%d offen sc1" % (vr(vGH + 4 * k, 4), vA0, srd(S_WS), [sT0, sT2][k]), vGH + 4 * k, 4) for k in range(2)], sleep=1, init_masks=[sp(sE0), sp(sE1)])
stamp(12)
e("v_pk_add_f32 %s, %s, %s" % (vr(vT, 2), vr(vGH, 2), vr(vGH + 4, 2)))
e("v_pk_add_f32 %s, %s, %s" % (vr(vT + 2, 2), vr(vGH + 2, 2), vr(vGH + 6, 2)))
rs_4to1(vT)
e("v_add_f32_dpp v%d, v%d, v%d row_ror:8 row_mask:0xf bank_mask:0xf" % (vT + 1, vT, vT))
setexec(0x00ff00ff00ff00ff)
e("ds_write_b32 v%d, v%d offset:%d" % (vA1, vT + 1, L_RED + 1024))
setexec(-1)
e("s_waitcnt lgkmcnt(0)")
e("s_barrier")
e("s_cmp_lg_u32 s%d, 0" % sW)
e("s_cbranch_scc1 L_fin")
e("v_lshlrev_b32 v%d, 2, v%d" % (vA0, vLANE))
e("v_add_u32 v%d, s%d, v%d" % (vA1, sT1, vA0))
setexec(0xffffffff)
for i in range(8):
    e("ds_read_b32 v%d, v%d offset:%d" % (vGH + i, vA0, L_RED + 1024 + 128 * i))
e("ds_read_b32 v%d, v%d offset:%d" % (vGH + 8, vA1, L_HF))
e("s_waitcnt lgkmcnt(0)")
for st in (4, 2, 1):
    for i in range(st):
        e("v_add_f32 v%d, v%d, v%d" % (vGH + i, vGH + i, vGH + i + st))
rbf(vGH, vGH)
e("v_add_f32 v%d, v%d, v%d" % (vGH, vGH, vGH + 8))
e("v_cvt_pk_bf16_f32 v%d, v%d, v%d" % (vGH, vGH, vGH))
e("v_lshrrev_b32 v%d, 1, v%d" % (vA1, vA1))
e("buffer_store_short v%d, v%d, %s, 0 offen" % (vGH, vA1, srd(S_OUT)))
setexec(-1)
e("L_fin:")
if DIAG:
    stamp(13)
    e("v_lshlrev_b32 v%d, 2, v%d" % (vA0, vLANE))
    e("s_lshl_b32 s%d, s2, 3" % sT0)
    e("s_add_u32 s%d, s%d, s%d" % (sT0, sT0, sW))
    e("s_lshl_b32 s%d, s%d, 8" % (sT0, sT0))
    e("s_add_u32 s%d, s%d, %d" % (sT0, sT0, DIAGO))
    e("buffer_store_dword v%d, v%d, %s, s%d offen" % (vTSV, vA0, srd(S_WS), sT0))
e("L_end:")
e("s_endpgm")
e.raw(""".section .rodata,"a"
.p2align 6
.amdhsa_kernel %s
  .amdhsa_next_free_vgpr %d
  .amdhsa_next_free_sgpr 102
  .amdhsa_accum_offset %d
  .amdhsa_group_segment_fixed_size 0
  .amdhsa_kernarg_size 96
  .amdhsa_user_sgpr_count 2
  .amdhsa_user_sgpr_kernarg_segment_ptr 1
  .amdhsa_system_sgpr_workgroup_id_x 1
.end_amdhsa_kernel""" % (KN, NVGPR, NVGPR))
open(OUTF, "w").write(e.text())
```

```python
import sys
sys.path.insert(0, "gen")
from emit import Emitter

KN = "sequential_preLN__compressed_kv_cla__dense_activation_relu__decode_kernel"
DIAG = "--diag" in sys.argv
OUTF = [a for a in sys.argv[1:] if not a.startswith("--")][0]
def opt(name, default):
    for a in sys.argv:
        if a.startswith("--%s=" % name): return int(a.split("=")[1])
    return default
EWA_AT = opt("ewa", 16)
FLAG_AT = opt("flag", 8)

QA, CP, EWA, QP = 0x0, 0x8000, 0x10000, 0x12000
HP, EWC, STAT, OP, PART, DIAGO = 0x90000, 0x9E000, 0x24000, 0x30000, 0x100000, 0x800000
RDY = 0
NT = " nt" if opt("nt", 1) else ""
NTC = " nt" if opt("ntc", 1) else ""
WS_BYTES = 0x900000
RS = 1040
L_RED = 0
L_QL = 4096
L_LN = 8448
L_MX = 4096
L_SUM = 4608
L_P = 6656
PRS = 272
L_HB = 4096
L_ONES = 5376
L_ST = 6656
L_HF = 7168
L_QS = 12288
L_CK = L_QS + 16 * RS
LDS_BYTES = L_CK + 128 * RS
L_WUV = 12288
L_WO = L_WUV + 32768
L_W1 = 12288
SPIN = 200000

S_X, S_CKV, S_WQ, S_WUK, S_WUV, S_WO, S_W1, S_W2, S_OUT, S_DBG, S_WS = [4 + 4 * i for i in range(11)]
def srd(b): return "s[%d:%d]" % (b, b + 3)
sW, sA, sB, sCNT, sT0, sT1, sT2, sT3 = 48, 49, 50, 51, 52, 53, 54, 55
sH, sCQ, sXI = 56, 57, 58
sKS, sHF, sYI = 56, 57, 58
sRD, sISD, sFIN = 59, 88, 89
sM = [60, 62, 64, 66, 68, 70, 72, 74]
sTM, sOR = 76, 78
sF = 80
sE0, sE1 = 90, 92
sL2E, sT4 = 94, 95
sTS = 96
def sp(b): return "s[%d:%d]" % (b, b + 1)
e = Emitter()
def vr(b, n): return "v[%d:%d]" % (b, b + n - 1) if n > 1 else "v%d" % b

vLANE, vN, vG = 1, 2, 3
vA0, vA1, vA2, vA3 = 4, 5, 6, 7
vT = 8
vTSV = 40
vL16 = 41
vCL = 44
NVGPR = 240

def stamp(idx):
    if not DIAG: return
    e("s_memrealtime %s" % sp(sTS))
    e("s_waitcnt lgkmcnt(0)")
    e("v_writelane_b32 v%d, s%d, %d" % (vTSV, sTS, idx))
def setexec(m):
    if m == -1: e("s_mov_b64 exec, -1"); return
    e("s_mov_b32 exec_lo, 0x%x" % (m & 0xffffffff))
    e("s_mov_b32 exec_hi, 0x%x" % (m >> 32))
def rbf(dst, src):
    e("v_cvt_pk_bf16_f32 v%d, v%d, v%d" % (dst, src, src))
    e("v_lshlrev_b32 v%d, 16, v%d" % (dst, dst))
def wave_red(vs, sdsts, op="v_add_f32"):
    bc = " bound_ctrl:0" if op == "v_add_f32" else ""
    for sh in (1, 2, 4, 8):
        for v in vs: e("%s_dpp v%d, v%d, v%d row_shr:%d row_mask:0xf bank_mask:0xf%s" % (op, v, v, v, sh, bc))
    for v in vs: e("%s_dpp v%d, v%d, v%d row_bcast:15 row_mask:0xa bank_mask:0xf" % (op, v, v, v))
    for v in vs: e("%s_dpp v%d, v%d, v%d row_bcast:31 row_mask:0xc bank_mask:0xf" % (op, v, v, v))
    for v, s in zip(vs, sdsts): e("v_readlane_b32 s%d, v%d, 63" % (s, v))
def unpack(dst, src, n):
    for i in range(n):
        e("v_lshlrev_b32 v%d, 16, v%d" % (dst + 2 * i, src + i))
        e("v_and_b32 v%d, 0xffff0000, v%d" % (dst + 2 * i + 1, src + i))
def poll(loads, sleep=1, init_masks=None):
    lp = e.newlabel("L_poll"); dn = e.newlabel("L_polld")
    for k in range(len(loads)):
        e("s_mov_b64 %s, %s" % (sp(sM[k]), "-1" if not init_masks or init_masks[k] is None else init_masks[k]))
    e("s_mov_b32 s%d, 0" % sCNT)
    e(lp + ":")
    for k, (txt, d, n) in enumerate(loads):
        e("s_mov_b64 exec, %s" % sp(sM[k]))
        e(txt)
    e("s_mov_b64 exec, -1")
    e("s_waitcnt vmcnt(0)")
    for k, (txt, d, n) in enumerate(loads):
        t = vT + 31
        if n == 1:
            e("v_cmp_eq_u32 %s, -1, v%d" % (sp(sTM), d))
        else:
            e("v_max_u32 v%d, v%d, v%d" % (t, d, d + 1))
            if n == 4: e("v_max3_u32 v%d, v%d, v%d, v%d" % (t, t, d + 2, d + 3))
            e("v_cmp_eq_u32 %s, -1, v%d" % (sp(sTM), t))
        e("s_and_b64 %s, %s, %s" % (sp(sM[k]), sp(sM[k]), sp(sTM)))
        if k == 1: e("s_or_b64 %s, %s, %s" % (sp(sOR), sp(sM[0]), sp(sM[k])))
        elif k > 1: e("s_or_b64 %s, %s, %s" % (sp(sOR), sp(sOR), sp(sM[k])))
    e("s_cbranch_scc0 %s" % dn)
    e("s_add_u32 s%d, s%d, 1" % (sCNT, sCNT))
    e("s_cmp_gt_u32 s%d, %d" % (sCNT, SPIN))
    e("s_cbranch_scc1 %s" % dn)
    if sleep: e("s_sleep %d" % sleep)
    e("s_branch %s" % lp)
    e(dn + ":")
def rs_8to2(b):
    for i in range(4): e("v_permlane32_swap_b32 v%d, v%d" % (b + i, b + 4 + i))
    for i in range(4): e("v_add_f32 v%d, v%d, v%d" % (b + i, b + i, b + 4 + i))
    for i in range(2): e("v_permlane16_swap_b32 v%d, v%d" % (b + i, b + 2 + i))
    for i in range(2): e("v_add_f32 v%d, v%d, v%d" % (b + i, b + i, b + 2 + i))
def rs_4to1(b):
    for i in range(2): e("v_permlane32_swap_b32 v%d, v%d" % (b + i, b + 2 + i))
    for i in range(2): e("v_add_f32 v%d, v%d, v%d" % (b + i, b + i, b + 2 + i))
    e("v_permlane16_swap_b32 v%d, v%d" % (b, b + 1))
    e("v_add_f32 v%d, v%d, v%d" % (b, b, b + 1))
def allred_g(v, tmp, op="v_add_f32"):
    e("v_mov_b32 v%d, v%d" % (tmp, v))
    e("v_permlane32_swap_b32 v%d, v%d" % (v, tmp))
    e("%s v%d, v%d, v%d" % (op, v, v, tmp))
    e("v_mov_b32 v%d, v%d" % (tmp, v))
    e("v_permlane16_swap_b32 v%d, v%d" % (v, tmp))
    e("%s v%d, v%d, v%d" % (op, v, v, tmp))
def hilo_write(v, vaddr):
    h, a, b = v + 2, v + 3, v + 4
    e("v_cvt_pk_bf16_f32 v%d, v%d, v%d" % (h, v, v + 1))
    e("v_lshlrev_b32 v%d, 16, v%d" % (a, h))
    e("v_and_b32 v%d, 0xffff0000, v%d" % (b, h))
    e("v_sub_f32 v%d, v%d, v%d" % (v, v, a))
    e("v_sub_f32 v%d, v%d, v%d" % (v + 1, v + 1, b))
    e("v_cvt_pk_bf16_f32 v%d, v%d, v%d" % (a, v, v + 1))
    e("ds_write2_b32 v%d, v%d, v%d offset0:0 offset1:68" % (vaddr, h, a))
def rows_gemv_publish(vB, vQLr, vOut, sOut):
    f = vT + 8
    for ks in range(4):
        e("ds_read_b128 %s, v%d offset:%d" % (vr(f + 4 * ks, 4), vQLr, 64 * ks))
    for ks in range(4):
        e("s_waitcnt lgkmcnt(%d)" % (3 - ks))
        e("v_mfma_f32_16x16x32_bf16 %s, %s, %s, %s" % (vr(vT, 4), vr(f + 4 * ks, 4), vr(vB + 4 * ks, 4), "0" if ks == 0 else vr(vT, 4)))
    e("v_add_f32 v%d, v%d, v%d" % (vT, vT, vT + 1))
    e("v_add_f32 v%d, v%d, v%d" % (vT + 2, vT + 2, vT + 3))
    e("v_add_f32 v%d, v%d, v%d" % (vT, vT, vT + 2))
    allred_g(vT, vT + 1)
    e("v_mov_b32_dpp v%d, v%d row_shl:1 row_mask:0xf bank_mask:0xf bound_ctrl:0" % (vT + 1, vT))
    e("v_cvt_pk_bf16_f32 v%d, v%d, v%d" % (vT, vT, vT + 1))
    e("v_min_u32 v%d, -2, v%d" % (vT, vT))
    setexec(0x5555)
    e("buffer_store_dword v%d, v%d, %s, s%d offen sc1" % (vT, vOut, srd(S_WS), sOut))
    setexec(-1)
def flag_check(first_loaded=None):
    lp = e.newlabel("L_fl"); ld = e.newlabel("L_fld"); l1 = e.newlabel("L_fl1")
    e("s_mov_b32 s%d, 0" % sCNT)
    if first_loaded is not None: e("s_branch %s" % l1)
    e(lp + ":")
    setexec(0xff)
    e("v_lshlrev_b32 v%d, 5, v%d" % (vA3, vLANE))
    e("buffer_load_dword v%d, v%d, %s, 0 offen sc1" % (vL16 + 1, vA3, srd(S_DBG)))
    setexec(-1)
    e(l1 + ":")
    e("s_waitcnt vmcnt(0)")
    setexec(0xff)
    e("v_cmp_eq_u32 vcc, 0, v%d" % (vL16 + 1))
    setexec(-1)
    e("s_cbranch_vccz %s" % ld)
    e("s_add_u32 s%d, s%d, 1" % (sCNT, sCNT))
    e("s_cmp_gt_u32 s%d, %d" % (sCNT, SPIN))
    e("s_cbranch_scc1 %s" % ld)
    e("s_sleep 8")
    e("s_branch %s" % lp)
    e(ld + ":")
def store1(soff, val=1):
    e("v_mov_b32 v%d, %d" % (vA3, val))
    e("v_mov_b32 v%d, 0" % (vT + 30))
    setexec(1)
    e("buffer_store_dword v%d, v%d, %s, s%d offen sc1" % (vA3, vT + 30, srd(S_WS), soff))
    setexec(-1)
def rdy_write():
    e("s_lshl_b32 s%d, s2, 6" % sT0)
    e("s_add_u32 s%d, s%d, %d" % (sT0, sT0, RDY))
    store1(sT0)
def rdy_check(dst):
    l = e.newlabel("L_rdy")
    e("s_cmp_ge_u32 s%d, 4" % sW)
    e("s_cbranch_scc1 %s" % l)
    e("v_lshlrev_b32 v%d, 6, v0" % vA0)
    e("s_mov_b32 s%d, %d" % (sT0, RDY))
    poll([("buffer_load_dword v%d, v%d, %s, s%d offen sc1" % (dst, vA0, srd(S_WS), sT0), dst, 1)], sleep=8)
    e(l + ":")
def hint_wait(soff, dst, sleep):
    e("v_mov_b32 v%d, 0" % vA3)
    poll([("buffer_load_dword v%d, v%d, %s, s%d offen sc1" % (dst, vA3, srd(S_WS), soff), dst, 1)], sleep=sleep, init_masks=["1"])

e.raw("""; persistent MLA decode + FFN kernel (generated by gen/gen6.py)
; @launch grid=(256,1,1) block=(512,1,1) lds=%d
.amdgcn_target "amdgcn-amd-amdhsa--gfx950"
.text
.globl %s
.p2align 8
.type %s,@function
%s:""" % (LDS_BYTES, KN, KN, KN))
e("s_cmp_ge_u32 s2, 256")
e("s_cbranch_scc1 L_end")
e("s_load_dwordx16 s[64:79], s[0:1], 0")
e("s_add_u32 s2, s2, 248")
e("s_and_b32 s2, s2, 255")
e("s_load_dwordx8 s[80:87], s[0:1], 64")
if DIAG:
    e("v_mov_b32 v%d, 0" % vTSV)
    stamp(0)
e("v_and_b32 v%d, 63, v0" % vLANE)
e("v_lshrrev_b32 v%d, 6, v0" % vA0)
e("v_and_b32 v%d, 15, v0" % vN)
e("v_bfe_u32 v%d, v0, 4, 2" % vG)
e("v_readfirstlane_b32 s%d, v%d" % (sW, vA0))
for i in range(4): e("v_mov_b32 v%d, -1" % (vCL + i))
e("v_lshlrev_b32 v%d, 4, v%d" % (vL16, vLANE))
e("s_bfe_u32 s%d, s2, 0x40003" % sA)
e("s_and_b32 s%d, s2, 7" % sB)
e("s_mov_b32 s%d, 0x3fb8aa3b" % sL2E)
e("s_waitcnt lgkmcnt(0)")
sizes = {S_X: 1280, S_CKV: 8388608, S_WQ: 5242880, S_WUK: 4194304, S_WUV: 4194304, S_WO: 5242880, S_W1: 2211840, S_W2: 2211840, S_OUT: 1280, S_DBG: 256, S_WS: WS_BYTES}
src = {S_X: 64, S_CKV: 66, S_WQ: 68, S_WUK: 70, S_WUV: 72, S_WO: 74, S_W1: 78, S_W2: 80, S_OUT: 82, S_DBG: 84, S_WS: 86}
for b in (S_WS, S_X, S_WQ, S_CKV, S_WUK, S_DBG, S_WUV, S_WO, S_W1, S_W2, S_OUT):
    e("s_mov_b32 s%d, s%d" % (b, src[b]))
    e("s_mov_b32 s%d, s%d" % (b + 1, src[b] + 1))
    e("s_mov_b32 s%d, %d" % (b + 2, sizes[b]))
    e("s_mov_b32 s%d, 0x00020000" % (b + 3))
e("s_cmp_ge_u32 s2, 128")
e("s_cbranch_scc1 L_Y")

vWQ, vWUK, vL1, vL0, vXF, vXR = 48, 148, 164, 170, 184, 190
vBUV, vBO, vG0 = 48, 64, 96
vQLw, vQLr, vOutA = 192, 193, 194
e("s_lshl_b32 s%d, s%d, 2" % (sH, sB))
e("s_lshr_b32 s%d, s%d, 2" % (sT0, sA))
e("s_add_u32 s%d, s%d, s%d" % (sH, sH, sT0))
e("s_and_b32 s%d, s%d, 3" % (sCQ, sA))
e("s_lshl_b32 s%d, s%d, 2" % (sXI, sH))
e("s_add_u32 s%d, s%d, s%d" % (sXI, sXI, sCQ))
sST, sKQ, sUS, sNU = 98, 99, 100, 101
e("s_mul_i32 s%d, s2, 205" % sKQ)
e("s_lshr_b32 s%d, s%d, 11" % (sKQ, sKQ))
e("s_mul_i32 s%d, s%d, 10" % (sT0, sKQ))
e("s_sub_u32 s%d, s2, s%d" % (sST, sT0))
e("s_mul_i32 s%d, s%d, 11" % (sUS, sKQ))
e("s_max_u32 s%d, s%d, 8" % (sT0, sKQ))
e("s_sub_u32 s%d, s%d, 8" % (sT0, sT0))
e("s_sub_u32 s%d, s%d, s%d" % (sUS, sUS, sT0))
e("s_cmp_lt_u32 s%d, 8" % sKQ)
e("s_cselect_b32 s%d, 11, 10" % sNU)
l1 = e.newlabel("L_c")
e("s_cmp_lg_u32 s%d, 1" % sW)
e("s_cbranch_scc1 %s" % l1)
e("s_lshl_b32 s%d, s2, 8" % sT0)
e("s_add_u32 s%d, s%d, %d" % (sT0, sT0, HP))
setexec(0xffff)
e("buffer_store_dwordx4 %s, v%d, %s, s%d offen sc1" % (vr(vCL, 4), vL16, srd(S_WS), sT0))
e("s_lshl_b32 s%d, s2, 6" % sT0)
e("s_add_u32 s%d, s%d, %d" % (sT0, sT0, EWC))
setexec(0xf)
e("buffer_store_dwordx4 %s, v%d, %s, s%d offen sc1" % (vr(vCL, 4), vL16, srd(S_WS), sT0))
e("s_lshr_b32 s%d, s%d, 4" % (sT0, sH))
e("s_lshl_b32 s%d, s%d, 7" % (sT0, sT0))
e("s_and_b32 s%d, s%d, 15" % (sT1, sH))
e("s_lshl_b32 s%d, s%d, 3" % (sT1, sT1))
e("s_add_u32 s%d, s%d, s%d" % (sT0, sT0, sT1))
e("s_lshl_b32 s%d, s%d, 12" % (sT1, sCQ))
e("s_add_u32 s%d, s%d, s%d" % (sT0, sT0, sT1))
e("s_add_u32 s%d, s%d, %d" % (sT0, sT0, STAT))
setexec(0xffff)
e("v_lshlrev_b32 v%d, 8, v%d" % (vA0, vLANE))
e("buffer_store_dwordx2 %s, v%d, %s, s%d offen sc1" % (vr(vCL, 2), vA0, srd(S_WS), sT0))
setexec(-1)
e(l1 + ":")
e("v_lshlrev_b32 v%d, 2, v%d" % (vA0, vLANE))
for i in range(5):
    e("buffer_load_dword v%d, v%d, %s, 0 offen offset:%d" % (vXF + i, vA0, srd(S_X), 256 * i))
e("v_lshlrev_b32 v%d, 1, v%d" % (vA1, vG))
e("s_mul_i32 s%d, s%d, 160" % (sT0, sCQ))
e("s_mul_i32 s%d, s%d, 20" % (sT1, sW))
e("s_add_u32 s%d, s%d, s%d" % (sT0, sT0, sT1))
e("s_lshl_b32 s%d, s%d, 1" % (sT1, sT0))
for i in range(5):
    e("buffer_load_ushort v%d, v%d, %s, s%d offen offset:%d" % (vL1 + i, vA1, srd(S_X), sT1, 8 * i))
if opt("xbar", 1): e("s_barrier")
e("v_lshlrev_b32 v%d, 13, v%d" % (vA0, vG))
e("v_lshl_add_u32 v%d, v%d, 4, v%d" % (vA0, vN, vA0))
e("s_lshl_b32 s%d, s%d, 13" % (sT0, sT0))
e("s_lshl_b32 s%d, s%d, 8" % (sT1, sH))
e("s_add_u32 s%d, s%d, s%d" % (sT0, sT0, sT1))
for i in range(5):
    e("buffer_load_dwordx4 %s, v%d, %s, s%d offen%s" % (vr(vWQ + 4 * i, 4), vA0, srd(S_WQ), sT0, NT))
    if i < 4: e("s_add_u32 s%d, s%d, 32768" % (sT0, sT0))
L_WUK = L_WO + 45056
e("s_waitcnt vmcnt(5)")
stamp(1)
unpack(vT, vXF, 5)
a, b_, vM, vS = vT + 10, vT + 11, vT + 12, vT + 13
e("v_add_f32 v%d, v%d, v%d" % (a, vT, vT + 1))
for k in range(2, 10): e("v_add_f32 v%d, v%d, v%d" % (a, a, vT + k))
wave_red([a], [sT0])
e("s_mov_b32 s%d, 0x3acccccd" % sT1)
e("v_mov_b32 v%d, s%d" % (vM, sT0))
e("v_mul_f32 v%d, s%d, v%d" % (vM, sT1, vM))
e("v_sub_f32 v%d, v%d, v%d" % (b_, vT, vM))
e("v_mul_f32 v%d, v%d, v%d" % (a, b_, b_))
for k in range(1, 10):
    e("v_sub_f32 v%d, v%d, v%d" % (b_, vT + k, vM))
    e("v_fmac_f32 v%d, v%d, v%d" % (a, b_, b_))
wave_red([a], [sT0])
e("v_mov_b32 v%d, s%d" % (vS, sT0))
e("v_mul_f32 v%d, s%d, v%d" % (vS, sT1, vS))
rbf(vM, vM); rbf(vS, vS)
e("v_add_f32 v%d, 0x3727c5ac, v%d" % (vS, vS))
rbf(vS, vS)
e("v_sqrt_f32 v%d, v%d" % (vS, vS))
rbf(vS, vS)
e("v_rcp_f32 v%d, v%d" % (vS + 1, vS))
e("s_lshl_b32 s%d, s%d, 5" % (sF + 3, sB))
lf = e.newlabel("L_f")
e("s_cmp_lg_u32 s%d, 4" % sW)
e("s_cbranch_scc1 %s" % lf)
e("v_mov_b32 v%d, 0" % (vT + 20))
setexec(1)
e("buffer_load_dword v%d, v%d, %s, s%d offen sc1" % (vL16 + 1, vT + 20, srd(S_DBG), sF + 3))
setexec(-1)
e(lf + ":")
for k in range(5):
    v = vL1 + k
    e("v_lshlrev_b32 v%d, 16, v%d" % (v, v))
    e("v_sub_f32 v%d, v%d, v%d" % (v, v, vM))
    rbf(v, v)
    e("v_mul_f32 v%d, v%d, v%d" % (b_, v, vS + 1))
    e("v_fma_f32 v%d, -v%d, v%d, v%d" % (a, b_, vS, v))
    e("v_fmac_f32 v%d, v%d, v%d" % (b_, a, vS + 1))
    e("v_cvt_pk_bf16_f32 v%d, v%d, v%d" % (v, b_, b_))
    e("v_and_b32 v%d, 0xffff, v%d" % (vL0 + k, v))
    e("v_and_b32 v%d, 0xffff0000, v%d" % (v, v))
e("v_lshlrev_b32 v%d, 4, v%d" % (vQLw, vN))
e("v_lshl_add_u32 v%d, v%d, 2, v%d" % (vQLw, vG, vQLw))
e("v_lshlrev_b32 v%d, 1, v%d" % (vA1, vQLw))
e("s_lshl_b32 s%d, s%d, 9" % (sT0, sW))
e("v_add_u32 v%d, s%d, v%d" % (vA1, sT0, vA1))
e("s_mul_i32 s%d, s%d, 544" % (sT0, sW))
e("s_add_u32 s%d, s%d, %d" % (sT0, sT0, L_QL))
e("v_add_u32 v%d, s%d, v%d" % (vQLw, sT0, vQLw))
e("v_mul_u32_u24 v%d, 272, v%d" % (vQLr, vN))
e("v_lshl_add_u32 v%d, v%d, 4, v%d" % (vQLr, vG, vQLr))
e("v_add_u32 v%d, %d, v%d" % (vQLr, L_QL, vQLr))
e("v_lshlrev_b32 v%d, 1, v%d" % (vOutA, vN))
e("v_lshlrev_b32 v%d, 3, v%d" % (vA2, vLANE))
e("v_lshlrev_b32 v%d, 2, v%d" % (vA3, vLANE))
vUKa = 196
e("s_lshl_b32 s%d, s%d, 13" % (sT0, sW))
e("s_add_u32 s%d, s%d, %d" % (sT0, sT0, L_WUK))
e("v_xor_b32 v%d, v%d, v%d" % (vA0, vN, vG))
for ks in range(4):
    e("v_xor_b32 v%d, %d, v%d" % (vUKa + ks, 4 * ks, vA0))
    e("v_lshlrev_b32 v%d, 4, v%d" % (vUKa + ks, vUKa + ks))
    e("v_lshl_add_u32 v%d, v%d, 8, v%d" % (vUKa + ks, vN, vUKa + ks))
    e("v_add_u32 v%d, s%d, v%d" % (vUKa + ks, sT0, vUKa + ks))
e("v_lshlrev_b32 v%d, 8, v%d" % (vA0, vN))
e("v_lshl_add_u32 v%d, v%d, 4, v%d" % (vA0, vG, vA0))
for k in range(8): e("v_mov_b32 v%d, 0" % (vT + k))
for k in range(16): e("v_mov_b32 v%d, 0" % (vG0 + 32 + k))
e("s_mov_b32 s%d, 0x00ff00ff" % sE0)
e("s_mov_b32 s%d, 0x00ff00ff" % (sE0 + 1))
e("s_lshl_b32 s%d, s%d, 9" % (sT2, sXI))
e("s_add_u32 s%d, s%d, %d" % (sT2, sT2, QP))
e("s_lshl_b32 s%d, s%d, 11" % (sT3, sH))
e("s_add_u32 s%d, s%d, %d" % (sT3, sT3, QP))
lk = e.newlabel("L_k"); lk2 = e.newlabel("L_k")
e("s_cmp_ge_u32 s%d, 4" % sW)
e("s_cbranch_scc1 %s" % lk)
e("s_lshl_b32 s%d, s%d, 8" % (sF + 2, sH))
e("s_lshl_b32 s%d, s%d, 7" % (sF, sCQ))
e("s_lshl_b32 s%d, s%d, 5" % ((sF + 1), sW))
e("s_add_u32 s%d, s%d, s%d" % (sF, sF, (sF + 1)))
e("s_lshl_b32 s%d, s%d, 13" % (sF, sF))
e("s_add_u32 s%d, s%d, s%d" % (sF, sF, (sF + 2)))
e("s_lshl_b32 s%d, s%d, 13" % ((sF + 1), sW))
e("s_add_u32 s%d, s%d, %d" % ((sF + 1), (sF + 1), L_WUK))
e("v_xor_b32 v%d, v%d, v%d" % ((vT + 21), vN, vG))
for k in range(8):
    e("v_xor_b32 v%d, %d, v%d" % ((vT + 20), 4 * (k & 3), (vT + 21)))
    e("v_lshlrev_b32 v%d, 4, v%d" % ((vT + 20), (vT + 20)))
    e("v_lshl_add_u32 v%d, v%d, 13, v%d" % ((vT + 20), vG, (vT + 20)))
    e("s_mov_b32 m0, s%d" % (sF + 1))
    e("buffer_load_dwordx4 v%d, %s, s%d offen%s lds" % ((vT + 20), srd(S_WUK), sF, NT))
    if k < 7:
        e("s_add_u32 s%d, s%d, 32768" % (sF, sF))
        e("s_add_u32 s%d, s%d, 1024" % ((sF + 1), (sF + 1)))
e(lk + ":")
stamp(2)
def a1(extra):
    for i in range(5):
        e("s_waitcnt vmcnt(%d)" % (4 - i + extra))
        for k in range(4):
            e("v_dot2c_f32_bf16 v%d, v%d, v%d" % (vT + 2 * k, vWQ + 4 * i + k, vL0 + i))
            e("v_dot2c_f32_bf16 v%d, v%d, v%d" % (vT + 2 * k + 1, vWQ + 4 * i + k, vL1 + i))
    e("s_nop 3")
la = e.newlabel("L_a1"); lb = e.newlabel("L_a1"); lc = e.newlabel("L_a1")
e("s_cmp_ge_u32 s%d, 4" % sW)
e("s_cbranch_scc1 %s" % la)
a1(8)
e("s_branch %s" % lc)
e(la + ":")
e("s_cmp_eq_u32 s%d, 4" % sW)
e("s_cbranch_scc1 %s" % lb)
a1(0)
e("s_branch %s" % lc)
e(lb + ":")
a1(1)
e(lc + ":")
rs_8to2(vT)
e("ds_write_b64 v%d, %s offset:%d" % (vA1, vr(vT, 2), L_RED))
e("s_waitcnt lgkmcnt(0)")
e("s_barrier")
stamp(3)
lw = e.newlabel("L_a1w")
e("s_cmp_lg_u32 s%d, 4" % sW)
e("s_cbranch_scc1 %s" % lw)
for i in range(8):
    e("ds_read_b64 %s, v%d offset:%d" % (vr(vG0 + 2 * i, 2), vA2, L_RED + 512 * i))
e("v_mov_b32 v%d, v%d" % (vT + 29, vA3))
lfo = e.newlabel("L_fo"); lfp = e.newlabel("L_fp")
e("s_mov_b32 s%d, 0" % sCNT)
lf1 = e.newlabel("L_f1")
e("v_mov_b32 v%d, 0" % vA3)
setexec(1)
e("s_branch %s" % lf1)
e(lfp + ":")
setexec(1)
e("buffer_load_dword v%d, v%d, %s, s%d offen sc1" % (vL16 + 1, vA3, srd(S_DBG), sF + 3))
e(lf1 + ":")
e("s_waitcnt vmcnt(0)")
e("v_cmp_eq_u32 vcc, 0, v%d" % (vL16 + 1))
setexec(-1)
e("s_cbranch_vccz %s" % lfo)
e("s_add_u32 s%d, s%d, 1" % (sCNT, sCNT))
e("s_cmp_gt_u32 s%d, %d" % (sCNT, SPIN))
e("s_cbranch_scc1 %s" % lfo)
e("s_sleep 2")
e("s_branch %s" % lfp)
e(lfo + ":")
stamp(14)
if DIAG: e("v_writelane_b32 v%d, s%d, 20" % (vTSV, sCNT))
e("s_waitcnt lgkmcnt(0)")
for st in (4, 2, 1):
    for i in range(st):
        e("v_pk_add_f32 %s, %s, %s" % (vr(vG0 + 2 * i, 2), vr(vG0 + 2 * i, 2), vr(vG0 + 2 * (i + st), 2)))
v = vG0
e("v_cvt_pk_bf16_f32 v%d, v%d, v%d" % (v + 2, v, v + 1))
e("v_lshlrev_b32 v%d, 16, v%d" % (v + 4, v + 2))
e("v_and_b32 v%d, 0xffff0000, v%d" % (v + 5, v + 2))
e("v_min_u32 v%d, -2, v%d" % (v + 2, v + 2))
e("buffer_store_dword v%d, v%d, %s, s%d offen sc1" % (v + 2, vT + 29, srd(S_WS), sT2))
e("v_pk_add_f32 %s, %s, %s neg_lo:[0,1] neg_hi:[0,1]" % (vr(v, 2), vr(v, 2), vr(v + 4, 2)))
e("v_cvt_pk_bf16_f32 v%d, v%d, v%d" % (v + 3, v, v + 1))
e("v_min_u32 v%d, -2, v%d" % (v + 3, v + 3))
e("buffer_store_dword v%d, v%d, %s, s%d offen offset:256 sc1" % (v + 3, vT + 29, srd(S_WS), sT2))
e(lw + ":")
e("s_barrier")
stamp(16)
lc1 = e.newlabel("L_c1"); lld = e.newlabel("L_ld")
vQF = vG0 + 32
vCF = vG0 + 32
vC2a, vC1a = 200, 201
e("s_cmp_ge_u32 s%d, 4" % sW)
e("s_cbranch_scc1 %s" % lld)
if opt("d1", 0): e("s_sleep %d" % opt("d1", 0))
poll([("buffer_load_dwordx4 %s, v%d, %s, s%d offen offset:%d sc1" % (vr(vQF + 4 * ks, 4), vA0, srd(S_WS), sT3, 64 * ks), vQF + 4 * ks, 4) for ks in range(4)], sleep=1, init_masks=[sp(sE0)] * 4)
stamp(15)
if DIAG: e("v_writelane_b32 v%d, s%d, 21" % (vTSV, sCNT))
vUK = 48
for t in range(2):
    for ks in range(4):
        e("ds_read_b128 %s, v%d offset:%d" % (vr(vUK + 16 * t + 4 * ks, 4), vUKa + ks, 4096 * t))
lr = e.newlabel("L_ew")
e("s_cmp_lg_u32 s%d, 1" % sW)
e("s_cbranch_scc1 %s" % lr)
e("s_lshl_b32 s%d, s%d, 6" % (sT0, sXI))
e("s_add_u32 s%d, s%d, %d" % (sT0, sT0, EWA))
store1(sT0)
e(lr + ":")
for t in range(2):
    for ks in range(4):
        e("s_waitcnt lgkmcnt(%d)" % (7 - 4 * t - ks))
        e("v_mfma_f32_16x16x32_bf16 %s, %s, %s, %s" % (vr(vT + 4 * t, 4), vr(vQF + 4 * ks, 4), vr(vUK + 16 * t + 4 * ks, 4), "0" if ks == 0 else vr(vT + 4 * t, 4)))
e("s_lshl_b32 s%d, s%d, 8" % (sT0, sXI))
e("s_lshl_b32 s%d, s%d, 6" % (sT1, sW))
e("s_add_u32 s%d, s%d, s%d" % (sT0, sT0, sT1))
e("v_lshlrev_b32 v%d, 1, v%d" % (vA1, vLANE))
for t in range(2):
    b = vT + 4 * t
    e("v_add_f32 v%d, v%d, v%d" % (b, b, b + 1))
    e("v_add_f32 v%d, v%d, v%d" % (b + 2, b + 2, b + 3))
    e("v_add_f32 v%d, v%d, v%d" % (b, b, b + 2))
e("v_permlane16_swap_b32 v%d, v%d" % (vT, vT + 4))
e("v_add_f32 v%d, v%d, v%d" % (vT, vT, vT + 4))
e("v_mov_b32_dpp v%d, v%d row_shl:1 row_mask:0xf bank_mask:0xf bound_ctrl:0" % (vT + 1, vT))
e("v_cvt_pk_bf16_f32 v%d, v%d, v%d" % (vT, vT, vT + 1))
e("v_min_u32 v%d, -2, v%d" % (vT, vT))
setexec(0x55555555)
e("buffer_store_dword v%d, v%d, %s, s%d offen sc1" % (vT, vA1, srd(S_WS), sT0))
setexec(-1)
stamp(4)
e("s_barrier")
e("v_lshlrev_b32 v%d, 8, v%d" % (vA0, vG))
e("s_lshr_b32 s%d, s%d, 4" % (sT0, sH))
e("s_lshl_b32 s%d, s%d, 7" % (sT0, sT0))
e("s_and_b32 s%d, s%d, 15" % (sT1, sH))
e("s_lshl_b32 s%d, s%d, 3" % (sT1, sT1))
e("s_add_u32 s%d, s%d, s%d" % (sT0, sT0, sT1))
e("s_add_u32 s%d, s%d, %d" % (sT0, sT0, STAT))
e("s_lshl_b32 s%d, s%d, 12" % (sT1, sW))
e("s_add_u32 s%d, s%d, s%d" % (sT1, sT1, sT0))
e("v_lshlrev_b32 v%d, 8, v%d" % (vA1, vLANE))
e("v_lshlrev_b32 v%d, 15, v%d" % (vA2, vG))
e("v_lshl_add_u32 v%d, v%d, 4, v%d" % (vA2, vN, vA2))
e("s_lshl_b32 s%d, s%d, 19" % (sT2, sW))
e("s_lshl_b32 s%d, s%d, 8" % (sT3, sXI))
e("s_add_u32 s%d, s%d, s%d" % (sT2, sT2, sT3))
e("s_add_u32 s%d, s%d, %d" % (sT2, sT2, PART))
e("s_add_u32 s%d, s%d, 0x20000" % (sT3, sT2))
e("s_add_u32 s%d, s%d, 0x40000" % (sT4, sT2))
e("s_add_u32 s%d, s%d, 0x60000" % (sF, sT2))
vSo, vSa, vD = vG0, vG0 + 8, vG0 + 12
poll([("buffer_load_dwordx2 %s, v%d, %s, s%d offen offset:%d sc1" % (vr(vSo + 2 * i, 2), vA0, srd(S_WS), sT1, 1024 * i), vSo + 2 * i, 2) for i in range(4)], sleep=opt("sl3", 3))
stamp(6)
poll([("buffer_load_dwordx4 %s, v%d, %s, s%d offen sc1" % (vr(vD + 4 * i, 4), vA2, srd(S_WS), [sT2, sT3, sT4, sF][i]), vD + 4 * i, 4) for i in range(4)]
     + [("buffer_load_dwordx2 %s, v%d, %s, s%d offen sc1" % (vr(vSa, 2), vA1, srd(S_WS), sT0), vSa, 2)], sleep=1)
stamp(7)
e("v_mov_b32 v%d, v%d" % (vT + 8, vSa))
wave_red([vT + 8], [sT0], "v_max_f32")
e("v_mov_b32 v%d, s%d" % (vT + 9, sT0))
e("v_mul_f32 v%d, s%d, v%d" % (vT + 9, sL2E, vT + 9))
ws_ = (vSo, vSo + 2, vSo + 4, vSo + 6, vSa)
for v in ws_: e("v_fma_f32 v%d, v%d, s%d, -v%d" % (v, v, sL2E, vT + 9))
for v in ws_: e("v_exp_f32 v%d, v%d" % (v, v))
for v in ws_: e("v_cvt_pk_bf16_f32 v%d, v%d, v%d" % (v, v, v))
for v in ws_[:4]:
    e("v_and_b32 v%d, 0xffff0000, v%d" % (v + 1, v))
    e("v_and_b32 v%d, 0xffff, v%d" % (v, v))
e("v_lshlrev_b32 v%d, 16, v%d" % (vSa, vSa))
e("v_mul_f32 v%d, v%d, v%d" % (vSa, vSa, vSa + 1))
for k in range(8): e("v_mov_b32 v%d, 0" % (vT + k))
for i in range(4):
    for k in range(4):
        e("v_dot2c_f32_bf16 v%d, v%d, v%d" % (vT + 2 * k, vD + 4 * i + k, vSo + 2 * i))
        e("v_dot2c_f32_bf16 v%d, v%d, v%d" % (vT + 2 * k + 1, vD + 4 * i + k, vSo + 2 * i + 1))
wave_red([vSa], [sT0])
rs_8to2(vT)
e("v_rcp_f32 v%d, s%d" % (vT + 8, sT0))
e("v_mul_f32 v%d, v%d, v%d" % (vT, vT, vT + 8))
e("v_mul_f32 v%d, v%d, v%d" % (vT + 1, vT + 1, vT + 8))
hilo_write(vT, vQLw)
e("s_branch %s" % lc1)
e(lld + ":")
e("s_barrier")
e("s_sub_u32 s%d, s%d, 4" % (sT3, sW))
e("v_lshlrev_b32 v%d, 13, v%d" % (vA0, vG))
e("v_lshl_add_u32 v%d, v%d, 4, v%d" % (vA0, vN, vA0))
e("s_lshl_b32 s%d, s%d, 7" % (sT0, sCQ))
e("s_lshl_b32 s%d, s%d, 5" % (sT1, sT3))
e("s_add_u32 s%d, s%d, s%d" % (sT0, sT0, sT1))
e("s_lshl_b32 s%d, s%d, 13" % (sT0, sT0))
e("s_lshl_b32 s%d, s%d, 8" % (sT1, sH))
e("s_add_u32 s%d, s%d, s%d" % (sT0, sT0, sT1))
e("s_lshl_b32 s%d, s%d, 13" % (sT2, sT3))
e("s_add_u32 s%d, s%d, %d" % (sT2, sT2, L_WUV))
DEPTH = opt("depth", 8)
for k in range(8):
    if k >= DEPTH: e("s_waitcnt vmcnt(%d)" % (DEPTH - 1))
    e("s_mov_b32 m0, s%d" % sT2)
    e("buffer_load_dwordx4 v%d, %s, s%d offen%s lds" % (vA0, srd(S_WUV), sT0, NT))
    if k < 7:
        e("s_add_u32 s%d, s%d, 32768" % (sT0, sT0))
        e("s_add_u32 s%d, s%d, 1024" % (sT2, sT2))
lno = e.newlabel("L_no")
e("s_cmp_ge_u32 s2, 120")
e("s_cbranch_scc1 %s" % lno)
e("v_lshrrev_b32 v%d, 3, v%d" % (vA0, vLANE))
e("v_mul_u32_u24 v%d, 1280, v%d" % (vA0, vA0))
e("v_and_b32 v%d, 7, v%d" % (vA1, vLANE))
e("v_lshl_add_u32 v%d, v%d, 4, v%d" % (vA0, vA1, vA0))
e("s_lshl_b32 s%d, s%d, 2" % (sT0, sUS))
e("s_add_u32 s%d, s%d, s%d" % (sT0, sT0, sT3))
e("s_mul_i32 s%d, s%d, 10240" % (sT0, sT0))
e("s_lshl_b32 s%d, s%d, 7" % (sT1, sST))
e("s_add_u32 s%d, s%d, s%d" % (sT0, sT0, sT1))
e("s_lshl_b32 s%d, s%d, 10" % (sT2, sT3))
e("s_add_u32 s%d, s%d, %d" % (sT2, sT2, L_WO))
for k in range(11):
    if k == 10:
        e("s_cmp_lt_u32 s%d, 11" % sNU)
        e("s_cbranch_scc1 %s" % lno)
    e("s_mov_b32 m0, s%d" % sT2)
    e("buffer_load_dwordx4 v%d, %s, s%d offen%s lds" % (vA0, srd(S_WO), sT0, NT))
    if k < 10:
        e("s_add_u32 s%d, s%d, 40960" % (sT0, sT0))
        e("s_add_u32 s%d, s%d, 4096" % (sT2, sT2))
e(lno + ":")
e("s_waitcnt vmcnt(0)")
if DIAG:
    e("s_memrealtime %s" % sp(sTS))
    e("s_waitcnt lgkmcnt(0)")
    e("v_mov_b32 v%d, s%d" % (vA0, sTS))
    e("v_mov_b32 v%d, 0" % vA1)
    e("ds_write_b32 v%d, v%d offset:%d" % (vA1, vA0, L_LN))
e(lc1 + ":")
e("v_lshrrev_b32 v%d, 2, v%d" % (vC1a, vN))
e("v_lshlrev_b32 v%d, 4, v%d" % (vC1a, vC1a))
e("v_lshl_add_u32 v%d, v%d, 1, v%d" % (vC1a, vG, vC1a))
e("v_lshlrev_b32 v%d, 8, v%d" % (vC1a, vC1a))
e("v_and_b32 v%d, 3, v%d" % (vA1, vN))
e("v_lshl_add_u32 v%d, v%d, 3, v%d" % (vC1a, vA1, vC1a))
e("s_lshl_b32 s%d, s%d, 5" % (sT1, sW))
e("v_add_u32 v%d, s%d, v%d" % (vC1a, sT1, vC1a))
e("s_lshl_b32 s%d, s%d, 8" % (sT0, sXI))
e("s_add_u32 s%d, s%d, s%d" % (sT0, sT0, sT1))
e("s_add_u32 s%d, s%d, %d" % (sT0, sT0, CP))
e("s_waitcnt lgkmcnt(0)")
e("s_barrier")
for ks in range(4):
    for u in range(2):
        e("ds_read_b64_tr_b16 %s, v%d offset:%d" % (vr(vBUV + 4 * ks + 2 * u, 2), vC1a, L_WUV + (64 * (ks >> 1) + 8 * (ks & 1) + u) * 256))
setexec(0x00ff00ff00ff00ff)
for ks in range(4):
    e("ds_read_b128 %s, v%d offset:%d" % (vr(vCF + 4 * ks, 4), vQLr, 64 * ks))
setexec(-1)
for ks in range(4):
    e("s_waitcnt lgkmcnt(%d)" % (3 - ks))
    e("v_mfma_f32_16x16x32_bf16 %s, %s, %s, %s" % (vr(vT, 4), vr(vCF + 4 * ks, 4), vr(vBUV + 4 * ks, 4), "0" if ks == 0 else vr(vT, 4)))
e("v_add_f32 v%d, v%d, v%d" % (vT, vT, vT + 1))
e("v_add_f32 v%d, v%d, v%d" % (vT + 2, vT + 2, vT + 3))
e("v_add_f32 v%d, v%d, v%d" % (vT, vT, vT + 2))
e("v_mov_b32 v%d, v%d" % (vT + 1, vT))
e("v_permlane16_swap_b32 v%d, v%d" % (vT, vT + 1))
e("v_add_f32 v%d, v%d, v%d" % (vT, vT, vT + 1))
e("v_mov_b32_dpp v%d, v%d row_shl:1 row_mask:0xf bank_mask:0xf bound_ctrl:0" % (vT + 1, vT))
e("v_cvt_pk_bf16_f32 v%d, v%d, v%d" % (vT, vT, vT + 1))
e("v_min_u32 v%d, -2, v%d" % (vT, vT))
setexec(0x5555)
e("buffer_store_dword v%d, v%d, %s, s%d offen sc1" % (vT, vOutA, srd(S_WS), sT0))
setexec(-1)
stamp(8)
if DIAG:
    e("v_mov_b32 v%d, 0" % vA0)
    e("ds_read_b32 v%d, v%d offset:%d" % (vA0, vA0, L_LN))
    e("s_waitcnt lgkmcnt(0)")
    e("v_readfirstlane_b32 s%d, v%d" % (sTS, vA0))
    e("s_nop 3")
    e("v_writelane_b32 v%d, s%d, 11" % (vTSV, sTS))
e("s_cmp_ge_u32 s2, 120")
e("s_cbranch_scc1 L_fin")
e("v_lshrrev_b32 v%d, 2, v%d" % (vC2a, vN))
e("v_lshl_add_u32 v%d, v%d, 3, v%d" % (vC2a, vG, vC2a))
e("v_lshlrev_b32 v%d, 7, v%d" % (vC2a, vC2a))
e("v_lshl_add_u32 v%d, v%d, 3, v%d" % (vC2a, vA1, vC2a))
e("s_lshl_b32 s%d, s%d, 12" % (sT0, sW))
e("s_add_u32 s%d, s%d, %d" % (sT0, sT0, L_WO))
e("v_add_u32 v%d, s%d, v%d" % (vC2a, sT0, vC2a))
vBO = 48
for j in range(2):
    for t in range(4):
        for u in range(2):
            e("ds_read_b64_tr_b16 %s, v%d offset:%d" % (vr(vBO + 16 * j + 4 * t + 2 * u, 2), vC2a, 32768 * j + 512 * u + 32 * t))
    if j == 0: e("s_waitcnt lgkmcnt(0)")
e("v_lshlrev_b32 v%d, 8, v%d" % (vA0, vN))
e("v_lshl_add_u32 v%d, v%d, 4, v%d" % (vA0, vG, vA0))
e("s_add_u32 s%d, s%d, s%d" % (sT1, sUS, sW))
e("s_lshr_b32 s%d, s%d, 2" % (sT0, sT1))
e("s_lshl_b32 s%d, s%d, 10" % (sT0, sT0))
e("s_and_b32 s%d, s%d, 3" % (sT1, sT1))
e("s_lshl_b32 s%d, s%d, 6" % (sT1, sT1))
e("s_add_u32 s%d, s%d, s%d" % (sT0, sT0, sT1))
e("s_add_u32 s%d, s%d, %d" % (sT0, sT0, CP))
for k in range(8): e("v_mov_b32 v%d, 0" % (vG0 + k))
e("s_mov_b32 s%d, 0x000f000f" % sE0)
e("s_mov_b32 s%d, 0x000f000f" % (sE0 + 1))
e("s_add_u32 s%d, s%d, 8" % (sT1, sW))
e("s_cmp_lt_u32 s%d, s%d" % (sT1, sNU))
e("s_cselect_b64 %s, %s, 0" % (sp(sE1), sp(sE0)))
e("s_cselect_b32 s%d, 1, 0" % sT4)
e("v_lshlrev_b32 v%d, 2, v%d" % (vA1, vLANE))
e("s_lshl_b32 s%d, s%d, 8" % (sT1, sW))
e("v_add_u32 v%d, s%d, v%d" % (vA2, sT1, vA1))
e("s_lshl_b32 s%d, s2, 6" % sT2)
e("s_add_u32 s%d, s%d, %d" % (sT2, sT2, EWC))
if opt("d4", 0): e("s_sleep %d" % opt("d4", 0))
poll([("buffer_load_dwordx4 %s, v%d, %s, s%d offen offset:%d sc1" % (vr(vG0 + 4 * j, 4), vA0, srd(S_WS), sT0, 2048 * j), vG0 + 4 * j, 4) for j in range(2)], sleep=1, init_masks=[sp(sE0), sp(sE1)])
lr = e.newlabel("L_ew")
e("s_cmp_lg_u32 s%d, 0" % sW)
e("s_cbranch_scc1 %s" % lr)
store1(sT2)
e(lr + ":")
stamp(9)
e("s_waitcnt lgkmcnt(0)")
for t in range(4):
    e("v_mfma_f32_16x16x32_bf16 %s, %s, %s, 0" % (vr(vT + 4 * t, 4), vr(vG0, 4), vr(vBO + 4 * t, 4)))
l2u = e.newlabel("L_2u")
e("s_cmp_eq_u32 s%d, 0" % sT4)
e("s_cbranch_scc1 %s" % l2u)
for t in range(4):
    e("v_mfma_f32_16x16x32_bf16 %s, %s, %s, %s" % (vr(vT + 4 * t, 4), vr(vG0 + 4, 4), vr(vBO + 16 + 4 * t, 4), vr(vT + 4 * t, 4)))
e(l2u + ":")
e("s_lshl_b32 s%d, s2, 8" % sT0)
e("s_add_u32 s%d, s%d, %d" % (sT0, sT0, HP))
setexec(0xffff)
e("s_nop 4")
for t in range(4):
    b = vT + 4 * t
    e("v_add_f32 v%d, v%d, v%d" % (b, b, b + 1))
    e("v_add_f32 v%d, v%d, v%d" % (b + 2, b + 2, b + 3))
    e("v_add_f32 v%d, v%d, v%d" % (b, b, b + 2))
    e("ds_write_b32 v%d, v%d offset:%d" % (vA2, b, L_RED + 64 * t))
setexec(-1)
e("s_waitcnt lgkmcnt(0)")
e("s_barrier")
e("s_cmp_lg_u32 s%d, 0" % sW)
e("s_cbranch_scc1 L_fin")
for i in range(8):
    e("ds_read_b32 v%d, v%d offset:%d" % (vG0 + i, vA1, L_RED + 256 * i))
e("s_waitcnt lgkmcnt(0)")
for st in (4, 2, 1):
    for i in range(st):
        e("v_add_f32 v%d, v%d, v%d" % (vG0 + i, vG0 + i, vG0 + i + st))
e("v_min_u32 v%d, -2, v%d" % (vG0, vG0))
e("buffer_store_dword v%d, v%d, %s, s%d offen sc1" % (vG0, vA1, srd(S_WS), sT0))
stamp(10)
e("s_branch L_fin")

vCA, vCB, vGQ, vACC, vP = 48, 112, 176, 208, 224
e("L_Y:")
l5 = e.newlabel("L_c"); l6 = e.newlabel("L_c"); l7 = e.newlabel("L_c")
e("s_cmp_lt_u32 s2, 248")
e("s_cbranch_scc1 %s" % l5)
e("s_lshl_b32 s%d, s%d, 13" % (sT2, sB))
e("s_lshl_b32 s%d, s%d, 10" % (sT3, sW))
e("s_add_u32 s%d, s%d, s%d" % (sT2, sT2, sT3))
e("s_add_u32 s%d, s%d, %d" % (sT2, sT2, QP))
e("buffer_store_dwordx4 %s, v%d, %s, s%d offen sc1" % (vr(vCL, 4), vL16, srd(S_WS), sT2))
e("s_lshl_b32 s%d, s%d, 12" % (sT2, sB))
e("s_and_b32 s%d, s%d, 3" % (sT3, sW))
e("s_lshl_b32 s%d, s%d, 10" % (sT3, sT3))
e("s_add_u32 s%d, s%d, s%d" % (sT2, sT2, sT3))
e("s_lshr_b32 s%d, s%d, 2" % (sT3, sW))
e("s_lshl_b32 s%d, s%d, 15" % (sT3, sT3))
e("s_add_u32 s%d, s%d, s%d" % (sT2, sT2, sT3))
e("buffer_store_dwordx4 %s, v%d, %s, s%d offen sc1" % (vr(vCL, 4), vL16, srd(S_WS), sT2))
e("s_cmp_lg_u32 s%d, 7" % sW)
e("s_cbranch_scc1 %s" % l6)
e("s_lshl_b32 s%d, s%d, 10" % (sT2, sB))
e("s_add_u32 s%d, s%d, %d" % (sT2, sT2, EWA))
e("buffer_store_dwordx4 %s, v%d, %s, s%d offen sc1" % (vr(vCL, 4), vL16, srd(S_WS), sT2))
e(l6 + ":")
e("s_waitcnt vmcnt(0)")
e("s_barrier")
e("s_cmp_lg_u32 s%d, 0" % sW)
e("s_cbranch_scc1 %s" % l7)
e("s_lshl_b32 s%d, s%d, 5" % (sT2, sB))
e("v_mov_b32 v%d, 1" % vA3)
setexec(1)
e("buffer_store_dword v%d, v%d, %s, s%d offen sc1" % (vA3, vL16, srd(S_DBG), sT2))
setexec(-1)
stamp(17)
e(l7 + ":")
e("s_barrier")
e(l5 + ":")
e("s_lshl_b32 s%d, s%d, 3" % (sKS, sB))
e("s_lshr_b32 s%d, s%d, 1" % (sT0, sA))
e("s_add_u32 s%d, s%d, s%d" % (sKS, sKS, sT0))
e("s_and_b32 s%d, s%d, 1" % (sHF, sA))
e("s_lshl_b32 s%d, s%d, 1" % (sYI, sKS))
e("s_add_u32 s%d, s%d, s%d" % (sYI, sYI, sHF))
e("s_lshr_b32 s%d, s%d, 2" % (sT1, sA))
e("s_lshl_b32 s%d, s%d, 3" % (sT1, sT1))
e("s_add_u32 s%d, s%d, s%d" % (sT1, sT1, sB))
e("s_and_b32 s%d, s%d, 3" % (sT0, sA))
e("s_lshl_b32 s%d, s%d, 2" % (sRD, sT1))
e("s_add_u32 s%d, s%d, s%d" % (sRD, sRD, sT0))
e("s_cmp_lt_u32 s%d, 27" % sT1)
e("s_cselect_b32 s%d, 1, 0" % sISD)
e("s_cmp_lt_u32 s%d, 20" % sT1)
e("s_cselect_b32 s%d, 1, 0" % sFIN)
e("s_cmp_eq_u32 s%d, 0" % sT0)
e("s_cselect_b32 s%d, s%d, 0" % (sFIN, sFIN))
def y_dma():
    e("s_lshl_b32 s%d, s%d, 7" % (sT0, sKS))
    e("s_lshl_b32 s%d, s%d, 4" % (sT2, sW))
    e("s_add_u32 s%d, s%d, s%d" % (sT0, sT0, sT2))
    e("s_lshl_b32 s%d, s%d, 10" % (sT0, sT0))
    e("s_mul_i32 s%d, s%d, %d" % (sT2, sT2, RS))
    e("s_add_u32 s%d, s%d, %d" % (sT2, sT2, L_CK))
    for j in range(2):
        e("s_xor_b32 s%d, s%d, %d" % (sT3, sHF, j))
        e("s_lshl_b32 s%d, s%d, 13" % (sT1, sT3))
        e("s_add_u32 s%d, s%d, s%d" % (sT1, sT1, sT0))
        e("s_mul_i32 s%d, s%d, %d" % (sT3, sT3, 8 * RS))
        e("s_add_u32 s%d, s%d, s%d" % (sT3, sT3, sT2))
        for i in range(8):
            e("s_mov_b32 m0, s%d" % sT3)
            e("buffer_load_dwordx4 v%d, %s, s%d offen%s lds" % (vL16, srd(S_CKV), sT1, NTC))
            if i < 7:
                e("s_add_u32 s%d, s%d, 1024" % (sT1, sT1))
                e("s_add_u32 s%d, s%d, %d" % (sT3, sT3, RS))
def y_pclr():
    e("s_lshl_b32 s%d, s%d, 14" % (sT0, sYI))
    e("s_lshl_b32 s%d, s%d, 11" % (sT1, sW))
    e("s_add_u32 s%d, s%d, s%d" % (sT0, sT0, sT1))
    e("s_add_u32 s%d, s%d, %d" % (sT0, sT0, PART))
    for i in range(2):
        e("buffer_store_dwordx4 %s, v%d, %s, s%d offen offset:%d sc1" % (vr(vCL, 4), vL16, srd(S_WS), sT0, 1024 * i))
def y_clr():
    if not opt("ypc", 1): y_pclr()
    l3 = e.newlabel("L_c")
    e("s_cmp_eq_u32 s%d, 0" % sISD)
    e("s_cbranch_scc1 %s" % l3)
    e("s_cmp_gt_u32 s%d, 2" % sW)
    e("s_cbranch_scc1 %s" % l3)
    e("s_mul_i32 s%d, s%d, 2560" % (sT0, sRD))
    e("s_add_u32 s%d, s%d, %d" % (sT0, sT0, OP))
    e("v_lshlrev_b32 v%d, 4, v0" % vA3)
    e("v_cmp_gt_u32 vcc, 160, v0")
    e("s_mov_b64 exec, vcc")
    e("buffer_store_dwordx4 %s, v%d, %s, s%d offen sc1" % (vr(vCL, 4), vA3, srd(S_WS), sT0))
    setexec(-1)
    e(l3 + ":")
if opt("yord", 0):
    y_clr()
    e("s_waitcnt vmcnt(0)")
    for _ in range(opt("ydel", 0)): e("s_sleep 16")
    y_dma()
else:
    for _ in range(opt("ydel", 0)): e("s_sleep 16")
    y_dma()
    y_clr()
vFr = 43
e("v_mul_u32_u24 v%d, %d, v%d" % (vFr, RS, vN))
e("v_lshl_add_u32 v%d, v%d, 4, v%d" % (vFr, vG, vFr))
e("s_mul_i32 s%d, s%d, %d" % (sT0, sW, 16 * RS))
e("s_add_u32 s%d, s%d, %d" % (sT0, sT0, L_CK))
e("v_add_u32 v%d, s%d, v%d" % (vA1, sT0, vFr))
lr = e.newlabel("L_r")
e("s_cmp_lg_u32 s%d, 0" % sW)
e("s_cbranch_scc1 %s" % lr)
flag_check()
e(lr + ":")
e("s_waitcnt vmcnt(0)")
stamp(1)
if opt("ypc", 1): y_pclr()
for ks in range(16):
    e("ds_read_b128 %s, v%d offset:%d" % (vr(vCA + 4 * ks, 4), vA1, 64 * ks))
    if ks == 7: e("s_waitcnt lgkmcnt(0)")
e("s_barrier")
stamp(2)
e("s_lshl_b32 s%d, s%d, 4" % (sT0, sHF))
e("s_lshl_b32 s%d, s%d, 1" % (sT1, sW))
e("s_add_u32 s%d, s%d, s%d" % (sT0, sT0, sT1))
e("s_lshl_b32 s%d, s%d, 10" % (sT2, sT0))
for k in range(2):
    e("buffer_load_dwordx4 %s, v%d, %s, s%d offen offset:%d sc1" % (vr(vGQ + 4 * k, 4), vL16, srd(S_WS), sT2, 1024 * k))
e("v_lshrrev_b32 v%d, 2, v%d" % (vA1, vN))
e("v_lshl_add_u32 v%d, v%d, 3, v%d" % (vA1, vG, vA1))
e("v_mul_u32_u24 v%d, %d, v%d" % (vA1, RS, vA1))
e("v_and_b32 v%d, 3, v%d" % (vA3, vN))
e("v_lshl_add_u32 v%d, v%d, 3, v%d" % (vA1, vA3, vA1))
e("s_lshl_b32 s%d, s%d, 7" % (sT0, sW))
e("s_add_u32 s%d, s%d, %d" % (sT0, sT0, L_CK))
e("v_add_u32 v%d, s%d, v%d" % (vA1, sT0, vA1))
e("v_add_u32 v%d, %d, v%d" % (vA2, 64 * RS, vA1))
e("s_waitcnt lgkmcnt(0)")
cnt = 0
for t in range(4):
    for kk in range(4):
        for u in range(2):
            e("ds_read_b64_tr_b16 %s, v%d offset:%d" % (vr(vCB + 16 * t + 4 * kk + 2 * u, 2), vA1 if kk < 2 else vA2, (32 * (kk & 1) + 4 * u) * RS + 32 * t))
            cnt += 1
            if cnt % 8 == 0: e("s_waitcnt lgkmcnt(0)")
vQSw, vQSr, vMXa, vPw, vPr, vPo = 240 - 16 + 16, 0, 0, 0, 0, 0
vQSw, vQSr, vMXa, vPw, vPr, vPo = vT + 20, vT + 21, vT + 22, vT + 23, vT + 24, vT + 25
e("s_mul_i32 s%d, s%d, %d" % (sT0, sW, 2 * RS))
e("s_add_u32 s%d, s%d, %d" % (sT0, sT0, L_QS))
e("v_add_u32 v%d, s%d, v%d" % (vQSw, sT0, vL16))
e("v_add_u32 v%d, %d, v%d" % (vQSr, L_QS, vFr))
e("v_lshlrev_b32 v%d, 5, v%d" % (vMXa, vN))
e("v_mul_u32_u24 v%d, %d, v%d" % (vPr, PRS, vN))
e("v_lshl_add_u32 v%d, v%d, 3, v%d" % (vPw, vG, vPr))
e("s_lshl_b32 s%d, s%d, 5" % (sT0, sW))
e("v_add_u32 v%d, s%d, v%d" % (vPw, sT0, vPw))
e("v_lshl_add_u32 v%d, v%d, 4, v%d" % (vPr, vG, vPr))
e("v_lshlrev_b32 v%d, 12, v%d" % (vPo, vG))
e("v_lshl_add_u32 v%d, v%d, 3, v%d" % (vPo, vN, vPo))
e("s_lshl_b32 s%d, s%d, 2" % (sT4, sW))
e("v_add_u32 v%d, s%d, v%d" % (vT + 26, sT4, vMXa))
e("v_lshlrev_b32 v%d, 7, v%d" % (vT + 27, vN))
e("v_lshl_add_u32 v%d, v%d, 2, v%d" % (vT + 27, vG, vT + 27))
e("s_lshl_b32 s%d, s%d, 4" % (sT4, sW))
e("v_add_u32 v%d, s%d, v%d" % (vT + 27, sT4, vT + 27))
e("s_lshl_b32 s%d, s%d, 4" % (sT0, sHF))
e("s_lshl_b32 s%d, s%d, 1" % (sT1, sW))
e("s_add_u32 s%d, s%d, s%d" % (sT0, sT0, sT1))
e("s_lshl_b32 s%d, s%d, 10" % (sT2, sT0))
e("s_lshl_b32 s%d, s%d, 2" % (sT0, sT0))
e("s_and_b32 s%d, s%d, 7" % (sT1, sKS))
e("s_add_u32 s%d, s%d, s%d" % (sT0, sT0, sT1))
e("s_lshl_b32 s%d, s%d, 6" % (sT0, sT0))
e("s_add_u32 s%d, s%d, %d" % (sT0, sT0, EWA))
lq = e.newlabel("L_qok")
e("s_waitcnt vmcnt(0)")
e("v_max3_u32 v%d, v%d, v%d, v%d" % (vT, vGQ, vGQ + 1, vGQ + 2))
e("v_max3_u32 v%d, v%d, v%d, v%d" % (vT, vT, vGQ + 3, vGQ + 4))
e("v_max3_u32 v%d, v%d, v%d, v%d" % (vT, vT, vGQ + 5, vGQ + 6))
e("v_max_u32 v%d, v%d, v%d" % (vT, vT, vGQ + 7))
e("v_cmp_eq_u32 vcc, -1, v%d" % vT)
e("s_cbranch_vccz %s" % lq)
hint_wait(sT0, vGQ, opt("sl2", 3))
stamp(3)
poll([("buffer_load_dwordx4 %s, v%d, %s, s%d offen offset:%d sc1" % (vr(vGQ + 4 * k, 4), vL16, srd(S_WS), sT2, 1024 * k), vGQ + 4 * k, 4) for k in range(2)], sleep=1)
e(lq + ":")
stamp(4)
for k in range(2):
    e("ds_write_b128 v%d, %s offset:%d" % (vQSw, vr(vGQ + 4 * k, 4), RS * k))
e("s_waitcnt lgkmcnt(0)")
e("s_barrier")
sacc = vT
for half in range(2):
    for k in range(8):
        e("ds_read_b128 %s, v%d offset:%d" % (vr(vGQ + 4 * k, 4), vQSr, 64 * (8 * half + k)))
    for k in range(8):
        ks = 8 * half + k
        e("s_waitcnt lgkmcnt(%d)" % (7 - k))
        e("v_mfma_f32_16x16x32_bf16 %s, %s, %s, %s" % (vr(sacc, 4), vr(vCA + 4 * ks, 4), vr(vGQ + 4 * k, 4), "0" if ks == 0 else vr(sacc, 4)))
e("s_mov_b32 s%d, 0x3db504f3" % sT0)
e("v_cvt_pk_bf16_f32 v%d, v%d, v%d" % (vT + 4, sacc, sacc + 1))
e("v_cvt_pk_bf16_f32 v%d, v%d, v%d" % (vT + 5, sacc + 2, sacc + 3))
unpack(sacc, vT + 4, 2)
for i in range(4): e("v_mul_f32 v%d, s%d, v%d" % (sacc + i, sT0, sacc + i))
e("v_cvt_pk_bf16_f32 v%d, v%d, v%d" % (vT + 4, sacc, sacc + 1))
e("v_cvt_pk_bf16_f32 v%d, v%d, v%d" % (vT + 5, sacc + 2, sacc + 3))
unpack(sacc, vT + 4, 2)
mx = vT + 4
e("v_max3_f32 v%d, v%d, v%d, v%d" % (mx, sacc, sacc + 1, sacc + 2))
e("v_max_f32 v%d, v%d, v%d" % (mx, mx, sacc + 3))
allred_g(mx, vT + 5, "v_max_f32")
e("ds_write_b32 v%d, v%d offset:%d" % (vT + 26, mx, L_MX))
e("s_waitcnt lgkmcnt(0)")
e("s_barrier")
stamp(5)
e("ds_read_b128 %s, v%d offset:%d" % (vr(vT + 8, 4), vMXa, L_MX))
e("ds_read_b128 %s, v%d offset:%d" % (vr(vT + 12, 4), vMXa, L_MX + 16))
e("s_waitcnt lgkmcnt(0)")
e("v_max3_f32 v%d, v%d, v%d, v%d" % (mx, vT + 8, vT + 9, vT + 10))
e("v_max3_f32 v%d, v%d, v%d, v%d" % (vT + 5, vT + 11, vT + 12, vT + 13))
e("v_max3_f32 v%d, v%d, v%d, v%d" % (mx, mx, vT + 14, vT + 15))
e("v_max_f32 v%d, v%d, v%d" % (mx, mx, vT + 5))
e("v_mul_f32 v%d, s%d, v%d" % (vT + 6, sL2E, mx))
for i in range(4): e("v_fma_f32 v%d, v%d, s%d, -v%d" % (sacc + i, sacc + i, sL2E, vT + 6))
for i in range(4): e("v_exp_f32 v%d, v%d" % (sacc + i, sacc + i))
e("v_cvt_pk_bf16_f32 v%d, v%d, v%d" % (vT + 8, sacc, sacc + 1))
e("v_cvt_pk_bf16_f32 v%d, v%d, v%d" % (vT + 9, sacc + 2, sacc + 3))
e("ds_write_b64 v%d, %s offset:%d" % (vPw, vr(vT + 8, 2), L_P))
e("v_add_f32 v%d, v%d, v%d" % (sacc, sacc, sacc + 1))
e("v_add_f32 v%d, v%d, v%d" % (sacc + 2, sacc + 2, sacc + 3))
e("v_add_f32 v%d, v%d, v%d" % (sacc, sacc, sacc + 2))
e("ds_write_b32 v%d, v%d offset:%d" % (vT + 27, sacc, L_SUM))
e("s_waitcnt lgkmcnt(0)")
e("s_barrier")
for kk in range(4):
    e("ds_read_b128 %s, v%d offset:%d" % (vr(vP + 4 * kk, 4), vPr, L_P + 64 * kk))
ls_ = e.newlabel("L_st")
e("s_cmp_lg_u32 s%d, 7" % sW)
e("s_cbranch_scc1 %s" % ls_)
e("v_lshlrev_b32 v%d, 7, v%d" % (vA1, vN))
e("v_lshl_add_u32 v%d, v%d, 5, v%d" % (vA1, vG, vA1))
e("ds_read_b128 %s, v%d offset:%d" % (vr(vT + 8, 4), vA1, L_SUM))
e("ds_read_b128 %s, v%d offset:%d" % (vr(vT + 12, 4), vA1, L_SUM + 16))
e("s_lshl_b32 s%d, s%d, 7" % (sT0, sYI))
e("s_add_u32 s%d, s%d, %d" % (sT0, sT0, STAT))
e("v_lshlrev_b32 v%d, 3, v%d" % (vA1, vN))
e("s_waitcnt lgkmcnt(0)")
for st in (4, 2, 1):
    for i in range(st): e("v_add_f32 v%d, v%d, v%d" % (vT + 8 + i, vT + 8 + i, vT + 8 + i + st))
allred_g(vT + 8, vT + 9)
e("v_min_u32 v%d, -2, v%d" % (mx, mx))
e("v_min_u32 v%d, -2, v%d" % (mx + 1, vT + 8))
setexec(0xffff)
e("buffer_store_dwordx2 %s, v%d, %s, s%d offen sc1" % (vr(mx, 2), vA1, srd(S_WS), sT0))
setexec(-1)
e(ls_ + ":")
e("s_lshl_b32 s%d, s%d, 14" % (sT0, sYI))
e("s_lshl_b32 s%d, s%d, 7" % (sT1, sW))
e("s_add_u32 s%d, s%d, s%d" % (sT0, sT0, sT1))
e("s_add_u32 s%d, s%d, %d" % (sT0, sT0, PART))
for kk in range(4):
    e("s_waitcnt lgkmcnt(%d)" % (3 - kk))
    for t in range(4):
        a = vACC + 4 * t
        e("v_mfma_f32_16x16x32_bf16 %s, %s, %s, %s" % (vr(a, 4), vr(vP + 4 * kk, 4), vr(vCB + 16 * t + 4 * kk, 4), "0" if kk == 0 else vr(a, 4)))
for i in range(4):
    o = vT + 8 + 2 * i
    e("v_cvt_pk_bf16_f32 v%d, v%d, v%d" % (o, vACC + i, vACC + 4 + i))
    e("v_cvt_pk_bf16_f32 v%d, v%d, v%d" % (o + 1, vACC + 8 + i, vACC + 12 + i))
    e("v_min_u32 v%d, -2, v%d" % (o, o))
    e("v_min_u32 v%d, -2, v%d" % (o + 1, o + 1))
    e("buffer_store_dwordx2 %s, v%d, %s, s%d offen offset:%d sc1" % (vr(o, 2), vPo, srd(S_WS), sT0, 1024 * i))
stamp(6)
e("s_cmp_eq_u32 s%d, 0" % sISD)
e("s_cbranch_scc1 L_fin")
vW2, vW2p, vB1, vXD, vGH = 48, 64, 80, 110, 112
e("s_barrier")
lw1 = e.newlabel("L_w1")
e("s_cmp_ge_u32 s%d, 4" % sW)
e("s_cbranch_scc1 %s" % lw1)
e("v_lshrrev_b32 v%d, 1, v%d" % (vA0, vLANE))
e("v_mul_u32_u24 v%d, 3456, v%d" % (vA0, vA0))
e("v_and_b32 v%d, 1, v%d" % (vA1, vLANE))
e("v_lshl_add_u32 v%d, v%d, 4, v%d" % (vA0, vA1, vA0))
e("s_mul_i32 s%d, s%d, %d" % (sT0, sW, 160 * 3456))
e("s_lshl_b32 s%d, s%d, 5" % (sT1, sRD))
e("s_add_u32 s%d, s%d, s%d" % (sT0, sT0, sT1))
e("s_mul_i32 s%d, s%d, 5120" % (sT2, sW))
e("s_add_u32 s%d, s%d, %d" % (sT2, sT2, L_W1))
for k in range(5):
    e("s_mov_b32 m0, s%d" % sT2)
    e("buffer_load_dwordx4 v%d, %s, s%d offen lds" % (vA0, srd(S_W1), sT0))
    if k < 4:
        e("s_add_u32 s%d, s%d, %d" % (sT0, sT0, 32 * 3456))
        e("s_add_u32 s%d, s%d, 1024" % (sT2, sT2))
e(lw1 + ":")
lw2 = e.newlabel("L_w2")
e("v_lshlrev_b32 v%d, 2, v0" % vA0)
e("s_cmp_ge_u32 s%d, 5" % sW)
e("s_cbranch_scc1 %s" % lw2)
e("s_mul_i32 s%d, s%d, %d" % (sT0, sRD, 16 * 1280))
for r in range(16):
    e("buffer_load_dword v%d, v%d, %s, s%d offen offset:%d%s" % (vW2 + r, vA0, srd(S_W2), sT0, (r % 3) * 1280, NT))
    if r % 3 == 2: e("s_add_u32 s%d, s%d, 3840" % (sT0, sT0))
e("buffer_load_dword v%d, v%d, %s, 0 offen" % (vXD, vA0, srd(S_X)))
e("v_mov_b32 v%d, 0x3f803f80" % vA1)
e("ds_write_b32 v%d, v%d offset:%d" % (vA0, vA1, L_ONES))
e(lw2 + ":")
lo = e.newlabel("L_oh")
e("s_cmp_lg_u32 s%d, 7" % sW)
e("s_cbranch_scc1 %s" % lo)
e("v_lshlrev_b32 v%d, 8, v%d" % (vA0, vLANE))
e("s_xor_b32 s%d, s%d, 1" % (sT0, sHF))
e("s_lshl_b32 s%d, s%d, 14" % (sT0, sT0))
poll([("buffer_load_dword v%d, v%d, %s, s%d offen sc1" % (vGH, vA0, srd(S_WS), sT0), vGH, 1)], sleep=8)
e(lo + ":")
e("v_lshlrev_b32 v%d, 2, v0" % vA0)
e("s_waitcnt vmcnt(0) lgkmcnt(0)")
e("s_barrier")
lp5 = e.newlabel("L_p5"); lpd = e.newlabel("L_pd")
e("s_cmp_ge_u32 s%d, 5" % sW)
e("s_cbranch_scc1 %s" % lp5)
e("s_mov_b32 s%d, 0x05040100" % sT0)
e("s_mov_b32 s%d, 0x07060302" % sT1)
for j in range(8):
    e("v_perm_b32 v%d, v%d, v%d, s%d" % (vW2p + 2 * j, vW2 + 2 * j + 1, vW2 + 2 * j, sT0))
    e("v_perm_b32 v%d, v%d, v%d, s%d" % (vW2p + 2 * j + 1, vW2 + 2 * j + 1, vW2 + 2 * j, sT1))
unpack(vXD, vXD, 1) if False else None
e("v_and_b32 v%d, 0xffff0000, v%d" % (vXD + 1, vXD))
e("v_lshlrev_b32 v%d, 16, v%d" % (vXD, vXD))
e("s_branch %s" % lpd)
e(lp5 + ":")
e("v_lshrrev_b32 v%d, 2, v%d" % (vA1, vN))
e("v_lshl_add_u32 v%d, v%d, 3, v%d" % (vA1, vG, vA1))
e("v_lshlrev_b32 v%d, 5, v%d" % (vA1, vA1))
e("v_and_b32 v%d, 3, v%d" % (vA2, vN))
e("v_lshl_add_u32 v%d, v%d, 3, v%d" % (vA1, vA2, vA1))
e("s_sub_u32 s%d, s%d, 5" % (sT0, sW))
e("s_mul_i32 s%d, s%d, 7168" % (sT1, sT0))
e("v_add_u32 v%d, s%d, v%d" % (vA1, sT1, vA1))
for j in range(7):
    for u in range(2):
        e("ds_read_b64_tr_b16 %s, v%d offset:%d" % (vr(vB1 + 4 * j + 2 * u, 2), vA1, L_W1 + 1024 * j + 128 * u))
e("v_lshlrev_b32 v%d, 4, v%d" % (vA2, vG))
e("s_mul_i32 s%d, s%d, 448" % (sT1, sT0))
e("v_add_u32 v%d, s%d, v%d" % (vA2, sT1, vA2))
e("v_add_u32 v%d, %d, v%d" % (vA3, L_ONES - L_HB, vA2))
e("v_cmp_eq_u32 vcc, 1, v%d" % vN)
e("v_cndmask_b32 v%d, v%d, v%d, vcc" % (vA2, vA2, vA3))
e("s_waitcnt lgkmcnt(0)")
e(lpd + ":")
stamp(7)
lh = e.newlabel("L_dh")
e("s_cmp_ge_u32 s%d, 5" % sW)
e("s_cbranch_scc1 %s" % lh)
e("s_lshl_b32 s%d, s%d, 6" % (sT0, sRD))
e("s_add_u32 s%d, s%d, %d" % (sT0, sT0, EWC))
hint_wait(sT0, vGH, opt("sl5", 4))
stamp(8)
e("v_lshlrev_b32 v%d, 3, v0" % vA1)
for k in range(6): e("s_mov_b32 s%d, %d" % (sF + k, HP + 2 * 2560 * k))
if opt("d5", 0): e("s_sleep %d" % opt("d5", 0))
poll([("buffer_load_dwordx2 %s, v%d, %s, s%d offen sc1\nbuffer_load_dwordx2 %s, v%d, %s, s%d offen offset:2560 sc1" % (vr(vGH + 4 * k, 2), vA1, srd(S_WS), sF + k, vr(vGH + 4 * k + 2, 2), vA1, srd(S_WS), sF + k), vGH + 4 * k, 4) for k in range(6)], sleep=1)
stamp(9)
for i in range(6):
    e("v_pk_add_f32 %s, %s, %s" % (vr(vGH + 2 * i, 2), vr(vGH + 2 * i, 2), vr(vGH + 2 * (i + 6), 2)))
for i in range(3):
    e("v_pk_add_f32 %s, %s, %s" % (vr(vGH + 2 * i, 2), vr(vGH + 2 * i, 2), vr(vGH + 2 * (i + 3), 2)))
e("v_pk_add_f32 %s, %s, %s" % (vr(vGH, 2), vr(vGH, 2), vr(vGH + 2, 2)))
e("v_pk_add_f32 %s, %s, %s" % (vr(vGH, 2), vr(vGH, 2), vr(vGH + 4, 2)))
e("v_cvt_pk_bf16_f32 v%d, v%d, v%d" % (vT, vGH, vGH + 1))
unpack(vGH, vT, 1)
e("v_pk_add_f32 %s, %s, %s" % (vr(vGH, 2), vr(vGH, 2), vr(vXD, 2)))
e("v_cvt_pk_bf16_f32 v%d, v%d, v%d" % (vT, vGH, vGH + 1))
e("ds_write_b32 v%d, v%d offset:%d" % (vA0, vT, L_HB))
unpack(vGH, vT, 1)
e("s_waitcnt lgkmcnt(0)")
e(lh + ":")
e("s_barrier")
lm = e.newlabel("L_dm"); lj = e.newlabel("L_dj")
e("s_cmp_ge_u32 s%d, 5" % sW)
e("s_cbranch_scc1 %s" % lm)
e("ds_write_b64 v%d, %s offset:%d" % (vA1, vr(vGH, 2), L_HF))
e("v_add_f32 v%d, v%d, v%d" % (vT, vGH, vGH + 1))
wave_red([vT], [sT0])
e("v_mov_b32 v%d, s%d" % (vT + 2, sT0))
e("v_mul_f32 v%d, 0x3c000000, v%d" % (vT + 2, vT + 2))
e("v_sub_f32 v%d, v%d, v%d" % (vT, vGH, vT + 2))
e("v_sub_f32 v%d, v%d, v%d" % (vT + 1, vGH + 1, vT + 2))
e("v_mul_f32 v%d, v%d, v%d" % (vT, vT, vT))
e("v_fmac_f32 v%d, v%d, v%d" % (vT, vT + 1, vT + 1))
wave_red([vT], [sT0])
e("v_mov_b32 v%d, s%d" % (vT + 3, sT0))
e("s_lshl_b32 s%d, s%d, 3" % (sT0, sW))
e("v_mov_b32 v%d, s%d" % (vT + 4, sT0))
setexec(1)
e("ds_write_b64 v%d, %s offset:%d" % (vT + 4, vr(vT + 2, 2), L_ST))
setexec(-1)
e("s_branch %s" % lj)
e(lm + ":")
for j in range(7):
    e("ds_read_b128 %s, v%d offset:%d" % (vr(vGH + 4 * j, 4), vA2, L_HB + 64 * j))
lz = e.newlabel("L_z")
for j in range(7):
    if j == 6:
        e("s_cmp_eq_u32 s%d, 7" % sW)
        e("s_cbranch_scc1 %s" % lz)
    e("s_waitcnt lgkmcnt(%d)" % (6 - j))
    e("v_mfma_f32_16x16x32_bf16 %s, %s, %s, %s" % (vr(vT, 4), vr(vGH + 4 * j, 4), vr(vB1 + 4 * j, 4), "0" if j == 0 else vr(vT, 4)))
e(lz + ":")
e("v_lshlrev_b32 v%d, 3, v%d" % (vA1, vN))
e("s_sub_u32 s%d, s%d, 5" % (sT0, sW))
e("s_lshl_b32 s%d, s%d, 7" % (sT0, sT0))
e("v_add_u32 v%d, s%d, v%d" % (vA1, sT0, vA1))
setexec(0xffff)
e("ds_write_b64 v%d, %s offset:%d" % (vA1, vr(vT, 2), L_RED))
setexec(-1)
e(lj + ":")
e("s_waitcnt lgkmcnt(0)")
e("s_barrier")
stamp(10)
ld2 = e.newlabel("L_d2")
e("s_cmp_ge_u32 s%d, 5" % sW)
e("s_cbranch_scc1 %s" % ld2)
e("v_mov_b32 v%d, 0" % vA2)
e("v_lshlrev_b32 v%d, 3, v%d" % (vA3, vN))
st_ = vT + 8
e("ds_read_b128 %s, v%d offset:%d" % (vr(st_, 4), vA2, L_ST))
e("ds_read_b128 %s, v%d offset:%d" % (vr(st_ + 4, 4), vA2, L_ST + 16))
e("ds_read_b64 %s, v%d offset:%d" % (vr(st_ + 8, 2), vA2, L_ST + 32))
for k in range(3):
    e("ds_read_b64 %s, v%d offset:%d" % (vr(vT + 20 + 2 * k, 2), vA3, L_RED + 128 * k))
e("s_waitcnt lgkmcnt(3)")
mean, m2 = vT, vT + 1
e("v_pk_add_f32 %s, %s, %s" % (vr(vT, 2), vr(st_, 2), vr(st_ + 2, 2)))
e("v_pk_add_f32 %s, %s, %s" % (vr(vT + 2, 2), vr(st_ + 4, 2), vr(st_ + 6, 2)))
e("v_pk_add_f32 %s, %s, %s" % (vr(vT, 2), vr(vT, 2), vr(st_ + 8, 2)))
e("v_pk_add_f32 %s, %s, %s" % (vr(vT, 2), vr(vT, 2), vr(vT + 2, 2)))
e("v_mul_f32 v%d, 0x3e4ccccd, v%d" % (mean, mean))
e("v_mov_b32 v%d, 0" % (vT + 2))
for k in range(5):
    e("v_sub_f32 v%d, v%d, v%d" % (vT + 3, st_ + 2 * k, mean))
    e("v_fmac_f32 v%d, v%d, v%d" % (vT + 2, vT + 3, vT + 3))
e("v_fmac_f32 v%d, 0x43000000, v%d" % (m2, vT + 2))
e("v_mul_f32 v%d, 0x3acccccd, v%d" % (m2, m2))
rbf(mean, mean); rbf(m2, m2)
e("v_add_f32 v%d, 0x3727c5ac, v%d" % (m2, m2))
rbf(m2, m2)
e("v_sqrt_f32 v%d, v%d" % (m2, m2))
rbf(m2, m2)
e("v_rcp_f32 v%d, v%d" % (m2, m2))
e("s_waitcnt lgkmcnt(0)")
e("v_pk_add_f32 %s, %s, %s" % (vr(vT + 20, 2), vr(vT + 20, 2), vr(vT + 22, 2)))
e("v_pk_add_f32 %s, %s, %s" % (vr(vT + 20, 2), vr(vT + 20, 2), vr(vT + 24, 2)))
e("v_fma_f32 v%d, -v%d, v%d, v%d" % (vT + 20, mean, vT + 21, vT + 20))
e("v_mul_f32 v%d, v%d, v%d" % (vT + 20, vT + 20, m2))
e("v_max_f32 v%d, 0, v%d" % (vT + 20, vT + 20))
e("v_mov_b32_dpp v%d, v%d row_shl:1 row_mask:0xf bank_mask:0xf bound_ctrl:0" % (vT + 21, vT + 20))
e("v_cvt_pk_bf16_f32 v%d, v%d, v%d" % (vT + 20, vT + 20, vT + 21))
for j in range(8):
    e("v_readlane_b32 s%d, v%d, %d" % (sF + j, vT + 20, 2 * j))
e("v_mov_b32 v%d, 0" % (vT + 2))
e("v_mov_b32 v%d, 0" % (vT + 3))
for j in range(8):
    for k in range(2):
        e("v_dot2c_f32_bf16 v%d, s%d, v%d" % (vT + 2 + k, sF + j, vW2p + 2 * j + k))
e("s_mul_i32 s%d, s%d, 2560" % (sT0, sRD))
e("s_add_u32 s%d, s%d, %d" % (sT0, sT0, OP))
e("v_min_u32 v%d, -2, v%d" % (vT + 2, vT + 2))
e("v_min_u32 v%d, -2, v%d" % (vT + 3, vT + 3))
e("buffer_store_dwordx2 %s, v%d, %s, s%d offen sc1" % (vr(vT + 2, 2), vA1, srd(S_WS), sT0))
e(ld2 + ":")
stamp(11)
e("s_cmp_eq_u32 s%d, 0" % sFIN)
e("s_cbranch_scc1 L_fin")
e("v_lshrrev_b32 v%d, 3, v%d" % (vA1, vLANE))
e("v_mul_u32_u24 v%d, 2560, v%d" % (vA0, vA1))
e("v_and_b32 v%d, 7, v%d" % (vA3, vLANE))
e("v_lshl_add_u32 v%d, v%d, 4, v%d" % (vA0, vA3, vA0))
e("s_mul_i32 s%d, s%d, %d" % (sT0, sW, 16 * 2560))
e("s_lshl_b32 s%d, s%d, 5" % (sT1, sRD))
e("s_add_u32 s%d, s%d, s%d" % (sT0, sT0, sT1))
e("s_add_u32 s%d, s%d, %d" % (sT0, sT0, OP))
e("s_add_u32 s%d, s%d, %d" % (sT2, sT0, 8 * 2560))
e("s_lshl_b32 s%d, s%d, 4" % (sT3, sW))
e("v_add_u32 v%d, s%d, v%d" % (vA1, sT3, vA1))
for k in range(8): e("v_mov_b32 v%d, 0" % (vGH + k))
e("v_cmp_gt_u32 vcc, 108, v%d" % vA1)
e("s_mov_b64 %s, vcc" % sp(sE0))
e("v_cmp_gt_u32 vcc, 100, v%d" % vA1)
e("s_mov_b64 %s, vcc" % sp(sE1))
e("v_lshlrev_b32 v%d, 4, v%d" % (vA1, vA3))
e("v_lshl_add_u32 v%d, v%d, 2, v%d" % (vA1, vG, vA1))
e("s_lshl_b32 s%d, s%d, 7" % (sT3, sW))
e("v_add_u32 v%d, s%d, v%d" % (vA1, sT3, vA1))
if opt("d6", 0): e("s_sleep %d" % opt("d6", 0))
poll([("buffer_load_dwordx4 %s, v%d, %s, s%d offen sc1" % (vr(vGH + 4 * k, 4), vA0, srd(S_WS), [sT0, sT2][k]), vGH + 4 * k, 4) for k in range(2)], sleep=1, init_masks=[sp(sE0), sp(sE1)])
stamp(12)
e("v_pk_add_f32 %s, %s, %s" % (vr(vT, 2), vr(vGH, 2), vr(vGH + 4, 2)))
e("v_pk_add_f32 %s, %s, %s" % (vr(vT + 2, 2), vr(vGH + 2, 2), vr(vGH + 6, 2)))
rs_4to1(vT)
e("v_add_f32_dpp v%d, v%d, v%d row_ror:8 row_mask:0xf bank_mask:0xf" % (vT + 1, vT, vT))
setexec(0x00ff00ff00ff00ff)
e("ds_write_b32 v%d, v%d offset:%d" % (vA1, vT + 1, L_RED + 1024))
setexec(-1)
e("s_waitcnt lgkmcnt(0)")
e("s_barrier")
e("s_cmp_lg_u32 s%d, 0" % sW)
e("s_cbranch_scc1 L_fin")
e("v_lshlrev_b32 v%d, 2, v%d" % (vA0, vLANE))
e("v_add_u32 v%d, s%d, v%d" % (vA1, sT1, vA0))
setexec(0xffffffff)
for i in range(8):
    e("ds_read_b32 v%d, v%d offset:%d" % (vGH + i, vA0, L_RED + 1024 + 128 * i))
e("ds_read_b32 v%d, v%d offset:%d" % (vGH + 8, vA1, L_HF))
e("s_waitcnt lgkmcnt(0)")
for st in (4, 2, 1):
    for i in range(st):
        e("v_add_f32 v%d, v%d, v%d" % (vGH + i, vGH + i, vGH + i + st))
rbf(vGH, vGH)
e("v_add_f32 v%d, v%d, v%d" % (vGH, vGH, vGH + 8))
e("v_cvt_pk_bf16_f32 v%d, v%d, v%d" % (vGH, vGH, vGH))
e("v_lshrrev_b32 v%d, 1, v%d" % (vA1, vA1))
e("buffer_store_short v%d, v%d, %s, 0 offen" % (vGH, vA1, srd(S_OUT)))
setexec(-1)
e("L_fin:")
if DIAG:
    stamp(13)
    if opt("dbg", 0):
        for wgid, base, idxs in ((128, 1, (2, 4, 6, 8, 9, 11, 13)), (0, 9, (1, 3, 4, 6, 7, 8, 10))):
            l = e.newlabel("L_dbg")
            e("s_cmp_lg_u32 s2, %d" % wgid)
            e("s_cbranch_scc1 %s" % l)
            e("s_cmp_lg_u32 s%d, 0" % sW)
            e("s_cbranch_scc1 %s" % l)
            e("v_readlane_b32 s%d, v%d, 0" % (sT0, vTSV))
            for k, ix in enumerate(idxs):
                e("v_readlane_b32 s%d, v%d, %d" % (sT1, vTSV, ix))
                e("s_sub_u32 s%d, s%d, s%d" % (sT1, sT1, sT0))
                e("v_mov_b32 v%d, s%d" % (vA1, sT1))
                e("v_mov_b32 v%d, %d" % (vA0, 4 * (base + k)))
                setexec(1)
                e("buffer_store_dword v%d, v%d, %s, 0 offen" % (vA1, vA0, srd(S_DBG)))
                setexec(-1)
            e(l + ":")
    e("v_lshlrev_b32 v%d, 2, v%d" % (vA0, vLANE))
    e("s_lshl_b32 s%d, s2, 3" % sT0)
    e("s_add_u32 s%d, s%d, s%d" % (sT0, sT0, sW))
    e("s_lshl_b32 s%d, s%d, 8" % (sT0, sT0))
    e("s_add_u32 s%d, s%d, %d" % (sT0, sT0, DIAGO))
    e("buffer_store_dword v%d, v%d, %s, s%d offen" % (vTSV, vA0, srd(S_WS), sT0))
e("L_end:")
e("s_endpgm")
e.raw(""".section .rodata,"a"
.p2align 6
.amdhsa_kernel %s
  .amdhsa_next_free_vgpr %d
  .amdhsa_next_free_sgpr 102
  .amdhsa_accum_offset %d
  .amdhsa_group_segment_fixed_size 0
  .amdhsa_kernarg_size 96
  .amdhsa_user_sgpr_count 2
  .amdhsa_user_sgpr_kernarg_segment_ptr 1
  .amdhsa_system_sgpr_workgroup_id_x 1
.end_amdhsa_kernel""" % (KN, NVGPR, NVGPR))
open(OUTF, "w").write(e.text())
```

```python
import sys
sys.path.insert(0, "gen")
from emit import Emitter

KN = "sequential_preLN__compressed_kv_cla__dense_activation_relu__decode_kernel"
DIAG = "--diag" in sys.argv
OUTF = [a for a in sys.argv[1:] if not a.startswith("--")][0]
def opt(name, default):
    for a in sys.argv:
        if a.startswith("--%s=" % name): return int(a.split("=")[1])
    return default
EWA_AT = opt("ewa", 16)
FLAG_AT = opt("flag", 8)

QA, CP, EWA, QP = 0x0, 0x8000, 0x10000, 0x12000
HP, EWC, STAT, OP, PART, DIAGO = 0x90000, 0x9E000, 0x24000, 0x30000, 0x100000, 0x800000
RDY = 0
NT = " nt" if opt("nt", 1) else ""
NTC = " nt" if opt("ntc", 1) else ""
WS_BYTES = 0x900000
RS = 1040
L_RED = 0
L_QL = 4096
L_LN = 8448
L_MX = 4096
L_SUM = 4608
L_P = 6656
PRS = 272
L_HB = 4096
L_ONES = 5376
L_ST = 6656
L_HF = 7168
L_QS = 12288
L_CK = L_QS + 16 * RS
LDS_BYTES = L_CK + 128 * RS
L_WUV = 12288
L_WO = L_WUV + 32768
L_W1 = 12288
SPIN = 200000

S_X, S_CKV, S_WQ, S_WUK, S_WUV, S_WO, S_W1, S_W2, S_OUT, S_DBG, S_WS = [4 + 4 * i for i in range(11)]
def srd(b): return "s[%d:%d]" % (b, b + 3)
sW, sA, sB, sCNT, sT0, sT1, sT2, sT3 = 48, 49, 50, 51, 52, 53, 54, 55
sH, sCQ, sXI = 56, 57, 58
sKS, sHF, sYI = 56, 57, 58
sRD, sISD, sFIN = 59, 88, 89
sM = [60, 62, 64, 66, 68, 70, 72, 74]
sTM, sOR = 76, 78
sF = 80
sE0, sE1 = 90, 92
sL2E, sT4 = 94, 95
sTS = 96
def sp(b): return "s[%d:%d]" % (b, b + 1)
e = Emitter()
def vr(b, n): return "v[%d:%d]" % (b, b + n - 1) if n > 1 else "v%d" % b

vLANE, vN, vG = 1, 2, 3
vA0, vA1, vA2, vA3 = 4, 5, 6, 7
vT = 8
vTSV = 40
vL16 = 41
vCL = 44
NVGPR = 240

def stamp(idx):
    if not DIAG: return
    e("s_memrealtime %s" % sp(sTS))
    e("s_waitcnt lgkmcnt(0)")
    e("v_writelane_b32 v%d, s%d, %d" % (vTSV, sTS, idx))
def setexec(m):
    if m == -1: e("s_mov_b64 exec, -1"); return
    e("s_mov_b32 exec_lo, 0x%x" % (m & 0xffffffff))
    e("s_mov_b32 exec_hi, 0x%x" % (m >> 32))
def rbf(dst, src):
    e("v_cvt_pk_bf16_f32 v%d, v%d, v%d" % (dst, src, src))
    e("v_lshlrev_b32 v%d, 16, v%d" % (dst, dst))
def wave_red(vs, sdsts, op="v_add_f32"):
    bc = " bound_ctrl:0" if op == "v_add_f32" else ""
    for sh in (1, 2, 4, 8):
        for v in vs: e("%s_dpp v%d, v%d, v%d row_shr:%d row_mask:0xf bank_mask:0xf%s" % (op, v, v, v, sh, bc))
    for v in vs: e("%s_dpp v%d, v%d, v%d row_bcast:15 row_mask:0xa bank_mask:0xf" % (op, v, v, v))
    for v in vs: e("%s_dpp v%d, v%d, v%d row_bcast:31 row_mask:0xc bank_mask:0xf" % (op, v, v, v))
    for v, s in zip(vs, sdsts): e("v_readlane_b32 s%d, v%d, 63" % (s, v))
def unpack(dst, src, n):
    for i in range(n):
        e("v_lshlrev_b32 v%d, 16, v%d" % (dst + 2 * i, src + i))
        e("v_and_b32 v%d, 0xffff0000, v%d" % (dst + 2 * i + 1, src + i))
def poll(loads, sleep=1, init_masks=None):
    lp = e.newlabel("L_poll"); dn = e.newlabel("L_polld")
    for k in range(len(loads)):
        e("s_mov_b64 %s, %s" % (sp(sM[k]), "-1" if not init_masks or init_masks[k] is None else init_masks[k]))
    e("s_mov_b32 s%d, 0" % sCNT)
    e(lp + ":")
    for k, (txt, d, n) in enumerate(loads):
        e("s_mov_b64 exec, %s" % sp(sM[k]))
        e(txt)
    e("s_mov_b64 exec, -1")
    e("s_waitcnt vmcnt(0)")
    for k, (txt, d, n) in enumerate(loads):
        t = vT + 31
        if n == -2:
            e("v_cmp_gt_i32 %s, 0, v%d" % (sp(sTM), d + 1))
        elif n == 1:
            e("v_cmp_eq_u32 %s, -1, v%d" % (sp(sTM), d))
        else:
            e("v_max_u32 v%d, v%d, v%d" % (t, d, d + 1))
            if n == 4: e("v_max3_u32 v%d, v%d, v%d, v%d" % (t, t, d + 2, d + 3))
            e("v_cmp_eq_u32 %s, -1, v%d" % (sp(sTM), t))
        e("s_and_b64 %s, %s, %s" % (sp(sM[k]), sp(sM[k]), sp(sTM)))
        if k == 1: e("s_or_b64 %s, %s, %s" % (sp(sOR), sp(sM[0]), sp(sM[k])))
        elif k > 1: e("s_or_b64 %s, %s, %s" % (sp(sOR), sp(sOR), sp(sM[k])))
    e("s_cbranch_scc0 %s" % dn)
    e("s_add_u32 s%d, s%d, 1" % (sCNT, sCNT))
    e("s_cmp_gt_u32 s%d, %d" % (sCNT, SPIN))
    e("s_cbranch_scc1 %s" % dn)
    if sleep: e("s_sleep %d" % sleep)
    e("s_branch %s" % lp)
    e(dn + ":")
def rs_8to2(b):
    for i in range(4): e("v_permlane32_swap_b32 v%d, v%d" % (b + i, b + 4 + i))
    for i in range(4): e("v_add_f32 v%d, v%d, v%d" % (b + i, b + i, b + 4 + i))
    for i in range(2): e("v_permlane16_swap_b32 v%d, v%d" % (b + i, b + 2 + i))
    for i in range(2): e("v_add_f32 v%d, v%d, v%d" % (b + i, b + i, b + 2 + i))
def rs_4to1(b):
    for i in range(2): e("v_permlane32_swap_b32 v%d, v%d" % (b + i, b + 2 + i))
    for i in range(2): e("v_add_f32 v%d, v%d, v%d" % (b + i, b + i, b + 2 + i))
    e("v_permlane16_swap_b32 v%d, v%d" % (b, b + 1))
    e("v_add_f32 v%d, v%d, v%d" % (b, b, b + 1))
def allred_g(v, tmp, op="v_add_f32"):
    e("v_mov_b32 v%d, v%d" % (tmp, v))
    e("v_permlane32_swap_b32 v%d, v%d" % (v, tmp))
    e("%s v%d, v%d, v%d" % (op, v, v, tmp))
    e("v_mov_b32 v%d, v%d" % (tmp, v))
    e("v_permlane16_swap_b32 v%d, v%d" % (v, tmp))
    e("%s v%d, v%d, v%d" % (op, v, v, tmp))
def hilo_write(v, vaddr):
    h, a, b = v + 2, v + 3, v + 4
    e("v_cvt_pk_bf16_f32 v%d, v%d, v%d" % (h, v, v + 1))
    e("v_lshlrev_b32 v%d, 16, v%d" % (a, h))
    e("v_and_b32 v%d, 0xffff0000, v%d" % (b, h))
    e("v_sub_f32 v%d, v%d, v%d" % (v, v, a))
    e("v_sub_f32 v%d, v%d, v%d" % (v + 1, v + 1, b))
    e("v_cvt_pk_bf16_f32 v%d, v%d, v%d" % (a, v, v + 1))
    e("ds_write2_b32 v%d, v%d, v%d offset0:0 offset1:68" % (vaddr, h, a))
def rows_gemv_publish(vB, vQLr, vOut, sOut):
    f = vT + 8
    for ks in range(4):
        e("ds_read_b128 %s, v%d offset:%d" % (vr(f + 4 * ks, 4), vQLr, 64 * ks))
    for ks in range(4):
        e("s_waitcnt lgkmcnt(%d)" % (3 - ks))
        e("v_mfma_f32_16x16x32_bf16 %s, %s, %s, %s" % (vr(vT, 4), vr(f + 4 * ks, 4), vr(vB + 4 * ks, 4), "0" if ks == 0 else vr(vT, 4)))
    e("v_add_f32 v%d, v%d, v%d" % (vT, vT, vT + 1))
    e("v_add_f32 v%d, v%d, v%d" % (vT + 2, vT + 2, vT + 3))
    e("v_add_f32 v%d, v%d, v%d" % (vT, vT, vT + 2))
    allred_g(vT, vT + 1)
    e("v_mov_b32_dpp v%d, v%d row_shl:1 row_mask:0xf bank_mask:0xf bound_ctrl:0" % (vT + 1, vT))
    e("v_cvt_pk_bf16_f32 v%d, v%d, v%d" % (vT, vT, vT + 1))
    e("v_min_u32 v%d, -2, v%d" % (vT, vT))
    setexec(0x5555)
    e("buffer_store_dword v%d, v%d, %s, s%d offen sc1" % (vT, vOut, srd(S_WS), sOut))
    setexec(-1)
def flag_check(first_loaded=None):
    lp = e.newlabel("L_fl"); ld = e.newlabel("L_fld"); l1 = e.newlabel("L_fl1")
    e("s_mov_b32 s%d, 0" % sCNT)
    if first_loaded is not None: e("s_branch %s" % l1)
    e(lp + ":")
    setexec(0xff)
    e("v_lshlrev_b32 v%d, 5, v%d" % (vA3, vLANE))
    e("buffer_load_dword v%d, v%d, %s, 0 offen sc1" % (vL16 + 1, vA3, srd(S_DBG)))
    setexec(-1)
    e(l1 + ":")
    e("s_waitcnt vmcnt(0)")
    setexec(0xff)
    e("v_cmp_eq_u32 vcc, 0, v%d" % (vL16 + 1))
    setexec(-1)
    e("s_cbranch_vccz %s" % ld)
    e("s_add_u32 s%d, s%d, 1" % (sCNT, sCNT))
    e("s_cmp_gt_u32 s%d, %d" % (sCNT, SPIN))
    e("s_cbranch_scc1 %s" % ld)
    e("s_sleep 8")
    e("s_branch %s" % lp)
    e(ld + ":")
def store1(soff, val=1):
    e("v_mov_b32 v%d, %d" % (vA3, val))
    e("v_mov_b32 v%d, 0" % (vT + 30))
    setexec(1)
    e("buffer_store_dword v%d, v%d, %s, s%d offen sc1" % (vA3, vT + 30, srd(S_WS), soff))
    setexec(-1)
def rdy_write():
    e("s_lshl_b32 s%d, s2, 6" % sT0)
    e("s_add_u32 s%d, s%d, %d" % (sT0, sT0, RDY))
    store1(sT0)
def rdy_check(dst):
    l = e.newlabel("L_rdy")
    e("s_cmp_ge_u32 s%d, 4" % sW)
    e("s_cbranch_scc1 %s" % l)
    e("v_lshlrev_b32 v%d, 6, v0" % vA0)
    e("s_mov_b32 s%d, %d" % (sT0, RDY))
    poll([("buffer_load_dword v%d, v%d, %s, s%d offen sc1" % (dst, vA0, srd(S_WS), sT0), dst, 1)], sleep=8)
    e(l + ":")
def hint_wait(soff, dst, sleep):
    e("v_mov_b32 v%d, 0" % vA3)
    poll([("buffer_load_dword v%d, v%d, %s, s%d offen sc1" % (dst, vA3, srd(S_WS), soff), dst, 1)], sleep=sleep, init_masks=["1"])

e.raw("""; persistent MLA decode + FFN kernel (generated by gen/gen9.py)
; @launch grid=(256,1,1) block=(512,1,1) lds=%d
.amdgcn_target "amdgcn-amd-amdhsa--gfx950"
.text
.globl %s
.p2align 8
.type %s,@function
%s:""" % (LDS_BYTES, KN, KN, KN))
e("s_cmp_ge_u32 s2, 256")
e("s_cbranch_scc1 L_end")
e("s_load_dwordx16 s[64:79], s[0:1], 0")
e("s_add_u32 s2, s2, 248")
e("s_and_b32 s2, s2, 255")
e("s_load_dwordx8 s[80:87], s[0:1], 64")
if opt("dbl", 0):
    e("s_memrealtime s[98:99]")
if DIAG:
    e("v_mov_b32 v%d, 0" % vTSV)
    stamp(0)
e("v_and_b32 v%d, 63, v0" % vLANE)
e("v_lshrrev_b32 v%d, 6, v0" % vA0)
e("v_and_b32 v%d, 15, v0" % vN)
e("v_bfe_u32 v%d, v0, 4, 2" % vG)
e("v_readfirstlane_b32 s%d, v%d" % (sW, vA0))
for i in range(4): e("v_mov_b32 v%d, -1" % (vCL + i))
e("v_lshlrev_b32 v%d, 4, v%d" % (vL16, vLANE))
e("s_bfe_u32 s%d, s2, 0x40003" % sA)
e("s_and_b32 s%d, s2, 7" % sB)
e("s_mov_b32 s%d, 0x3fb8aa3b" % sL2E)
e("s_waitcnt lgkmcnt(0)")
sizes = {S_X: 1280, S_CKV: 8388608, S_WQ: 5242880, S_WUK: 4194304, S_WUV: 4194304, S_WO: 5242880, S_W1: 2211840, S_W2: 2211840, S_OUT: 1280, S_DBG: 256, S_WS: WS_BYTES}
src = {S_X: 64, S_CKV: 66, S_WQ: 68, S_WUK: 70, S_WUV: 72, S_WO: 74, S_W1: 78, S_W2: 80, S_OUT: 82, S_DBG: 84, S_WS: 86}
for b in (S_WS, S_X, S_WQ, S_CKV, S_WUK, S_DBG, S_WUV, S_WO, S_W1, S_W2, S_OUT):
    e("s_mov_b32 s%d, s%d" % (b, src[b]))
    e("s_mov_b32 s%d, s%d" % (b + 1, src[b] + 1))
    e("s_mov_b32 s%d, %d" % (b + 2, sizes[b]))
    e("s_mov_b32 s%d, 0x00020000" % (b + 3))
e("s_cmp_ge_u32 s2, 128")
e("s_cbranch_scc1 L_Y")

vWQ, vWUK, vL1, vL0, vXF, vXR = 48, 148, 164, 170, 184, 190
vBUV, vBO, vG0 = 48, 64, 96
vQLw, vQLr, vOutA = 192, 193, 194
e("s_lshl_b32 s%d, s%d, 2" % (sH, sB))
e("s_lshr_b32 s%d, s%d, 2" % (sT0, sA))
e("s_add_u32 s%d, s%d, s%d" % (sH, sH, sT0))
e("s_and_b32 s%d, s%d, 3" % (sCQ, sA))
e("s_lshl_b32 s%d, s%d, 2" % (sXI, sH))
e("s_add_u32 s%d, s%d, s%d" % (sXI, sXI, sCQ))
sST, sKQ, sUS, sNU = 98, 99, 100, 101
e("s_mul_i32 s%d, s2, 205" % sKQ)
e("s_lshr_b32 s%d, s%d, 11" % (sKQ, sKQ))
e("s_mul_i32 s%d, s%d, 10" % (sT0, sKQ))
e("s_sub_u32 s%d, s2, s%d" % (sST, sT0))
e("s_mul_i32 s%d, s%d, 11" % (sUS, sKQ))
e("s_max_u32 s%d, s%d, 8" % (sT0, sKQ))
e("s_sub_u32 s%d, s%d, 8" % (sT0, sT0))
e("s_sub_u32 s%d, s%d, s%d" % (sUS, sUS, sT0))
e("s_cmp_lt_u32 s%d, 8" % sKQ)
e("s_cselect_b32 s%d, 11, 10" % sNU)
L_WUK = L_WO + 45056
vWQ, vL1, vL0, vXF, vXR = 48, 164, 176, 186, 191
vQF = vG0 + 32; vCF = vG0 + 32; vC2a, vC1a, vUKa = 200, 201, 196
vBUV, vBO = 144, 160
def frag_prep():
    r_, q_, x_ = vT + 26, vT + 27, vT + 28
    e("v_lshrrev_b32 v%d, 2, v%d" % (r_, vN))
    e("v_bfe_u32 v%d, v%d, 1, 1" % (q_, vN))
    e("v_lshl_or_b32 v%d, v%d, 2, v%d" % (x_, vG, r_))
    e("v_xor_b32 v%d, v%d, v%d" % (x_, x_, q_))
    e("s_lshl_b32 s%d, s%d, 1" % (sF + 5, sW))
    e("v_xor_b32 v%d, s%d, v%d" % (x_, sF + 5, x_))
    e("v_lshlrev_b32 v%d, 4, v%d" % (x_, x_))
    e("v_lshlrev_b32 v%d, 4, v%d" % (vC1a, r_))
    e("v_lshl_add_u32 v%d, v%d, 1, v%d" % (vC1a, vG, vC1a))
    e("v_lshl_add_u32 v%d, v%d, 8, v%d" % (vC1a, vC1a, x_))
    e("v_and_b32 v%d, 1, v%d" % (x_, vN))
    e("v_lshl_add_u32 v%d, v%d, 3, v%d" % (vC1a, x_, vC1a))
    for ks in range(4):
        for u in range(2):
            e("ds_read_b64_tr_b16 %s, v%d offset:%d" % (vr(vBUV + 4 * ks + 2 * u, 2), vC1a, L_WUV + (64 * (ks >> 1) + 8 * (ks & 1) + u) * 256))
    e("v_lshl_add_u32 v%d, v%d, 3, v%d" % (vC2a, vG, r_))
    e("v_lshlrev_b32 v%d, 7, v%d" % (vC2a, vC2a))
    e("v_lshl_add_u32 v%d, v%d, 3, v%d" % (vC2a, x_, vC2a))
    e("s_lshl_b32 s%d, s%d, 12" % (sF + 5, sW))
    e("s_add_u32 s%d, s%d, %d" % (sF + 5, sF + 5, L_WO))
    e("v_add_u32 v%d, s%d, v%d" % (vC2a, sF + 5, vC2a))
    e("v_lshrrev_b32 v%d, 1, v%d" % (r_, r_))
    e("v_lshl_or_b32 v%d, v%d, 1, v%d" % (r_, vG, r_))
    e("v_xor_b32 v%d, v%d, v%d" % (r_, r_, q_))
    e("s_waitcnt lgkmcnt(0)")
    for t in range(4):
        e("v_xor_b32 v%d, %d, v%d" % (x_, 2 * t, r_))
        e("v_lshl_add_u32 v%d, v%d, 4, v%d" % (x_, x_, vC2a))
        for j in range(2):
            for u in range(2):
                e("ds_read_b64_tr_b16 %s, v%d offset:%d" % (vr(vBO + 16 * j + 4 * t + 2 * u, 2), x_, 32768 * j + 512 * u))
        if t == 1: e("s_waitcnt lgkmcnt(0)")
    e("s_waitcnt lgkmcnt(0)")
lc1 = e.newlabel("L_c1"); lS = e.newlabel("L_S")
for k in range(16): e("v_mov_b32 v%d, 0" % (vQF + k))
e("v_lshlrev_b32 v%d, 4, v%d" % (vQLw, vN))
e("v_lshl_add_u32 v%d, v%d, 2, v%d" % (vQLw, vG, vQLw))
e("v_mul_u32_u24 v%d, 272, v%d" % (vQLr, vN))
e("v_lshl_add_u32 v%d, v%d, 4, v%d" % (vQLr, vG, vQLr))
e("v_add_u32 v%d, %d, v%d" % (vQLr, L_QL, vQLr))
e("v_lshlrev_b32 v%d, 1, v%d" % (vOutA, vN))
e("s_cmp_ge_u32 s%d, 4" % sW)
e("s_cbranch_scc1 %s" % lS)
e("v_lshlrev_b32 v%d, 2, v%d" % (vA0, vLANE))
for i in range(5):
    e("buffer_load_dword v%d, v%d, %s, 0 offen offset:%d" % (vXF + i, vA0, srd(S_X), 256 * i))
e("v_lshlrev_b32 v%d, 1, v%d" % (vA1, vLANE))
e("s_mul_i32 s%d, s%d, 160" % (sT0, sCQ))
e("s_mul_i32 s%d, s%d, 40" % (sT1, sW))
e("s_add_u32 s%d, s%d, s%d" % (sT0, sT0, sT1))
e("s_lshl_b32 s%d, s%d, 1" % (sT1, sT0))
e("buffer_load_ushort v%d, v%d, %s, s%d offen" % (vXR, vA1, srd(S_X), sT1))
e("s_barrier")
e("v_lshlrev_b32 v%d, 13, v%d" % (vA0, vG))
e("v_lshl_add_u32 v%d, v%d, 4, v%d" % (vA0, vN, vA0))
e("s_lshl_b32 s%d, s%d, 13" % (sT0, sT0))
e("s_lshl_b32 s%d, s%d, 8" % (sT1, sH))
e("s_add_u32 s%d, s%d, s%d" % (sT0, sT0, sT1))
for i in range(10):
    e("buffer_load_dwordx4 %s, v%d, %s, s%d offen%s" % (vr(vWQ + 4 * i, 4), vA0, srd(S_WQ), sT0, NT))
    if i < 9: e("s_add_u32 s%d, s%d, 32768" % (sT0, sT0))
e("s_barrier")
e("s_waitcnt vmcnt(10)")
stamp(1)
unpack(vT, vXF, 5)
a, b_, vM, vS = vT + 10, vT + 11, vT + 12, vT + 13
e("v_add_f32 v%d, v%d, v%d" % (a, vT, vT + 1))
for k in range(2, 10): e("v_add_f32 v%d, v%d, v%d" % (a, a, vT + k))
wave_red([a], [sT0])
e("s_mov_b32 s%d, 0x3acccccd" % sT1)
e("v_mov_b32 v%d, s%d" % (vM, sT0))
e("v_mul_f32 v%d, s%d, v%d" % (vM, sT1, vM))
e("v_sub_f32 v%d, v%d, v%d" % (b_, vT, vM))
e("v_mul_f32 v%d, v%d, v%d" % (a, b_, b_))
for k in range(1, 10):
    e("v_sub_f32 v%d, v%d, v%d" % (b_, vT + k, vM))
    e("v_fmac_f32 v%d, v%d, v%d" % (a, b_, b_))
wave_red([a], [sT0])
e("v_mov_b32 v%d, s%d" % (vS, sT0))
e("v_mul_f32 v%d, s%d, v%d" % (vS, sT1, vS))
rbf(vM, vM); rbf(vS, vS)
e("v_add_f32 v%d, 0x3727c5ac, v%d" % (vS, vS))
rbf(vS, vS)
e("v_sqrt_f32 v%d, v%d" % (vS, vS))
rbf(vS, vS)
e("v_rcp_f32 v%d, v%d" % (vS + 1, vS))
v = vXR
e("v_lshlrev_b32 v%d, 16, v%d" % (v, v))
e("v_sub_f32 v%d, v%d, v%d" % (v, v, vM))
rbf(v, v)
e("v_mul_f32 v%d, v%d, v%d" % (b_, v, vS + 1))
e("v_fma_f32 v%d, -v%d, v%d, v%d" % (a, b_, vS, v))
e("v_fmac_f32 v%d, v%d, v%d" % (b_, a, vS + 1))
rbf(v, b_)
e("v_and_b32 v%d, 3, v%d" % (vA0, vLANE))
e("v_lshlrev_b32 v%d, 6, v%d" % (vA0, vA0))
e("v_and_b32 v%d, 0x3c, v%d" % (vA1, vLANE))
e("v_add_u32 v%d, v%d, v%d" % (vA0, vA0, vA1))
e("s_lshl_b32 s%d, s%d, 8" % (sT0, sW))
e("v_add_u32 v%d, s%d, v%d" % (vA0, sT0, vA0))
e("ds_write_b32 v%d, v%d offset:%d" % (vA0, vXR, L_LN))
e("v_lshlrev_b32 v%d, 6, v%d" % (vA1, vG))
e("v_add_u32 v%d, s%d, v%d" % (vA1, sT0, vA1))
e("s_waitcnt lgkmcnt(0)")
for k in range(3):
    e("ds_read_b128 %s, v%d offset:%d" % (vr(vL1 + 4 * k, 4), vA1, L_LN + 16 * k))
e("s_lshl_b32 s%d, s%d, 5" % (sF + 3, sB))
e("v_mov_b32 v%d, 0" % (vT + 20))
setexec(1)
e("buffer_load_dword v%d, v%d, %s, s%d offen sc1" % (vL16 + 1, vT + 20, srd(S_DBG), sF + 3))
setexec(-1)
e("v_lshlrev_b32 v%d, 1, v%d" % (vA1, vQLw))
e("s_lshl_b32 s%d, s%d, 9" % (sT0, sW))
e("v_add_u32 v%d, s%d, v%d" % (vA1, sT0, vA1))
e("s_mul_i32 s%d, s%d, 544" % (sT0, sW))
e("s_add_u32 s%d, s%d, %d" % (sT0, sT0, L_QL))
e("v_add_u32 v%d, s%d, v%d" % (vQLw, sT0, vQLw))
e("v_lshlrev_b32 v%d, 3, v%d" % (vA2, vLANE))
e("v_lshlrev_b32 v%d, 2, v%d" % (vT + 29, vLANE))
e("s_lshl_b32 s%d, s%d, 13" % (sT0, sW))
e("s_add_u32 s%d, s%d, %d" % (sT0, sT0, L_WUK))
e("v_xor_b32 v%d, v%d, v%d" % (vA0, vN, vG))
for ks in range(4):
    e("v_xor_b32 v%d, %d, v%d" % (vUKa + ks, 4 * ks, vA0))
    e("v_lshlrev_b32 v%d, 4, v%d" % (vUKa + ks, vUKa + ks))
    e("v_lshl_add_u32 v%d, v%d, 8, v%d" % (vUKa + ks, vN, vUKa + ks))
    e("v_add_u32 v%d, s%d, v%d" % (vUKa + ks, sT0, vUKa + ks))
e("v_lshlrev_b32 v%d, 8, v%d" % (vA0, vN))
e("v_lshl_add_u32 v%d, v%d, 4, v%d" % (vA0, vG, vA0))
for k in range(8): e("v_mov_b32 v%d, 0" % (vT + k))
e("s_mov_b32 s%d, 0x00ff00ff" % sE0)
e("s_mov_b32 s%d, 0x00ff00ff" % (sE0 + 1))
e("s_lshl_b32 s%d, s%d, 9" % (sT2, sXI))
e("s_add_u32 s%d, s%d, %d" % (sT2, sT2, QP))
e("s_lshl_b32 s%d, s%d, 11" % (sT3, sH))
e("s_add_u32 s%d, s%d, %d" % (sT3, sT3, QP))
e("s_waitcnt lgkmcnt(0)")
for k in range(10): e("v_lshrrev_b32 v%d, 16, v%d" % (vL0 + k, vL1 + k))
stamp(2)
for i in range(10):
    e("s_waitcnt vmcnt(%d)" % (9 - i + 1))
    for k in range(4):
        e("v_dot2c_f32_bf16 v%d, v%d, v%d" % (vT + 2 * k, vWQ + 4 * i + k, vL0 + i))
        e("v_dot2c_f32_bf16 v%d, v%d, v%d" % (vT + 2 * k + 1, vWQ + 4 * i + k, vL1 + i))
rs_8to2(vT)
e("ds_write_b64 v%d, %s offset:%d" % (vA1, vr(vT, 2), L_RED))
e("s_waitcnt lgkmcnt(0)")
e("s_barrier")
stamp(3)
lw = e.newlabel("L_a1w")
e("s_cmp_lg_u32 s%d, 0" % sW)
e("s_cbranch_scc1 %s" % lw)
for i in range(4):
    e("ds_read_b64 %s, v%d offset:%d" % (vr(vG0 + 2 * i, 2), vA2, L_RED + 512 * i))
e(lw + ":")
lfo = e.newlabel("L_fo"); lfp = e.newlabel("L_fp"); lf1 = e.newlabel("L_f1")
e("s_mov_b32 s%d, 0" % sCNT)
setexec(1)
e("s_branch %s" % lf1)
e(lfp + ":")
setexec(1)
e("buffer_load_dword v%d, v%d, %s, s%d offen sc1" % (vL16 + 1, vT + 20, srd(S_DBG), sF + 3))
e(lf1 + ":")
e("s_waitcnt vmcnt(0)")
e("v_cmp_eq_u32 vcc, 0, v%d" % (vL16 + 1))
setexec(-1)
e("s_cbranch_vccz %s" % lfo)
e("s_add_u32 s%d, s%d, 1" % (sCNT, sCNT))
e("s_cmp_gt_u32 s%d, %d" % (sCNT, SPIN))
e("s_cbranch_scc1 %s" % lfo)
e("s_sleep 2")
e("s_branch %s" % lfp)
e(lfo + ":")
stamp(14)
if DIAG: e("v_writelane_b32 v%d, s%d, 20" % (vTSV, sCNT))
lw = e.newlabel("L_a1w")
e("s_cmp_lg_u32 s%d, 0" % sW)
e("s_cbranch_scc1 %s" % lw)
e("s_waitcnt lgkmcnt(0)")
v = vG0
e("v_pk_add_f32 %s, %s, %s" % (vr(v, 2), vr(v, 2), vr(v + 2, 2)))
e("v_pk_add_f32 %s, %s, %s" % (vr(v + 4, 2), vr(v + 4, 2), vr(v + 6, 2)))
e("v_pk_add_f32 %s, %s, %s" % (vr(v, 2), vr(v, 2), vr(v + 4, 2)))
e("v_cvt_pk_bf16_f32 v%d, v%d, v%d" % (v + 2, v, v + 1))
e("v_lshlrev_b32 v%d, 16, v%d" % (v + 4, v + 2))
e("v_and_b32 v%d, 0xffff0000, v%d" % (v + 5, v + 2))
e("v_min_u32 v%d, -2, v%d" % (v + 2, v + 2))
e("buffer_store_dword v%d, v%d, %s, s%d offen sc1" % (v + 2, vT + 29, srd(S_WS), sT2))
e("v_pk_add_f32 %s, %s, %s neg_lo:[0,1] neg_hi:[0,1]" % (vr(v, 2), vr(v, 2), vr(v + 4, 2)))
e("v_cvt_pk_bf16_f32 v%d, v%d, v%d" % (v + 3, v, v + 1))
e("v_min_u32 v%d, -2, v%d" % (v + 3, v + 3))
e("buffer_store_dword v%d, v%d, %s, s%d offen offset:256 sc1" % (v + 3, vT + 29, srd(S_WS), sT2))
e(lw + ":")
stamp(16)
if opt("d1", 0): e("s_sleep %d" % opt("d1", 0))
poll([("buffer_load_dwordx4 %s, v%d, %s, s%d offen offset:%d sc1" % (vr(vQF + 4 * ks, 4), vA0, srd(S_WS), sT3, 64 * ks), vQF + 4 * ks, 4) for ks in range(4)], sleep=1, init_masks=[sp(sE0)] * 4)
stamp(15)
if DIAG: e("v_writelane_b32 v%d, s%d, 21" % (vTSV, sCNT))
lr = e.newlabel("L_ew")
e("s_cmp_lg_u32 s%d, 1" % sW)
e("s_cbranch_scc1 %s" % lr)
e("s_lshl_b32 s%d, s%d, 6" % (sT0, sXI))
e("s_add_u32 s%d, s%d, %d" % (sT0, sT0, EWA))
store1(sT0)
e(lr + ":")
e("s_barrier")
vUK = 48
for t in range(2):
    for ks in range(4):
        e("ds_read_b128 %s, v%d offset:%d" % (vr(vUK + 16 * t + 4 * ks, 4), vUKa + ks, 4096 * t))
e("s_lshl_b32 s%d, s%d, 8" % (sT0, sXI))
e("s_lshl_b32 s%d, s%d, 6" % (sT1, sW))
e("s_add_u32 s%d, s%d, s%d" % (sT0, sT0, sT1))
e("v_lshlrev_b32 v%d, 1, v%d" % (vA1, vLANE))
for t in range(2):
    for ks in range(4):
        e("s_waitcnt lgkmcnt(%d)" % (7 - 4 * t - ks))
        e("v_mfma_f32_16x16x32_bf16 %s, %s, %s, %s" % (vr(vT + 4 * t, 4), vr(vQF + 4 * ks, 4), vr(vUK + 16 * t + 4 * ks, 4), "0" if ks == 0 else vr(vT + 4 * t, 4)))
for t in range(2):
    b = vT + 4 * t
    e("v_add_f32 v%d, v%d, v%d" % (b, b, b + 1))
    e("v_add_f32 v%d, v%d, v%d" % (b + 2, b + 2, b + 3))
    e("v_add_f32 v%d, v%d, v%d" % (b, b, b + 2))
e("v_permlane16_swap_b32 v%d, v%d" % (vT, vT + 4))
e("v_add_f32 v%d, v%d, v%d" % (vT, vT, vT + 4))
e("v_mov_b32_dpp v%d, v%d row_shl:1 row_mask:0xf bank_mask:0xf bound_ctrl:0" % (vT + 1, vT))
e("v_cvt_pk_bf16_f32 v%d, v%d, v%d" % (vT, vT, vT + 1))
e("v_min_u32 v%d, -2, v%d" % (vT, vT))
setexec(0x55555555)
e("buffer_store_dword v%d, v%d, %s, s%d offen sc1" % (vT, vA1, srd(S_WS), sT0))
setexec(-1)
stamp(4)
e("s_barrier")
e("s_lshr_b32 s%d, s%d, 4" % (sT0, sH))
e("s_lshl_b32 s%d, s%d, 7" % (sT0, sT0))
e("s_and_b32 s%d, s%d, 15" % (sT1, sH))
e("s_lshl_b32 s%d, s%d, 3" % (sT1, sT1))
e("s_add_u32 s%d, s%d, s%d" % (sT0, sT0, sT1))
e("s_add_u32 s%d, s%d, %d" % (sT0, sT0, STAT))
e("s_lshl_b32 s%d, s%d, 12" % (sT1, sW))
e("s_add_u32 s%d, s%d, s%d" % (sT1, sT1, sT0))
e("v_lshlrev_b32 v%d, 8, v%d" % (vA1, vLANE))
e("v_lshlrev_b32 v%d, 15, v%d" % (vA2, vG))
e("v_lshl_add_u32 v%d, v%d, 4, v%d" % (vA2, vN, vA2))
e("s_lshl_b32 s%d, s%d, 19" % (sT2, sW))
e("s_lshl_b32 s%d, s%d, 8" % (sT3, sXI))
e("s_add_u32 s%d, s%d, s%d" % (sT2, sT2, sT3))
e("s_add_u32 s%d, s%d, %d" % (sT2, sT2, PART))
e("s_add_u32 s%d, s%d, 0x20000" % (sT3, sT2))
e("s_add_u32 s%d, s%d, 0x40000" % (sT4, sT2))
e("s_add_u32 s%d, s%d, 0x60000" % (sF, sT2))
e("s_lshl_b32 s%d, s%d, 6" % (sF + 1, sW))
e("v_lshlrev_b32 v%d, 2, v%d" % (vA0, vG))
e("v_add_u32 v%d, s%d, v%d" % (vA0, sF + 1, vA0))
vSo, vSa, vD = vG0, vG0 + 8, vG0 + 12
e("s_barrier")
frag_prep()
stamp(5)
poll([("buffer_load_dword v%d, v%d, %s, s%d offen offset:4 sc1" % (vSo, vA1, srd(S_WS), sT1), vSo, 1)], sleep=opt("sl3", 3), init_masks=["0xffff"])
stamp(6)
if opt("d3", 0): e("s_sleep %d" % opt("d3", 0))
poll([("buffer_load_dwordx4 %s, v%d, %s, s%d offen sc1" % (vr(vD + 4 * i, 4), vA2, srd(S_WS), [sT2, sT3, sT4, sF][i]), vD + 4 * i, 4) for i in range(4)]
     + [("buffer_load_dwordx2 %s, v%d, %s, s%d offen sc1" % (vr(vSa, 2), vA1, srd(S_WS), sT0), vSa, -2)], sleep=opt("sl3b", 1))
stamp(7)
if DIAG: e("v_writelane_b32 v%d, s%d, 22" % (vTSV, sCNT))
e("v_mov_b32 v%d, v%d" % (vT + 8, vSa))
wave_red([vT + 8], [sT0], "v_max_f32")
e("v_mov_b32 v%d, s%d" % (vT + 9, sT0))
e("v_mul_f32 v%d, s%d, v%d" % (vT + 9, sL2E, vT + 9))
e("v_fma_f32 v%d, v%d, s%d, -v%d" % (vSa, vSa, sL2E, vT + 9))
e("v_exp_f32 v%d, v%d" % (vSa, vSa))
e("v_cvt_pk_bf16_f32 v%d, v%d, v%d" % (vSa, vSa, vSa))
e("v_lshlrev_b32 v%d, 16, v%d" % (vSa, vSa))
for i in range(4):
    e("ds_bpermute_b32 v%d, v%d, v%d offset:%d" % (vSo + 2 * i + 1, vA0, vSa, 16 * i))
e("v_mul_f32 v%d, v%d, v%d" % (vSa, vSa, vSa + 1))
for k in range(8): e("v_mov_b32 v%d, 0" % (vT + k))
wave_red([vSa], [sT0])
for i in range(4):
    e("s_waitcnt lgkmcnt(%d)" % (3 - i))
    e("v_lshrrev_b32 v%d, 16, v%d" % (vSo + 2 * i, vSo + 2 * i + 1))
    for k in range(4):
        e("v_dot2c_f32_bf16 v%d, v%d, v%d" % (vT + 2 * k + 1, vD + 4 * i + k, vSo + 2 * i + 1))
    for k in range(4):
        e("v_dot2c_f32_bf16 v%d, v%d, v%d" % (vT + 2 * k, vD + 4 * i + k, vSo + 2 * i))
e("v_rcp_f32 v%d, s%d" % (vT + 8, sT0))
rs_8to2(vT)
e("v_mul_f32 v%d, v%d, v%d" % (vT, vT, vT + 8))
e("v_mul_f32 v%d, v%d, v%d" % (vT + 1, vT + 1, vT + 8))
hilo_write(vT, vQLw)
e("s_branch %s" % lc1)
e(lS + ":")
e("s_sub_u32 s%d, s%d, 4" % (sT3, sW))
l1 = e.newlabel("L_c")
e("s_cmp_lg_u32 s%d, 4" % sW)
e("s_cbranch_scc1 %s" % l1)
e("s_lshl_b32 s%d, s2, 8" % sT0)
e("s_add_u32 s%d, s%d, %d" % (sT0, sT0, HP))
setexec(0xffff)
e("buffer_store_dwordx4 %s, v%d, %s, s%d offen sc1" % (vr(vCL, 4), vL16, srd(S_WS), sT0))
e("s_lshl_b32 s%d, s2, 6" % sT0)
e("s_add_u32 s%d, s%d, %d" % (sT0, sT0, EWC))
setexec(0xf)
e("buffer_store_dwordx4 %s, v%d, %s, s%d offen sc1" % (vr(vCL, 4), vL16, srd(S_WS), sT0))
e("s_lshr_b32 s%d, s%d, 4" % (sT0, sH))
e("s_lshl_b32 s%d, s%d, 7" % (sT0, sT0))
e("s_and_b32 s%d, s%d, 15" % (sT1, sH))
e("s_lshl_b32 s%d, s%d, 3" % (sT1, sT1))
e("s_add_u32 s%d, s%d, s%d" % (sT0, sT0, sT1))
e("s_lshl_b32 s%d, s%d, 12" % (sT1, sCQ))
e("s_add_u32 s%d, s%d, s%d" % (sT0, sT0, sT1))
e("s_add_u32 s%d, s%d, %d" % (sT0, sT0, STAT))
setexec(0xffff)
e("v_lshlrev_b32 v%d, 8, v%d" % (vA0, vLANE))
e("buffer_store_dwordx2 %s, v%d, %s, s%d offen sc1" % (vr(vCL, 2), vA0, srd(S_WS), sT0))
setexec(-1)
e(l1 + ":")
e("s_lshl_b32 s%d, s%d, 7" % (sF, sCQ))
e("s_lshl_b32 s%d, s%d, 5" % (sT1, sT3))
e("s_add_u32 s%d, s%d, s%d" % (sF, sF, sT1))
e("s_lshl_b32 s%d, s%d, 13" % (sF, sF))
e("s_lshl_b32 s%d, s%d, 8" % (sT1, sH))
e("s_add_u32 s%d, s%d, s%d" % (sF, sF, sT1))
e("v_xor_b32 v%d, v%d, v%d" % (vA2, vN, vG))
for k in range(4):
    e("v_xor_b32 v%d, %d, v%d" % (vT + k, 4 * k, vA2))
    e("v_lshlrev_b32 v%d, 4, v%d" % (vT + k, vT + k))
    e("v_lshl_add_u32 v%d, v%d, 13, v%d" % (vT + k, vG, vT + k))
e("s_mov_b32 s%d, s%d" % (sT0, sF))
e("s_lshl_b32 s%d, s%d, 13" % (sT2, sT3))
e("s_add_u32 s%d, s%d, %d" % (sT2, sT2, L_WUK))
e("s_barrier")
e("s_barrier")
for k in range(8):
    e("s_mov_b32 m0, s%d" % sT2)
    e("buffer_load_dwordx4 v%d, %s, s%d offen%s lds" % (vT + (k & 3), srd(S_WUK), sT0, NT))
    if k < 7:
        e("s_add_u32 s%d, s%d, 32768" % (sT0, sT0))
        e("s_add_u32 s%d, s%d, 1024" % (sT2, sT2))
e("s_waitcnt vmcnt(8)")
e("s_barrier")
e("s_waitcnt vmcnt(0)")
stamp(12)
def uv_dma():
    e("v_lshrrev_b32 v%d, 1, v%d" % (vA2, vG))
    e("v_lshlrev_b32 v%d, 2, v%d" % (vA2, vA2))
    e("v_xor_b32 v%d, v%d, v%d" % (vA2, vA2, vN))
    e("s_and_b32 s%d, s%d, 1" % (sT0, sT3))
    e("s_lshl_b32 s%d, s%d, 1" % (sT0, sT0))
    e("v_xor_b32 v%d, s%d, v%d" % (vA2, sT0, vA2))
    for c, cv in enumerate((0, 8, 1, 9)):
        e("v_xor_b32 v%d, %d, v%d" % (vT + c, cv, vA2))
        e("v_lshlrev_b32 v%d, 4, v%d" % (vT + c, vT + c))
        e("v_lshl_add_u32 v%d, v%d, 13, v%d" % (vT + c, vG, vT + c))
    e("s_mov_b32 s%d, s%d" % (sT0, sF))
    e("s_lshl_b32 s%d, s%d, 13" % (sT2, sT3))
    e("s_add_u32 s%d, s%d, %d" % (sT2, sT2, L_WUV))
    for k in range(8):
        e("s_mov_b32 m0, s%d" % sT2)
        e("buffer_load_dwordx4 v%d, %s, s%d offen%s lds" % (vT + 2 * (k >> 2) + (k & 1), srd(S_WUV), sT0, NT))
        if k < 7:
            e("s_add_u32 s%d, s%d, 32768" % (sT0, sT0))
            e("s_add_u32 s%d, s%d, 1024" % (sT2, sT2))
if opt("uve", 0): uv_dma()
e("s_barrier")
e("s_barrier")
if not opt("uve", 0): uv_dma()
lno = e.newlabel("L_no")
e("s_cmp_ge_u32 s2, 120")
e("s_cbranch_scc1 %s" % lno)
e("v_lshrrev_b32 v%d, 3, v%d" % (vA0, vLANE))
e("v_mul_u32_u24 v%d, 1280, v%d" % (vA0, vA0))
e("v_and_b32 v%d, 7, v%d" % (vA1, vLANE))
e("v_and_b32 v%d, 1, v%d" % (vA2, vG))
e("v_xor_b32 v%d, v%d, v%d" % (vA1, vA1, vA2))
e("s_lshl_b32 s%d, s%d, 1" % (sT0, sT3))
e("v_xor_b32 v%d, s%d, v%d" % (vA1, sT0, vA1))
e("v_lshl_add_u32 v%d, v%d, 4, v%d" % (vA0, vA1, vA0))
e("s_lshl_b32 s%d, s%d, 2" % (sT0, sUS))
e("s_add_u32 s%d, s%d, s%d" % (sT0, sT0, sT3))
e("s_mul_i32 s%d, s%d, 10240" % (sT0, sT0))
e("s_lshl_b32 s%d, s%d, 7" % (sT1, sST))
e("s_add_u32 s%d, s%d, s%d" % (sT0, sT0, sT1))
e("s_lshl_b32 s%d, s%d, 10" % (sT2, sT3))
e("s_add_u32 s%d, s%d, %d" % (sT2, sT2, L_WO))
for k in range(11):
    if k == 10:
        e("s_cmp_lt_u32 s%d, 11" % sNU)
        e("s_cbranch_scc1 %s" % lno)
    e("s_mov_b32 m0, s%d" % sT2)
    e("buffer_load_dwordx4 v%d, %s, s%d offen%s lds" % (vA0, srd(S_WO), sT0, NT))
    if k < 10:
        e("s_add_u32 s%d, s%d, 40960" % (sT0, sT0))
        e("s_add_u32 s%d, s%d, 4096" % (sT2, sT2))
e(lno + ":")
e("s_waitcnt vmcnt(0)")
stamp(11)
e("s_barrier")
frag_prep()
e(lc1 + ":")
e("s_lshl_b32 s%d, s%d, 5" % (sT1, sW))
e("s_lshl_b32 s%d, s%d, 8" % (sT0, sXI))
e("s_add_u32 s%d, s%d, s%d" % (sT0, sT0, sT1))
e("s_add_u32 s%d, s%d, %d" % (sT0, sT0, CP))
e("s_waitcnt lgkmcnt(0)")
e("s_barrier")
setexec(0x00ff00ff00ff00ff)
for ks in range(4):
    e("ds_read_b128 %s, v%d offset:%d" % (vr(vCF + 4 * ks, 4), vQLr, 64 * ks))
setexec(-1)
for ks in range(4):
    e("s_waitcnt lgkmcnt(%d)" % (3 - ks))
    e("v_mfma_f32_16x16x32_bf16 %s, %s, %s, %s" % (vr(vT, 4), vr(vCF + 4 * ks, 4), vr(vBUV + 4 * ks, 4), "0" if ks == 0 else vr(vT, 4)))
e("v_add_f32 v%d, v%d, v%d" % (vT, vT, vT + 1))
e("v_add_f32 v%d, v%d, v%d" % (vT + 2, vT + 2, vT + 3))
e("v_add_f32 v%d, v%d, v%d" % (vT, vT, vT + 2))
e("v_mov_b32 v%d, v%d" % (vT + 1, vT))
e("v_permlane16_swap_b32 v%d, v%d" % (vT, vT + 1))
e("v_add_f32 v%d, v%d, v%d" % (vT, vT, vT + 1))
e("v_mov_b32_dpp v%d, v%d row_shl:1 row_mask:0xf bank_mask:0xf bound_ctrl:0" % (vT + 1, vT))
e("v_cvt_pk_bf16_f32 v%d, v%d, v%d" % (vT, vT, vT + 1))
e("v_min_u32 v%d, -2, v%d" % (vT, vT))
setexec(0x5555)
e("buffer_store_dword v%d, v%d, %s, s%d offen sc1" % (vT, vOutA, srd(S_WS), sT0))
setexec(-1)
stamp(8)
e("s_cmp_ge_u32 s2, 120")
e("s_cbranch_scc1 L_fin")
e("v_lshlrev_b32 v%d, 8, v%d" % (vA0, vN))
e("v_lshl_add_u32 v%d, v%d, 4, v%d" % (vA0, vG, vA0))
e("s_add_u32 s%d, s%d, s%d" % (sT1, sUS, sW))
e("s_lshr_b32 s%d, s%d, 2" % (sT0, sT1))
e("s_lshl_b32 s%d, s%d, 10" % (sT0, sT0))
e("s_and_b32 s%d, s%d, 3" % (sT1, sT1))
e("s_lshl_b32 s%d, s%d, 6" % (sT1, sT1))
e("s_add_u32 s%d, s%d, s%d" % (sT0, sT0, sT1))
e("s_add_u32 s%d, s%d, %d" % (sT0, sT0, CP))
for k in range(8): e("v_mov_b32 v%d, 0" % (vG0 + k))
e("s_mov_b32 s%d, 0x000f000f" % sE0)
e("s_mov_b32 s%d, 0x000f000f" % (sE0 + 1))
e("s_add_u32 s%d, s%d, 8" % (sT1, sW))
e("s_cmp_lt_u32 s%d, s%d" % (sT1, sNU))
e("s_cselect_b64 %s, %s, 0" % (sp(sE1), sp(sE0)))
e("s_cselect_b32 s%d, 1, 0" % sT4)
e("v_lshlrev_b32 v%d, 2, v%d" % (vA1, vLANE))
e("s_lshl_b32 s%d, s%d, 8" % (sT1, sW))
e("v_add_u32 v%d, s%d, v%d" % (vA2, sT1, vA1))
e("s_lshl_b32 s%d, s2, 6" % sT2)
e("s_add_u32 s%d, s%d, %d" % (sT2, sT2, EWC))
if opt("d4", 0): e("s_sleep %d" % opt("d4", 0))
poll([("buffer_load_dwordx4 %s, v%d, %s, s%d offen offset:%d sc1" % (vr(vG0 + 4 * j, 4), vA0, srd(S_WS), sT0, 2048 * j), vG0 + 4 * j, 4) for j in range(2)], sleep=1, init_masks=[sp(sE0), sp(sE1)])
lr = e.newlabel("L_ew")
e("s_cmp_lg_u32 s%d, 0" % sW)
e("s_cbranch_scc1 %s" % lr)
store1(sT2)
e(lr + ":")
stamp(9)
e("s_waitcnt lgkmcnt(0)")
for t in range(4):
    e("v_mfma_f32_16x16x32_bf16 %s, %s, %s, 0" % (vr(vT + 4 * t, 4), vr(vG0, 4), vr(vBO + 4 * t, 4)))
l2u = e.newlabel("L_2u")
e("s_cmp_eq_u32 s%d, 0" % sT4)
e("s_cbranch_scc1 %s" % l2u)
for t in range(4):
    e("v_mfma_f32_16x16x32_bf16 %s, %s, %s, %s" % (vr(vT + 4 * t, 4), vr(vG0 + 4, 4), vr(vBO + 16 + 4 * t, 4), vr(vT + 4 * t, 4)))
e(l2u + ":")
e("s_lshl_b32 s%d, s2, 8" % sT0)
e("s_add_u32 s%d, s%d, %d" % (sT0, sT0, HP))
setexec(0xffff)
e("s_nop 4")
for t in range(4):
    b = vT + 4 * t
    e("v_add_f32 v%d, v%d, v%d" % (b, b, b + 1))
    e("v_add_f32 v%d, v%d, v%d" % (b + 2, b + 2, b + 3))
    e("v_add_f32 v%d, v%d, v%d" % (b, b, b + 2))
    e("ds_write_b32 v%d, v%d offset:%d" % (vA2, b, L_RED + 64 * t))
setexec(-1)
e("s_waitcnt lgkmcnt(0)")
e("s_barrier")
e("s_cmp_lg_u32 s%d, 0" % sW)
e("s_cbranch_scc1 L_fin")
for i in range(8):
    e("ds_read_b32 v%d, v%d offset:%d" % (vG0 + i, vA1, L_RED + 256 * i))
e("s_waitcnt lgkmcnt(0)")
for st in (4, 2, 1):
    for i in range(st):
        e("v_add_f32 v%d, v%d, v%d" % (vG0 + i, vG0 + i, vG0 + i + st))
e("v_min_u32 v%d, -2, v%d" % (vG0, vG0))
e("buffer_store_dword v%d, v%d, %s, s%d offen sc1" % (vG0, vA1, srd(S_WS), sT0))
stamp(10)
e("s_branch L_fin")

vCA, vCB, vGQ, vACC, vP = 48, 112, 176, 208, 224
e("L_Y:")
if opt("cpf", 0):
    lp_ = e.newlabel("L_cpf")
    e("s_cmp_lg_u32 s%d, 14" % sA)
    e("s_cbranch_scc1 %s" % lp_)
    e("s_getpc_b64 s[%d:%d]" % (sTM, sTM + 1))
    e.raw("L_pcref:")
    e.raw("    s_sub_u32 s%d, s%d, (L_pcref - %s)" % (sTM, sTM, KN))
    e.raw("    s_subb_u32 s%d, s%d, 0" % (sTM + 1, sTM + 1))
    e("v_lshlrev_b32 v%d, 4, v0" % vA0)
    for k in range(opt("cpf", 0)):
        e("global_load_dwordx4 %s, v%d, s[%d:%d]" % (vr(48 + 4 * k, 4), vA0, sTM, sTM + 1))
        e("v_add_u32 v%d, 8192, v%d" % (vA0, vA0))
    e(lp_ + ":")
l5 = e.newlabel("L_c"); l6 = e.newlabel("L_c"); l7 = e.newlabel("L_c")
e("s_cmp_lt_u32 s2, 248")
e("s_cbranch_scc1 %s" % l5)
e("s_lshl_b32 s%d, s%d, 13" % (sT2, sB))
e("s_lshl_b32 s%d, s%d, 10" % (sT3, sW))
e("s_add_u32 s%d, s%d, s%d" % (sT2, sT2, sT3))
e("s_add_u32 s%d, s%d, %d" % (sT2, sT2, QP))
e("buffer_store_dwordx4 %s, v%d, %s, s%d offen sc1" % (vr(vCL, 4), vL16, srd(S_WS), sT2))
e("s_lshl_b32 s%d, s%d, 12" % (sT2, sB))
e("s_and_b32 s%d, s%d, 3" % (sT3, sW))
e("s_lshl_b32 s%d, s%d, 10" % (sT3, sT3))
e("s_add_u32 s%d, s%d, s%d" % (sT2, sT2, sT3))
e("s_lshr_b32 s%d, s%d, 2" % (sT3, sW))
e("s_lshl_b32 s%d, s%d, 15" % (sT3, sT3))
e("s_add_u32 s%d, s%d, s%d" % (sT2, sT2, sT3))
e("buffer_store_dwordx4 %s, v%d, %s, s%d offen sc1" % (vr(vCL, 4), vL16, srd(S_WS), sT2))
e("s_cmp_lg_u32 s%d, 7" % sW)
e("s_cbranch_scc1 %s" % l6)
e("s_lshl_b32 s%d, s%d, 10" % (sT2, sB))
e("s_add_u32 s%d, s%d, %d" % (sT2, sT2, EWA))
e("buffer_store_dwordx4 %s, v%d, %s, s%d offen sc1" % (vr(vCL, 4), vL16, srd(S_WS), sT2))
e(l6 + ":")
e("s_waitcnt vmcnt(0)")
e("s_barrier")
e("s_cmp_lg_u32 s%d, 0" % sW)
e("s_cbranch_scc1 %s" % l7)
e("s_lshl_b32 s%d, s%d, 5" % (sT2, sB))
e("v_mov_b32 v%d, 1" % vA3)
setexec(1)
e("buffer_store_dword v%d, v%d, %s, s%d offen sc1" % (vA3, vL16, srd(S_DBG), sT2))
setexec(-1)
stamp(17)
e(l7 + ":")
e("s_barrier")
e(l5 + ":")
e("s_lshl_b32 s%d, s%d, 3" % (sKS, sB))
e("s_lshr_b32 s%d, s%d, 1" % (sT0, sA))
e("s_add_u32 s%d, s%d, s%d" % (sKS, sKS, sT0))
e("s_and_b32 s%d, s%d, 1" % (sHF, sA))
e("s_lshl_b32 s%d, s%d, 1" % (sYI, sKS))
e("s_add_u32 s%d, s%d, s%d" % (sYI, sYI, sHF))
e("s_lshr_b32 s%d, s%d, 2" % (sT1, sA))
e("s_lshl_b32 s%d, s%d, 3" % (sT1, sT1))
e("s_add_u32 s%d, s%d, s%d" % (sT1, sT1, sB))
e("s_and_b32 s%d, s%d, 3" % (sT0, sA))
e("s_lshl_b32 s%d, s%d, 2" % (sRD, sT1))
e("s_add_u32 s%d, s%d, s%d" % (sRD, sRD, sT0))
e("s_cmp_lt_u32 s%d, 27" % sT1)
e("s_cselect_b32 s%d, 1, 0" % sISD)
e("s_cmp_lt_u32 s%d, 20" % sT1)
e("s_cselect_b32 s%d, 1, 0" % sFIN)
e("s_cmp_eq_u32 s%d, 0" % sT0)
e("s_cselect_b32 s%d, s%d, 0" % (sFIN, sFIN))
def y_dma():
    e("s_lshl_b32 s%d, s%d, 7" % (sT0, sKS))
    e("s_lshl_b32 s%d, s%d, 4" % (sT2, sW))
    e("s_add_u32 s%d, s%d, s%d" % (sT0, sT0, sT2))
    e("s_lshl_b32 s%d, s%d, 10" % (sT0, sT0))
    e("s_mul_i32 s%d, s%d, %d" % (sT2, sT2, RS))
    e("s_add_u32 s%d, s%d, %d" % (sT2, sT2, L_CK))
    for j in range(2):
        e("s_xor_b32 s%d, s%d, %d" % (sT3, sHF, j))
        e("s_lshl_b32 s%d, s%d, 13" % (sT1, sT3))
        e("s_add_u32 s%d, s%d, s%d" % (sT1, sT1, sT0))
        e("s_mul_i32 s%d, s%d, %d" % (sT3, sT3, 8 * RS))
        e("s_add_u32 s%d, s%d, s%d" % (sT3, sT3, sT2))
        for i in range(8):
            e("s_mov_b32 m0, s%d" % sT3)
            e("buffer_load_dwordx4 v%d, %s, s%d offen%s lds" % (vL16, srd(S_CKV), sT1, NTC))
            if i < 7:
                e("s_add_u32 s%d, s%d, 1024" % (sT1, sT1))
                e("s_add_u32 s%d, s%d, %d" % (sT3, sT3, RS))
def y_pclr():
    e("s_lshl_b32 s%d, s%d, 14" % (sT0, sYI))
    e("s_lshl_b32 s%d, s%d, 11" % (sT1, sW))
    e("s_add_u32 s%d, s%d, s%d" % (sT0, sT0, sT1))
    e("s_add_u32 s%d, s%d, %d" % (sT0, sT0, PART))
    for i in range(2):
        e("buffer_store_dwordx4 %s, v%d, %s, s%d offen offset:%d sc1" % (vr(vCL, 4), vL16, srd(S_WS), sT0, 1024 * i))
def y_clr():
    if not opt("ypc", 1): y_pclr()
    l3 = e.newlabel("L_c")
    e("s_cmp_eq_u32 s%d, 0" % sISD)
    e("s_cbranch_scc1 %s" % l3)
    e("s_cmp_gt_u32 s%d, 2" % sW)
    e("s_cbranch_scc1 %s" % l3)
    e("s_mul_i32 s%d, s%d, 2560" % (sT0, sRD))
    e("s_add_u32 s%d, s%d, %d" % (sT0, sT0, OP))
    e("v_lshlrev_b32 v%d, 4, v0" % vA3)
    e("v_cmp_gt_u32 vcc, 160, v0")
    e("s_mov_b64 exec, vcc")
    e("buffer_store_dwordx4 %s, v%d, %s, s%d offen sc1" % (vr(vCL, 4), vA3, srd(S_WS), sT0))
    setexec(-1)
    e(l3 + ":")
if opt("yord", 0):
    y_clr()
    e("s_waitcnt vmcnt(0)")
    for _ in range(opt("ydel", 0)): e("s_sleep 16")
    y_dma()
else:
    for _ in range(opt("ydel", 0)): e("s_sleep 16")
    y_dma()
    y_clr()
vFr = 43
e("v_mul_u32_u24 v%d, %d, v%d" % (vFr, RS, vN))
e("v_lshl_add_u32 v%d, v%d, 4, v%d" % (vFr, vG, vFr))
e("s_mul_i32 s%d, s%d, %d" % (sT0, sW, 16 * RS))
e("s_add_u32 s%d, s%d, %d" % (sT0, sT0, L_CK))
e("v_add_u32 v%d, s%d, v%d" % (vA1, sT0, vFr))
lr = e.newlabel("L_r")
e("s_cmp_lg_u32 s%d, 0" % sW)
e("s_cbranch_scc1 %s" % lr)
flag_check()
e(lr + ":")
e("s_waitcnt vmcnt(0)")
stamp(1)
if opt("ypc", 1): y_pclr()
for ks in range(16):
    e("ds_read_b128 %s, v%d offset:%d" % (vr(vCA + 4 * ks, 4), vA1, 64 * ks))
    if ks == 7: e("s_waitcnt lgkmcnt(0)")
e("s_barrier")
stamp(2)
e("s_lshl_b32 s%d, s%d, 4" % (sT0, sHF))
e("s_lshl_b32 s%d, s%d, 1" % (sT1, sW))
e("s_add_u32 s%d, s%d, s%d" % (sT0, sT0, sT1))
e("s_lshl_b32 s%d, s%d, 10" % (sT2, sT0))
for k in range(2):
    e("buffer_load_dwordx4 %s, v%d, %s, s%d offen offset:%d sc1" % (vr(vGQ + 4 * k, 4), vL16, srd(S_WS), sT2, 1024 * k))
e("v_lshrrev_b32 v%d, 2, v%d" % (vA1, vN))
e("v_lshl_add_u32 v%d, v%d, 3, v%d" % (vA1, vG, vA1))
e("v_mul_u32_u24 v%d, %d, v%d" % (vA1, RS, vA1))
e("v_and_b32 v%d, 3, v%d" % (vA3, vN))
e("v_lshl_add_u32 v%d, v%d, 3, v%d" % (vA1, vA3, vA1))
e("s_lshl_b32 s%d, s%d, 7" % (sT0, sW))
e("s_add_u32 s%d, s%d, %d" % (sT0, sT0, L_CK))
e("v_add_u32 v%d, s%d, v%d" % (vA1, sT0, vA1))
e("v_add_u32 v%d, %d, v%d" % (vA2, 64 * RS, vA1))
e("s_waitcnt lgkmcnt(0)")
cnt = 0
for t in range(4):
    for kk in range(4):
        for u in range(2):
            e("ds_read_b64_tr_b16 %s, v%d offset:%d" % (vr(vCB + 16 * t + 4 * kk + 2 * u, 2), vA1 if kk < 2 else vA2, (32 * (kk & 1) + 4 * u) * RS + 32 * t))
            cnt += 1
            if cnt % 8 == 0: e("s_waitcnt lgkmcnt(0)")
vQSw, vQSr, vMXa, vPw, vPr, vPo = 240 - 16 + 16, 0, 0, 0, 0, 0
vQSw, vQSr, vMXa, vPw, vPr, vPo = vT + 20, vT + 21, vT + 22, vT + 23, vT + 24, vT + 25
e("s_mul_i32 s%d, s%d, %d" % (sT0, sW, 2 * RS))
e("s_add_u32 s%d, s%d, %d" % (sT0, sT0, L_QS))
e("v_add_u32 v%d, s%d, v%d" % (vQSw, sT0, vL16))
e("v_add_u32 v%d, %d, v%d" % (vQSr, L_QS, vFr))
e("v_lshlrev_b32 v%d, 5, v%d" % (vMXa, vN))
e("v_mul_u32_u24 v%d, %d, v%d" % (vPr, PRS, vN))
e("v_lshl_add_u32 v%d, v%d, 3, v%d" % (vPw, vG, vPr))
e("s_lshl_b32 s%d, s%d, 5" % (sT0, sW))
e("v_add_u32 v%d, s%d, v%d" % (vPw, sT0, vPw))
e("v_lshl_add_u32 v%d, v%d, 4, v%d" % (vPr, vG, vPr))
e("v_lshlrev_b32 v%d, 12, v%d" % (vPo, vG))
e("v_lshl_add_u32 v%d, v%d, 3, v%d" % (vPo, vN, vPo))
e("s_lshl_b32 s%d, s%d, 2" % (sT4, sW))
e("v_add_u32 v%d, s%d, v%d" % (vT + 26, sT4, vMXa))
e("v_lshlrev_b32 v%d, 7, v%d" % (vT + 27, vN))
e("v_lshl_add_u32 v%d, v%d, 2, v%d" % (vT + 27, vG, vT + 27))
e("s_lshl_b32 s%d, s%d, 4" % (sT4, sW))
e("v_add_u32 v%d, s%d, v%d" % (vT + 27, sT4, vT + 27))
e("s_lshl_b32 s%d, s%d, 4" % (sT0, sHF))
e("s_lshl_b32 s%d, s%d, 1" % (sT1, sW))
e("s_add_u32 s%d, s%d, s%d" % (sT0, sT0, sT1))
e("s_lshl_b32 s%d, s%d, 10" % (sT2, sT0))
e("s_lshl_b32 s%d, s%d, 2" % (sT0, sT0))
e("s_and_b32 s%d, s%d, 7" % (sT1, sKS))
e("s_add_u32 s%d, s%d, s%d" % (sT0, sT0, sT1))
e("s_lshl_b32 s%d, s%d, 6" % (sT0, sT0))
e("s_add_u32 s%d, s%d, %d" % (sT0, sT0, EWA))
lq = e.newlabel("L_qok")
e("s_waitcnt vmcnt(0)")
e("v_max3_u32 v%d, v%d, v%d, v%d" % (vT, vGQ, vGQ + 1, vGQ + 2))
e("v_max3_u32 v%d, v%d, v%d, v%d" % (vT, vT, vGQ + 3, vGQ + 4))
e("v_max3_u32 v%d, v%d, v%d, v%d" % (vT, vT, vGQ + 5, vGQ + 6))
e("v_max_u32 v%d, v%d, v%d" % (vT, vT, vGQ + 7))
e("v_cmp_eq_u32 vcc, -1, v%d" % vT)
e("s_cbranch_vccz %s" % lq)
hint_wait(sT0, vGQ, opt("sl2", 3))
stamp(3)
poll([("buffer_load_dwordx4 %s, v%d, %s, s%d offen offset:%d sc1" % (vr(vGQ + 4 * k, 4), vL16, srd(S_WS), sT2, 1024 * k), vGQ + 4 * k, 4) for k in range(2)], sleep=1)
e(lq + ":")
stamp(4)
for k in range(2):
    e("ds_write_b128 v%d, %s offset:%d" % (vQSw, vr(vGQ + 4 * k, 4), RS * k))
e("s_waitcnt lgkmcnt(0)")
e("s_barrier")
sacc = vT
for half in range(2):
    for k in range(8):
        e("ds_read_b128 %s, v%d offset:%d" % (vr(vGQ + 4 * k, 4), vQSr, 64 * (8 * half + k)))
    for k in range(8):
        ks = 8 * half + k
        e("s_waitcnt lgkmcnt(%d)" % (7 - k))
        e("v_mfma_f32_16x16x32_bf16 %s, %s, %s, %s" % (vr(sacc, 4), vr(vCA + 4 * ks, 4), vr(vGQ + 4 * k, 4), "0" if ks == 0 else vr(sacc, 4)))
if opt('mk', 1) == 0:
    lmk = e.newlabel("L_mk")
    e("s_cmp_lg_u32 s%d, 7" % sW)
    e("s_cbranch_scc1 %s" % lmk)
    e("s_lshl_b32 s%d, s%d, 7" % (sT0, sYI))
    e("s_add_u32 s%d, s%d, %d" % (sT0, sT0, STAT))
    e("v_lshlrev_b32 v%d, 3, v%d" % (vA1, vN))
    e("v_mov_b32 v%d, 0" % (vT + 8))
    e("v_mov_b32 v%d, -1.0" % (vT + 9))
    setexec(0xffff)
    e("buffer_store_dwordx2 %s, v%d, %s, s%d offen sc1" % (vr(vT + 8, 2), vA1, srd(S_WS), sT0))
    setexec(-1)
    e(lmk + ":")
e("s_mov_b32 s%d, 0x3db504f3" % sT0)
e("v_cvt_pk_bf16_f32 v%d, v%d, v%d" % (vT + 4, sacc, sacc + 1))
e("v_cvt_pk_bf16_f32 v%d, v%d, v%d" % (vT + 5, sacc + 2, sacc + 3))
unpack(sacc, vT + 4, 2)
for i in range(4): e("v_mul_f32 v%d, s%d, v%d" % (sacc + i, sT0, sacc + i))
e("v_cvt_pk_bf16_f32 v%d, v%d, v%d" % (vT + 4, sacc, sacc + 1))
e("v_cvt_pk_bf16_f32 v%d, v%d, v%d" % (vT + 5, sacc + 2, sacc + 3))
unpack(sacc, vT + 4, 2)
mx = vT + 4
e("v_max3_f32 v%d, v%d, v%d, v%d" % (mx, sacc, sacc + 1, sacc + 2))
e("v_max_f32 v%d, v%d, v%d" % (mx, mx, sacc + 3))
allred_g(mx, vT + 5, "v_max_f32")
e("ds_write_b32 v%d, v%d offset:%d" % (vT + 26, mx, L_MX))
if opt('mk', 1) == 1:
    lmk = e.newlabel("L_mk")
    e("s_cmp_lg_u32 s%d, 7" % sW)
    e("s_cbranch_scc1 %s" % lmk)
    e("s_lshl_b32 s%d, s%d, 7" % (sT0, sYI))
    e("s_add_u32 s%d, s%d, %d" % (sT0, sT0, STAT))
    e("v_lshlrev_b32 v%d, 3, v%d" % (vA1, vN))
    e("v_mov_b32 v%d, 0" % (vT + 8))
    e("v_mov_b32 v%d, -1.0" % (vT + 9))
    setexec(0xffff)
    e("buffer_store_dwordx2 %s, v%d, %s, s%d offen sc1" % (vr(vT + 8, 2), vA1, srd(S_WS), sT0))
    setexec(-1)
    e(lmk + ":")
e("s_waitcnt lgkmcnt(0)")
e("s_barrier")
stamp(5)
e("ds_read_b128 %s, v%d offset:%d" % (vr(vT + 8, 4), vMXa, L_MX))
e("ds_read_b128 %s, v%d offset:%d" % (vr(vT + 12, 4), vMXa, L_MX + 16))
e("s_waitcnt lgkmcnt(0)")
e("v_max3_f32 v%d, v%d, v%d, v%d" % (mx, vT + 8, vT + 9, vT + 10))
e("v_max3_f32 v%d, v%d, v%d, v%d" % (vT + 5, vT + 11, vT + 12, vT + 13))
e("v_max3_f32 v%d, v%d, v%d, v%d" % (mx, mx, vT + 14, vT + 15))
e("v_max_f32 v%d, v%d, v%d" % (mx, mx, vT + 5))
e("v_mul_f32 v%d, s%d, v%d" % (vT + 6, sL2E, mx))
for i in range(4): e("v_fma_f32 v%d, v%d, s%d, -v%d" % (sacc + i, sacc + i, sL2E, vT + 6))
for i in range(4): e("v_exp_f32 v%d, v%d" % (sacc + i, sacc + i))
e("v_cvt_pk_bf16_f32 v%d, v%d, v%d" % (vT + 8, sacc, sacc + 1))
e("v_cvt_pk_bf16_f32 v%d, v%d, v%d" % (vT + 9, sacc + 2, sacc + 3))
e("ds_write_b64 v%d, %s offset:%d" % (vPw, vr(vT + 8, 2), L_P))
e("v_add_f32 v%d, v%d, v%d" % (sacc, sacc, sacc + 1))
e("v_add_f32 v%d, v%d, v%d" % (sacc + 2, sacc + 2, sacc + 3))
e("v_add_f32 v%d, v%d, v%d" % (sacc, sacc, sacc + 2))
e("ds_write_b32 v%d, v%d offset:%d" % (vT + 27, sacc, L_SUM))
e("s_waitcnt lgkmcnt(0)")
e("s_barrier")
for kk in range(4):
    e("ds_read_b128 %s, v%d offset:%d" % (vr(vP + 4 * kk, 4), vPr, L_P + 64 * kk))
ls_ = e.newlabel("L_st")
e("s_cmp_lg_u32 s%d, 7" % sW)
e("s_cbranch_scc1 %s" % ls_)
e("v_lshlrev_b32 v%d, 7, v%d" % (vA1, vN))
e("v_lshl_add_u32 v%d, v%d, 5, v%d" % (vA1, vG, vA1))
e("ds_read_b128 %s, v%d offset:%d" % (vr(vT + 8, 4), vA1, L_SUM))
e("ds_read_b128 %s, v%d offset:%d" % (vr(vT + 12, 4), vA1, L_SUM + 16))
e("s_lshl_b32 s%d, s%d, 7" % (sT0, sYI))
e("s_add_u32 s%d, s%d, %d" % (sT0, sT0, STAT))
e("v_lshlrev_b32 v%d, 3, v%d" % (vA1, vN))
e("s_waitcnt lgkmcnt(0)")
for st in (4, 2, 1):
    for i in range(st): e("v_add_f32 v%d, v%d, v%d" % (vT + 8 + i, vT + 8 + i, vT + 8 + i + st))
allred_g(vT + 8, vT + 9)
e("v_min_u32 v%d, -2, v%d" % (mx, mx))
e("v_and_b32 v%d, 0x7fffffff, v%d" % (mx + 1, vT + 8))
setexec(0xffff)
e("buffer_store_dwordx2 %s, v%d, %s, s%d offen sc1" % (vr(mx, 2), vA1, srd(S_WS), sT0))
setexec(-1)
e(ls_ + ":")
e("s_lshl_b32 s%d, s%d, 14" % (sT0, sYI))
e("s_lshl_b32 s%d, s%d, 7" % (sT1, sW))
e("s_add_u32 s%d, s%d, s%d" % (sT0, sT0, sT1))
e("s_add_u32 s%d, s%d, %d" % (sT0, sT0, PART))
for kk in range(4):
    e("s_waitcnt lgkmcnt(%d)" % (3 - kk))
    for t in range(4):
        a = vACC + 4 * t
        e("v_mfma_f32_16x16x32_bf16 %s, %s, %s, %s" % (vr(a, 4), vr(vP + 4 * kk, 4), vr(vCB + 16 * t + 4 * kk, 4), "0" if kk == 0 else vr(a, 4)))
for i in range(4):
    o = vT + 8 + 2 * i
    e("v_cvt_pk_bf16_f32 v%d, v%d, v%d" % (o, vACC + i, vACC + 4 + i))
    e("v_cvt_pk_bf16_f32 v%d, v%d, v%d" % (o + 1, vACC + 8 + i, vACC + 12 + i))
    e("v_min_u32 v%d, -2, v%d" % (o, o))
    e("v_min_u32 v%d, -2, v%d" % (o + 1, o + 1))
    e("buffer_store_dwordx2 %s, v%d, %s, s%d offen offset:%d sc1" % (vr(o, 2), vPo, srd(S_WS), sT0, 1024 * i))
stamp(6)
e("s_cmp_eq_u32 s%d, 0" % sISD)
e("s_cbranch_scc1 L_fin")
vW2, vW2p, vB1, vXD, vGH = 48, 64, 80, 110, 112
e("s_barrier")
lw1 = e.newlabel("L_w1")
e("s_cmp_ge_u32 s%d, 4" % sW)
e("s_cbranch_scc1 %s" % lw1)
e("v_lshrrev_b32 v%d, 1, v%d" % (vA0, vLANE))
e("v_mul_u32_u24 v%d, 3456, v%d" % (vA0, vA0))
e("v_and_b32 v%d, 1, v%d" % (vA1, vLANE))
e("v_lshl_add_u32 v%d, v%d, 4, v%d" % (vA0, vA1, vA0))
e("s_mul_i32 s%d, s%d, %d" % (sT0, sW, 160 * 3456))
e("s_lshl_b32 s%d, s%d, 5" % (sT1, sRD))
e("s_add_u32 s%d, s%d, s%d" % (sT0, sT0, sT1))
e("s_mul_i32 s%d, s%d, 5120" % (sT2, sW))
e("s_add_u32 s%d, s%d, %d" % (sT2, sT2, L_W1))
for k in range(5):
    e("s_mov_b32 m0, s%d" % sT2)
    e("buffer_load_dwordx4 v%d, %s, s%d offen lds" % (vA0, srd(S_W1), sT0))
    if k < 4:
        e("s_add_u32 s%d, s%d, %d" % (sT0, sT0, 32 * 3456))
        e("s_add_u32 s%d, s%d, 1024" % (sT2, sT2))
e(lw1 + ":")
lw2 = e.newlabel("L_w2")
e("v_lshlrev_b32 v%d, 2, v0" % vA0)
e("s_cmp_ge_u32 s%d, 5" % sW)
e("s_cbranch_scc1 %s" % lw2)
e("s_mul_i32 s%d, s%d, %d" % (sT0, sRD, 16 * 1280))
for r in range(16):
    e("buffer_load_dword v%d, v%d, %s, s%d offen offset:%d%s" % (vW2 + r, vA0, srd(S_W2), sT0, (r % 3) * 1280, NT))
    if r % 3 == 2: e("s_add_u32 s%d, s%d, 3840" % (sT0, sT0))
e("buffer_load_dword v%d, v%d, %s, 0 offen" % (vXD, vA0, srd(S_X)))
e("v_mov_b32 v%d, 0x3f803f80" % vA1)
e("ds_write_b32 v%d, v%d offset:%d" % (vA0, vA1, L_ONES))
e(lw2 + ":")
lo = e.newlabel("L_oh")
e("s_cmp_lg_u32 s%d, 7" % sW)
e("s_cbranch_scc1 %s" % lo)
e("v_lshlrev_b32 v%d, 8, v%d" % (vA0, vLANE))
e("s_xor_b32 s%d, s%d, 1" % (sT0, sHF))
e("s_lshl_b32 s%d, s%d, 14" % (sT0, sT0))
poll([("buffer_load_dword v%d, v%d, %s, s%d offen sc1" % (vGH, vA0, srd(S_WS), sT0), vGH, 1)], sleep=8)
e(lo + ":")
e("v_lshlrev_b32 v%d, 2, v0" % vA0)
e("s_waitcnt vmcnt(0) lgkmcnt(0)")
e("s_barrier")
lp5 = e.newlabel("L_p5"); lpd = e.newlabel("L_pd")
e("s_cmp_ge_u32 s%d, 5" % sW)
e("s_cbranch_scc1 %s" % lp5)
e("s_mov_b32 s%d, 0x05040100" % sT0)
e("s_mov_b32 s%d, 0x07060302" % sT1)
for j in range(8):
    e("v_perm_b32 v%d, v%d, v%d, s%d" % (vW2p + 2 * j, vW2 + 2 * j + 1, vW2 + 2 * j, sT0))
    e("v_perm_b32 v%d, v%d, v%d, s%d" % (vW2p + 2 * j + 1, vW2 + 2 * j + 1, vW2 + 2 * j, sT1))
unpack(vXD, vXD, 1) if False else None
e("v_and_b32 v%d, 0xffff0000, v%d" % (vXD + 1, vXD))
e("v_lshlrev_b32 v%d, 16, v%d" % (vXD, vXD))
e("s_branch %s" % lpd)
e(lp5 + ":")
e("v_lshrrev_b32 v%d, 2, v%d" % (vA1, vN))
e("v_lshl_add_u32 v%d, v%d, 3, v%d" % (vA1, vG, vA1))
e("v_lshlrev_b32 v%d, 5, v%d" % (vA1, vA1))
e("v_and_b32 v%d, 3, v%d" % (vA2, vN))
e("v_lshl_add_u32 v%d, v%d, 3, v%d" % (vA1, vA2, vA1))
e("s_sub_u32 s%d, s%d, 5" % (sT0, sW))
e("s_mul_i32 s%d, s%d, 7168" % (sT1, sT0))
e("v_add_u32 v%d, s%d, v%d" % (vA1, sT1, vA1))
for j in range(7):
    for u in range(2):
        e("ds_read_b64_tr_b16 %s, v%d offset:%d" % (vr(vB1 + 4 * j + 2 * u, 2), vA1, L_W1 + 1024 * j + 128 * u))
e("v_lshlrev_b32 v%d, 4, v%d" % (vA2, vG))
e("s_mul_i32 s%d, s%d, 448" % (sT1, sT0))
e("v_add_u32 v%d, s%d, v%d" % (vA2, sT1, vA2))
e("v_add_u32 v%d, %d, v%d" % (vA3, L_ONES - L_HB, vA2))
e("v_cmp_eq_u32 vcc, 1, v%d" % vN)
e("v_cndmask_b32 v%d, v%d, v%d, vcc" % (vA2, vA2, vA3))
e("s_waitcnt lgkmcnt(0)")
e(lpd + ":")
stamp(7)
lh = e.newlabel("L_dh")
e("s_cmp_ge_u32 s%d, 5" % sW)
e("s_cbranch_scc1 %s" % lh)
e("s_lshl_b32 s%d, s%d, 6" % (sT0, sRD))
e("s_add_u32 s%d, s%d, %d" % (sT0, sT0, EWC))
hint_wait(sT0, vGH, opt("sl5", 4))
stamp(8)
e("v_lshlrev_b32 v%d, 3, v0" % vA1)
for k in range(6): e("s_mov_b32 s%d, %d" % (sF + k, HP + 2 * 2560 * k))
if opt("d5", 0): e("s_sleep %d" % opt("d5", 0))
poll([("buffer_load_dwordx2 %s, v%d, %s, s%d offen sc1\nbuffer_load_dwordx2 %s, v%d, %s, s%d offen offset:2560 sc1" % (vr(vGH + 4 * k, 2), vA1, srd(S_WS), sF + k, vr(vGH + 4 * k + 2, 2), vA1, srd(S_WS), sF + k), vGH + 4 * k, 4) for k in range(6)], sleep=1)
stamp(9)
for i in range(6):
    e("v_pk_add_f32 %s, %s, %s" % (vr(vGH + 2 * i, 2), vr(vGH + 2 * i, 2), vr(vGH + 2 * (i + 6), 2)))
for i in range(3):
    e("v_pk_add_f32 %s, %s, %s" % (vr(vGH + 2 * i, 2), vr(vGH + 2 * i, 2), vr(vGH + 2 * (i + 3), 2)))
e("v_pk_add_f32 %s, %s, %s" % (vr(vGH, 2), vr(vGH, 2), vr(vGH + 2, 2)))
e("v_pk_add_f32 %s, %s, %s" % (vr(vGH, 2), vr(vGH, 2), vr(vGH + 4, 2)))
e("v_cvt_pk_bf16_f32 v%d, v%d, v%d" % (vT, vGH, vGH + 1))
unpack(vGH, vT, 1)
e("v_pk_add_f32 %s, %s, %s" % (vr(vGH, 2), vr(vGH, 2), vr(vXD, 2)))
e("v_cvt_pk_bf16_f32 v%d, v%d, v%d" % (vT, vGH, vGH + 1))
e("ds_write_b32 v%d, v%d offset:%d" % (vA0, vT, L_HB))
unpack(vGH, vT, 1)
e("s_waitcnt lgkmcnt(0)")
e(lh + ":")
e("s_barrier")
lm = e.newlabel("L_dm"); lj = e.newlabel("L_dj")
e("s_cmp_ge_u32 s%d, 5" % sW)
e("s_cbranch_scc1 %s" % lm)
e("ds_write_b64 v%d, %s offset:%d" % (vA1, vr(vGH, 2), L_HF))
e("v_add_f32 v%d, v%d, v%d" % (vT, vGH, vGH + 1))
wave_red([vT], [sT0])
e("v_mov_b32 v%d, s%d" % (vT + 2, sT0))
e("v_mul_f32 v%d, 0x3c000000, v%d" % (vT + 2, vT + 2))
e("v_sub_f32 v%d, v%d, v%d" % (vT, vGH, vT + 2))
e("v_sub_f32 v%d, v%d, v%d" % (vT + 1, vGH + 1, vT + 2))
e("v_mul_f32 v%d, v%d, v%d" % (vT, vT, vT))
e("v_fmac_f32 v%d, v%d, v%d" % (vT, vT + 1, vT + 1))
wave_red([vT], [sT0])
e("v_mov_b32 v%d, s%d" % (vT + 3, sT0))
e("s_lshl_b32 s%d, s%d, 3" % (sT0, sW))
e("v_mov_b32 v%d, s%d" % (vT + 4, sT0))
setexec(1)
e("ds_write_b64 v%d, %s offset:%d" % (vT + 4, vr(vT + 2, 2), L_ST))
setexec(-1)
e("s_branch %s" % lj)
e(lm + ":")
for j in range(7):
    e("ds_read_b128 %s, v%d offset:%d" % (vr(vGH + 4 * j, 4), vA2, L_HB + 64 * j))
lz = e.newlabel("L_z")
for j in range(7):
    if j == 6:
        e("s_cmp_eq_u32 s%d, 7" % sW)
        e("s_cbranch_scc1 %s" % lz)
    e("s_waitcnt lgkmcnt(%d)" % (6 - j))
    e("v_mfma_f32_16x16x32_bf16 %s, %s, %s, %s" % (vr(vT, 4), vr(vGH + 4 * j, 4), vr(vB1 + 4 * j, 4), "0" if j == 0 else vr(vT, 4)))
e(lz + ":")
e("v_lshlrev_b32 v%d, 3, v%d" % (vA1, vN))
e("s_sub_u32 s%d, s%d, 5" % (sT0, sW))
e("s_lshl_b32 s%d, s%d, 7" % (sT0, sT0))
e("v_add_u32 v%d, s%d, v%d" % (vA1, sT0, vA1))
setexec(0xffff)
e("ds_write_b64 v%d, %s offset:%d" % (vA1, vr(vT, 2), L_RED))
setexec(-1)
e(lj + ":")
e("s_waitcnt lgkmcnt(0)")
e("s_barrier")
stamp(10)
ld2 = e.newlabel("L_d2")
e("s_cmp_ge_u32 s%d, 5" % sW)
e("s_cbranch_scc1 %s" % ld2)
e("v_mov_b32 v%d, 0" % vA2)
e("v_lshlrev_b32 v%d, 3, v%d" % (vA3, vN))
st_ = vT + 8
e("ds_read_b128 %s, v%d offset:%d" % (vr(st_, 4), vA2, L_ST))
e("ds_read_b128 %s, v%d offset:%d" % (vr(st_ + 4, 4), vA2, L_ST + 16))
e("ds_read_b64 %s, v%d offset:%d" % (vr(st_ + 8, 2), vA2, L_ST + 32))
for k in range(3):
    e("ds_read_b64 %s, v%d offset:%d" % (vr(vT + 20 + 2 * k, 2), vA3, L_RED + 128 * k))
e("s_waitcnt lgkmcnt(3)")
mean, m2 = vT, vT + 1
e("v_pk_add_f32 %s, %s, %s" % (vr(vT, 2), vr(st_, 2), vr(st_ + 2, 2)))
e("v_pk_add_f32 %s, %s, %s" % (vr(vT + 2, 2), vr(st_ + 4, 2), vr(st_ + 6, 2)))
e("v_pk_add_f32 %s, %s, %s" % (vr(vT, 2), vr(vT, 2), vr(st_ + 8, 2)))
e("v_pk_add_f32 %s, %s, %s" % (vr(vT, 2), vr(vT, 2), vr(vT + 2, 2)))
e("v_mul_f32 v%d, 0x3e4ccccd, v%d" % (mean, mean))
e("v_mov_b32 v%d, 0" % (vT + 2))
for k in range(5):
    e("v_sub_f32 v%d, v%d, v%d" % (vT + 3, st_ + 2 * k, mean))
    e("v_fmac_f32 v%d, v%d, v%d" % (vT + 2, vT + 3, vT + 3))
e("v_fmac_f32 v%d, 0x43000000, v%d" % (m2, vT + 2))
e("v_mul_f32 v%d, 0x3acccccd, v%d" % (m2, m2))
rbf(mean, mean); rbf(m2, m2)
e("v_add_f32 v%d, 0x3727c5ac, v%d" % (m2, m2))
rbf(m2, m2)
e("v_sqrt_f32 v%d, v%d" % (m2, m2))
rbf(m2, m2)
e("v_rcp_f32 v%d, v%d" % (m2, m2))
e("s_waitcnt lgkmcnt(0)")
e("v_pk_add_f32 %s, %s, %s" % (vr(vT + 20, 2), vr(vT + 20, 2), vr(vT + 22, 2)))
e("v_pk_add_f32 %s, %s, %s" % (vr(vT + 20, 2), vr(vT + 20, 2), vr(vT + 24, 2)))
e("v_fma_f32 v%d, -v%d, v%d, v%d" % (vT + 20, mean, vT + 21, vT + 20))
e("v_mul_f32 v%d, v%d, v%d" % (vT + 20, vT + 20, m2))
e("v_max_f32 v%d, 0, v%d" % (vT + 20, vT + 20))
e("v_mov_b32_dpp v%d, v%d row_shl:1 row_mask:0xf bank_mask:0xf bound_ctrl:0" % (vT + 21, vT + 20))
e("v_cvt_pk_bf16_f32 v%d, v%d, v%d" % (vT + 20, vT + 20, vT + 21))
for j in range(8):
    e("v_readlane_b32 s%d, v%d, %d" % (sF + j, vT + 20, 2 * j))
e("v_mov_b32 v%d, 0" % (vT + 2))
e("v_mov_b32 v%d, 0" % (vT + 3))
for j in range(8):
    for k in range(2):
        e("v_dot2c_f32_bf16 v%d, s%d, v%d" % (vT + 2 + k, sF + j, vW2p + 2 * j + k))
e("s_mul_i32 s%d, s%d, 2560" % (sT0, sRD))
e("s_add_u32 s%d, s%d, %d" % (sT0, sT0, OP))
e("v_min_u32 v%d, -2, v%d" % (vT + 2, vT + 2))
e("v_min_u32 v%d, -2, v%d" % (vT + 3, vT + 3))
e("buffer_store_dwordx2 %s, v%d, %s, s%d offen sc1" % (vr(vT + 2, 2), vA1, srd(S_WS), sT0))
e(ld2 + ":")
stamp(11)
e("s_cmp_eq_u32 s%d, 0" % sFIN)
e("s_cbranch_scc1 L_fin")
e("v_lshrrev_b32 v%d, 3, v%d" % (vA1, vLANE))
e("v_mul_u32_u24 v%d, 2560, v%d" % (vA0, vA1))
e("v_and_b32 v%d, 7, v%d" % (vA3, vLANE))
e("v_lshl_add_u32 v%d, v%d, 4, v%d" % (vA0, vA3, vA0))
e("s_mul_i32 s%d, s%d, %d" % (sT0, sW, 16 * 2560))
e("s_lshl_b32 s%d, s%d, 5" % (sT1, sRD))
e("s_add_u32 s%d, s%d, s%d" % (sT0, sT0, sT1))
e("s_add_u32 s%d, s%d, %d" % (sT0, sT0, OP))
e("s_add_u32 s%d, s%d, %d" % (sT2, sT0, 8 * 2560))
e("s_lshl_b32 s%d, s%d, 4" % (sT3, sW))
e("v_add_u32 v%d, s%d, v%d" % (vA1, sT3, vA1))
for k in range(8): e("v_mov_b32 v%d, 0" % (vGH + k))
e("v_cmp_gt_u32 vcc, 108, v%d" % vA1)
e("s_mov_b64 %s, vcc" % sp(sE0))
e("v_cmp_gt_u32 vcc, 100, v%d" % vA1)
e("s_mov_b64 %s, vcc" % sp(sE1))
e("v_lshlrev_b32 v%d, 4, v%d" % (vA1, vA3))
e("v_lshl_add_u32 v%d, v%d, 2, v%d" % (vA1, vG, vA1))
e("s_lshl_b32 s%d, s%d, 7" % (sT3, sW))
e("v_add_u32 v%d, s%d, v%d" % (vA1, sT3, vA1))
if opt("d6", 0): e("s_sleep %d" % opt("d6", 0))
poll([("buffer_load_dwordx4 %s, v%d, %s, s%d offen sc1" % (vr(vGH + 4 * k, 4), vA0, srd(S_WS), [sT0, sT2][k]), vGH + 4 * k, 4) for k in range(2)], sleep=1, init_masks=[sp(sE0), sp(sE1)])
stamp(12)
e("v_pk_add_f32 %s, %s, %s" % (vr(vT, 2), vr(vGH, 2), vr(vGH + 4, 2)))
e("v_pk_add_f32 %s, %s, %s" % (vr(vT + 2, 2), vr(vGH + 2, 2), vr(vGH + 6, 2)))
rs_4to1(vT)
e("v_add_f32_dpp v%d, v%d, v%d row_ror:8 row_mask:0xf bank_mask:0xf" % (vT + 1, vT, vT))
setexec(0x00ff00ff00ff00ff)
e("ds_write_b32 v%d, v%d offset:%d" % (vA1, vT + 1, L_RED + 1024))
setexec(-1)
e("s_waitcnt lgkmcnt(0)")
e("s_barrier")
e("s_cmp_lg_u32 s%d, 0" % sW)
e("s_cbranch_scc1 L_fin")
e("v_lshlrev_b32 v%d, 2, v%d" % (vA0, vLANE))
e("v_add_u32 v%d, s%d, v%d" % (vA1, sT1, vA0))
setexec(0xffffffff)
for i in range(8):
    e("ds_read_b32 v%d, v%d offset:%d" % (vGH + i, vA0, L_RED + 1024 + 128 * i))
e("ds_read_b32 v%d, v%d offset:%d" % (vGH + 8, vA1, L_HF))
e("s_waitcnt lgkmcnt(0)")
for st in (4, 2, 1):
    for i in range(st):
        e("v_add_f32 v%d, v%d, v%d" % (vGH + i, vGH + i, vGH + i + st))
rbf(vGH, vGH)
e("v_add_f32 v%d, v%d, v%d" % (vGH, vGH, vGH + 8))
e("v_cvt_pk_bf16_f32 v%d, v%d, v%d" % (vGH, vGH, vGH))
e("v_lshrrev_b32 v%d, 1, v%d" % (vA1, vA1))
e("buffer_store_short v%d, v%d, %s, 0 offen" % (vGH, vA1, srd(S_OUT)))
setexec(-1)
if opt("dbl", 0):
    e("s_memrealtime s[100:101]")
    e("s_waitcnt lgkmcnt(0)")
    e("s_sub_u32 s99, s100, s98")
    e("L_dbl:")
    e("s_memrealtime s[96:97]")
    e("s_waitcnt lgkmcnt(0)")
    e("s_sub_u32 s96, s96, s100")
    e("s_cmp_lt_u32 s96, s99")
    e("s_cbranch_scc1 L_dbl")
e("L_fin:")
if DIAG:
    stamp(13)
    if opt("dbg", 0):
        for wgid, base, idxs in ((128, 1, (2, 4, 6, 8, 9, 11, 13)), (0, 9, (1, 3, 4, 6, 7, 8, 10))):
            l = e.newlabel("L_dbg")
            e("s_cmp_lg_u32 s2, %d" % wgid)
            e("s_cbranch_scc1 %s" % l)
            e("s_cmp_lg_u32 s%d, 0" % sW)
            e("s_cbranch_scc1 %s" % l)
            e("v_readlane_b32 s%d, v%d, 0" % (sT0, vTSV))
            for k, ix in enumerate(idxs):
                e("v_readlane_b32 s%d, v%d, %d" % (sT1, vTSV, ix))
                e("s_sub_u32 s%d, s%d, s%d" % (sT1, sT1, sT0))
                e("v_mov_b32 v%d, s%d" % (vA1, sT1))
                e("v_mov_b32 v%d, %d" % (vA0, 4 * (base + k)))
                setexec(1)
                e("buffer_store_dword v%d, v%d, %s, 0 offen" % (vA1, vA0, srd(S_DBG)))
                setexec(-1)
            e(l + ":")
    e("v_lshlrev_b32 v%d, 2, v%d" % (vA0, vLANE))
    e("s_lshl_b32 s%d, s2, 3" % sT0)
    e("s_add_u32 s%d, s%d, s%d" % (sT0, sT0, sW))
    e("s_lshl_b32 s%d, s%d, 8" % (sT0, sT0))
    e("s_add_u32 s%d, s%d, %d" % (sT0, sT0, DIAGO))
    e("buffer_store_dword v%d, v%d, %s, s%d offen" % (vTSV, vA0, srd(S_WS), sT0))
e("L_end:")
e("s_endpgm")
e.raw(""".section .rodata,"a"
.p2align 6
.amdhsa_kernel %s
  .amdhsa_next_free_vgpr %d
  .amdhsa_next_free_sgpr 102
  .amdhsa_accum_offset %d
  .amdhsa_group_segment_fixed_size 0
  .amdhsa_kernarg_size 96
  .amdhsa_user_sgpr_count 2
  .amdhsa_user_sgpr_kernarg_segment_ptr 1
  .amdhsa_system_sgpr_workgroup_id_x 1
.end_amdhsa_kernel""" % (KN, NVGPR, NVGPR))
open(OUTF, "w").write(e.text())
```

```python
import sys
sys.path.insert(0, "gen")
from emit import Emitter

KN = "sequential_preLN__compressed_kv_cla__dense_activation_relu__decode_kernel"
DIAG = "--diag" in sys.argv
OUTF = [a for a in sys.argv[1:] if not a.startswith("--")][0]
def opt(name, default):
    for a in sys.argv:
        if a.startswith("--%s=" % name): return int(a.split("=")[1])
    return default
EWA_AT = opt("ewa", 16)
FLAG_AT = opt("flag", 8)

QA, CP, EWA, QP = 0x0, 0x8000, 0x10000, 0x12000
HP, EWC, STAT, OP, PART, DIAGO = 0x90000, 0x9E000, 0x24000, 0x30000, 0x100000, 0x800000
RDY = 0
EWB = 0x96000
NT = " nt" if opt("nt", 1) else ""
NTC = " nt" if opt("ntc", 1) else ""
WS_BYTES = 0x900000
RS = 1040
L_RED = 0
L_QL = 4096
L_LN = 8448
L_MX = 4096
L_SUM = 4608
L_P = 6656
PRS = 272
L_HB = 4096
L_ONES = 5376
L_ST = 6656
L_HF = 7168
L_QS = 12288
L_CK = L_QS + 16 * RS
LDS_BYTES = L_CK + 128 * RS
L_WUV = 12288
L_WO = L_WUV + 32768
L_W1 = 12288
SPIN = 200000

S_X, S_CKV, S_WQ, S_WUK, S_WUV, S_WO, S_W1, S_W2, S_OUT, S_DBG, S_WS = [4 + 4 * i for i in range(11)]
def srd(b): return "s[%d:%d]" % (b, b + 3)
sW, sA, sB, sCNT, sT0, sT1, sT2, sT3 = 48, 49, 50, 51, 52, 53, 54, 55
sH, sCQ, sXI = 56, 57, 58
sKS, sHF, sYI = 56, 57, 58
sRD, sISD, sFIN = 59, 88, 89
sM = [60, 62, 64, 66, 68, 70, 72, 74]
sTM, sOR = 76, 78
sF = 80
sE0, sE1 = 90, 92
sL2E, sT4 = 94, 95
sTS = 96
def sp(b): return "s[%d:%d]" % (b, b + 1)
e = Emitter()
def vr(b, n): return "v[%d:%d]" % (b, b + n - 1) if n > 1 else "v%d" % b

vLANE, vN, vG = 1, 2, 3
vA0, vA1, vA2, vA3 = 4, 5, 6, 7
vT = 8
vTSV = 40
vL16 = 41
vCL = 44
NVGPR = 248

def stamp(idx):
    if not DIAG: return
    e("s_memrealtime %s" % sp(sTS))
    e("s_waitcnt lgkmcnt(0)")
    e("v_writelane_b32 v%d, s%d, %d" % (vTSV, sTS, idx))
def setexec(m):
    if m == -1: e("s_mov_b64 exec, -1"); return
    e("s_mov_b32 exec_lo, 0x%x" % (m & 0xffffffff))
    e("s_mov_b32 exec_hi, 0x%x" % (m >> 32))
def rbf(dst, src):
    e("v_cvt_pk_bf16_f32 v%d, v%d, v%d" % (dst, src, src))
    e("v_lshlrev_b32 v%d, 16, v%d" % (dst, dst))
def wave_red(vs, sdsts, op="v_add_f32"):
    bc = " bound_ctrl:0" if op == "v_add_f32" else ""
    for sh in (1, 2, 4, 8):
        for v in vs: e("%s_dpp v%d, v%d, v%d row_shr:%d row_mask:0xf bank_mask:0xf%s" % (op, v, v, v, sh, bc))
    for v in vs: e("%s_dpp v%d, v%d, v%d row_bcast:15 row_mask:0xa bank_mask:0xf" % (op, v, v, v))
    for v in vs: e("%s_dpp v%d, v%d, v%d row_bcast:31 row_mask:0xc bank_mask:0xf" % (op, v, v, v))
    for v, s in zip(vs, sdsts): e("v_readlane_b32 s%d, v%d, 63" % (s, v))
def unpack(dst, src, n):
    for i in range(n):
        e("v_lshlrev_b32 v%d, 16, v%d" % (dst + 2 * i, src + i))
        e("v_and_b32 v%d, 0xffff0000, v%d" % (dst + 2 * i + 1, src + i))
PD = opt("pd", 1)
PG = opt("pg", 5)
def poll(loads, sleep=1, init_masks=None, depth=None):
    D = PD if depth is None else depth
    lp = e.newlabel("L_poll"); dn = e.newlabel("L_polld")
    nl = sum(t.count("buffer_load") for t, _, _ in loads)
    for k in range(len(loads)):
        e("s_mov_b64 %s, %s" % (sp(sM[k]), "-1" if not init_masks or init_masks[k] is None else init_masks[k]))
    e("s_mov_b32 s%d, 0" % sCNT)
    def issue():
        for k, (txt, d, n) in enumerate(loads):
            e("s_mov_b64 exec, %s" % sp(sM[k]))
            e(txt)
        e("s_mov_b64 exec, -1")
    for _ in range(D - 1):
        issue()
        e("s_sleep %d" % PG)
    e(lp + ":")
    issue()
    e("s_waitcnt vmcnt(%d)" % ((D - 1) * nl))
    for k, (txt, d, n) in enumerate(loads):
        t = vT + 31
        if n == -2:
            e("v_cmp_gt_i32 %s, 0, v%d" % (sp(sTM), d + 1))
        elif n == 1:
            e("v_cmp_eq_u32 %s, -1, v%d" % (sp(sTM), d))
        else:
            e("v_max_u32 v%d, v%d, v%d" % (t, d, d + 1))
            if n >= 4: e("v_max3_u32 v%d, v%d, v%d, v%d" % (t, t, d + 2, d + 3))
            e("v_cmp_eq_u32 %s, -1, v%d" % (sp(sTM), t))
        e("s_and_b64 %s, %s, %s" % (sp(sM[k]), sp(sM[k]), sp(sTM)))
        if k == 1: e("s_or_b64 %s, %s, %s" % (sp(sOR), sp(sM[0]), sp(sM[k])))
        elif k > 1: e("s_or_b64 %s, %s, %s" % (sp(sOR), sp(sOR), sp(sM[k])))
    e("s_cbranch_scc0 %s" % dn)
    e("s_add_u32 s%d, s%d, 1" % (sCNT, sCNT))
    e("s_cmp_gt_u32 s%d, %d" % (sCNT, SPIN))
    e("s_cbranch_scc1 %s" % dn)
    if sleep and D == 1: e("s_sleep %d" % sleep)
    e("s_branch %s" % lp)
    e(dn + ":")
def rs_8to2(b):
    for i in range(4): e("v_permlane32_swap_b32 v%d, v%d" % (b + i, b + 4 + i))
    for i in range(4): e("v_add_f32 v%d, v%d, v%d" % (b + i, b + i, b + 4 + i))
    for i in range(2): e("v_permlane16_swap_b32 v%d, v%d" % (b + i, b + 2 + i))
    for i in range(2): e("v_add_f32 v%d, v%d, v%d" % (b + i, b + i, b + 2 + i))
def rs_4to1(b):
    for i in range(2): e("v_permlane32_swap_b32 v%d, v%d" % (b + i, b + 2 + i))
    for i in range(2): e("v_add_f32 v%d, v%d, v%d" % (b + i, b + i, b + 2 + i))
    e("v_permlane16_swap_b32 v%d, v%d" % (b, b + 1))
    e("v_add_f32 v%d, v%d, v%d" % (b, b, b + 1))
def allred_g(v, tmp, op="v_add_f32"):
    e("v_mov_b32 v%d, v%d" % (tmp, v))
    e("v_permlane32_swap_b32 v%d, v%d" % (v, tmp))
    e("%s v%d, v%d, v%d" % (op, v, v, tmp))
    e("v_mov_b32 v%d, v%d" % (tmp, v))
    e("v_permlane16_swap_b32 v%d, v%d" % (v, tmp))
    e("%s v%d, v%d, v%d" % (op, v, v, tmp))
def hilo_write(v, vaddr):
    h, a, b = v + 2, v + 3, v + 4
    e("v_cvt_pk_bf16_f32 v%d, v%d, v%d" % (h, v, v + 1))
    e("v_lshlrev_b32 v%d, 16, v%d" % (a, h))
    e("v_and_b32 v%d, 0xffff0000, v%d" % (b, h))
    e("v_sub_f32 v%d, v%d, v%d" % (v, v, a))
    e("v_sub_f32 v%d, v%d, v%d" % (v + 1, v + 1, b))
    e("v_cvt_pk_bf16_f32 v%d, v%d, v%d" % (a, v, v + 1))
    e("ds_write2_b32 v%d, v%d, v%d offset0:0 offset1:68" % (vaddr, h, a))
def rows_gemv_publish(vB, vQLr, vOut, sOut):
    f = vT + 8
    for ks in range(4):
        e("ds_read_b128 %s, v%d offset:%d" % (vr(f + 4 * ks, 4), vQLr, 64 * ks))
    for ks in range(4):
        e("s_waitcnt lgkmcnt(%d)" % (3 - ks))
        e("v_mfma_f32_16x16x32_bf16 %s, %s, %s, %s" % (vr(vT, 4), vr(f + 4 * ks, 4), vr(vB + 4 * ks, 4), "0" if ks == 0 else vr(vT, 4)))
    e("v_add_f32 v%d, v%d, v%d" % (vT, vT, vT + 1))
    e("v_add_f32 v%d, v%d, v%d" % (vT + 2, vT + 2, vT + 3))
    e("v_add_f32 v%d, v%d, v%d" % (vT, vT, vT + 2))
    allred_g(vT, vT + 1)
    e("v_mov_b32_dpp v%d, v%d row_shl:1 row_mask:0xf bank_mask:0xf bound_ctrl:0" % (vT + 1, vT))
    e("v_cvt_pk_bf16_f32 v%d, v%d, v%d" % (vT, vT, vT + 1))
    e("v_min_u32 v%d, -2, v%d" % (vT, vT))
    setexec(0x5555)
    e("buffer_store_dword v%d, v%d, %s, s%d offen sc1" % (vT, vOut, srd(S_WS), sOut))
    setexec(-1)
def flag_check(first_loaded=None):
    lp = e.newlabel("L_fl"); ld = e.newlabel("L_fld"); l1 = e.newlabel("L_fl1")
    e("s_mov_b32 s%d, 0" % sCNT)
    if first_loaded is not None: e("s_branch %s" % l1)
    e(lp + ":")
    setexec(0xff)
    e("v_lshlrev_b32 v%d, 5, v%d" % (vA3, vLANE))
    e("buffer_load_dword v%d, v%d, %s, 0 offen sc1" % (vL16 + 1, vA3, srd(S_DBG)))
    setexec(-1)
    e(l1 + ":")
    e("s_waitcnt vmcnt(0)")
    setexec(0xff)
    e("v_cmp_eq_u32 vcc, 0, v%d" % (vL16 + 1))
    setexec(-1)
    e("s_cbranch_vccz %s" % ld)
    e("s_add_u32 s%d, s%d, 1" % (sCNT, sCNT))
    e("s_cmp_gt_u32 s%d, %d" % (sCNT, SPIN))
    e("s_cbranch_scc1 %s" % ld)
    e("s_sleep 8")
    e("s_branch %s" % lp)
    e(ld + ":")
def store1(soff, val=1):
    e("v_mov_b32 v%d, %d" % (vA3, val))
    e("v_mov_b32 v%d, 0" % (vT + 30))
    setexec(1)
    e("buffer_store_dword v%d, v%d, %s, s%d offen sc1" % (vA3, vT + 30, srd(S_WS), soff))
    setexec(-1)
def rdy_write():
    e("s_lshl_b32 s%d, s2, 6" % sT0)
    e("s_add_u32 s%d, s%d, %d" % (sT0, sT0, RDY))
    store1(sT0)
def rdy_check(dst):
    l = e.newlabel("L_rdy")
    e("s_cmp_ge_u32 s%d, 4" % sW)
    e("s_cbranch_scc1 %s" % l)
    e("v_lshlrev_b32 v%d, 6, v0" % vA0)
    e("s_mov_b32 s%d, %d" % (sT0, RDY))
    poll([("buffer_load_dword v%d, v%d, %s, s%d offen sc1" % (dst, vA0, srd(S_WS), sT0), dst, 1)], sleep=8)
    e(l + ":")
def hint_wait(soff, dst, sleep):
    e("v_mov_b32 v%d, 0" % vA3)
    poll([("buffer_load_dword v%d, v%d, %s, s%d offen sc1" % (dst, vA3, srd(S_WS), soff), dst, 1)], sleep=sleep, init_masks=["1"])

e.raw("""; persistent MLA decode + FFN kernel (generated by gen/gen13.py)
; @launch grid=(256,1,1) block=(512,1,1) lds=%d
.amdgcn_target "amdgcn-amd-amdhsa--gfx950"
.text
.globl %s
.p2align 8
.type %s,@function
%s:""" % (LDS_BYTES, KN, KN, KN))
e("s_cmp_ge_u32 s2, 256")
e("s_cbranch_scc1 L_end")
e("s_load_dwordx16 s[64:79], s[0:1], 0")
e("s_add_u32 s2, s2, 248")
e("s_and_b32 s2, s2, 255")
e("s_load_dwordx8 s[80:87], s[0:1], 64")
if opt("dbl", 0):
    e("s_memrealtime s[98:99]")
if DIAG:
    e("v_mov_b32 v%d, 0" % vTSV)
    stamp(0)
e("v_and_b32 v%d, 63, v0" % vLANE)
e("v_lshrrev_b32 v%d, 6, v0" % vA0)
e("v_and_b32 v%d, 15, v0" % vN)
e("v_bfe_u32 v%d, v0, 4, 2" % vG)
e("v_readfirstlane_b32 s%d, v%d" % (sW, vA0))
for i in range(4): e("v_mov_b32 v%d, -1" % (vCL + i))
e("v_lshlrev_b32 v%d, 4, v%d" % (vL16, vLANE))
e("s_bfe_u32 s%d, s2, 0x40003" % sA)
e("s_and_b32 s%d, s2, 7" % sB)
e("s_mov_b32 s%d, 0x3fb8aa3b" % sL2E)
e("s_waitcnt lgkmcnt(0)")
sizes = {S_X: 1280, S_CKV: 8388608, S_WQ: 5242880, S_WUK: 4194304, S_WUV: 4194304, S_WO: 5242880, S_W1: 2211840, S_W2: 2211840, S_OUT: 1280, S_DBG: 256, S_WS: WS_BYTES}
src = {S_X: 64, S_CKV: 66, S_WQ: 68, S_WUK: 70, S_WUV: 72, S_WO: 74, S_W1: 78, S_W2: 80, S_OUT: 82, S_DBG: 84, S_WS: 86}
for b in (S_WS, S_X, S_WQ, S_CKV, S_WUK, S_DBG, S_WUV, S_WO, S_W1, S_W2, S_OUT):
    e("s_mov_b32 s%d, s%d" % (b, src[b]))
    e("s_mov_b32 s%d, s%d" % (b + 1, src[b] + 1))
    e("s_mov_b32 s%d, %d" % (b + 2, sizes[b]))
    e("s_mov_b32 s%d, 0x00020000" % (b + 3))
e("s_cmp_ge_u32 s2, 128")
e("s_cbranch_scc1 L_Y")

vWQ, vWUK, vL1, vL0, vXF, vXR = 48, 148, 164, 170, 184, 190
vBUV, vBO, vG0 = 48, 64, 96
vQLw, vQLr, vOutA = 192, 193, 194
e("s_lshl_b32 s%d, s%d, 2" % (sH, sB))
e("s_lshr_b32 s%d, s%d, 2" % (sT0, sA))
e("s_add_u32 s%d, s%d, s%d" % (sH, sH, sT0))
e("s_and_b32 s%d, s%d, 3" % (sCQ, sA))
e("s_lshl_b32 s%d, s%d, 2" % (sXI, sH))
e("s_add_u32 s%d, s%d, s%d" % (sXI, sXI, sCQ))
sST, sKQ, sUS, sNU = 98, 99, 100, 101
e("s_mul_i32 s%d, s2, 205" % sKQ)
e("s_lshr_b32 s%d, s%d, 11" % (sKQ, sKQ))
e("s_mul_i32 s%d, s%d, 10" % (sT0, sKQ))
e("s_sub_u32 s%d, s2, s%d" % (sST, sT0))
e("s_mul_i32 s%d, s%d, 11" % (sUS, sKQ))
e("s_max_u32 s%d, s%d, 8" % (sT0, sKQ))
e("s_sub_u32 s%d, s%d, 8" % (sT0, sT0))
e("s_sub_u32 s%d, s%d, s%d" % (sUS, sUS, sT0))
e("s_cmp_lt_u32 s%d, 8" % sKQ)
e("s_cselect_b32 s%d, 11, 10" % sNU)
L_WUK = L_WO + 45056
vWQ, vL1, vL0, vXF, vXR = 48, 164, 176, 186, 191
vQF = vG0 + 32; vCF = vG0 + 32; vC2a, vC1a, vUKa = 200, 201, 196
vBUV, vBO = 144, 160
def frag_prep():
    r_, q_, x_ = vT + 26, vT + 27, vT + 28
    e("v_lshrrev_b32 v%d, 2, v%d" % (r_, vN))
    e("v_bfe_u32 v%d, v%d, 1, 1" % (q_, vN))
    e("v_lshl_or_b32 v%d, v%d, 2, v%d" % (x_, vG, r_))
    e("v_xor_b32 v%d, v%d, v%d" % (x_, x_, q_))
    e("s_lshl_b32 s%d, s%d, 1" % (sF + 5, sW))
    e("v_xor_b32 v%d, s%d, v%d" % (x_, sF + 5, x_))
    e("v_lshlrev_b32 v%d, 4, v%d" % (x_, x_))
    e("v_lshlrev_b32 v%d, 4, v%d" % (vC1a, r_))
    e("v_lshl_add_u32 v%d, v%d, 1, v%d" % (vC1a, vG, vC1a))
    e("v_lshl_add_u32 v%d, v%d, 8, v%d" % (vC1a, vC1a, x_))
    e("v_and_b32 v%d, 1, v%d" % (x_, vN))
    e("v_lshl_add_u32 v%d, v%d, 3, v%d" % (vC1a, x_, vC1a))
    for ks in range(4):
        for u in range(2):
            e("ds_read_b64_tr_b16 %s, v%d offset:%d" % (vr(vBUV + 4 * ks + 2 * u, 2), vC1a, L_WUV + (64 * (ks >> 1) + 8 * (ks & 1) + u) * 256))
    e("v_lshl_add_u32 v%d, v%d, 3, v%d" % (vC2a, vG, r_))
    e("v_lshlrev_b32 v%d, 7, v%d" % (vC2a, vC2a))
    e("v_lshl_add_u32 v%d, v%d, 3, v%d" % (vC2a, x_, vC2a))
    e("s_lshl_b32 s%d, s%d, 12" % (sF + 5, sW))
    e("s_add_u32 s%d, s%d, %d" % (sF + 5, sF + 5, L_WO))
    e("v_add_u32 v%d, s%d, v%d" % (vC2a, sF + 5, vC2a))
    e("v_lshrrev_b32 v%d, 1, v%d" % (r_, r_))
    e("v_lshl_or_b32 v%d, v%d, 1, v%d" % (r_, vG, r_))
    e("v_xor_b32 v%d, v%d, v%d" % (r_, r_, q_))
    e("s_waitcnt lgkmcnt(0)")
    for t in range(4):
        e("v_xor_b32 v%d, %d, v%d" % (x_, 2 * t, r_))
        e("v_lshl_add_u32 v%d, v%d, 4, v%d" % (x_, x_, vC2a))
        for j in range(2):
            for u in range(2):
                e("ds_read_b64_tr_b16 %s, v%d offset:%d" % (vr(vBO + 16 * j + 4 * t + 2 * u, 2), x_, 32768 * j + 512 * u))
        if t == 1: e("s_waitcnt lgkmcnt(0)")
    e("s_waitcnt lgkmcnt(0)")
lc1 = e.newlabel("L_c1"); lS = e.newlabel("L_S")
for k in range(16): e("v_mov_b32 v%d, 0" % (vQF + k))
e("v_lshlrev_b32 v%d, 4, v%d" % (vQLw, vN))
e("v_lshl_add_u32 v%d, v%d, 2, v%d" % (vQLw, vG, vQLw))
e("v_mul_u32_u24 v%d, 272, v%d" % (vQLr, vN))
e("v_lshl_add_u32 v%d, v%d, 4, v%d" % (vQLr, vG, vQLr))
e("v_add_u32 v%d, %d, v%d" % (vQLr, L_QL, vQLr))
e("v_lshlrev_b32 v%d, 1, v%d" % (vOutA, vN))
e("s_cmp_ge_u32 s%d, 4" % sW)
e("s_cbranch_scc1 %s" % lS)
e("v_lshlrev_b32 v%d, 2, v%d" % (vA0, vLANE))
for i in range(5):
    e("buffer_load_dword v%d, v%d, %s, 0 offen offset:%d" % (vXF + i, vA0, srd(S_X), 256 * i))
e("v_lshlrev_b32 v%d, 1, v%d" % (vA1, vLANE))
e("s_mul_i32 s%d, s%d, 160" % (sT0, sCQ))
e("s_mul_i32 s%d, s%d, 40" % (sT1, sW))
e("s_add_u32 s%d, s%d, s%d" % (sT0, sT0, sT1))
e("s_lshl_b32 s%d, s%d, 1" % (sT1, sT0))
e("buffer_load_ushort v%d, v%d, %s, s%d offen" % (vXR, vA1, srd(S_X), sT1))
e("s_barrier")
e("v_lshlrev_b32 v%d, 13, v%d" % (vA0, vG))
e("v_lshl_add_u32 v%d, v%d, 4, v%d" % (vA0, vN, vA0))
e("s_lshl_b32 s%d, s%d, 13" % (sT0, sT0))
e("s_lshl_b32 s%d, s%d, 8" % (sT1, sH))
e("s_add_u32 s%d, s%d, s%d" % (sT0, sT0, sT1))
for i in range(10):
    e("buffer_load_dwordx4 %s, v%d, %s, s%d offen%s" % (vr(vWQ + 4 * i, 4), vA0, srd(S_WQ), sT0, NT))
    if i < 9: e("s_add_u32 s%d, s%d, 32768" % (sT0, sT0))
e("s_barrier")
e("s_waitcnt vmcnt(10)")
stamp(1)
unpack(vT, vXF, 5)
a, b_, vM, vS = vT + 10, vT + 11, vT + 12, vT + 13
e("v_add_f32 v%d, v%d, v%d" % (a, vT, vT + 1))
for k in range(2, 10): e("v_add_f32 v%d, v%d, v%d" % (a, a, vT + k))
wave_red([a], [sT0])
e("s_mov_b32 s%d, 0x3acccccd" % sT1)
e("v_mov_b32 v%d, s%d" % (vM, sT0))
e("v_mul_f32 v%d, s%d, v%d" % (vM, sT1, vM))
e("v_sub_f32 v%d, v%d, v%d" % (b_, vT, vM))
e("v_mul_f32 v%d, v%d, v%d" % (a, b_, b_))
for k in range(1, 10):
    e("v_sub_f32 v%d, v%d, v%d" % (b_, vT + k, vM))
    e("v_fmac_f32 v%d, v%d, v%d" % (a, b_, b_))
wave_red([a], [sT0])
e("v_mov_b32 v%d, s%d" % (vS, sT0))
e("v_mul_f32 v%d, s%d, v%d" % (vS, sT1, vS))
rbf(vM, vM); rbf(vS, vS)
e("v_add_f32 v%d, 0x3727c5ac, v%d" % (vS, vS))
rbf(vS, vS)
e("v_sqrt_f32 v%d, v%d" % (vS, vS))
rbf(vS, vS)
e("v_rcp_f32 v%d, v%d" % (vS + 1, vS))
v = vXR
e("v_lshlrev_b32 v%d, 16, v%d" % (v, v))
e("v_sub_f32 v%d, v%d, v%d" % (v, v, vM))
rbf(v, v)
e("v_mul_f32 v%d, v%d, v%d" % (b_, v, vS + 1))
e("v_fma_f32 v%d, -v%d, v%d, v%d" % (a, b_, vS, v))
e("v_fmac_f32 v%d, v%d, v%d" % (b_, a, vS + 1))
rbf(v, b_)
e("v_and_b32 v%d, 3, v%d" % (vA0, vLANE))
e("v_lshlrev_b32 v%d, 6, v%d" % (vA0, vA0))
e("v_and_b32 v%d, 0x3c, v%d" % (vA1, vLANE))
e("v_add_u32 v%d, v%d, v%d" % (vA0, vA0, vA1))
e("s_lshl_b32 s%d, s%d, 8" % (sT0, sW))
e("v_add_u32 v%d, s%d, v%d" % (vA0, sT0, vA0))
e("ds_write_b32 v%d, v%d offset:%d" % (vA0, vXR, L_LN))
e("v_lshlrev_b32 v%d, 6, v%d" % (vA1, vG))
e("v_add_u32 v%d, s%d, v%d" % (vA1, sT0, vA1))
e("s_waitcnt lgkmcnt(0)")
for k in range(3):
    e("ds_read_b128 %s, v%d offset:%d" % (vr(vL1 + 4 * k, 4), vA1, L_LN + 16 * k))
e("s_lshl_b32 s%d, s%d, 5" % (sF + 3, sB))
e("v_mov_b32 v%d, 0" % (vT + 20))
setexec(1)
e("buffer_load_dword v%d, v%d, %s, s%d offen sc1" % (vL16 + 1, vT + 20, srd(S_DBG), sF + 3))
setexec(-1)
e("v_lshlrev_b32 v%d, 1, v%d" % (vA1, vQLw))
e("s_lshl_b32 s%d, s%d, 9" % (sT0, sW))
e("v_add_u32 v%d, s%d, v%d" % (vA1, sT0, vA1))
e("s_mul_i32 s%d, s%d, 544" % (sT0, sW))
e("s_add_u32 s%d, s%d, %d" % (sT0, sT0, L_QL))
e("v_add_u32 v%d, s%d, v%d" % (vQLw, sT0, vQLw))
e("v_lshlrev_b32 v%d, 3, v%d" % (vA2, vLANE))
e("v_lshlrev_b32 v%d, 2, v%d" % (vT + 29, vLANE))
e("s_lshl_b32 s%d, s%d, 13" % (sT0, sW))
e("s_add_u32 s%d, s%d, %d" % (sT0, sT0, L_WUK))
e("v_xor_b32 v%d, v%d, v%d" % (vA0, vN, vG))
for ks in range(4):
    e("v_xor_b32 v%d, %d, v%d" % (vUKa + ks, 4 * ks, vA0))
    e("v_lshlrev_b32 v%d, 4, v%d" % (vUKa + ks, vUKa + ks))
    e("v_lshl_add_u32 v%d, v%d, 8, v%d" % (vUKa + ks, vN, vUKa + ks))
    e("v_add_u32 v%d, s%d, v%d" % (vUKa + ks, sT0, vUKa + ks))
e("v_lshlrev_b32 v%d, 8, v%d" % (vA0, vN))
e("v_lshl_add_u32 v%d, v%d, 4, v%d" % (vA0, vG, vA0))
for k in range(8): e("v_mov_b32 v%d, 0" % (vT + k))
e("s_mov_b32 s%d, 0x00ff00ff" % sE0)
e("s_mov_b32 s%d, 0x00ff00ff" % (sE0 + 1))
e("s_lshl_b32 s%d, s%d, 9" % (sT2, sXI))
e("s_add_u32 s%d, s%d, %d" % (sT2, sT2, QP))
e("s_lshl_b32 s%d, s%d, 11" % (sT3, sH))
e("s_add_u32 s%d, s%d, %d" % (sT3, sT3, QP))
e("s_waitcnt lgkmcnt(0)")
for k in range(10): e("v_lshrrev_b32 v%d, 16, v%d" % (vL0 + k, vL1 + k))
stamp(2)
for i in range(10):
    e("s_waitcnt vmcnt(%d)" % (9 - i + 1))
    for k in range(4):
        e("v_dot2c_f32_bf16 v%d, v%d, v%d" % (vT + 2 * k, vWQ + 4 * i + k, vL0 + i))
        e("v_dot2c_f32_bf16 v%d, v%d, v%d" % (vT + 2 * k + 1, vWQ + 4 * i + k, vL1 + i))
rs_8to2(vT)
e("ds_write_b64 v%d, %s offset:%d" % (vA1, vr(vT, 2), L_RED))
e("s_waitcnt lgkmcnt(0)")
e("s_barrier")
stamp(3)
lw = e.newlabel("L_a1w")
e("s_cmp_lg_u32 s%d, 0" % sW)
e("s_cbranch_scc1 %s" % lw)
for i in range(4):
    e("ds_read_b64 %s, v%d offset:%d" % (vr(vG0 + 2 * i, 2), vA2, L_RED + 512 * i))
e(lw + ":")
lfo = e.newlabel("L_fo"); lfp = e.newlabel("L_fp"); lf1 = e.newlabel("L_f1")
e("s_mov_b32 s%d, 0" % sCNT)
setexec(1)
e("s_branch %s" % lf1)
e(lfp + ":")
setexec(1)
e("buffer_load_dword v%d, v%d, %s, s%d offen sc1" % (vL16 + 1, vT + 20, srd(S_DBG), sF + 3))
e(lf1 + ":")
e("s_waitcnt vmcnt(0)")
e("v_cmp_eq_u32 vcc, 0, v%d" % (vL16 + 1))
setexec(-1)
e("s_cbranch_vccz %s" % lfo)
e("s_add_u32 s%d, s%d, 1" % (sCNT, sCNT))
e("s_cmp_gt_u32 s%d, %d" % (sCNT, SPIN))
e("s_cbranch_scc1 %s" % lfo)
e("s_sleep 2")
e("s_branch %s" % lfp)
e(lfo + ":")
stamp(14)
if DIAG: e("v_writelane_b32 v%d, s%d, 20" % (vTSV, sCNT))
lw = e.newlabel("L_a1w")
e("s_cmp_lg_u32 s%d, 0" % sW)
e("s_cbranch_scc1 %s" % lw)
e("s_waitcnt lgkmcnt(0)")
v = vG0
e("v_pk_add_f32 %s, %s, %s" % (vr(v, 2), vr(v, 2), vr(v + 2, 2)))
e("v_pk_add_f32 %s, %s, %s" % (vr(v + 4, 2), vr(v + 4, 2), vr(v + 6, 2)))
e("v_pk_add_f32 %s, %s, %s" % (vr(v, 2), vr(v, 2), vr(v + 4, 2)))
e("v_cvt_pk_bf16_f32 v%d, v%d, v%d" % (v + 2, v, v + 1))
e("v_lshlrev_b32 v%d, 16, v%d" % (v + 4, v + 2))
e("v_and_b32 v%d, 0xffff0000, v%d" % (v + 5, v + 2))
e("v_min_u32 v%d, -2, v%d" % (v + 2, v + 2))
e("buffer_store_dword v%d, v%d, %s, s%d offen sc1" % (v + 2, vT + 29, srd(S_WS), sT2))
e("v_pk_add_f32 %s, %s, %s neg_lo:[0,1] neg_hi:[0,1]" % (vr(v, 2), vr(v, 2), vr(v + 4, 2)))
e("v_cvt_pk_bf16_f32 v%d, v%d, v%d" % (v + 3, v, v + 1))
e("v_min_u32 v%d, -2, v%d" % (v + 3, v + 3))
e("buffer_store_dword v%d, v%d, %s, s%d offen offset:256 sc1" % (v + 3, vT + 29, srd(S_WS), sT2))
e(lw + ":")
stamp(16)
if opt("d1", 0): e("s_sleep %d" % opt("d1", 0))
poll([("buffer_load_dwordx4 %s, v%d, %s, s%d offen offset:%d sc1" % (vr(vQF + 4 * ks, 4), vA0, srd(S_WS), sT3, 64 * ks), vQF + 4 * ks, 4) for ks in range(4)], sleep=1, init_masks=[sp(sE0)] * 4)
stamp(15)
if DIAG: e("v_writelane_b32 v%d, s%d, 21" % (vTSV, sCNT))
lr = e.newlabel("L_ew")
e("s_cmp_lg_u32 s%d, 1" % sW)
e("s_cbranch_scc1 %s" % lr)
e("s_lshl_b32 s%d, s%d, 6" % (sT0, sXI))
e("s_add_u32 s%d, s%d, %d" % (sT0, sT0, EWA))
store1(sT0)
e(lr + ":")
e("s_barrier")
vUK = 48
for t in range(2):
    for ks in range(4):
        e("ds_read_b128 %s, v%d offset:%d" % (vr(vUK + 16 * t + 4 * ks, 4), vUKa + ks, 4096 * t))
e("s_lshl_b32 s%d, s%d, 8" % (sT0, sXI))
e("s_lshl_b32 s%d, s%d, 6" % (sT1, sW))
e("s_add_u32 s%d, s%d, s%d" % (sT0, sT0, sT1))
e("v_lshlrev_b32 v%d, 1, v%d" % (vA1, vLANE))
for t in range(2):
    for ks in range(4):
        e("s_waitcnt lgkmcnt(%d)" % (7 - 4 * t - ks))
        e("v_mfma_f32_16x16x32_bf16 %s, %s, %s, %s" % (vr(vT + 4 * t, 4), vr(vQF + 4 * ks, 4), vr(vUK + 16 * t + 4 * ks, 4), "0" if ks == 0 else vr(vT + 4 * t, 4)))
for t in range(2):
    b = vT + 4 * t
    e("v_add_f32 v%d, v%d, v%d" % (b, b, b + 1))
    e("v_add_f32 v%d, v%d, v%d" % (b + 2, b + 2, b + 3))
    e("v_add_f32 v%d, v%d, v%d" % (b, b, b + 2))
e("v_permlane16_swap_b32 v%d, v%d" % (vT, vT + 4))
e("v_add_f32 v%d, v%d, v%d" % (vT, vT, vT + 4))
e("v_mov_b32_dpp v%d, v%d row_shl:1 row_mask:0xf bank_mask:0xf bound_ctrl:0" % (vT + 1, vT))
e("v_cvt_pk_bf16_f32 v%d, v%d, v%d" % (vT, vT, vT + 1))
e("v_min_u32 v%d, -2, v%d" % (vT, vT))
setexec(0x55555555)
e("buffer_store_dword v%d, v%d, %s, s%d offen sc1" % (vT, vA1, srd(S_WS), sT0))
setexec(-1)
stamp(4)
e("s_barrier")
e("s_lshr_b32 s%d, s%d, 4" % (sT0, sH))
e("s_lshl_b32 s%d, s%d, 7" % (sT0, sT0))
e("s_and_b32 s%d, s%d, 15" % (sT1, sH))
e("s_lshl_b32 s%d, s%d, 3" % (sT1, sT1))
e("s_add_u32 s%d, s%d, s%d" % (sT0, sT0, sT1))
e("s_add_u32 s%d, s%d, %d" % (sT0, sT0, STAT))
e("s_lshl_b32 s%d, s%d, 12" % (sT1, sW))
e("s_add_u32 s%d, s%d, s%d" % (sT1, sT1, sT0))
e("v_lshlrev_b32 v%d, 8, v%d" % (vA1, vLANE))
e("v_lshlrev_b32 v%d, 15, v%d" % (vA2, vG))
e("v_lshl_add_u32 v%d, v%d, 4, v%d" % (vA2, vN, vA2))
e("s_lshl_b32 s%d, s%d, 19" % (sT2, sW))
e("s_lshl_b32 s%d, s%d, 8" % (sT3, sXI))
e("s_add_u32 s%d, s%d, s%d" % (sT2, sT2, sT3))
e("s_add_u32 s%d, s%d, %d" % (sT2, sT2, PART))
e("s_add_u32 s%d, s%d, 0x20000" % (sT3, sT2))
e("s_add_u32 s%d, s%d, 0x40000" % (sT4, sT2))
e("s_add_u32 s%d, s%d, 0x60000" % (sF, sT2))
e("s_lshl_b32 s%d, s%d, 6" % (sF + 1, sW))
e("v_lshlrev_b32 v%d, 2, v%d" % (vA0, vG))
e("v_add_u32 v%d, s%d, v%d" % (vA0, sF + 1, vA0))
vSo, vSa, vD = vG0, vG0 + 8, vG0 + 12
e("s_barrier")
frag_prep()
stamp(5)
e("s_and_b32 s%d, s%d, 15" % (sF + 2, sXI))
e("s_lshl_b32 s%d, s%d, 4" % (sF + 3, sW))
e("s_add_u32 s%d, s%d, s%d" % (sF + 2, sF + 2, sF + 3))
e("s_lshl_b32 s%d, s%d, 1" % (sF + 2, sF + 2))
e("s_lshr_b32 s%d, s%d, 4" % (sF + 3, sH))
e("s_add_u32 s%d, s%d, s%d" % (sF + 2, sF + 2, sF + 3))
e("s_lshl_b32 s%d, s%d, 6" % (sF + 2, sF + 2))
e("s_add_u32 s%d, s%d, %d" % (sF + 2, sF + 2, EWB))
e("s_add_u32 s%d, s%d, 32" % (sF + 3, sF + 2))
e("v_mov_b32 v%d, 0" % vA3)
poll([("buffer_load_dword v%d, v%d, %s, s%d offen offset:4 sc1" % (vSo, vA1, srd(S_WS), sT1), vSo, 1),
      ("buffer_load_dword v%d, v%d, %s, s%d offen sc1" % (vSo + 1, vA3, srd(S_WS), sF + 3), vSo + 1, 1)], sleep=opt("sl3", 3), init_masks=["0xffff", "1"])
stamp(6)
if opt("d3", 0): e("s_sleep %d" % opt("d3", 0))
poll([("buffer_load_dwordx4 %s, v%d, %s, s%d offen sc1" % (vr(vD + 4 * i, 4), vA2, srd(S_WS), [sT2, sT3, sT4, sF][i]), vD + 4 * i, 4) for i in range(4)]
     + [("buffer_load_dwordx2 %s, v%d, %s, s%d offen sc1" % (vr(vSa, 2), vA1, srd(S_WS), sT0), vSa, -2)], sleep=opt("sl3b", 1))
stamp(7)
if DIAG: e("v_writelane_b32 v%d, s%d, 22" % (vTSV, sCNT))
e("v_mov_b32 v%d, v%d" % (vT + 8, vSa))
wave_red([vT + 8], [sT0], "v_max_f32")
e("v_mov_b32 v%d, s%d" % (vT + 9, sT0))
e("v_mul_f32 v%d, s%d, v%d" % (vT + 9, sL2E, vT + 9))
wv = vT + 12
e("v_fma_f32 v%d, v%d, s%d, -v%d" % (wv, vSa, sL2E, vT + 9))
e("v_exp_f32 v%d, v%d" % (wv, wv))
e("v_cvt_pk_bf16_f32 v%d, v%d, v%d" % (wv, wv, wv))
e("v_lshlrev_b32 v%d, 16, v%d" % (wv, wv))
for i in range(4):
    e("ds_bpermute_b32 v%d, v%d, v%d offset:%d" % (vSo + 2 * i + 1, vA0, wv, 16 * i))
e("v_mul_f32 v%d, v%d, v%d" % (wv + 1, wv, vSa + 1))
for k in range(8): e("v_mov_b32 v%d, 0" % (vT + k))
wave_red([wv + 1], [sT0])
for i in range(4):
    e("s_waitcnt lgkmcnt(%d)" % (3 - i))
    e("v_lshrrev_b32 v%d, 16, v%d" % (vSo + 2 * i, vSo + 2 * i + 1))
    for k in range(4):
        e("v_dot2c_f32_bf16 v%d, v%d, v%d" % (vT + 2 * k + 1, vD + 4 * i + k, vSo + 2 * i + 1))
    for k in range(4):
        e("v_dot2c_f32_bf16 v%d, v%d, v%d" % (vT + 2 * k, vD + 4 * i + k, vSo + 2 * i))
e("v_rcp_f32 v%d, s%d" % (vT + 8, sT0))
rs_8to2(vT)
e("v_mul_f32 v%d, v%d, v%d" % (vT, vT, vT + 8))
e("v_mul_f32 v%d, v%d, v%d" % (vT + 1, vT + 1, vT + 8))
hilo_write(vT, vQLw)
e("s_branch %s" % lc1)
e(lS + ":")
e("s_sub_u32 s%d, s%d, 4" % (sT3, sW))
l1 = e.newlabel("L_c")
e("s_cmp_lg_u32 s%d, 4" % sW)
e("s_cbranch_scc1 %s" % l1)
e("s_lshl_b32 s%d, s2, 7" % sT0)
e("s_add_u32 s%d, s%d, %d" % (sT0, sT0, HP))
setexec(0xff)
e("buffer_store_dwordx4 %s, v%d, %s, s%d offen sc1" % (vr(vCL, 4), vL16, srd(S_WS), sT0))
e("s_lshl_b32 s%d, s2, 6" % sT0)
e("s_add_u32 s%d, s%d, %d" % (sT0, sT0, EWC))
setexec(0xf)
e("buffer_store_dwordx4 %s, v%d, %s, s%d offen sc1" % (vr(vCL, 4), vL16, srd(S_WS), sT0))
e("s_lshr_b32 s%d, s%d, 4" % (sT0, sH))
e("s_lshl_b32 s%d, s%d, 7" % (sT0, sT0))
e("s_and_b32 s%d, s%d, 15" % (sT1, sH))
e("s_lshl_b32 s%d, s%d, 3" % (sT1, sT1))
e("s_add_u32 s%d, s%d, s%d" % (sT0, sT0, sT1))
e("s_lshl_b32 s%d, s%d, 12" % (sT1, sCQ))
e("s_add_u32 s%d, s%d, s%d" % (sT0, sT0, sT1))
e("s_add_u32 s%d, s%d, %d" % (sT0, sT0, STAT))
setexec(0xffff)
e("v_lshlrev_b32 v%d, 8, v%d" % (vA0, vLANE))
e("buffer_store_dwordx2 %s, v%d, %s, s%d offen sc1" % (vr(vCL, 2), vA0, srd(S_WS), sT0))
setexec(-1)
e(l1 + ":")
e("s_lshl_b32 s%d, s%d, 7" % (sF, sCQ))
e("s_lshl_b32 s%d, s%d, 5" % (sT1, sT3))
e("s_add_u32 s%d, s%d, s%d" % (sF, sF, sT1))
e("s_lshl_b32 s%d, s%d, 13" % (sF, sF))
e("s_lshl_b32 s%d, s%d, 8" % (sT1, sH))
e("s_add_u32 s%d, s%d, s%d" % (sF, sF, sT1))
e("v_xor_b32 v%d, v%d, v%d" % (vA2, vN, vG))
for k in range(4):
    e("v_xor_b32 v%d, %d, v%d" % (vT + k, 4 * k, vA2))
    e("v_lshlrev_b32 v%d, 4, v%d" % (vT + k, vT + k))
    e("v_lshl_add_u32 v%d, v%d, 13, v%d" % (vT + k, vG, vT + k))
e("s_mov_b32 s%d, s%d" % (sT0, sF))
e("s_lshl_b32 s%d, s%d, 13" % (sT2, sT3))
e("s_add_u32 s%d, s%d, %d" % (sT2, sT2, L_WUK))
e("s_barrier")
e("s_barrier")
for k in range(8):
    e("s_mov_b32 m0, s%d" % sT2)
    e("buffer_load_dwordx4 v%d, %s, s%d offen%s lds" % (vT + (k & 3), srd(S_WUK), sT0, NT))
    if k < 7:
        e("s_add_u32 s%d, s%d, 32768" % (sT0, sT0))
        e("s_add_u32 s%d, s%d, 1024" % (sT2, sT2))
e("s_waitcnt vmcnt(8)")
e("s_barrier")
e("s_waitcnt vmcnt(0)")
stamp(12)
def uv_dma():
    e("v_lshrrev_b32 v%d, 1, v%d" % (vA2, vG))
    e("v_lshlrev_b32 v%d, 2, v%d" % (vA2, vA2))
    e("v_xor_b32 v%d, v%d, v%d" % (vA2, vA2, vN))
    e("s_and_b32 s%d, s%d, 1" % (sT0, sT3))
    e("s_lshl_b32 s%d, s%d, 1" % (sT0, sT0))
    e("v_xor_b32 v%d, s%d, v%d" % (vA2, sT0, vA2))
    for c, cv in enumerate((0, 8, 1, 9)):
        e("v_xor_b32 v%d, %d, v%d" % (vT + c, cv, vA2))
        e("v_lshlrev_b32 v%d, 4, v%d" % (vT + c, vT + c))
        e("v_lshl_add_u32 v%d, v%d, 13, v%d" % (vT + c, vG, vT + c))
    e("s_mov_b32 s%d, s%d" % (sT0, sF))
    e("s_lshl_b32 s%d, s%d, 13" % (sT2, sT3))
    e("s_add_u32 s%d, s%d, %d" % (sT2, sT2, L_WUV))
    for k in range(8):
        e("s_mov_b32 m0, s%d" % sT2)
        e("buffer_load_dwordx4 v%d, %s, s%d offen%s lds" % (vT + 2 * (k >> 2) + (k & 1), srd(S_WUV), sT0, NT))
        if k < 7:
            e("s_add_u32 s%d, s%d, 32768" % (sT0, sT0))
            e("s_add_u32 s%d, s%d, 1024" % (sT2, sT2))
if opt("uve", 0): uv_dma()
e("s_barrier")
e("s_barrier")
if not opt("uve", 0): uv_dma()
lno = e.newlabel("L_no")
e("s_cmp_ge_u32 s2, 120")
e("s_cbranch_scc1 %s" % lno)
e("v_lshrrev_b32 v%d, 3, v%d" % (vA0, vLANE))
e("v_mul_u32_u24 v%d, 1280, v%d" % (vA0, vA0))
e("v_and_b32 v%d, 7, v%d" % (vA1, vLANE))
e("v_and_b32 v%d, 1, v%d" % (vA2, vG))
e("v_xor_b32 v%d, v%d, v%d" % (vA1, vA1, vA2))
e("s_lshl_b32 s%d, s%d, 1" % (sT0, sT3))
e("v_xor_b32 v%d, s%d, v%d" % (vA1, sT0, vA1))
e("v_lshl_add_u32 v%d, v%d, 4, v%d" % (vA0, vA1, vA0))
e("s_lshl_b32 s%d, s%d, 2" % (sT0, sUS))
e("s_add_u32 s%d, s%d, s%d" % (sT0, sT0, sT3))
e("s_mul_i32 s%d, s%d, 10240" % (sT0, sT0))
e("s_lshl_b32 s%d, s%d, 7" % (sT1, sST))
e("s_add_u32 s%d, s%d, s%d" % (sT0, sT0, sT1))
e("s_lshl_b32 s%d, s%d, 10" % (sT2, sT3))
e("s_add_u32 s%d, s%d, %d" % (sT2, sT2, L_WO))
for k in range(11):
    if k == 10:
        e("s_cmp_lt_u32 s%d, 11" % sNU)
        e("s_cbranch_scc1 %s" % lno)
    e("s_mov_b32 m0, s%d" % sT2)
    e("buffer_load_dwordx4 v%d, %s, s%d offen%s lds" % (vA0, srd(S_WO), sT0, NT))
    if k < 10:
        e("s_add_u32 s%d, s%d, 40960" % (sT0, sT0))
        e("s_add_u32 s%d, s%d, 4096" % (sT2, sT2))
e(lno + ":")
e("s_waitcnt vmcnt(0)")
stamp(11)
e("s_barrier")
frag_prep()
e(lc1 + ":")
e("s_lshl_b32 s%d, s%d, 5" % (sT1, sW))
e("s_lshl_b32 s%d, s%d, 8" % (sT0, sXI))
e("s_add_u32 s%d, s%d, s%d" % (sT0, sT0, sT1))
e("s_add_u32 s%d, s%d, %d" % (sT0, sT0, CP))
e("s_waitcnt lgkmcnt(0)")
e("s_barrier")
setexec(0x00ff00ff00ff00ff)
for ks in range(4):
    e("ds_read_b128 %s, v%d offset:%d" % (vr(vCF + 4 * ks, 4), vQLr, 64 * ks))
setexec(-1)
for ks in range(4):
    e("s_waitcnt lgkmcnt(%d)" % (3 - ks))
    e("v_mfma_f32_16x16x32_bf16 %s, %s, %s, %s" % (vr(vT, 4), vr(vCF + 4 * ks, 4), vr(vBUV + 4 * ks, 4), "0" if ks == 0 else vr(vT, 4)))
e("v_add_f32 v%d, v%d, v%d" % (vT, vT, vT + 1))
e("v_add_f32 v%d, v%d, v%d" % (vT + 2, vT + 2, vT + 3))
e("v_add_f32 v%d, v%d, v%d" % (vT, vT, vT + 2))
e("v_mov_b32 v%d, v%d" % (vT + 1, vT))
e("v_permlane16_swap_b32 v%d, v%d" % (vT, vT + 1))
e("v_add_f32 v%d, v%d, v%d" % (vT, vT, vT + 1))
e("v_mov_b32_dpp v%d, v%d row_shl:1 row_mask:0xf bank_mask:0xf bound_ctrl:0" % (vT + 1, vT))
e("v_cvt_pk_bf16_f32 v%d, v%d, v%d" % (vT, vT, vT + 1))
e("v_min_u32 v%d, -2, v%d" % (vT, vT))
setexec(0x5555)
e("buffer_store_dword v%d, v%d, %s, s%d offen sc1" % (vT, vOutA, srd(S_WS), sT0))
setexec(-1)
stamp(8)
e("s_cmp_ge_u32 s2, 120")
e("s_cbranch_scc1 L_fin")
vG2 = 204
e("v_lshlrev_b32 v%d, 8, v%d" % (vA0, vN))
e("v_lshl_add_u32 v%d, v%d, 4, v%d" % (vA0, vG, vA0))
e("s_add_u32 s%d, s%d, s%d" % (sT1, sUS, sW))
e("s_lshr_b32 s%d, s%d, 2" % (sT0, sT1))
e("s_lshl_b32 s%d, s%d, 10" % (sT0, sT0))
e("s_and_b32 s%d, s%d, 3" % (sT1, sT1))
e("s_lshl_b32 s%d, s%d, 6" % (sT1, sT1))
e("s_add_u32 s%d, s%d, s%d" % (sT0, sT0, sT1))
e("s_add_u32 s%d, s%d, %d" % (sT0, sT0, CP))
for k in range(8): e("v_mov_b32 v%d, 0" % (vG2 + k))
e("s_mov_b32 s%d, 0x000f000f" % sE0)
e("s_mov_b32 s%d, 0x000f000f" % (sE0 + 1))
e("s_add_u32 s%d, s%d, 8" % (sT1, sW))
e("s_cmp_lt_u32 s%d, s%d" % (sT1, sNU))
e("s_cselect_b64 %s, %s, 0" % (sp(sE1), sp(sE0)))
e("s_cselect_b32 s%d, 1, 0" % sT4)
e("v_lshlrev_b32 v%d, 2, v%d" % (vA1, vLANE))
e("s_lshl_b32 s%d, s%d, 8" % (sT1, sW))
e("v_add_u32 v%d, s%d, v%d" % (vA2, sT1, vA1))
e("s_lshl_b32 s%d, s2, 6" % sT2)
e("s_add_u32 s%d, s%d, %d" % (sT2, sT2, EWC))
if opt("d4", 0): e("s_sleep %d" % opt("d4", 0))
poll([("buffer_load_dwordx4 %s, v%d, %s, s%d offen offset:%d sc1" % (vr(vG2 + 4 * j, 4), vA0, srd(S_WS), sT0, 2048 * j), vG2 + 4 * j, 4) for j in range(2)], sleep=1, init_masks=[sp(sE0), sp(sE1)])
lr = e.newlabel("L_ew")
e("s_cmp_lg_u32 s%d, 0" % sW)
e("s_cbranch_scc1 %s" % lr)
store1(sT2)
e(lr + ":")
stamp(9)
e("s_waitcnt lgkmcnt(0)")
for t in range(4):
    e("v_mfma_f32_16x16x32_bf16 %s, %s, %s, 0" % (vr(vT + 4 * t, 4), vr(vG2, 4), vr(vBO + 4 * t, 4)))
l2u = e.newlabel("L_2u")
e("s_cmp_eq_u32 s%d, 0" % sT4)
e("s_cbranch_scc1 %s" % l2u)
for t in range(4):
    e("v_mfma_f32_16x16x32_bf16 %s, %s, %s, %s" % (vr(vT + 4 * t, 4), vr(vG2 + 4, 4), vr(vBO + 16 + 4 * t, 4), vr(vT + 4 * t, 4)))
e(l2u + ":")
e("s_lshl_b32 s%d, s2, 7" % sT0)
e("s_add_u32 s%d, s%d, %d" % (sT0, sT0, HP))
setexec(0xffff)
e("s_nop 4")
for t in range(4):
    b = vT + 4 * t
    e("v_add_f32 v%d, v%d, v%d" % (b, b, b + 1))
    e("v_add_f32 v%d, v%d, v%d" % (b + 2, b + 2, b + 3))
    e("v_add_f32 v%d, v%d, v%d" % (b, b, b + 2))
    e("ds_write_b32 v%d, v%d offset:%d" % (vA2, b, L_RED + 64 * t))
setexec(-1)
e("s_waitcnt lgkmcnt(0)")
e("s_barrier")
e("s_cmp_lg_u32 s%d, 0" % sW)
e("s_cbranch_scc1 L_fin")
e("v_lshlrev_b32 v%d, 3, v%d" % (vA2, vLANE))
setexec(0xffffffff)
for i in range(8):
    e("ds_read_b64 %s, v%d offset:%d" % (vr(vG2 + 8 + 2 * i, 2), vA2, L_RED + 256 * i))
e("s_waitcnt lgkmcnt(0)")
for st in (4, 2, 1):
    for i in range(st):
        e("v_pk_add_f32 %s, %s, %s" % (vr(vG2 + 8 + 2 * i, 2), vr(vG2 + 8 + 2 * i, 2), vr(vG2 + 8 + 2 * (i + st), 2)))
e("v_cvt_pk_bf16_f32 v%d, v%d, v%d" % (vG2 + 8, vG2 + 8, vG2 + 9))
e("v_min_u32 v%d, -2, v%d" % (vG2 + 8, vG2 + 8))
e("buffer_store_dword v%d, v%d, %s, s%d offen sc1" % (vG2 + 8, vA1, srd(S_WS), sT0))
setexec(-1)
stamp(10)
e("s_branch L_fin")

vCA, vCB, vGQ, vACC, vP = 48, 112, 176, 208, 224
e("L_Y:")
if opt("cpf", 0):
    lp_ = e.newlabel("L_cpf")
    e("s_cmp_lg_u32 s%d, 14" % sA)
    e("s_cbranch_scc1 %s" % lp_)
    e("s_getpc_b64 s[%d:%d]" % (sTM, sTM + 1))
    e.raw("L_pcref:")
    e.raw("    s_sub_u32 s%d, s%d, (L_pcref - %s)" % (sTM, sTM, KN))
    e.raw("    s_subb_u32 s%d, s%d, 0" % (sTM + 1, sTM + 1))
    e("v_lshlrev_b32 v%d, 4, v0" % vA0)
    for k in range(opt("cpf", 0)):
        e("global_load_dwordx4 %s, v%d, s[%d:%d]" % (vr(48 + 4 * k, 4), vA0, sTM, sTM + 1))
        e("v_add_u32 v%d, 8192, v%d" % (vA0, vA0))
    e(lp_ + ":")
l5 = e.newlabel("L_c"); l6 = e.newlabel("L_c"); l7 = e.newlabel("L_c")
e("s_cmp_lt_u32 s2, 248")
e("s_cbranch_scc1 %s" % l5)
e("s_lshl_b32 s%d, s%d, 13" % (sT2, sB))
e("s_lshl_b32 s%d, s%d, 10" % (sT3, sW))
e("s_add_u32 s%d, s%d, s%d" % (sT2, sT2, sT3))
e("s_add_u32 s%d, s%d, %d" % (sT2, sT2, QP))
e("buffer_store_dwordx4 %s, v%d, %s, s%d offen sc1" % (vr(vCL, 4), vL16, srd(S_WS), sT2))
e("s_lshl_b32 s%d, s%d, 12" % (sT2, sB))
e("s_and_b32 s%d, s%d, 3" % (sT3, sW))
e("s_lshl_b32 s%d, s%d, 10" % (sT3, sT3))
e("s_add_u32 s%d, s%d, s%d" % (sT2, sT2, sT3))
e("s_lshr_b32 s%d, s%d, 2" % (sT3, sW))
e("s_lshl_b32 s%d, s%d, 15" % (sT3, sT3))
e("s_add_u32 s%d, s%d, s%d" % (sT2, sT2, sT3))
e("buffer_store_dwordx4 %s, v%d, %s, s%d offen sc1" % (vr(vCL, 4), vL16, srd(S_WS), sT2))
e("s_cmp_lt_u32 s%d, 6" % sW)
e("s_cbranch_scc1 %s" % l6)
e("s_lshl_b32 s%d, s%d, 10" % (sT2, sB))
e("s_mov_b32 s%d, %d" % (sT3, EWA))
e("s_cmp_eq_u32 s%d, 6" % sW)
e("s_cselect_b32 s%d, %d, s%d" % (sT3, EWB, sT3))
e("s_add_u32 s%d, s%d, s%d" % (sT2, sT2, sT3))
e("buffer_store_dwordx4 %s, v%d, %s, s%d offen sc1" % (vr(vCL, 4), vL16, srd(S_WS), sT2))
e(l6 + ":")
e("s_waitcnt vmcnt(0)")
e("s_barrier")
e("s_cmp_lg_u32 s%d, 0" % sW)
e("s_cbranch_scc1 %s" % l7)
e("s_lshl_b32 s%d, s%d, 5" % (sT2, sB))
e("v_mov_b32 v%d, 1" % vA3)
setexec(1)
e("buffer_store_dword v%d, v%d, %s, s%d offen sc1" % (vA3, vL16, srd(S_DBG), sT2))
setexec(-1)
stamp(17)
e(l7 + ":")
e("s_barrier")
e(l5 + ":")
e("s_lshl_b32 s%d, s%d, 3" % (sKS, sB))
e("s_lshr_b32 s%d, s%d, 1" % (sT0, sA))
e("s_add_u32 s%d, s%d, s%d" % (sKS, sKS, sT0))
e("s_and_b32 s%d, s%d, 1" % (sHF, sA))
e("s_lshl_b32 s%d, s%d, 1" % (sYI, sKS))
e("s_add_u32 s%d, s%d, s%d" % (sYI, sYI, sHF))
e("s_lshr_b32 s%d, s%d, 1" % (sT1, sA))
e("s_lshl_b32 s%d, s%d, 3" % (sT1, sT1))
e("s_add_u32 s%d, s%d, s%d" % (sT1, sT1, sB))
e("s_and_b32 s%d, s%d, 1" % (sT0, sA))
e("s_lshl_b32 s%d, s%d, 1" % (sRD, sT1))
e("s_add_u32 s%d, s%d, s%d" % (sRD, sRD, sT0))
e("s_cmp_lt_u32 s%d, 27" % sT1)
e("s_cselect_b32 s%d, 1, 0" % sISD)
e("s_cmp_lt_u32 s%d, 20" % sT1)
e("s_cselect_b32 s%d, 1, 0" % sFIN)
e("s_cmp_eq_u32 s%d, 0" % sT0)
e("s_cselect_b32 s%d, s%d, 0" % (sFIN, sFIN))
def y_dma():
    e("s_lshl_b32 s%d, s%d, 7" % (sT0, sKS))
    e("s_lshl_b32 s%d, s%d, 4" % (sT2, sW))
    e("s_add_u32 s%d, s%d, s%d" % (sT0, sT0, sT2))
    e("s_lshl_b32 s%d, s%d, 10" % (sT0, sT0))
    e("s_mul_i32 s%d, s%d, %d" % (sT2, sT2, RS))
    e("s_add_u32 s%d, s%d, %d" % (sT2, sT2, L_CK))
    for j in range(2):
        e("s_xor_b32 s%d, s%d, %d" % (sT3, sHF, j))
        e("s_lshl_b32 s%d, s%d, 13" % (sT1, sT3))
        e("s_add_u32 s%d, s%d, s%d" % (sT1, sT1, sT0))
        e("s_mul_i32 s%d, s%d, %d" % (sT3, sT3, 8 * RS))
        e("s_add_u32 s%d, s%d, s%d" % (sT3, sT3, sT2))
        for i in range(8):
            e("s_mov_b32 m0, s%d" % sT3)
            e("buffer_load_dwordx4 v%d, %s, s%d offen%s lds" % (vL16, srd(S_CKV), sT1, NTC))
            if i < 7:
                e("s_add_u32 s%d, s%d, 1024" % (sT1, sT1))
                e("s_add_u32 s%d, s%d, %d" % (sT3, sT3, RS))
def y_pclr():
    e("s_lshl_b32 s%d, s%d, 14" % (sT0, sYI))
    e("s_lshl_b32 s%d, s%d, 11" % (sT1, sW))
    e("s_add_u32 s%d, s%d, s%d" % (sT0, sT0, sT1))
    e("s_add_u32 s%d, s%d, %d" % (sT0, sT0, PART))
    for i in range(2):
        e("buffer_store_dwordx4 %s, v%d, %s, s%d offen offset:%d sc1" % (vr(vCL, 4), vL16, srd(S_WS), sT0, 1024 * i))
def y_clr():
    if not opt("ypc", 1): y_pclr()
    l3 = e.newlabel("L_c")
    e("s_cmp_eq_u32 s%d, 0" % sISD)
    e("s_cbranch_scc1 %s" % l3)
    e("s_cmp_gt_u32 s%d, 2" % sW)
    e("s_cbranch_scc1 %s" % l3)
    e("s_mul_i32 s%d, s%d, 2560" % (sT0, sRD))
    e("s_add_u32 s%d, s%d, %d" % (sT0, sT0, OP))
    e("v_lshlrev_b32 v%d, 4, v0" % vA3)
    e("v_cmp_gt_u32 vcc, 160, v0")
    e("s_mov_b64 exec, vcc")
    e("buffer_store_dwordx4 %s, v%d, %s, s%d offen sc1" % (vr(vCL, 4), vA3, srd(S_WS), sT0))
    setexec(-1)
    e(l3 + ":")
if opt("yord", 0):
    y_clr()
    e("s_waitcnt vmcnt(0)")
    for _ in range(opt("ydel", 0)): e("s_sleep 16")
    y_dma()
else:
    for _ in range(opt("ydel", 0)): e("s_sleep 16")
    y_dma()
    y_clr()
vFr = 43
e("v_mul_u32_u24 v%d, %d, v%d" % (vFr, RS, vN))
e("v_lshl_add_u32 v%d, v%d, 4, v%d" % (vFr, vG, vFr))
e("s_mul_i32 s%d, s%d, %d" % (sT0, sW, 16 * RS))
e("s_add_u32 s%d, s%d, %d" % (sT0, sT0, L_CK))
e("v_add_u32 v%d, s%d, v%d" % (vA1, sT0, vFr))
lr = e.newlabel("L_r")
e("s_cmp_lg_u32 s%d, 0" % sW)
e("s_cbranch_scc1 %s" % lr)
flag_check()
e(lr + ":")
e("s_waitcnt vmcnt(0)")
stamp(1)
if opt("ypc", 1): y_pclr()
for ks in range(16):
    e("ds_read_b128 %s, v%d offset:%d" % (vr(vCA + 4 * ks, 4), vA1, 64 * ks))
    if ks == 7: e("s_waitcnt lgkmcnt(0)")
e("s_barrier")
stamp(2)
e("s_lshl_b32 s%d, s%d, 4" % (sT0, sHF))
e("s_lshl_b32 s%d, s%d, 1" % (sT1, sW))
e("s_add_u32 s%d, s%d, s%d" % (sT0, sT0, sT1))
e("s_lshl_b32 s%d, s%d, 10" % (sT2, sT0))
vQG = 240
for k in range(2):
    e("buffer_load_dwordx4 %s, v%d, %s, s%d offen offset:%d sc1" % (vr(vQG + 4 * k, 4), vL16, srd(S_WS), sT2, 1024 * k))
e("v_lshrrev_b32 v%d, 2, v%d" % (vA1, vN))
e("v_lshl_add_u32 v%d, v%d, 3, v%d" % (vA1, vG, vA1))
e("v_mul_u32_u24 v%d, %d, v%d" % (vA1, RS, vA1))
e("v_and_b32 v%d, 3, v%d" % (vA3, vN))
e("v_lshl_add_u32 v%d, v%d, 3, v%d" % (vA1, vA3, vA1))
e("s_lshl_b32 s%d, s%d, 7" % (sT0, sW))
e("s_add_u32 s%d, s%d, %d" % (sT0, sT0, L_CK))
e("v_add_u32 v%d, s%d, v%d" % (vA1, sT0, vA1))
e("v_add_u32 v%d, %d, v%d" % (vA2, 64 * RS, vA1))
e("s_waitcnt lgkmcnt(0)")
cnt = 0
for t in range(4):
    for kk in range(4):
        for u in range(2):
            e("ds_read_b64_tr_b16 %s, v%d offset:%d" % (vr(vCB + 16 * t + 4 * kk + 2 * u, 2), vA1 if kk < 2 else vA2, (32 * (kk & 1) + 4 * u) * RS + 32 * t))
            cnt += 1
            if cnt % 8 == 0: e("s_waitcnt lgkmcnt(0)")
vQSw, vQSr, vMXa, vPw, vPr, vPo = 240 - 16 + 16, 0, 0, 0, 0, 0
vQSw, vQSr, vMXa, vPw, vPr, vPo = vT + 20, vT + 21, vT + 22, vT + 23, vT + 24, vT + 25
e("s_mul_i32 s%d, s%d, %d" % (sT0, sW, 2 * RS))
e("s_add_u32 s%d, s%d, %d" % (sT0, sT0, L_QS))
e("v_add_u32 v%d, s%d, v%d" % (vQSw, sT0, vL16))
e("v_add_u32 v%d, %d, v%d" % (vQSr, L_QS, vFr))
e("v_lshlrev_b32 v%d, 5, v%d" % (vMXa, vN))
e("v_mul_u32_u24 v%d, %d, v%d" % (vPr, PRS, vN))
e("v_lshl_add_u32 v%d, v%d, 3, v%d" % (vPw, vG, vPr))
e("s_lshl_b32 s%d, s%d, 5" % (sT0, sW))
e("v_add_u32 v%d, s%d, v%d" % (vPw, sT0, vPw))
e("v_lshl_add_u32 v%d, v%d, 4, v%d" % (vPr, vG, vPr))
e("v_lshlrev_b32 v%d, 12, v%d" % (vPo, vG))
e("v_lshl_add_u32 v%d, v%d, 3, v%d" % (vPo, vN, vPo))
e("s_lshl_b32 s%d, s%d, 2" % (sT4, sW))
e("v_add_u32 v%d, s%d, v%d" % (vT + 26, sT4, vMXa))
e("v_lshlrev_b32 v%d, 7, v%d" % (vT + 27, vN))
e("v_lshl_add_u32 v%d, v%d, 2, v%d" % (vT + 27, vG, vT + 27))
e("s_lshl_b32 s%d, s%d, 4" % (sT4, sW))
e("v_add_u32 v%d, s%d, v%d" % (vT + 27, sT4, vT + 27))
e("s_lshl_b32 s%d, s%d, 4" % (sT0, sHF))
e("s_lshl_b32 s%d, s%d, 1" % (sT1, sW))
e("s_add_u32 s%d, s%d, s%d" % (sT0, sT0, sT1))
e("s_lshl_b32 s%d, s%d, 10" % (sT2, sT0))
e("s_lshl_b32 s%d, s%d, 2" % (sT0, sT0))
e("s_and_b32 s%d, s%d, 7" % (sT1, sKS))
e("s_add_u32 s%d, s%d, s%d" % (sT0, sT0, sT1))
e("s_lshl_b32 s%d, s%d, 6" % (sT0, sT0))
e("s_add_u32 s%d, s%d, %d" % (sT0, sT0, EWA))
lq = e.newlabel("L_qok")
e("s_waitcnt vmcnt(0)")
e("v_max3_u32 v%d, v%d, v%d, v%d" % (vT, vQG, vQG + 1, vQG + 2))
e("v_max3_u32 v%d, v%d, v%d, v%d" % (vT, vT, vQG + 3, vQG + 4))
e("v_max3_u32 v%d, v%d, v%d, v%d" % (vT, vT, vQG + 5, vQG + 6))
e("v_max_u32 v%d, v%d, v%d" % (vT, vT, vQG + 7))
e("v_cmp_eq_u32 vcc, -1, v%d" % vT)
e("s_cbranch_vccz %s" % lq)
hint_wait(sT0, vGQ, opt("sl2", 3))
stamp(3)
poll([("buffer_load_dwordx4 %s, v%d, %s, s%d offen offset:%d sc1" % (vr(vQG + 4 * k, 4), vL16, srd(S_WS), sT2, 1024 * k), vQG + 4 * k, 4) for k in range(2)], sleep=1)
e(lq + ":")
stamp(4)
for k in range(2):
    e("ds_write_b128 v%d, %s offset:%d" % (vQSw, vr(vQG + 4 * k, 4), RS * k))
e("s_waitcnt lgkmcnt(0)")
e("s_barrier")
lmk = e.newlabel("L_mk")
e("s_cmp_lg_u32 s%d, 7" % sW)
e("s_cbranch_scc1 %s" % lmk)
e("s_lshl_b32 s%d, s%d, 7" % (sT0, sYI))
e("s_add_u32 s%d, s%d, %d" % (sT0, sT0, STAT))
e("v_lshlrev_b32 v%d, 3, v%d" % (vA1, vN))
e("v_mov_b32 v%d, 0" % (vT + 8))
e("v_mov_b32 v%d, -1.0" % (vT + 9))
setexec(0xffff)
e("buffer_store_dwordx2 %s, v%d, %s, s%d offen sc1" % (vr(vT + 8, 2), vA1, srd(S_WS), sT0))
setexec(-1)
e("s_lshl_b32 s%d, s%d, 6" % (sT0, sYI))
e("s_add_u32 s%d, s%d, %d" % (sT0, sT0, EWB))
store1(sT0)
e(lmk + ":")
sacc = vT
for half in range(2):
    for k in range(8):
        e("ds_read_b128 %s, v%d offset:%d" % (vr(vGQ + 4 * k, 4), vQSr, 64 * (8 * half + k)))
    for k in range(8):
        ks = 8 * half + k
        e("s_waitcnt lgkmcnt(%d)" % (7 - k))
        e("v_mfma_f32_16x16x32_bf16 %s, %s, %s, %s" % (vr(sacc, 4), vr(vCA + 4 * ks, 4), vr(vGQ + 4 * k, 4), "0" if ks == 0 else vr(sacc, 4)))
if opt('mk', 0) == 0:
    lh1 = e.newlabel("L_h1")
    e("s_cmp_lg_u32 s%d, 6" % sW)
    e("s_cbranch_scc1 %s" % lh1)
    e("s_lshl_b32 s%d, s%d, 6" % (sT0, sYI))
    e("s_add_u32 s%d, s%d, %d" % (sT0, sT0, EWB + 32))
    store1(sT0)
    e(lh1 + ":")
e("s_mov_b32 s%d, 0x3db504f3" % sT0)
e("v_cvt_pk_bf16_f32 v%d, v%d, v%d" % (vT + 4, sacc, sacc + 1))
e("v_cvt_pk_bf16_f32 v%d, v%d, v%d" % (vT + 5, sacc + 2, sacc + 3))
unpack(sacc, vT + 4, 2)
for i in range(4): e("v_mul_f32 v%d, s%d, v%d" % (sacc + i, sT0, sacc + i))
e("v_cvt_pk_bf16_f32 v%d, v%d, v%d" % (vT + 4, sacc, sacc + 1))
e("v_cvt_pk_bf16_f32 v%d, v%d, v%d" % (vT + 5, sacc + 2, sacc + 3))
unpack(sacc, vT + 4, 2)
mx = vT + 4
e("v_max3_f32 v%d, v%d, v%d, v%d" % (mx, sacc, sacc + 1, sacc + 2))
e("v_max_f32 v%d, v%d, v%d" % (mx, mx, sacc + 3))
allred_g(mx, vT + 5, "v_max_f32")
e("ds_write_b32 v%d, v%d offset:%d" % (vT + 26, mx, L_MX))
if opt('mk', 0) == 1:
    lh1 = e.newlabel("L_h1")
    e("s_cmp_lg_u32 s%d, 6" % sW)
    e("s_cbranch_scc1 %s" % lh1)
    e("s_lshl_b32 s%d, s%d, 6" % (sT0, sYI))
    e("s_add_u32 s%d, s%d, %d" % (sT0, sT0, EWB + 32))
    store1(sT0)
    e(lh1 + ":")
e("s_waitcnt lgkmcnt(0)")
e("s_barrier")
stamp(5)
e("ds_read_b128 %s, v%d offset:%d" % (vr(vT + 8, 4), vMXa, L_MX))
e("ds_read_b128 %s, v%d offset:%d" % (vr(vT + 12, 4), vMXa, L_MX + 16))
e("s_waitcnt lgkmcnt(0)")
e("v_max3_f32 v%d, v%d, v%d, v%d" % (mx, vT + 8, vT + 9, vT + 10))
e("v_max3_f32 v%d, v%d, v%d, v%d" % (vT + 5, vT + 11, vT + 12, vT + 13))
e("v_max3_f32 v%d, v%d, v%d, v%d" % (mx, mx, vT + 14, vT + 15))
e("v_max_f32 v%d, v%d, v%d" % (mx, mx, vT + 5))
e("v_mul_f32 v%d, s%d, v%d" % (vT + 6, sL2E, mx))
for i in range(4): e("v_fma_f32 v%d, v%d, s%d, -v%d" % (sacc + i, sacc + i, sL2E, vT + 6))
for i in range(4): e("v_exp_f32 v%d, v%d" % (sacc + i, sacc + i))
e("v_cvt_pk_bf16_f32 v%d, v%d, v%d" % (vT + 8, sacc, sacc + 1))
e("v_cvt_pk_bf16_f32 v%d, v%d, v%d" % (vT + 9, sacc + 2, sacc + 3))
e("ds_write_b64 v%d, %s offset:%d" % (vPw, vr(vT + 8, 2), L_P))
e("v_add_f32 v%d, v%d, v%d" % (sacc, sacc, sacc + 1))
e("v_add_f32 v%d, v%d, v%d" % (sacc + 2, sacc + 2, sacc + 3))
e("v_add_f32 v%d, v%d, v%d" % (sacc, sacc, sacc + 2))
e("ds_write_b32 v%d, v%d offset:%d" % (vT + 27, sacc, L_SUM))
e("s_waitcnt lgkmcnt(0)")
e("s_barrier")
for kk in range(4):
    e("ds_read_b128 %s, v%d offset:%d" % (vr(vP + 4 * kk, 4), vPr, L_P + 64 * kk))
ls_ = e.newlabel("L_st")
e("s_cmp_lg_u32 s%d, 7" % sW)
e("s_cbranch_scc1 %s" % ls_)
e("v_lshlrev_b32 v%d, 7, v%d" % (vA1, vN))
e("v_lshl_add_u32 v%d, v%d, 5, v%d" % (vA1, vG, vA1))
e("ds_read_b128 %s, v%d offset:%d" % (vr(vT + 8, 4), vA1, L_SUM))
e("ds_read_b128 %s, v%d offset:%d" % (vr(vT + 12, 4), vA1, L_SUM + 16))
e("s_lshl_b32 s%d, s%d, 7" % (sT0, sYI))
e("s_add_u32 s%d, s%d, %d" % (sT0, sT0, STAT))
e("v_lshlrev_b32 v%d, 3, v%d" % (vA1, vN))
e("s_waitcnt lgkmcnt(0)")
for st in (4, 2, 1):
    for i in range(st): e("v_add_f32 v%d, v%d, v%d" % (vT + 8 + i, vT + 8 + i, vT + 8 + i + st))
allred_g(vT + 8, vT + 9)
e("v_min_u32 v%d, -2, v%d" % (mx, mx))
e("v_and_b32 v%d, 0x7fffffff, v%d" % (mx + 1, vT + 8))
setexec(0xffff)
e("buffer_store_dwordx2 %s, v%d, %s, s%d offen sc1" % (vr(mx, 2), vA1, srd(S_WS), sT0))
setexec(-1)
e(ls_ + ":")
e("s_lshl_b32 s%d, s%d, 14" % (sT0, sYI))
e("s_lshl_b32 s%d, s%d, 7" % (sT1, sW))
e("s_add_u32 s%d, s%d, s%d" % (sT0, sT0, sT1))
e("s_add_u32 s%d, s%d, %d" % (sT0, sT0, PART))
for kk in range(4):
    e("s_waitcnt lgkmcnt(%d)" % (3 - kk))
    for t in range(4):
        a = vACC + 4 * t
        e("v_mfma_f32_16x16x32_bf16 %s, %s, %s, %s" % (vr(a, 4), vr(vP + 4 * kk, 4), vr(vCB + 16 * t + 4 * kk, 4), "0" if kk == 0 else vr(a, 4)))
for i in range(4):
    o = vT + 8 + 2 * i
    e("v_cvt_pk_bf16_f32 v%d, v%d, v%d" % (o, vACC + i, vACC + 4 + i))
    e("v_cvt_pk_bf16_f32 v%d, v%d, v%d" % (o + 1, vACC + 8 + i, vACC + 12 + i))
    e("v_min_u32 v%d, -2, v%d" % (o, o))
    e("v_min_u32 v%d, -2, v%d" % (o + 1, o + 1))
    e("buffer_store_dwordx2 %s, v%d, %s, s%d offen offset:%d sc1" % (vr(o, 2), vPo, srd(S_WS), sT0, 1024 * i))
stamp(6)
e("s_cmp_eq_u32 s%d, 0" % sISD)
e("s_cbranch_scc1 L_fin")
vW2, vW2p, vB1, vXD, vGH, vH2 = 48, 80, 48, 112, 116, 140
if opt("dack", 1): e("s_waitcnt vmcnt(0)")
e("s_barrier")
L_W2 = L_W1 + 43008
DD = opt("dd", 10)
e("v_lshrrev_b32 v%d, 2, v%d" % (vA0, vLANE))
e("v_mul_u32_u24 v%d, 3456, v%d" % (vA0, vA0))
e("v_and_b32 v%d, 3, v%d" % (vA1, vLANE))
e("v_lshl_add_u32 v%d, v%d, 4, v%d" % (vA0, vA1, vA0))
e("s_mul_i32 s%d, s%d, %d" % (sT0, sW, 80 * 3456))
e("s_lshl_b32 s%d, s%d, 6" % (sT1, sRD))
e("s_add_u32 s%d, s%d, s%d" % (sT0, sT0, sT1))
e("s_mul_i32 s%d, s%d, 5120" % (sT2, sW))
e("s_mul_i32 s%d, s%d, 40960" % (sT1, sRD))
e("s_add_u32 s%d, s%d, s%d" % (sT1, sT1, sT2))
e("s_add_u32 s%d, s%d, %d" % (sT3, sT2, L_W2))
e("s_add_u32 s%d, s%d, %d" % (sT2, sT2, L_W1))
n_ = 0
for k in range(5):
    if n_ >= DD: e("s_waitcnt vmcnt(%d)" % (DD - 1))
    e("s_mov_b32 m0, s%d" % sT2)
    e("buffer_load_dwordx4 v%d, %s, s%d offen lds" % (vA0, srd(S_W1), sT0)); n_ += 1
    if n_ >= DD: e("s_waitcnt vmcnt(%d)" % (DD - 1))
    e("s_mov_b32 m0, s%d" % sT3)
    e("buffer_load_dwordx4 v%d, %s, s%d offen nt lds" % (vL16, srd(S_W2), sT1)); n_ += 1
    if k < 4:
        e("s_add_u32 s%d, s%d, %d" % (sT0, sT0, 16 * 3456))
        e("s_add_u32 s%d, s%d, 1024" % (sT2, sT2))
        e("s_add_u32 s%d, s%d, 1024" % (sT1, sT1))
        e("s_add_u32 s%d, s%d, 1024" % (sT3, sT3))
lw2 = e.newlabel("L_w2")
e("v_lshlrev_b32 v%d, 2, v0" % vA0)
e("s_cmp_ge_u32 s%d, 5" % sW)
e("s_cbranch_scc1 %s" % lw2)
e("buffer_load_dword v%d, v%d, %s, 0 offen" % (vXD, vA0, srd(S_X)))
e("v_mov_b32 v%d, 0x3f803f80" % vA1)
e("ds_write_b32 v%d, v%d offset:%d" % (vA0, vA1, L_ONES))
e(lw2 + ":")
lo = e.newlabel("L_oh")
e("s_cmp_lg_u32 s%d, 7" % sW)
e("s_cbranch_scc1 %s" % lo)
e("v_lshlrev_b32 v%d, 8, v%d" % (vA1, vLANE))
e("s_xor_b32 s%d, s%d, 1" % (sT0, sHF))
e("s_lshl_b32 s%d, s%d, 14" % (sT0, sT0))
poll([("buffer_load_dword v%d, v%d, %s, s%d offen sc1" % (vGH, vA1, srd(S_WS), sT0), vGH, 1)], sleep=8, depth=1)
e(lo + ":")
e("s_waitcnt vmcnt(0) lgkmcnt(0)")
e("s_barrier")
lp5 = e.newlabel("L_p5"); lpd = e.newlabel("L_pd")
e("s_cmp_ge_u32 s%d, 5" % sW)
e("s_cbranch_scc1 %s" % lp5)
e("v_add_u32 v%d, %d, v%d" % (vA1, L_W2, vA0))
for r in range(32):
    e("ds_read_b32 v%d, v%d offset:%d" % (vW2 + r, vA1, 1280 * r))
    if r % 8 == 7: e("s_waitcnt lgkmcnt(0)")
e("s_mov_b32 s%d, 0x05040100" % sT0)
e("s_mov_b32 s%d, 0x07060302" % sT1)
for j in range(16):
    e("v_perm_b32 v%d, v%d, v%d, s%d" % (vW2p + 2 * j, vW2 + 2 * j + 1, vW2 + 2 * j, sT0))
    e("v_perm_b32 v%d, v%d, v%d, s%d" % (vW2p + 2 * j + 1, vW2 + 2 * j + 1, vW2 + 2 * j, sT1))
e("v_and_b32 v%d, 0xffff0000, v%d" % (vXD + 1, vXD))
e("v_lshlrev_b32 v%d, 16, v%d" % (vXD, vXD))
e("v_mov_b32 v%d, 0x3f80" % (vXD + 2))
e("v_mov_b32 v%d, 1.0" % (vXD + 3))
e("s_branch %s" % lpd)
e(lp5 + ":")
e("v_lshrrev_b32 v%d, 2, v%d" % (vA1, vN))
e("v_lshl_add_u32 v%d, v%d, 3, v%d" % (vA1, vG, vA1))
e("v_lshlrev_b32 v%d, 6, v%d" % (vA1, vA1))
e("v_and_b32 v%d, 3, v%d" % (vA2, vN))
e("v_lshl_add_u32 v%d, v%d, 3, v%d" % (vA1, vA2, vA1))
e("s_sub_u32 s%d, s%d, 5" % (sT0, sW))
e("s_mul_i32 s%d, s%d, 14336" % (sT1, sT0))
e("v_add_u32 v%d, s%d, v%d" % (vA1, sT1, vA1))
for j in range(7):
    for t in range(2):
        for u in range(2):
            e("ds_read_b64_tr_b16 %s, v%d offset:%d" % (vr(vB1 + 8 * j + 4 * t + 2 * u, 2), vA1, L_W1 + 2048 * j + 256 * u + 32 * t))
    if j % 2 == 1: e("s_waitcnt lgkmcnt(0)")
e("v_lshlrev_b32 v%d, 4, v%d" % (vA2, vG))
e("s_mul_i32 s%d, s%d, 448" % (sT1, sT0))
e("v_add_u32 v%d, s%d, v%d" % (vA2, sT1, vA2))
e("v_add_u32 v%d, %d, v%d" % (vA3, L_ONES - L_HB, vA2))
e("v_cmp_eq_u32 vcc, 1, v%d" % vN)
e("v_cndmask_b32 v%d, v%d, v%d, vcc" % (vA2, vA2, vA3))
e("s_waitcnt lgkmcnt(0)")
e(lpd + ":")
stamp(7)
lh = e.newlabel("L_dh")
e("s_cmp_ge_u32 s%d, 5" % sW)
e("s_cbranch_scc1 %s" % lh)
e("s_lshl_b32 s%d, s%d, 7" % (sT0, sRD))
e("s_add_u32 s%d, s%d, %d" % (sT0, sT0, EWC))
hint_wait(sT0, vGH, opt("sl5", 4))
stamp(8)
e("v_lshlrev_b32 v%d, 3, v0" % vA1)
for k in range(3): e("s_mov_b32 s%d, %d" % (sF + k, HP + 5120 * k))
e("v_mov_b32 v%d, 0" % vH2)
e("v_mov_b32 v%d, 0" % (vH2 + 1))
if opt("d5", 0): e("s_sleep %d" % opt("d5", 0))
poll([("\n".join("buffer_load_dword v%d, v%d, %s, s%d offen offset:%d sc1" % (vGH + 4 * k + q, vA0, srd(S_WS), sF + k, 1280 * q) for q in range(3)) + "\nbuffer_load_dword v%d, v%d, %s, s%d offen offset:3840 sc1" % (vGH + 4 * k + 3, vA0, srd(S_WS), sF + k), vGH + 4 * k, 4) for k in range(3)], sleep=1)
stamp(9)
for k in range(12):
    e("v_dot2c_f32_bf16 v%d, v%d, v%d" % (vH2, vGH + k, vXD + 2))
    e("v_dot2c_f32_bf16 v%d, v%d, v%d" % (vH2 + 1, vGH + k, vXD + 3))
e("v_cvt_pk_bf16_f32 v%d, v%d, v%d" % (vT, vH2, vH2 + 1))
unpack(vH2, vT, 1)
e("v_pk_add_f32 %s, %s, %s" % (vr(vH2, 2), vr(vH2, 2), vr(vXD, 2)))
e("v_cvt_pk_bf16_f32 v%d, v%d, v%d" % (vT, vH2, vH2 + 1))
e("ds_write_b32 v%d, v%d offset:%d" % (vA0, vT, L_HB))
unpack(vH2, vT, 1)
e("s_waitcnt lgkmcnt(0)")
e(lh + ":")
e("s_barrier")
lm = e.newlabel("L_dm"); lj = e.newlabel("L_dj")
e("s_cmp_ge_u32 s%d, 5" % sW)
e("s_cbranch_scc1 %s" % lm)
e("ds_write_b64 v%d, %s offset:%d" % (vA1, vr(vH2, 2), L_HF))
e("v_add_f32 v%d, v%d, v%d" % (vT, vH2, vH2 + 1))
wave_red([vT], [sT0])
e("v_mov_b32 v%d, s%d" % (vT + 2, sT0))
e("v_mul_f32 v%d, 0x3c000000, v%d" % (vT + 2, vT + 2))
e("v_sub_f32 v%d, v%d, v%d" % (vT, vH2, vT + 2))
e("v_sub_f32 v%d, v%d, v%d" % (vT + 1, vH2 + 1, vT + 2))
e("v_mul_f32 v%d, v%d, v%d" % (vT, vT, vT))
e("v_fmac_f32 v%d, v%d, v%d" % (vT, vT + 1, vT + 1))
wave_red([vT], [sT0])
e("v_mov_b32 v%d, s%d" % (vT + 3, sT0))
e("s_lshl_b32 s%d, s%d, 3" % (sT0, sW))
e("v_mov_b32 v%d, s%d" % (vT + 4, sT0))
setexec(1)
e("ds_write_b64 v%d, %s offset:%d" % (vT + 4, vr(vT + 2, 2), L_ST))
setexec(-1)
e("s_branch %s" % lj)
e(lm + ":")
for j in range(7):
    e("ds_read_b128 %s, v%d offset:%d" % (vr(vGH + 4 * j, 4), vA2, L_HB + 64 * j))
lz = e.newlabel("L_z")
for j in range(7):
    if j == 6:
        e("s_cmp_eq_u32 s%d, 7" % sW)
        e("s_cbranch_scc1 %s" % lz)
    e("s_waitcnt lgkmcnt(%d)" % (6 - j))
    for t in range(2):
        e("v_mfma_f32_16x16x32_bf16 %s, %s, %s, %s" % (vr(vT + 4 * t, 4), vr(vGH + 4 * j, 4), vr(vB1 + 8 * j + 4 * t, 4), "0" if j == 0 else vr(vT + 4 * t, 4)))
e(lz + ":")
e("v_lshlrev_b32 v%d, 3, v%d" % (vA1, vN))
e("s_sub_u32 s%d, s%d, 5" % (sT0, sW))
e("s_lshl_b32 s%d, s%d, 8" % (sT0, sT0))
e("v_add_u32 v%d, s%d, v%d" % (vA1, sT0, vA1))
setexec(0xffff)
e("s_nop 2")
e("ds_write_b64 v%d, %s offset:%d" % (vA1, vr(vT, 2), L_RED))
e("ds_write_b64 v%d, %s offset:%d" % (vA1, vr(vT + 4, 2), L_RED + 128))
setexec(-1)
e(lj + ":")
e("s_waitcnt lgkmcnt(0)")
e("s_barrier")
stamp(10)
ld2 = e.newlabel("L_d2")
e("s_cmp_ge_u32 s%d, 5" % sW)
e("s_cbranch_scc1 %s" % ld2)
e("v_mov_b32 v%d, 0" % vA2)
e("v_and_b32 v%d, 31, v%d" % (vA3, vLANE))
e("v_lshlrev_b32 v%d, 3, v%d" % (vA3, vA3))
st_ = vT + 8
e("ds_read_b128 %s, v%d offset:%d" % (vr(st_, 4), vA2, L_ST))
e("ds_read_b128 %s, v%d offset:%d" % (vr(st_ + 4, 4), vA2, L_ST + 16))
e("ds_read_b64 %s, v%d offset:%d" % (vr(st_ + 8, 2), vA2, L_ST + 32))
for k in range(3):
    e("ds_read_b64 %s, v%d offset:%d" % (vr(vT + 20 + 2 * k, 2), vA3, L_RED + 256 * k))
e("s_waitcnt lgkmcnt(3)")
mean, m2 = vT, vT + 1
e("v_pk_add_f32 %s, %s, %s" % (vr(vT, 2), vr(st_, 2), vr(st_ + 2, 2)))
e("v_pk_add_f32 %s, %s, %s" % (vr(vT + 2, 2), vr(st_ + 4, 2), vr(st_ + 6, 2)))
e("v_pk_add_f32 %s, %s, %s" % (vr(vT, 2), vr(vT, 2), vr(st_ + 8, 2)))
e("v_pk_add_f32 %s, %s, %s" % (vr(vT, 2), vr(vT, 2), vr(vT + 2, 2)))
e("v_mul_f32 v%d, 0x3e4ccccd, v%d" % (mean, mean))
e("v_mov_b32 v%d, 0" % (vT + 2))
for k in range(5):
    e("v_sub_f32 v%d, v%d, v%d" % (vT + 3, st_ + 2 * k, mean))
    e("v_fmac_f32 v%d, v%d, v%d" % (vT + 2, vT + 3, vT + 3))
e("v_fmac_f32 v%d, 0x43000000, v%d" % (m2, vT + 2))
e("v_mul_f32 v%d, 0x3acccccd, v%d" % (m2, m2))
rbf(mean, mean); rbf(m2, m2)
e("v_add_f32 v%d, 0x3727c5ac, v%d" % (m2, m2))
rbf(m2, m2)
e("v_sqrt_f32 v%d, v%d" % (m2, m2))
rbf(m2, m2)
e("v_rcp_f32 v%d, v%d" % (m2, m2))
e("s_waitcnt lgkmcnt(0)")
e("v_pk_add_f32 %s, %s, %s" % (vr(vT + 20, 2), vr(vT + 20, 2), vr(vT + 22, 2)))
e("v_pk_add_f32 %s, %s, %s" % (vr(vT + 20, 2), vr(vT + 20, 2), vr(vT + 24, 2)))
e("v_fma_f32 v%d, -v%d, v%d, v%d" % (vT + 20, mean, vT + 21, vT + 20))
e("v_mul_f32 v%d, v%d, v%d" % (vT + 20, vT + 20, m2))
e("v_max_f32 v%d, 0, v%d" % (vT + 20, vT + 20))
e("v_mov_b32_dpp v%d, v%d row_shl:1 row_mask:0xf bank_mask:0xf bound_ctrl:0" % (vT + 21, vT + 20))
e("v_cvt_pk_bf16_f32 v%d, v%d, v%d" % (vT + 20, vT + 20, vT + 21))
sF2 = 60
for j in range(16):
    e("v_readlane_b32 s%d, v%d, %d" % (sF2 + j, vT + 20, 2 * j))
for k in range(4): e("v_mov_b32 v%d, 0" % (vT + 2 + k))
for j in range(16):
    for k in range(2):
        e("v_dot2c_f32_bf16 v%d, s%d, v%d" % (vT + 2 + k + 2 * (j & 1), sF2 + j, vW2p + 2 * j + k))
e("s_mul_i32 s%d, s%d, 2560" % (sT0, sRD))
e("s_add_u32 s%d, s%d, %d" % (sT0, sT0, OP))
e("v_pk_add_f32 %s, %s, %s" % (vr(vT + 2, 2), vr(vT + 2, 2), vr(vT + 4, 2)))
e("v_min_u32 v%d, -2, v%d" % (vT + 2, vT + 2))
e("v_min_u32 v%d, -2, v%d" % (vT + 3, vT + 3))
e("buffer_store_dwordx2 %s, v%d, %s, s%d offen sc1" % (vr(vT + 2, 2), vA1, srd(S_WS), sT0))
e(ld2 + ":")
stamp(11)
vGF, vGE = 144, 156
e("s_cmp_eq_u32 s%d, 0" % sFIN)
e("s_cbranch_scc1 L_fin")
e("v_lshrrev_b32 v%d, 3, v%d" % (vA1, vLANE))
e("v_mul_u32_u24 v%d, 2560, v%d" % (vA0, vA1))
e("v_and_b32 v%d, 7, v%d" % (vA3, vLANE))
e("v_lshl_add_u32 v%d, v%d, 4, v%d" % (vA0, vA3, vA0))
e("s_mul_i32 s%d, s%d, %d" % (sT0, sW, 8 * 2560))
e("s_lshl_b32 s%d, s%d, 6" % (sT1, sRD))
e("s_add_u32 s%d, s%d, s%d" % (sT0, sT0, sT1))
e("s_add_u32 s%d, s%d, %d" % (sT0, sT0, OP))
e("s_lshl_b32 s%d, s%d, 3" % (sT3, sW))
e("v_add_u32 v%d, s%d, v%d" % (vA1, sT3, vA1))
for k in range(4): e("v_mov_b32 v%d, 0" % (vGF + k))
e("v_cmp_gt_u32 vcc, 54, v%d" % vA1)
e("s_mov_b64 %s, vcc" % sp(sE0))
e("v_lshlrev_b32 v%d, 4, v%d" % (vA1, vA3))
e("v_lshl_add_u32 v%d, v%d, 2, v%d" % (vA1, vG, vA1))
e("s_lshl_b32 s%d, s%d, 7" % (sT3, sW))
e("v_add_u32 v%d, s%d, v%d" % (vA1, sT3, vA1))
if opt("d6", 0): e("s_sleep %d" % opt("d6", 0))
poll([("buffer_load_dwordx4 %s, v%d, %s, s%d offen sc1" % (vr(vGF, 4), vA0, srd(S_WS), sT0), vGF, 4)], sleep=1, init_masks=[sp(sE0)])
stamp(12)
for k in range(4): e("v_mov_b32 v%d, v%d" % (vT + k, vGF + k))
rs_4to1(vT)
e("v_add_f32_dpp v%d, v%d, v%d row_ror:8 row_mask:0xf bank_mask:0xf" % (vT + 1, vT, vT))
setexec(0x00ff00ff00ff00ff)
e("ds_write_b32 v%d, v%d offset:%d" % (vA1, vT + 1, L_RED + 1024))
setexec(-1)
e("s_waitcnt lgkmcnt(0)")
e("s_barrier")
e("s_cmp_lg_u32 s%d, 0" % sW)
e("s_cbranch_scc1 L_fin")
e("v_lshlrev_b32 v%d, 2, v%d" % (vA0, vLANE))
e("v_add_u32 v%d, s%d, v%d" % (vA1, sT1, vA0))
setexec(0xffffffff)
for i in range(8):
    e("ds_read_b32 v%d, v%d offset:%d" % (vGE + i, vA0, L_RED + 1024 + 128 * i))
e("ds_read_b32 v%d, v%d offset:%d" % (vGE + 8, vA1, L_HF))
e("s_waitcnt lgkmcnt(0)")
for st in (4, 2, 1):
    for i in range(st):
        e("v_add_f32 v%d, v%d, v%d" % (vGE + i, vGE + i, vGE + i + st))
rbf(vGE, vGE)
e("v_add_f32 v%d, v%d, v%d" % (vGE, vGE, vGE + 8))
e("v_cvt_pk_bf16_f32 v%d, v%d, v%d" % (vGE, vGE, vGE))
e("v_lshrrev_b32 v%d, 1, v%d" % (vA1, vA1))
e("buffer_store_short v%d, v%d, %s, 0 offen" % (vGE, vA1, srd(S_OUT)))
setexec(-1)
e("L_fin:")
if DIAG:
    stamp(13)
    if opt("dbg", 0):
        for wgid, base, idxs in ((128, 1, (2, 4, 6, 8, 9, 11, 13)), (0, 9, (1, 3, 4, 6, 7, 8, 10))):
            l = e.newlabel("L_dbg")
            e("s_cmp_lg_u32 s2, %d" % wgid)
            e("s_cbranch_scc1 %s" % l)
            e("s_cmp_lg_u32 s%d, 0" % sW)
            e("s_cbranch_scc1 %s" % l)
            e("v_readlane_b32 s%d, v%d, 0" % (sT0, vTSV))
            for k, ix in enumerate(idxs):
                e("v_readlane_b32 s%d, v%d, %d" % (sT1, vTSV, ix))
                e("s_sub_u32 s%d, s%d, s%d" % (sT1, sT1, sT0))
                e("v_mov_b32 v%d, s%d" % (vA1, sT1))
                e("v_mov_b32 v%d, %d" % (vA0, 4 * (base + k)))
                setexec(1)
                e("buffer_store_dword v%d, v%d, %s, 0 offen" % (vA1, vA0, srd(S_DBG)))
                setexec(-1)
            e(l + ":")
    e("v_lshlrev_b32 v%d, 2, v%d" % (vA0, vLANE))
    e("s_lshl_b32 s%d, s2, 3" % sT0)
    e("s_add_u32 s%d, s%d, s%d" % (sT0, sT0, sW))
    e("s_lshl_b32 s%d, s%d, 8" % (sT0, sT0))
    e("s_add_u32 s%d, s%d, %d" % (sT0, sT0, DIAGO))
    e("buffer_store_dword v%d, v%d, %s, s%d offen" % (vTSV, vA0, srd(S_WS), sT0))
e("L_end:")
e("s_endpgm")
e.raw(""".section .rodata,"a"
.p2align 6
.amdhsa_kernel %s
  .amdhsa_next_free_vgpr %d
  .amdhsa_next_free_sgpr 102
  .amdhsa_accum_offset %d
  .amdhsa_group_segment_fixed_size 0
  .amdhsa_kernarg_size 96
  .amdhsa_user_sgpr_count 2
  .amdhsa_user_sgpr_kernarg_segment_ptr 1
  .amdhsa_system_sgpr_workgroup_id_x 1
.end_amdhsa_kernel""" % (KN, NVGPR, NVGPR))
open(OUTF, "w").write(e.text())
```

```python
import sys
sys.path.insert(0, "gen")
from emit import Emitter

KN = "sequential_preLN__compressed_kv_cla__dense_activation_relu__decode_kernel"
DIAG = "--diag" in sys.argv
OUTF = [a for a in sys.argv[1:] if not a.startswith("--")][0]
def opt(name, default):
    for a in sys.argv:
        if a.startswith("--%s=" % name): return int(a.split("=")[1])
    return default
EWA_AT = opt("ewa", 16)
FLAG_AT = opt("flag", 8)

QA, CP, EWA, QP = 0x0, 0x8000, 0x10000, 0x12000
HP, EWC, STAT, OP, PART, DIAGO = 0x90000, 0x9E000, 0x24000, 0x30000, 0x100000, 0x800000
RDY = 0
EWB = 0x96000
NT = " nt" if opt("nt", 1) else ""
NTC = " nt" if opt("ntc", 1) else ""
WS_BYTES = 0x900000
RS = 1040
L_RED = 0
L_QL = 4096
L_LN = 8448
L_MX = 4096
L_SUM = 4608
L_P = 6656
PRS = 272
L_HB = 4096
L_ONES = 5376
L_ST = 6656
L_HF = 7168
L_QS = 12288
L_CK = L_QS + 16 * RS
LDS_BYTES = L_CK + 128 * RS
L_WUV = 12288
L_WO = L_WUV + 32768
L_W1 = 12288
SPIN = 200000

S_X, S_CKV, S_WQ, S_WUK, S_WUV, S_WO, S_W1, S_W2, S_OUT, S_DBG, S_WS = [4 + 4 * i for i in range(11)]
def srd(b): return "s[%d:%d]" % (b, b + 3)
sW, sA, sB, sCNT, sT0, sT1, sT2, sT3 = 48, 49, 50, 51, 52, 53, 54, 55
sH, sCQ, sXI = 56, 57, 58
sKS, sHF, sYI = 56, 57, 58
sRD, sISD, sFIN = 59, 88, 89
sM = [60, 62, 64, 66, 68, 70, 72, 74]
sTM, sOR = 76, 78
sF = 80
sE0, sE1 = 90, 92
sL2E, sT4 = 94, 95
sTS = 96
def sp(b): return "s[%d:%d]" % (b, b + 1)
e = Emitter()
def vr(b, n): return "v[%d:%d]" % (b, b + n - 1) if n > 1 else "v%d" % b

vLANE, vN, vG = 1, 2, 3
vA0, vA1, vA2, vA3 = 4, 5, 6, 7
vT = 8
vTSV = 40
vL16 = 41
vCL = 44
NVGPR = 248

def stamp(idx):
    if not DIAG: return
    e("s_memrealtime %s" % sp(sTS))
    e("s_waitcnt lgkmcnt(0)")
    e("v_writelane_b32 v%d, s%d, %d" % (vTSV, sTS, idx))
def setexec(m):
    if m == -1: e("s_mov_b64 exec, -1"); return
    e("s_mov_b32 exec_lo, 0x%x" % (m & 0xffffffff))
    e("s_mov_b32 exec_hi, 0x%x" % (m >> 32))
def rbf(dst, src):
    e("v_cvt_pk_bf16_f32 v%d, v%d, v%d" % (dst, src, src))
    e("v_lshlrev_b32 v%d, 16, v%d" % (dst, dst))
def wave_red(vs, sdsts, op="v_add_f32"):
    bc = " bound_ctrl:0" if op == "v_add_f32" else ""
    for sh in (1, 2, 4, 8):
        for v in vs: e("%s_dpp v%d, v%d, v%d row_shr:%d row_mask:0xf bank_mask:0xf%s" % (op, v, v, v, sh, bc))
    for v in vs: e("%s_dpp v%d, v%d, v%d row_bcast:15 row_mask:0xa bank_mask:0xf" % (op, v, v, v))
    for v in vs: e("%s_dpp v%d, v%d, v%d row_bcast:31 row_mask:0xc bank_mask:0xf" % (op, v, v, v))
    for v, s in zip(vs, sdsts): e("v_readlane_b32 s%d, v%d, 63" % (s, v))
def unpack(dst, src, n):
    for i in range(n):
        e("v_lshlrev_b32 v%d, 16, v%d" % (dst + 2 * i, src + i))
        e("v_and_b32 v%d, 0xffff0000, v%d" % (dst + 2 * i + 1, src + i))
PD = opt("pd", 1)
PG = opt("pg", 5)
def poll(loads, sleep=1, init_masks=None, depth=None):
    D = PD if depth is None else depth
    lp = e.newlabel("L_poll"); dn = e.newlabel("L_polld")
    nl = sum(t.count("buffer_load") for t, _, _ in loads)
    for k in range(len(loads)):
        e("s_mov_b64 %s, %s" % (sp(sM[k]), "-1" if not init_masks or init_masks[k] is None else init_masks[k]))
    e("s_mov_b32 s%d, 0" % sCNT)
    def issue():
        for k, (txt, d, n) in enumerate(loads):
            e("s_mov_b64 exec, %s" % sp(sM[k]))
            e(txt)
        e("s_mov_b64 exec, -1")
    for _ in range(D - 1):
        issue()
        e("s_sleep %d" % PG)
    e(lp + ":")
    issue()
    e("s_waitcnt vmcnt(%d)" % ((D - 1) * nl))
    for k, (txt, d, n) in enumerate(loads):
        t = vT + 31
        if n == -2:
            e("v_cmp_gt_i32 %s, 0, v%d" % (sp(sTM), d + 1))
        elif n == 1:
            e("v_cmp_eq_u32 %s, -1, v%d" % (sp(sTM), d))
        else:
            e("v_max_u32 v%d, v%d, v%d" % (t, d, d + 1))
            if n >= 4: e("v_max3_u32 v%d, v%d, v%d, v%d" % (t, t, d + 2, d + 3))
            e("v_cmp_eq_u32 %s, -1, v%d" % (sp(sTM), t))
        e("s_and_b64 %s, %s, %s" % (sp(sM[k]), sp(sM[k]), sp(sTM)))
        if k == 1: e("s_or_b64 %s, %s, %s" % (sp(sOR), sp(sM[0]), sp(sM[k])))
        elif k > 1: e("s_or_b64 %s, %s, %s" % (sp(sOR), sp(sOR), sp(sM[k])))
    e("s_cbranch_scc0 %s" % dn)
    e("s_add_u32 s%d, s%d, 1" % (sCNT, sCNT))
    e("s_cmp_gt_u32 s%d, %d" % (sCNT, SPIN))
    e("s_cbranch_scc1 %s" % dn)
    if sleep and D == 1: e("s_sleep %d" % sleep)
    e("s_branch %s" % lp)
    e(dn + ":")
def rs_8to2(b):
    for i in range(4): e("v_permlane32_swap_b32 v%d, v%d" % (b + i, b + 4 + i))
    for i in range(4): e("v_add_f32 v%d, v%d, v%d" % (b + i, b + i, b + 4 + i))
    for i in range(2): e("v_permlane16_swap_b32 v%d, v%d" % (b + i, b + 2 + i))
    for i in range(2): e("v_add_f32 v%d, v%d, v%d" % (b + i, b + i, b + 2 + i))
def rs_4to1(b):
    for i in range(2): e("v_permlane32_swap_b32 v%d, v%d" % (b + i, b + 2 + i))
    for i in range(2): e("v_add_f32 v%d, v%d, v%d" % (b + i, b + i, b + 2 + i))
    e("v_permlane16_swap_b32 v%d, v%d" % (b, b + 1))
    e("v_add_f32 v%d, v%d, v%d" % (b, b, b + 1))
def allred_g(v, tmp, op="v_add_f32"):
    e("v_mov_b32 v%d, v%d" % (tmp, v))
    e("v_permlane32_swap_b32 v%d, v%d" % (v, tmp))
    e("%s v%d, v%d, v%d" % (op, v, v, tmp))
    e("v_mov_b32 v%d, v%d" % (tmp, v))
    e("v_permlane16_swap_b32 v%d, v%d" % (v, tmp))
    e("%s v%d, v%d, v%d" % (op, v, v, tmp))
def hilo_write(v, vaddr):
    h, a, b = v + 2, v + 3, v + 4
    e("v_cvt_pk_bf16_f32 v%d, v%d, v%d" % (h, v, v + 1))
    e("v_lshlrev_b32 v%d, 16, v%d" % (a, h))
    e("v_and_b32 v%d, 0xffff0000, v%d" % (b, h))
    e("v_sub_f32 v%d, v%d, v%d" % (v, v, a))
    e("v_sub_f32 v%d, v%d, v%d" % (v + 1, v + 1, b))
    e("v_cvt_pk_bf16_f32 v%d, v%d, v%d" % (a, v, v + 1))
    e("ds_write2_b32 v%d, v%d, v%d offset0:0 offset1:68" % (vaddr, h, a))
def rows_gemv_publish(vB, vQLr, vOut, sOut):
    f = vT + 8
    for ks in range(4):
        e("ds_read_b128 %s, v%d offset:%d" % (vr(f + 4 * ks, 4), vQLr, 64 * ks))
    for ks in range(4):
        e("s_waitcnt lgkmcnt(%d)" % (3 - ks))
        e("v_mfma_f32_16x16x32_bf16 %s, %s, %s, %s" % (vr(vT, 4), vr(f + 4 * ks, 4), vr(vB + 4 * ks, 4), "0" if ks == 0 else vr(vT, 4)))
    e("v_add_f32 v%d, v%d, v%d" % (vT, vT, vT + 1))
    e("v_add_f32 v%d, v%d, v%d" % (vT + 2, vT + 2, vT + 3))
    e("v_add_f32 v%d, v%d, v%d" % (vT, vT, vT + 2))
    allred_g(vT, vT + 1)
    e("v_mov_b32_dpp v%d, v%d row_shl:1 row_mask:0xf bank_mask:0xf bound_ctrl:0" % (vT + 1, vT))
    e("v_cvt_pk_bf16_f32 v%d, v%d, v%d" % (vT, vT, vT + 1))
    e("v_min_u32 v%d, -2, v%d" % (vT, vT))
    setexec(0x5555)
    e("buffer_store_dword v%d, v%d, %s, s%d offen sc1" % (vT, vOut, srd(S_WS), sOut))
    setexec(-1)
def flag_check(first_loaded=None):
    lp = e.newlabel("L_fl"); ld = e.newlabel("L_fld"); l1 = e.newlabel("L_fl1")
    e("s_mov_b32 s%d, 0" % sCNT)
    if first_loaded is not None: e("s_branch %s" % l1)
    e(lp + ":")
    setexec(0xff)
    e("v_lshlrev_b32 v%d, 5, v%d" % (vA3, vLANE))
    e("buffer_load_dword v%d, v%d, %s, 0 offen sc1" % (vL16 + 1, vA3, srd(S_DBG)))
    setexec(-1)
    e(l1 + ":")
    e("s_waitcnt vmcnt(0)")
    setexec(0xff)
    e("v_cmp_eq_u32 vcc, 0, v%d" % (vL16 + 1))
    setexec(-1)
    e("s_cbranch_vccz %s" % ld)
    e("s_add_u32 s%d, s%d, 1" % (sCNT, sCNT))
    e("s_cmp_gt_u32 s%d, %d" % (sCNT, SPIN))
    e("s_cbranch_scc1 %s" % ld)
    e("s_sleep 8")
    e("s_branch %s" % lp)
    e(ld + ":")
def store1(soff, val=1):
    e("v_mov_b32 v%d, %d" % (vA3, val))
    e("v_mov_b32 v%d, 0" % (vT + 30))
    setexec(1)
    e("buffer_store_dword v%d, v%d, %s, s%d offen sc1" % (vA3, vT + 30, srd(S_WS), soff))
    setexec(-1)
def rdy_write():
    e("s_lshl_b32 s%d, s2, 6" % sT0)
    e("s_add_u32 s%d, s%d, %d" % (sT0, sT0, RDY))
    store1(sT0)
def rdy_check(dst):
    l = e.newlabel("L_rdy")
    e("s_cmp_ge_u32 s%d, 4" % sW)
    e("s_cbranch_scc1 %s" % l)
    e("v_lshlrev_b32 v%d, 6, v0" % vA0)
    e("s_mov_b32 s%d, %d" % (sT0, RDY))
    poll([("buffer_load_dword v%d, v%d, %s, s%d offen sc1" % (dst, vA0, srd(S_WS), sT0), dst, 1)], sleep=8)
    e(l + ":")
def hint_addr(sidx, step, N, vdst):
    e("v_mul_u32_u24 v%d, %d, v%d" % (vdst, step, vLANE))
    e("v_add_u32 v%d, s%d, v%d" % (vdst, sidx, vdst))
    e("v_subrev_u32 v%d, %d, v%d" % (vT + 30, N, vdst))
    e("v_min_u32 v%d, v%d, v%d" % (vdst, vdst, vT + 30))
    e("v_lshlrev_b32 v%d, 6, v%d" % (vdst, vdst))
def hint_wait(soff, dst, sleep):
    e("v_mov_b32 v%d, 0" % vA3)
    poll([("buffer_load_dword v%d, v%d, %s, s%d offen sc1" % (dst, vA3, srd(S_WS), soff), dst, 1)], sleep=sleep, init_masks=["1"])

e.raw("""; persistent MLA decode + FFN kernel (generated by gen/gen15.py)
; @launch grid=(256,1,1) block=(512,1,1) lds=%d
.amdgcn_target "amdgcn-amd-amdhsa--gfx950"
.text
.globl %s
.p2align 8
.type %s,@function
%s:""" % (LDS_BYTES, KN, KN, KN))
e("s_cmp_ge_u32 s2, 256")
e("s_cbranch_scc1 L_end")
e("s_load_dwordx16 s[64:79], s[0:1], 0")
e("s_add_u32 s2, s2, 248")
e("s_and_b32 s2, s2, 255")
e("s_load_dwordx8 s[80:87], s[0:1], 64")
if opt("dbl", 0):
    e("s_memrealtime s[98:99]")
if DIAG:
    e("v_mov_b32 v%d, 0" % vTSV)
    stamp(0)
e("v_and_b32 v%d, 63, v0" % vLANE)
e("v_lshrrev_b32 v%d, 6, v0" % vA0)
e("v_and_b32 v%d, 15, v0" % vN)
e("v_bfe_u32 v%d, v0, 4, 2" % vG)
e("v_readfirstlane_b32 s%d, v%d" % (sW, vA0))
for i in range(4): e("v_mov_b32 v%d, -1" % (vCL + i))
e("v_lshlrev_b32 v%d, 4, v%d" % (vL16, vLANE))
e("s_bfe_u32 s%d, s2, 0x40003" % sA)
e("s_and_b32 s%d, s2, 7" % sB)
e("s_mov_b32 s%d, 0x3fb8aa3b" % sL2E)
e("s_waitcnt lgkmcnt(0)")
sizes = {S_X: 1280, S_CKV: 8388608, S_WQ: 5242880, S_WUK: 4194304, S_WUV: 4194304, S_WO: 5242880, S_W1: 2211840, S_W2: 2211840, S_OUT: 1280, S_DBG: 256, S_WS: WS_BYTES}
src = {S_X: 64, S_CKV: 66, S_WQ: 68, S_WUK: 70, S_WUV: 72, S_WO: 74, S_W1: 78, S_W2: 80, S_OUT: 82, S_DBG: 84, S_WS: 86}
for b in (S_WS, S_X, S_WQ, S_CKV, S_WUK, S_DBG, S_WUV, S_WO, S_W1, S_W2, S_OUT):
    e("s_mov_b32 s%d, s%d" % (b, src[b]))
    e("s_mov_b32 s%d, s%d" % (b + 1, src[b] + 1))
    e("s_mov_b32 s%d, %d" % (b + 2, sizes[b]))
    e("s_mov_b32 s%d, 0x00020000" % (b + 3))
e("s_cmp_ge_u32 s2, 128")
e("s_cbranch_scc1 L_Y")

vWQ, vWUK, vL1, vL0, vXF, vXR = 48, 148, 164, 170, 184, 190
vBUV, vBO, vG0 = 48, 64, 96
vQLw, vQLr, vOutA = 192, 193, 194
e("s_lshl_b32 s%d, s%d, 2" % (sH, sB))
e("s_lshr_b32 s%d, s%d, 2" % (sT0, sA))
e("s_add_u32 s%d, s%d, s%d" % (sH, sH, sT0))
e("s_and_b32 s%d, s%d, 3" % (sCQ, sA))
e("s_lshl_b32 s%d, s%d, 2" % (sXI, sH))
e("s_add_u32 s%d, s%d, s%d" % (sXI, sXI, sCQ))
sST, sKQ, sUS, sNU = 98, 99, 100, 101
e("s_mul_i32 s%d, s2, 205" % sKQ)
e("s_lshr_b32 s%d, s%d, 11" % (sKQ, sKQ))
e("s_mul_i32 s%d, s%d, 10" % (sT0, sKQ))
e("s_sub_u32 s%d, s2, s%d" % (sST, sT0))
e("s_mul_i32 s%d, s%d, 11" % (sUS, sKQ))
e("s_max_u32 s%d, s%d, 8" % (sT0, sKQ))
e("s_sub_u32 s%d, s%d, 8" % (sT0, sT0))
e("s_sub_u32 s%d, s%d, s%d" % (sUS, sUS, sT0))
e("s_cmp_lt_u32 s%d, 8" % sKQ)
e("s_cselect_b32 s%d, 11, 10" % sNU)
L_WUK = L_WO + 45056
vWQ, vL1, vL0, vXF, vXR = 48, 164, 176, 186, 191
vQF = vG0 + 32; vCF = vG0 + 32; vC2a, vC1a, vUKa = 200, 201, 196
vBUV, vBO = 144, 160
def frag_prep():
    r_, q_, x_ = vT + 26, vT + 27, vT + 28
    e("v_lshrrev_b32 v%d, 2, v%d" % (r_, vN))
    e("v_bfe_u32 v%d, v%d, 1, 1" % (q_, vN))
    e("v_lshl_or_b32 v%d, v%d, 2, v%d" % (x_, vG, r_))
    e("v_xor_b32 v%d, v%d, v%d" % (x_, x_, q_))
    e("s_lshl_b32 s%d, s%d, 1" % (sF + 5, sW))
    e("v_xor_b32 v%d, s%d, v%d" % (x_, sF + 5, x_))
    e("v_lshlrev_b32 v%d, 4, v%d" % (x_, x_))
    e("v_lshlrev_b32 v%d, 4, v%d" % (vC1a, r_))
    e("v_lshl_add_u32 v%d, v%d, 1, v%d" % (vC1a, vG, vC1a))
    e("v_lshl_add_u32 v%d, v%d, 8, v%d" % (vC1a, vC1a, x_))
    e("v_and_b32 v%d, 1, v%d" % (x_, vN))
    e("v_lshl_add_u32 v%d, v%d, 3, v%d" % (vC1a, x_, vC1a))
    for ks in range(4):
        for u in range(2):
            e("ds_read_b64_tr_b16 %s, v%d offset:%d" % (vr(vBUV + 4 * ks + 2 * u, 2), vC1a, L_WUV + (64 * (ks >> 1) + 8 * (ks & 1) + u) * 256))
    e("v_lshl_add_u32 v%d, v%d, 3, v%d" % (vC2a, vG, r_))
    e("v_lshlrev_b32 v%d, 7, v%d" % (vC2a, vC2a))
    e("v_lshl_add_u32 v%d, v%d, 3, v%d" % (vC2a, x_, vC2a))
    e("s_lshl_b32 s%d, s%d, 12" % (sF + 5, sW))
    e("s_add_u32 s%d, s%d, %d" % (sF + 5, sF + 5, L_WO))
    e("v_add_u32 v%d, s%d, v%d" % (vC2a, sF + 5, vC2a))
    e("v_lshrrev_b32 v%d, 1, v%d" % (r_, r_))
    e("v_lshl_or_b32 v%d, v%d, 1, v%d" % (r_, vG, r_))
    e("v_xor_b32 v%d, v%d, v%d" % (r_, r_, q_))
    e("s_waitcnt lgkmcnt(0)")
    for t in range(4):
        e("v_xor_b32 v%d, %d, v%d" % (x_, 2 * t, r_))
        e("v_lshl_add_u32 v%d, v%d, 4, v%d" % (x_, x_, vC2a))
        for j in range(2):
            for u in range(2):
                e("ds_read_b64_tr_b16 %s, v%d offset:%d" % (vr(vBO + 16 * j + 4 * t + 2 * u, 2), x_, 32768 * j + 512 * u))
        if t == 1: e("s_waitcnt lgkmcnt(0)")
    e("s_waitcnt lgkmcnt(0)")
lc1 = e.newlabel("L_c1"); lS = e.newlabel("L_S")
for k in range(16): e("v_mov_b32 v%d, 0" % (vQF + k))
e("v_lshlrev_b32 v%d, 4, v%d" % (vQLw, vN))
e("v_lshl_add_u32 v%d, v%d, 2, v%d" % (vQLw, vG, vQLw))
e("v_mul_u32_u24 v%d, 272, v%d" % (vQLr, vN))
e("v_lshl_add_u32 v%d, v%d, 4, v%d" % (vQLr, vG, vQLr))
e("v_add_u32 v%d, %d, v%d" % (vQLr, L_QL, vQLr))
e("v_lshlrev_b32 v%d, 1, v%d" % (vOutA, vN))
e("s_cmp_ge_u32 s%d, 4" % sW)
e("s_cbranch_scc1 %s" % lS)
e("v_lshlrev_b32 v%d, 2, v%d" % (vA0, vLANE))
for i in range(5):
    e("buffer_load_dword v%d, v%d, %s, 0 offen offset:%d" % (vXF + i, vA0, srd(S_X), 256 * i))
e("v_lshlrev_b32 v%d, 1, v%d" % (vA1, vLANE))
e("s_mul_i32 s%d, s%d, 160" % (sT0, sCQ))
e("s_mul_i32 s%d, s%d, 40" % (sT1, sW))
e("s_add_u32 s%d, s%d, s%d" % (sT0, sT0, sT1))
e("s_lshl_b32 s%d, s%d, 1" % (sT1, sT0))
e("buffer_load_ushort v%d, v%d, %s, s%d offen" % (vXR, vA1, srd(S_X), sT1))
e("s_barrier")
e("v_lshlrev_b32 v%d, 13, v%d" % (vA0, vG))
e("v_lshl_add_u32 v%d, v%d, 4, v%d" % (vA0, vN, vA0))
e("s_lshl_b32 s%d, s%d, 13" % (sT0, sT0))
e("s_lshl_b32 s%d, s%d, 8" % (sT1, sH))
e("s_add_u32 s%d, s%d, s%d" % (sT0, sT0, sT1))
for i in range(10):
    e("buffer_load_dwordx4 %s, v%d, %s, s%d offen%s" % (vr(vWQ + 4 * i, 4), vA0, srd(S_WQ), sT0, NT))
    if i < 9: e("s_add_u32 s%d, s%d, 32768" % (sT0, sT0))
e("s_barrier")
e("s_waitcnt vmcnt(10)")
stamp(1)
a, b_, vM, vS = vT + 10, vT + 11, vT + 12, vT + 13
e("v_readfirstlane_b32 s%d, v%d" % (sT0, vXF))
unpack(vT, vXF, 5)
e("s_lshl_b32 s%d, s%d, 16" % (sT0, sT0))
e("s_mov_b32 s%d, s%d" % (sT1, sT0))
for k in range(5):
    e("v_pk_add_f32 %s, %s, %s neg_lo:[0,1] neg_hi:[0,1]" % (vr(vT + 2 * k, 2), vr(vT + 2 * k, 2), sp(sT0)))
e("v_pk_add_f32 %s, %s, %s" % (vr(vT + 14, 2), vr(vT, 2), vr(vT + 2, 2)))
e("v_pk_mul_f32 %s, %s, %s" % (vr(vT + 16, 2), vr(vT, 2), vr(vT, 2)))
e("v_pk_fma_f32 %s, %s, %s, %s" % (vr(vT + 16, 2), vr(vT + 2, 2), vr(vT + 2, 2), vr(vT + 16, 2)))
for k in range(2, 5):
    e("v_pk_add_f32 %s, %s, %s" % (vr(vT + 14, 2), vr(vT + 14, 2), vr(vT + 2 * k, 2)))
    e("v_pk_fma_f32 %s, %s, %s, %s" % (vr(vT + 16, 2), vr(vT + 2 * k, 2), vr(vT + 2 * k, 2), vr(vT + 16, 2)))
e("v_add_f32 v%d, v%d, v%d" % (a, vT + 14, vT + 15))
e("v_add_f32 v%d, v%d, v%d" % (b_, vT + 16, vT + 17))
wave_red([a, b_], [sT2, sT3])
e("s_mov_b32 s%d, 0x3acccccd" % sT1)
e("v_mov_b32 v%d, s%d" % (vM, sT2))
e("v_mov_b32 v%d, s%d" % (vS, sT3))
e("v_mul_f32 v%d, s%d, v%d" % (vM, sT1, vM))
e("v_mul_f32 v%d, s%d, v%d" % (vS, sT1, vS))
e("v_fma_f32 v%d, -v%d, v%d, v%d" % (vS, vM, vM, vS))
e("v_max_f32 v%d, 0, v%d" % (vS, vS))
e("v_add_f32 v%d, s%d, v%d" % (vM, sT0, vM))
rbf(vM, vM); rbf(vS, vS)
e("v_add_f32 v%d, 0x3727c5ac, v%d" % (vS, vS))
rbf(vS, vS)
e("v_sqrt_f32 v%d, v%d" % (vS, vS))
rbf(vS, vS)
e("v_rcp_f32 v%d, v%d" % (vS + 1, vS))
v = vXR
e("v_lshlrev_b32 v%d, 16, v%d" % (v, v))
e("v_sub_f32 v%d, v%d, v%d" % (v, v, vM))
rbf(v, v)
e("v_mul_f32 v%d, v%d, v%d" % (b_, v, vS + 1))
e("v_fma_f32 v%d, -v%d, v%d, v%d" % (a, b_, vS, v))
e("v_fmac_f32 v%d, v%d, v%d" % (b_, a, vS + 1))
rbf(v, b_)
e("v_and_b32 v%d, 3, v%d" % (vA0, vLANE))
e("v_lshlrev_b32 v%d, 6, v%d" % (vA0, vA0))
e("v_and_b32 v%d, 0x3c, v%d" % (vA1, vLANE))
e("v_add_u32 v%d, v%d, v%d" % (vA0, vA0, vA1))
e("s_lshl_b32 s%d, s%d, 8" % (sT0, sW))
e("v_add_u32 v%d, s%d, v%d" % (vA0, sT0, vA0))
e("ds_write_b32 v%d, v%d offset:%d" % (vA0, vXR, L_LN))
e("v_lshlrev_b32 v%d, 6, v%d" % (vA1, vG))
e("v_add_u32 v%d, s%d, v%d" % (vA1, sT0, vA1))
e("s_waitcnt lgkmcnt(0)")
for k in range(3):
    e("ds_read_b128 %s, v%d offset:%d" % (vr(vL1 + 4 * k, 4), vA1, L_LN + 16 * k))
e("s_lshl_b32 s%d, s%d, 5" % (sF + 3, sB))
e("v_mov_b32 v%d, 0" % (vT + 20))
lf0 = e.newlabel("L_f0")
e("s_cmp_lg_u32 s%d, 0" % sW)
e("s_cbranch_scc1 %s" % lf0)
setexec(1)
e("buffer_load_dword v%d, v%d, %s, s%d offen sc1" % (vL16 + 1, vT + 20, srd(S_DBG), sF + 3))
setexec(-1)
e(lf0 + ":")
e("v_lshlrev_b32 v%d, 1, v%d" % (vA1, vQLw))
e("s_lshl_b32 s%d, s%d, 9" % (sT0, sW))
e("v_add_u32 v%d, s%d, v%d" % (vA1, sT0, vA1))
e("s_mul_i32 s%d, s%d, 544" % (sT0, sW))
e("s_add_u32 s%d, s%d, %d" % (sT0, sT0, L_QL))
e("v_add_u32 v%d, s%d, v%d" % (vQLw, sT0, vQLw))
e("v_lshlrev_b32 v%d, 3, v%d" % (vA2, vLANE))
e("v_lshlrev_b32 v%d, 2, v%d" % (vT + 29, vLANE))
e("s_lshl_b32 s%d, s%d, 13" % (sT0, sW))
e("s_add_u32 s%d, s%d, %d" % (sT0, sT0, L_WUK))
e("v_xor_b32 v%d, v%d, v%d" % (vA0, vN, vG))
for ks in range(4):
    e("v_xor_b32 v%d, %d, v%d" % (vUKa + ks, 4 * ks, vA0))
    e("v_lshlrev_b32 v%d, 4, v%d" % (vUKa + ks, vUKa + ks))
    e("v_lshl_add_u32 v%d, v%d, 8, v%d" % (vUKa + ks, vN, vUKa + ks))
    e("v_add_u32 v%d, s%d, v%d" % (vUKa + ks, sT0, vUKa + ks))
e("v_lshlrev_b32 v%d, 8, v%d" % (vA0, vN))
e("v_lshl_add_u32 v%d, v%d, 4, v%d" % (vA0, vG, vA0))
for k in range(8): e("v_mov_b32 v%d, 0" % (vT + k))
e("s_mov_b32 s%d, 0x00ff00ff" % sE0)
e("s_mov_b32 s%d, 0x00ff00ff" % (sE0 + 1))
e("s_lshl_b32 s%d, s%d, 9" % (sT2, sXI))
e("s_add_u32 s%d, s%d, %d" % (sT2, sT2, QP))
e("s_lshl_b32 s%d, s%d, 11" % (sT3, sH))
e("s_add_u32 s%d, s%d, %d" % (sT3, sT3, QP))
e("s_waitcnt lgkmcnt(0)")
for k in range(10): e("v_lshrrev_b32 v%d, 16, v%d" % (vL0 + k, vL1 + k))
stamp(2)
def a1(extra):
    for i in range(10):
        e("s_waitcnt vmcnt(%d)" % (9 - i + extra))
        for k in range(4):
            e("v_dot2c_f32_bf16 v%d, v%d, v%d" % (vT + 2 * k, vWQ + 4 * i + k, vL0 + i))
            e("v_dot2c_f32_bf16 v%d, v%d, v%d" % (vT + 2 * k + 1, vWQ + 4 * i + k, vL1 + i))
    e("s_nop 3")
la_ = e.newlabel("L_a1"); lb_ = e.newlabel("L_a1")
e("s_cmp_eq_u32 s%d, 0" % sW)
e("s_cbranch_scc1 %s" % la_)
a1(0)
e("s_branch %s" % lb_)
e(la_ + ":")
a1(1)
e(lb_ + ":")
rs_8to2(vT)
e("ds_write_b64 v%d, %s offset:%d" % (vA1, vr(vT, 2), L_RED))
lfo = e.newlabel("L_fo"); lfp = e.newlabel("L_fp"); lf1 = e.newlabel("L_f1")
e("s_mov_b32 s%d, 0" % sCNT)
e("s_cmp_lg_u32 s%d, 0" % sW)
e("s_cbranch_scc1 %s" % lfo)
setexec(1)
e("s_branch %s" % lf1)
e(lfp + ":")
setexec(1)
e("buffer_load_dword v%d, v%d, %s, s%d offen sc1" % (vL16 + 1, vT + 20, srd(S_DBG), sF + 3))
e(lf1 + ":")
e("s_waitcnt vmcnt(0)")
e("v_cmp_eq_u32 vcc, 0, v%d" % (vL16 + 1))
setexec(-1)
e("s_cbranch_vccz %s" % lfo)
e("s_add_u32 s%d, s%d, 1" % (sCNT, sCNT))
e("s_cmp_gt_u32 s%d, %d" % (sCNT, SPIN))
e("s_cbranch_scc1 %s" % lfo)
e("s_sleep 2")
e("s_branch %s" % lfp)
e(lfo + ":")
e("s_waitcnt lgkmcnt(0)")
e("s_barrier")
stamp(3)
lw = e.newlabel("L_a1w")
e("s_cmp_lg_u32 s%d, 0" % sW)
e("s_cbranch_scc1 %s" % lw)
for i in range(4):
    e("ds_read_b64 %s, v%d offset:%d" % (vr(vG0 + 2 * i, 2), vA2, L_RED + 512 * i))
e(lw + ":")
stamp(14)
if DIAG: e("v_writelane_b32 v%d, s%d, 20" % (vTSV, sCNT))
lw = e.newlabel("L_a1w")
e("s_cmp_lg_u32 s%d, 0" % sW)
e("s_cbranch_scc1 %s" % lw)
e("s_waitcnt lgkmcnt(0)")
v = vG0
e("v_pk_add_f32 %s, %s, %s" % (vr(v, 2), vr(v, 2), vr(v + 2, 2)))
e("v_pk_add_f32 %s, %s, %s" % (vr(v + 4, 2), vr(v + 4, 2), vr(v + 6, 2)))
e("v_pk_add_f32 %s, %s, %s" % (vr(v, 2), vr(v, 2), vr(v + 4, 2)))
e("v_min_u32 v%d, -2, v%d" % (v, v))
e("v_min_u32 v%d, -2, v%d" % (v + 1, v + 1))
e("buffer_store_dwordx2 %s, v%d, %s, s%d offen sc1" % (vr(v, 2), vA2, srd(S_WS), sT2))
e(lw + ":")
stamp(16)
if opt("d1", 0): e("s_sleep %d" % opt("d1", 0))
vQ8 = 100
e("s_lshl_b32 s%d, s%d, 8" % (sT0, sW))
e("v_add_u32 v%d, s%d, v%d" % (vT + 28, sT0, vT + 29))
e("v_lshlrev_b32 v%d, 4, v%d" % (vA0, vG))
e("v_add_u32 v%d, s%d, v%d" % (vA0, sT0, vA0))
poll([("buffer_load_dwordx2 %s, v%d, %s, s%d offen offset:%d sc1\nbuffer_load_dwordx2 %s, v%d, %s, s%d offen offset:%d sc1" % (vr(vQ8 + 4 * k, 2), vA2, srd(S_WS), sT3, 1024 * k, vr(vQ8 + 4 * k + 2, 2), vA2, srd(S_WS), sT3, 1024 * k + 512), vQ8 + 4 * k, 4) for k in range(2)], sleep=1)
stamp(15)
if DIAG: e("v_writelane_b32 v%d, s%d, 21" % (vTSV, sCNT))
e("v_pk_add_f32 %s, %s, %s" % (vr(vT, 2), vr(vQ8, 2), vr(vQ8 + 2, 2)))
e("v_pk_add_f32 %s, %s, %s" % (vr(vT + 2, 2), vr(vQ8 + 4, 2), vr(vQ8 + 6, 2)))
e("v_pk_add_f32 %s, %s, %s" % (vr(vT, 2), vr(vT, 2), vr(vT + 2, 2)))
e("v_cvt_pk_bf16_f32 v%d, v%d, v%d" % (vT, vT, vT + 1))
e("ds_write_b32 v%d, v%d offset:%d" % (vT + 28, vT, L_LN))
e("s_waitcnt lgkmcnt(0)")
vQA = 204
for ks in range(4):
    e("ds_read_b128 %s, v%d offset:%d" % (vr(vQA + 4 * ks, 4), vA0, L_LN + 64 * ks))
lr = e.newlabel("L_ew")
e("s_cmp_lg_u32 s%d, 1" % sW)
e("s_cbranch_scc1 %s" % lr)
e("s_lshl_b32 s%d, s%d, 6" % (sT0, sXI))
e("s_add_u32 s%d, s%d, %d" % (sT0, sT0, EWA))
store1(sT0)
e(lr + ":")
e("s_barrier")
vUK = 48
for t in range(2):
    for ks in range(4):
        e("ds_read_b128 %s, v%d offset:%d" % (vr(vUK + 16 * t + 4 * ks, 4), vUKa + ks, 4096 * t))
e("s_lshl_b32 s%d, s%d, 8" % (sT0, sXI))
e("s_lshl_b32 s%d, s%d, 6" % (sT1, sW))
e("s_add_u32 s%d, s%d, s%d" % (sT0, sT0, sT1))
e("v_lshlrev_b32 v%d, 1, v%d" % (vA1, vLANE))
for t in range(2):
    for ks in range(4):
        e("s_waitcnt lgkmcnt(%d)" % (7 - 4 * t - ks))
        e("v_mfma_f32_16x16x32_bf16 %s, %s, %s, %s" % (vr(vT + 4 * t, 4), vr(vQA + 4 * ks, 4), vr(vUK + 16 * t + 4 * ks, 4), "0" if ks == 0 else vr(vT + 4 * t, 4)))
e("v_mov_b32_dpp v%d, v%d quad_perm:[0,1,2,3] row_mask:0x2 bank_mask:0xf" % (vT, vT + 4))
e("v_mov_b32_dpp v%d, v%d row_shl:1 row_mask:0xf bank_mask:0xf bound_ctrl:0" % (vT + 1, vT))
e("v_cvt_pk_bf16_f32 v%d, v%d, v%d" % (vT, vT, vT + 1))
e("v_min_u32 v%d, -2, v%d" % (vT, vT))
setexec(0x55555555)
e("buffer_store_dword v%d, v%d, %s, s%d offen sc1" % (vT, vA1, srd(S_WS), sT0))
setexec(-1)
stamp(4)
e("s_barrier")
e("s_lshr_b32 s%d, s%d, 4" % (sT0, sH))
e("s_lshl_b32 s%d, s%d, 7" % (sT0, sT0))
e("s_and_b32 s%d, s%d, 15" % (sT1, sH))
e("s_lshl_b32 s%d, s%d, 3" % (sT1, sT1))
e("s_add_u32 s%d, s%d, s%d" % (sT0, sT0, sT1))
e("s_add_u32 s%d, s%d, %d" % (sT0, sT0, STAT))
e("s_lshl_b32 s%d, s%d, 12" % (sT1, sW))
e("s_add_u32 s%d, s%d, s%d" % (sT1, sT1, sT0))
e("v_lshlrev_b32 v%d, 8, v%d" % (vA1, vLANE))
e("v_lshlrev_b32 v%d, 15, v%d" % (vA2, vG))
e("v_lshl_add_u32 v%d, v%d, 4, v%d" % (vA2, vN, vA2))
e("s_lshl_b32 s%d, s%d, 19" % (sT2, sW))
e("s_lshl_b32 s%d, s%d, 8" % (sT3, sXI))
e("s_add_u32 s%d, s%d, s%d" % (sT2, sT2, sT3))
e("s_add_u32 s%d, s%d, %d" % (sT2, sT2, PART))
e("s_add_u32 s%d, s%d, 0x20000" % (sT3, sT2))
e("s_add_u32 s%d, s%d, 0x40000" % (sT4, sT2))
e("s_add_u32 s%d, s%d, 0x60000" % (sF, sT2))
e("s_lshl_b32 s%d, s%d, 6" % (sF + 1, sW))
e("v_lshlrev_b32 v%d, 2, v%d" % (vA0, vG))
e("v_add_u32 v%d, s%d, v%d" % (vA0, sF + 1, vA0))
vSo, vSa, vD = vG0, vG0 + 8, vG0 + 12
e("s_barrier")
frag_prep()
stamp(5)
NH3 = opt("nh3", 4)
e("s_and_b32 s%d, s%d, 15" % (sF + 2, sXI))
hint_addr(sF + 2, 16 // NH3 if NH3 > 1 else 1, 16, vA3)
e("v_lshlrev_b32 v%d, 1, v%d" % (vA3, vA3))
e("s_lshl_b32 s%d, s%d, 11" % (sF + 3, sW))
e("s_lshr_b32 s%d, s%d, 4" % (sF + 2, sH))
e("s_lshl_b32 s%d, s%d, 6" % (sF + 2, sF + 2))
e("s_add_u32 s%d, s%d, s%d" % (sF + 3, sF + 3, sF + 2))
e("s_add_u32 s%d, s%d, %d" % (sF + 3, sF + 3, EWB + 32))
poll([("buffer_load_dword v%d, v%d, %s, s%d offen offset:4 sc1" % (vSo, vA1, srd(S_WS), sT1), vSo, 1),
      ("buffer_load_dword v%d, v%d, %s, s%d offen sc1" % (vSo + 1, vA3, srd(S_WS), sF + 3), vSo + 1, 1)], sleep=opt("sl3", 3), init_masks=["0xffff", str((1 << NH3) - 1)])
stamp(6)
if opt("d3", 0): e("s_sleep %d" % opt("d3", 0))
poll([("buffer_load_dwordx4 %s, v%d, %s, s%d offen sc1" % (vr(vD + 4 * i, 4), vA2, srd(S_WS), [sT2, sT3, sT4, sF][i]), vD + 4 * i, 4) for i in range(4)]
     + [("buffer_load_dwordx2 %s, v%d, %s, s%d offen sc1" % (vr(vSa, 2), vA1, srd(S_WS), sT0), vSa, -2)], sleep=opt("sl3b", 1))
stamp(7)
if DIAG: e("v_writelane_b32 v%d, s%d, 22" % (vTSV, sCNT))
e("v_mov_b32 v%d, v%d" % (vT + 8, vSa))
wave_red([vT + 8], [sT0], "v_max_f32")
e("v_mov_b32 v%d, s%d" % (vT + 9, sT0))
e("v_mul_f32 v%d, s%d, v%d" % (vT + 9, sL2E, vT + 9))
wv = vT + 12
e("v_fma_f32 v%d, v%d, s%d, -v%d" % (wv, vSa, sL2E, vT + 9))
e("v_exp_f32 v%d, v%d" % (wv, wv))
e("v_cvt_pk_bf16_f32 v%d, v%d, v%d" % (wv, wv, wv))
e("v_lshlrev_b32 v%d, 16, v%d" % (wv, wv))
for i in range(4):
    e("ds_bpermute_b32 v%d, v%d, v%d offset:%d" % (vSo + 2 * i + 1, vA0, wv, 16 * i))
e("v_mul_f32 v%d, v%d, v%d" % (wv + 1, wv, vSa + 1))
for k in range(8): e("v_mov_b32 v%d, 0" % (vT + k))
wave_red([wv + 1], [sT0])
for i in range(4):
    e("s_waitcnt lgkmcnt(%d)" % (3 - i))
    e("v_lshrrev_b32 v%d, 16, v%d" % (vSo + 2 * i, vSo + 2 * i + 1))
    for k in range(4):
        e("v_dot2c_f32_bf16 v%d, v%d, v%d" % (vT + 2 * k + 1, vD + 4 * i + k, vSo + 2 * i + 1))
    for k in range(4):
        e("v_dot2c_f32_bf16 v%d, v%d, v%d" % (vT + 2 * k, vD + 4 * i + k, vSo + 2 * i))
e("v_rcp_f32 v%d, s%d" % (vT + 8, sT0))
rs_8to2(vT)
e("v_mul_f32 v%d, v%d, v%d" % (vT, vT, vT + 8))
e("v_mul_f32 v%d, v%d, v%d" % (vT + 1, vT + 1, vT + 8))
hilo_write(vT, vQLw)
e("s_branch %s" % lc1)
e(lS + ":")
e("s_sub_u32 s%d, s%d, 4" % (sT3, sW))
l1 = e.newlabel("L_c")
e("s_cmp_lg_u32 s%d, 4" % sW)
e("s_cbranch_scc1 %s" % l1)
e("s_lshl_b32 s%d, s2, 7" % sT0)
e("s_add_u32 s%d, s%d, %d" % (sT0, sT0, HP))
setexec(0xff)
e("buffer_store_dwordx4 %s, v%d, %s, s%d offen sc1" % (vr(vCL, 4), vL16, srd(S_WS), sT0))
e("s_lshl_b32 s%d, s2, 6" % sT0)
e("s_add_u32 s%d, s%d, %d" % (sT0, sT0, EWC))
setexec(0xf)
e("buffer_store_dwordx4 %s, v%d, %s, s%d offen sc1" % (vr(vCL, 4), vL16, srd(S_WS), sT0))
e("s_lshr_b32 s%d, s%d, 4" % (sT0, sH))
e("s_lshl_b32 s%d, s%d, 7" % (sT0, sT0))
e("s_and_b32 s%d, s%d, 15" % (sT1, sH))
e("s_lshl_b32 s%d, s%d, 3" % (sT1, sT1))
e("s_add_u32 s%d, s%d, s%d" % (sT0, sT0, sT1))
e("s_lshl_b32 s%d, s%d, 12" % (sT1, sCQ))
e("s_add_u32 s%d, s%d, s%d" % (sT0, sT0, sT1))
e("s_add_u32 s%d, s%d, %d" % (sT0, sT0, STAT))
setexec(0xffff)
e("v_lshlrev_b32 v%d, 8, v%d" % (vA0, vLANE))
e("buffer_store_dwordx2 %s, v%d, %s, s%d offen sc1" % (vr(vCL, 2), vA0, srd(S_WS), sT0))
setexec(-1)
e(l1 + ":")
e("s_lshl_b32 s%d, s%d, 7" % (sF, sCQ))
e("s_lshl_b32 s%d, s%d, 5" % (sT1, sT3))
e("s_add_u32 s%d, s%d, s%d" % (sF, sF, sT1))
e("s_lshl_b32 s%d, s%d, 13" % (sF, sF))
e("s_lshl_b32 s%d, s%d, 8" % (sT1, sH))
e("s_add_u32 s%d, s%d, s%d" % (sF, sF, sT1))
e("v_xor_b32 v%d, v%d, v%d" % (vA2, vN, vG))
for k in range(4):
    e("v_xor_b32 v%d, %d, v%d" % (vT + k, 4 * k, vA2))
    e("v_lshlrev_b32 v%d, 4, v%d" % (vT + k, vT + k))
    e("v_lshl_add_u32 v%d, v%d, 13, v%d" % (vT + k, vG, vT + k))
e("s_mov_b32 s%d, s%d" % (sT0, sF))
e("s_lshl_b32 s%d, s%d, 13" % (sT2, sT3))
e("s_add_u32 s%d, s%d, %d" % (sT2, sT2, L_WUK))
e("s_barrier")
e("s_barrier")
for k in range(8):
    e("s_mov_b32 m0, s%d" % sT2)
    e("buffer_load_dwordx4 v%d, %s, s%d offen%s lds" % (vT + (k & 3), srd(S_WUK), sT0, NT))
    if k < 7:
        e("s_add_u32 s%d, s%d, 32768" % (sT0, sT0))
        e("s_add_u32 s%d, s%d, 1024" % (sT2, sT2))
e("s_waitcnt vmcnt(8)")
e("s_barrier")
e("s_waitcnt vmcnt(0)")
stamp(12)
def uv_dma():
    e("v_lshrrev_b32 v%d, 1, v%d" % (vA2, vG))
    e("v_lshlrev_b32 v%d, 2, v%d" % (vA2, vA2))
    e("v_xor_b32 v%d, v%d, v%d" % (vA2, vA2, vN))
    e("s_and_b32 s%d, s%d, 1" % (sT0, sT3))
    e("s_lshl_b32 s%d, s%d, 1" % (sT0, sT0))
    e("v_xor_b32 v%d, s%d, v%d" % (vA2, sT0, vA2))
    for c, cv in enumerate((0, 8, 1, 9)):
        e("v_xor_b32 v%d, %d, v%d" % (vT + c, cv, vA2))
        e("v_lshlrev_b32 v%d, 4, v%d" % (vT + c, vT + c))
        e("v_lshl_add_u32 v%d, v%d, 13, v%d" % (vT + c, vG, vT + c))
    e("s_mov_b32 s%d, s%d" % (sT0, sF))
    e("s_lshl_b32 s%d, s%d, 13" % (sT2, sT3))
    e("s_add_u32 s%d, s%d, %d" % (sT2, sT2, L_WUV))
    for k in range(8):
        e("s_mov_b32 m0, s%d" % sT2)
        e("buffer_load_dwordx4 v%d, %s, s%d offen%s lds" % (vT + 2 * (k >> 2) + (k & 1), srd(S_WUV), sT0, NT))
        if k < 7:
            e("s_add_u32 s%d, s%d, 32768" % (sT0, sT0))
            e("s_add_u32 s%d, s%d, 1024" % (sT2, sT2))
if opt("uve", 0): uv_dma()
e("s_barrier")
e("s_barrier")
if not opt("uve", 0): uv_dma()
lno = e.newlabel("L_no")
e("s_cmp_ge_u32 s2, 120")
e("s_cbranch_scc1 %s" % lno)
e("v_lshrrev_b32 v%d, 3, v%d" % (vA0, vLANE))
e("v_mul_u32_u24 v%d, 1280, v%d" % (vA0, vA0))
e("v_and_b32 v%d, 7, v%d" % (vA1, vLANE))
e("v_and_b32 v%d, 1, v%d" % (vA2, vG))
e("v_xor_b32 v%d, v%d, v%d" % (vA1, vA1, vA2))
e("s_lshl_b32 s%d, s%d, 1" % (sT0, sT3))
e("v_xor_b32 v%d, s%d, v%d" % (vA1, sT0, vA1))
e("v_lshl_add_u32 v%d, v%d, 4, v%d" % (vA0, vA1, vA0))
e("s_lshl_b32 s%d, s%d, 2" % (sT0, sUS))
e("s_add_u32 s%d, s%d, s%d" % (sT0, sT0, sT3))
e("s_mul_i32 s%d, s%d, 10240" % (sT0, sT0))
e("s_lshl_b32 s%d, s%d, 7" % (sT1, sST))
e("s_add_u32 s%d, s%d, s%d" % (sT0, sT0, sT1))
e("s_lshl_b32 s%d, s%d, 10" % (sT2, sT3))
e("s_add_u32 s%d, s%d, %d" % (sT2, sT2, L_WO))
for k in range(11):
    if k == 10:
        e("s_cmp_lt_u32 s%d, 11" % sNU)
        e("s_cbranch_scc1 %s" % lno)
    e("s_mov_b32 m0, s%d" % sT2)
    e("buffer_load_dwordx4 v%d, %s, s%d offen%s lds" % (vA0, srd(S_WO), sT0, NT))
    if k < 10:
        e("s_add_u32 s%d, s%d, 40960" % (sT0, sT0))
        e("s_add_u32 s%d, s%d, 4096" % (sT2, sT2))
e(lno + ":")
e("s_waitcnt vmcnt(0)")
stamp(11)
e("s_barrier")
frag_prep()
e(lc1 + ":")
e("s_lshl_b32 s%d, s%d, 5" % (sT1, sW))
e("s_lshl_b32 s%d, s%d, 8" % (sT0, sXI))
e("s_add_u32 s%d, s%d, s%d" % (sT0, sT0, sT1))
e("s_add_u32 s%d, s%d, %d" % (sT0, sT0, CP))
e("s_waitcnt lgkmcnt(0)")
e("s_barrier")
setexec(0x00ff00ff00ff00ff)
for ks in range(4):
    e("ds_read_b128 %s, v%d offset:%d" % (vr(vCF + 4 * ks, 4), vQLr, 64 * ks))
setexec(-1)
for ks in range(4):
    e("s_waitcnt lgkmcnt(%d)" % (3 - ks))
    e("v_mfma_f32_16x16x32_bf16 %s, %s, %s, %s" % (vr(vT, 4), vr(vCF + 4 * ks, 4), vr(vBUV + 4 * ks, 4), "0" if ks == 0 else vr(vT, 4)))
e("v_add_f32 v%d, v%d, v%d" % (vT, vT, vT + 1))
e("v_add_f32 v%d, v%d, v%d" % (vT + 2, vT + 2, vT + 3))
e("v_add_f32 v%d, v%d, v%d" % (vT, vT, vT + 2))
e("v_mov_b32 v%d, v%d" % (vT + 1, vT))
e("v_permlane16_swap_b32 v%d, v%d" % (vT, vT + 1))
e("v_add_f32 v%d, v%d, v%d" % (vT, vT, vT + 1))
e("v_mov_b32_dpp v%d, v%d row_shl:1 row_mask:0xf bank_mask:0xf bound_ctrl:0" % (vT + 1, vT))
e("v_cvt_pk_bf16_f32 v%d, v%d, v%d" % (vT, vT, vT + 1))
e("v_min_u32 v%d, -2, v%d" % (vT, vT))
setexec(0x5555)
e("buffer_store_dword v%d, v%d, %s, s%d offen sc1" % (vT, vOutA, srd(S_WS), sT0))
setexec(-1)
stamp(8)
e("s_cmp_ge_u32 s2, 120")
e("s_cbranch_scc1 L_fin")
vG2 = 204
e("v_lshlrev_b32 v%d, 8, v%d" % (vA0, vN))
e("v_lshl_add_u32 v%d, v%d, 4, v%d" % (vA0, vG, vA0))
e("s_add_u32 s%d, s%d, s%d" % (sT1, sUS, sW))
e("s_lshr_b32 s%d, s%d, 2" % (sT0, sT1))
e("s_lshl_b32 s%d, s%d, 10" % (sT0, sT0))
e("s_and_b32 s%d, s%d, 3" % (sT1, sT1))
e("s_lshl_b32 s%d, s%d, 6" % (sT1, sT1))
e("s_add_u32 s%d, s%d, s%d" % (sT0, sT0, sT1))
e("s_add_u32 s%d, s%d, %d" % (sT0, sT0, CP))
for k in range(8): e("v_mov_b32 v%d, 0" % (vG2 + k))
e("s_mov_b32 s%d, 0x000f000f" % sE0)
e("s_mov_b32 s%d, 0x000f000f" % (sE0 + 1))
e("s_add_u32 s%d, s%d, 8" % (sT1, sW))
e("s_cmp_lt_u32 s%d, s%d" % (sT1, sNU))
e("s_cselect_b64 %s, %s, 0" % (sp(sE1), sp(sE0)))
e("s_cselect_b32 s%d, 1, 0" % sT4)
e("v_lshlrev_b32 v%d, 2, v%d" % (vA1, vLANE))
e("s_lshl_b32 s%d, s%d, 8" % (sT1, sW))
e("v_add_u32 v%d, s%d, v%d" % (vA2, sT1, vA1))
e("s_lshl_b32 s%d, s2, 6" % sT2)
e("s_add_u32 s%d, s%d, %d" % (sT2, sT2, EWC))
if opt("d4", 0): e("s_sleep %d" % opt("d4", 0))
poll([("buffer_load_dwordx4 %s, v%d, %s, s%d offen offset:%d sc1" % (vr(vG2 + 4 * j, 4), vA0, srd(S_WS), sT0, 2048 * j), vG2 + 4 * j, 4) for j in range(2)], sleep=1, init_masks=[sp(sE0), sp(sE1)])
lr = e.newlabel("L_ew")
e("s_cmp_lg_u32 s%d, 0" % sW)
e("s_cbranch_scc1 %s" % lr)
store1(sT2)
e(lr + ":")
stamp(9)
e("s_waitcnt lgkmcnt(0)")
for t in range(4):
    e("v_mfma_f32_16x16x32_bf16 %s, %s, %s, 0" % (vr(vT + 4 * t, 4), vr(vG2, 4), vr(vBO + 4 * t, 4)))
l2u = e.newlabel("L_2u")
e("s_cmp_eq_u32 s%d, 0" % sT4)
e("s_cbranch_scc1 %s" % l2u)
for t in range(4):
    e("v_mfma_f32_16x16x32_bf16 %s, %s, %s, %s" % (vr(vT + 4 * t, 4), vr(vG2 + 4, 4), vr(vBO + 16 + 4 * t, 4), vr(vT + 4 * t, 4)))
e(l2u + ":")
e("s_lshl_b32 s%d, s2, 7" % sT0)
e("s_add_u32 s%d, s%d, %d" % (sT0, sT0, HP))
setexec(0xffff)
e("s_nop 4")
for t in range(4):
    b = vT + 4 * t
    e("v_add_f32 v%d, v%d, v%d" % (b, b, b + 1))
    e("v_add_f32 v%d, v%d, v%d" % (b + 2, b + 2, b + 3))
    e("v_add_f32 v%d, v%d, v%d" % (b, b, b + 2))
    e("ds_write_b32 v%d, v%d offset:%d" % (vA2, b, L_RED + 64 * t))
setexec(-1)
e("s_waitcnt lgkmcnt(0)")
e("s_barrier")
e("s_cmp_lg_u32 s%d, 0" % sW)
e("s_cbranch_scc1 L_fin")
e("v_lshlrev_b32 v%d, 3, v%d" % (vA2, vLANE))
setexec(0xffffffff)
for i in range(8):
    e("ds_read_b64 %s, v%d offset:%d" % (vr(vG2 + 8 + 2 * i, 2), vA2, L_RED + 256 * i))
e("s_waitcnt lgkmcnt(0)")
for st in (4, 2, 1):
    for i in range(st):
        e("v_pk_add_f32 %s, %s, %s" % (vr(vG2 + 8 + 2 * i, 2), vr(vG2 + 8 + 2 * i, 2), vr(vG2 + 8 + 2 * (i + st), 2)))
e("v_cvt_pk_bf16_f32 v%d, v%d, v%d" % (vG2 + 8, vG2 + 8, vG2 + 9))
e("v_min_u32 v%d, -2, v%d" % (vG2 + 8, vG2 + 8))
e("buffer_store_dword v%d, v%d, %s, s%d offen sc1" % (vG2 + 8, vA1, srd(S_WS), sT0))
setexec(-1)
stamp(10)
e("s_branch L_fin")

vCA, vCB, vGQ, vACC, vP = 48, 112, 176, 208, 224
e("L_Y:")
if opt("cpf", 0):
    lp_ = e.newlabel("L_cpf")
    e("s_cmp_lg_u32 s%d, 14" % sA)
    e("s_cbranch_scc1 %s" % lp_)
    e("s_getpc_b64 s[%d:%d]" % (sTM, sTM + 1))
    e.raw("L_pcref:")
    e.raw("    s_sub_u32 s%d, s%d, (L_pcref - %s)" % (sTM, sTM, KN))
    e.raw("    s_subb_u32 s%d, s%d, 0" % (sTM + 1, sTM + 1))
    e("v_lshlrev_b32 v%d, 4, v0" % vA0)
    for k in range(opt("cpf", 0)):
        e("global_load_dwordx4 %s, v%d, s[%d:%d]" % (vr(48 + 4 * k, 4), vA0, sTM, sTM + 1))
        e("v_add_u32 v%d, 8192, v%d" % (vA0, vA0))
    e(lp_ + ":")
l5 = e.newlabel("L_c"); l6 = e.newlabel("L_c"); l7 = e.newlabel("L_c")
e("s_cmp_lt_u32 s2, 248")
e("s_cbranch_scc1 %s" % l5)
e("s_lshl_b32 s%d, s%d, 13" % (sT2, sB))
e("s_lshl_b32 s%d, s%d, 10" % (sT3, sW))
e("s_add_u32 s%d, s%d, s%d" % (sT2, sT2, sT3))
e("s_add_u32 s%d, s%d, %d" % (sT2, sT2, QP))
e("buffer_store_dwordx4 %s, v%d, %s, s%d offen sc1" % (vr(vCL, 4), vL16, srd(S_WS), sT2))
e("s_lshl_b32 s%d, s%d, 12" % (sT2, sB))
e("s_and_b32 s%d, s%d, 3" % (sT3, sW))
e("s_lshl_b32 s%d, s%d, 10" % (sT3, sT3))
e("s_add_u32 s%d, s%d, s%d" % (sT2, sT2, sT3))
e("s_lshr_b32 s%d, s%d, 2" % (sT3, sW))
e("s_lshl_b32 s%d, s%d, 15" % (sT3, sT3))
e("s_add_u32 s%d, s%d, s%d" % (sT2, sT2, sT3))
e("buffer_store_dwordx4 %s, v%d, %s, s%d offen sc1" % (vr(vCL, 4), vL16, srd(S_WS), sT2))
e("s_cmp_lt_u32 s%d, 6" % sW)
e("s_cbranch_scc1 %s" % l6)
e("s_lshl_b32 s%d, s%d, 10" % (sT2, sB))
e("s_mov_b32 s%d, %d" % (sT3, EWA))
e("s_cmp_eq_u32 s%d, 6" % sW)
e("s_cselect_b32 s%d, %d, s%d" % (sT3, EWB, sT3))
e("s_add_u32 s%d, s%d, s%d" % (sT2, sT2, sT3))
e("buffer_store_dwordx4 %s, v%d, %s, s%d offen sc1" % (vr(vCL, 4), vL16, srd(S_WS), sT2))
e(l6 + ":")
e("s_waitcnt vmcnt(0)")
e("s_barrier")
e("s_cmp_lg_u32 s%d, 0" % sW)
e("s_cbranch_scc1 %s" % l7)
e("s_lshl_b32 s%d, s%d, 5" % (sT2, sB))
e("v_mov_b32 v%d, 1" % vA3)
setexec(1)
e("buffer_store_dword v%d, v%d, %s, s%d offen sc1" % (vA3, vL16, srd(S_DBG), sT2))
setexec(-1)
stamp(17)
e(l7 + ":")
e("s_barrier")
e(l5 + ":")
e("s_lshl_b32 s%d, s%d, 3" % (sKS, sB))
e("s_lshr_b32 s%d, s%d, 1" % (sT0, sA))
e("s_add_u32 s%d, s%d, s%d" % (sKS, sKS, sT0))
e("s_and_b32 s%d, s%d, 1" % (sHF, sA))
e("s_lshl_b32 s%d, s%d, 1" % (sYI, sKS))
e("s_add_u32 s%d, s%d, s%d" % (sYI, sYI, sHF))
e("s_lshr_b32 s%d, s%d, 1" % (sT1, sA))
e("s_lshl_b32 s%d, s%d, 3" % (sT1, sT1))
e("s_add_u32 s%d, s%d, s%d" % (sT1, sT1, sB))
e("s_and_b32 s%d, s%d, 1" % (sT0, sA))
e("s_lshl_b32 s%d, s%d, 1" % (sRD, sT1))
e("s_add_u32 s%d, s%d, s%d" % (sRD, sRD, sT0))
e("s_cmp_lt_u32 s%d, 27" % sT1)
e("s_cselect_b32 s%d, 1, 0" % sISD)
e("s_cmp_lt_u32 s%d, 20" % sT1)
e("s_cselect_b32 s%d, 1, 0" % sFIN)
e("s_cmp_eq_u32 s%d, 0" % sT0)
e("s_cselect_b32 s%d, s%d, 0" % (sFIN, sFIN))
def y_dma():
    e("s_lshl_b32 s%d, s%d, 7" % (sT0, sKS))
    e("s_lshl_b32 s%d, s%d, 4" % (sT2, sW))
    e("s_add_u32 s%d, s%d, s%d" % (sT0, sT0, sT2))
    e("s_lshl_b32 s%d, s%d, 10" % (sT0, sT0))
    e("s_mul_i32 s%d, s%d, %d" % (sT2, sT2, RS))
    e("s_add_u32 s%d, s%d, %d" % (sT2, sT2, L_CK))
    for j in range(2):
        e("s_xor_b32 s%d, s%d, %d" % (sT3, sHF, j))
        e("s_lshl_b32 s%d, s%d, 13" % (sT1, sT3))
        e("s_add_u32 s%d, s%d, s%d" % (sT1, sT1, sT0))
        e("s_mul_i32 s%d, s%d, %d" % (sT3, sT3, 8 * RS))
        e("s_add_u32 s%d, s%d, s%d" % (sT3, sT3, sT2))
        for i in range(8):
            e("s_mov_b32 m0, s%d" % sT3)
            e("buffer_load_dwordx4 v%d, %s, s%d offen%s lds" % (vL16, srd(S_CKV), sT1, NTC))
            if i < 7:
                e("s_add_u32 s%d, s%d, 1024" % (sT1, sT1))
                e("s_add_u32 s%d, s%d, %d" % (sT3, sT3, RS))
def y_pclr():
    e("s_lshl_b32 s%d, s%d, 14" % (sT0, sYI))
    e("s_lshl_b32 s%d, s%d, 11" % (sT1, sW))
    e("s_add_u32 s%d, s%d, s%d" % (sT0, sT0, sT1))
    e("s_add_u32 s%d, s%d, %d" % (sT0, sT0, PART))
    for i in range(2):
        e("buffer_store_dwordx4 %s, v%d, %s, s%d offen offset:%d sc1" % (vr(vCL, 4), vL16, srd(S_WS), sT0, 1024 * i))
def y_clr():
    if not opt("ypc", 1): y_pclr()
    l3 = e.newlabel("L_c")
    e("s_cmp_eq_u32 s%d, 0" % sISD)
    e("s_cbranch_scc1 %s" % l3)
    e("s_cmp_gt_u32 s%d, 2" % sW)
    e("s_cbranch_scc1 %s" % l3)
    e("s_mul_i32 s%d, s%d, 2560" % (sT0, sRD))
    e("s_add_u32 s%d, s%d, %d" % (sT0, sT0, OP))
    e("v_lshlrev_b32 v%d, 4, v0" % vA3)
    e("v_cmp_gt_u32 vcc, 160, v0")
    e("s_mov_b64 exec, vcc")
    e("buffer_store_dwordx4 %s, v%d, %s, s%d offen sc1" % (vr(vCL, 4), vA3, srd(S_WS), sT0))
    setexec(-1)
    e(l3 + ":")
if opt("yord", 0):
    y_clr()
    e("s_waitcnt vmcnt(0)")
    for _ in range(opt("ydel", 0)): e("s_sleep 16")
    y_dma()
else:
    for _ in range(opt("ydel", 0)): e("s_sleep 16")
    y_dma()
    y_clr()
vFr = 43
e("v_mul_u32_u24 v%d, %d, v%d" % (vFr, RS, vN))
e("v_lshl_add_u32 v%d, v%d, 4, v%d" % (vFr, vG, vFr))
e("s_mul_i32 s%d, s%d, %d" % (sT0, sW, 16 * RS))
e("s_add_u32 s%d, s%d, %d" % (sT0, sT0, L_CK))
e("v_add_u32 v%d, s%d, v%d" % (vA1, sT0, vFr))
lr = e.newlabel("L_r")
e("s_cmp_lg_u32 s%d, 0" % sW)
e("s_cbranch_scc1 %s" % lr)
flag_check()
e(lr + ":")
e("s_waitcnt vmcnt(0)")
stamp(1)
if opt("ypc", 1): y_pclr()
for ks in range(16):
    e("ds_read_b128 %s, v%d offset:%d" % (vr(vCA + 4 * ks, 4), vA1, 64 * ks))
    if ks == 7: e("s_waitcnt lgkmcnt(0)")
e("s_barrier")
stamp(2)
e("s_lshl_b32 s%d, s%d, 4" % (sT0, sHF))
e("s_lshl_b32 s%d, s%d, 1" % (sT1, sW))
e("s_add_u32 s%d, s%d, s%d" % (sT0, sT0, sT1))
e("s_lshl_b32 s%d, s%d, 10" % (sT2, sT0))
vQG = 240
for k in range(2):
    e("buffer_load_dwordx4 %s, v%d, %s, s%d offen offset:%d sc1" % (vr(vQG + 4 * k, 4), vL16, srd(S_WS), sT2, 1024 * k))
e("v_lshrrev_b32 v%d, 2, v%d" % (vA1, vN))
e("v_lshl_add_u32 v%d, v%d, 3, v%d" % (vA1, vG, vA1))
e("v_mul_u32_u24 v%d, %d, v%d" % (vA1, RS, vA1))
e("v_and_b32 v%d, 3, v%d" % (vA3, vN))
e("v_lshl_add_u32 v%d, v%d, 3, v%d" % (vA1, vA3, vA1))
e("s_lshl_b32 s%d, s%d, 7" % (sT0, sW))
e("s_add_u32 s%d, s%d, %d" % (sT0, sT0, L_CK))
e("v_add_u32 v%d, s%d, v%d" % (vA1, sT0, vA1))
e("v_add_u32 v%d, %d, v%d" % (vA2, 64 * RS, vA1))
e("s_waitcnt lgkmcnt(0)")
cnt = 0
for t in range(4):
    for kk in range(4):
        for u in range(2):
            e("ds_read_b64_tr_b16 %s, v%d offset:%d" % (vr(vCB + 16 * t + 4 * kk + 2 * u, 2), vA1 if kk < 2 else vA2, (32 * (kk & 1) + 4 * u) * RS + 32 * t))
            cnt += 1
            if cnt % 8 == 0: e("s_waitcnt lgkmcnt(0)")
vQSw, vQSr, vMXa, vPw, vPr, vPo = 240 - 16 + 16, 0, 0, 0, 0, 0
vQSw, vQSr, vMXa, vPw, vPr, vPo = vT + 20, vT + 21, vT + 22, vT + 23, vT + 24, vT + 25
e("s_mul_i32 s%d, s%d, %d" % (sT0, sW, 2 * RS))
e("s_add_u32 s%d, s%d, %d" % (sT0, sT0, L_QS))
e("v_add_u32 v%d, s%d, v%d" % (vQSw, sT0, vL16))
e("v_add_u32 v%d, %d, v%d" % (vQSr, L_QS, vFr))
e("v_lshlrev_b32 v%d, 5, v%d" % (vMXa, vN))
e("v_mul_u32_u24 v%d, %d, v%d" % (vPr, PRS, vN))
e("v_lshl_add_u32 v%d, v%d, 3, v%d" % (vPw, vG, vPr))
e("s_lshl_b32 s%d, s%d, 5" % (sT0, sW))
e("v_add_u32 v%d, s%d, v%d" % (vPw, sT0, vPw))
e("v_lshl_add_u32 v%d, v%d, 4, v%d" % (vPr, vG, vPr))
e("v_lshlrev_b32 v%d, 12, v%d" % (vPo, vG))
e("v_lshl_add_u32 v%d, v%d, 3, v%d" % (vPo, vN, vPo))
e("s_lshl_b32 s%d, s%d, 2" % (sT4, sW))
e("v_add_u32 v%d, s%d, v%d" % (vT + 26, sT4, vMXa))
e("v_lshlrev_b32 v%d, 7, v%d" % (vT + 27, vN))
e("v_lshl_add_u32 v%d, v%d, 2, v%d" % (vT + 27, vG, vT + 27))
e("s_lshl_b32 s%d, s%d, 4" % (sT4, sW))
e("v_add_u32 v%d, s%d, v%d" % (vT + 27, sT4, vT + 27))
e("s_lshl_b32 s%d, s%d, 4" % (sT0, sHF))
e("s_lshl_b32 s%d, s%d, 1" % (sT1, sW))
e("s_add_u32 s%d, s%d, s%d" % (sT0, sT0, sT1))
e("s_lshl_b32 s%d, s%d, 10" % (sT2, sT0))
NH2 = opt("nh2", 4)
e("s_lshl_b32 s%d, s%d, 8" % (sT0, sT0))
e("s_add_u32 s%d, s%d, %d" % (sT0, sT0, EWA))
e("s_and_b32 s%d, s%d, 7" % (sT1, sKS))
hint_addr(sT1, 8 // NH2 if NH2 > 1 else 1, 8, vA3)
lq = e.newlabel("L_qok")
e("s_waitcnt vmcnt(0)")
e("v_max3_u32 v%d, v%d, v%d, v%d" % (vT, vQG, vQG + 1, vQG + 2))
e("v_max3_u32 v%d, v%d, v%d, v%d" % (vT, vT, vQG + 3, vQG + 4))
e("v_max3_u32 v%d, v%d, v%d, v%d" % (vT, vT, vQG + 5, vQG + 6))
e("v_max_u32 v%d, v%d, v%d" % (vT, vT, vQG + 7))
e("v_cmp_eq_u32 vcc, -1, v%d" % vT)
e("s_cbranch_vccz %s" % lq)
poll([("buffer_load_dword v%d, v%d, %s, s%d offen sc1" % (vGQ, vA3, srd(S_WS), sT0), vGQ, 1)], sleep=opt("sl2", 3), init_masks=[str((1 << NH2) - 1)])
stamp(3)
poll([("buffer_load_dwordx4 %s, v%d, %s, s%d offen offset:%d sc1" % (vr(vQG + 4 * k, 4), vL16, srd(S_WS), sT2, 1024 * k), vQG + 4 * k, 4) for k in range(2)], sleep=1)
e(lq + ":")
stamp(4)
for k in range(2):
    e("ds_write_b128 v%d, %s offset:%d" % (vQSw, vr(vQG + 4 * k, 4), RS * k))
e("s_waitcnt lgkmcnt(0)")
e("s_barrier")
lmk = e.newlabel("L_mk")
e("s_cmp_lg_u32 s%d, 7" % sW)
e("s_cbranch_scc1 %s" % lmk)
e("s_lshl_b32 s%d, s%d, 7" % (sT0, sYI))
e("s_add_u32 s%d, s%d, %d" % (sT0, sT0, STAT))
e("v_lshlrev_b32 v%d, 3, v%d" % (vA1, vN))
e("v_mov_b32 v%d, 0" % (vT + 8))
e("v_mov_b32 v%d, -1.0" % (vT + 9))
setexec(0xffff)
e("buffer_store_dwordx2 %s, v%d, %s, s%d offen sc1" % (vr(vT + 8, 2), vA1, srd(S_WS), sT0))
setexec(-1)
e("s_lshl_b32 s%d, s%d, 6" % (sT0, sYI))
e("s_add_u32 s%d, s%d, %d" % (sT0, sT0, EWB))
store1(sT0)
e(lmk + ":")
L_W2 = L_W1 + 43008
if opt("w2e", 0):
    lwe = e.newlabel("L_w2e")
    e("s_cmp_eq_u32 s%d, 0" % sISD)
    e("s_cbranch_scc1 %s" % lwe)
    e("s_mul_i32 s%d, s%d, 5120" % (sF + 1, sW))
    e("s_mul_i32 s%d, s%d, 40960" % (sF, sRD))
    e("s_add_u32 s%d, s%d, s%d" % (sF, sF, sF + 1))
    e("s_add_u32 s%d, s%d, %d" % (sF + 1, sF + 1, L_W2))
    for k in range(5):
        e("s_mov_b32 m0, s%d" % (sF + 1))
        e("buffer_load_dwordx4 v%d, %s, s%d offen nt lds" % (vL16, srd(S_W2), sF))
        if k < 4:
            e("s_add_u32 s%d, s%d, 1024" % (sF, sF))
            e("s_add_u32 s%d, s%d, 1024" % (sF + 1, sF + 1))
    e(lwe + ":")
sacc = vT
for half in range(2):
    for k in range(8):
        e("ds_read_b128 %s, v%d offset:%d" % (vr(vGQ + 4 * k, 4), vQSr, 64 * (8 * half + k)))
    for k in range(8):
        ks = 8 * half + k
        e("s_waitcnt lgkmcnt(%d)" % (7 - k))
        e("v_mfma_f32_16x16x32_bf16 %s, %s, %s, %s" % (vr(sacc, 4), vr(vCA + 4 * ks, 4), vr(vGQ + 4 * k, 4), "0" if ks == 0 else vr(sacc, 4)))
if opt('mk', 0) == 0:
    lh1 = e.newlabel("L_h1")
    e("s_cmp_lg_u32 s%d, 6" % sW)
    e("s_cbranch_scc1 %s" % lh1)
    e("s_lshl_b32 s%d, s%d, 6" % (sT0, sYI))
    e("s_add_u32 s%d, s%d, %d" % (sT0, sT0, EWB + 32))
    store1(sT0)
    e(lh1 + ":")
e("s_mov_b32 s%d, 0x3db504f3" % sT0)
e("v_cvt_pk_bf16_f32 v%d, v%d, v%d" % (vT + 4, sacc, sacc + 1))
e("v_cvt_pk_bf16_f32 v%d, v%d, v%d" % (vT + 5, sacc + 2, sacc + 3))
unpack(sacc, vT + 4, 2)
for i in range(4): e("v_mul_f32 v%d, s%d, v%d" % (sacc + i, sT0, sacc + i))
e("v_cvt_pk_bf16_f32 v%d, v%d, v%d" % (vT + 4, sacc, sacc + 1))
e("v_cvt_pk_bf16_f32 v%d, v%d, v%d" % (vT + 5, sacc + 2, sacc + 3))
unpack(sacc, vT + 4, 2)
mx = vT + 4
e("v_max3_f32 v%d, v%d, v%d, v%d" % (mx, sacc, sacc + 1, sacc + 2))
e("v_max_f32 v%d, v%d, v%d" % (mx, mx, sacc + 3))
allred_g(mx, vT + 5, "v_max_f32")
e("ds_write_b32 v%d, v%d offset:%d" % (vT + 26, mx, L_MX))
if opt('mk', 0) == 1:
    lh1 = e.newlabel("L_h1")
    e("s_cmp_lg_u32 s%d, 6" % sW)
    e("s_cbranch_scc1 %s" % lh1)
    e("s_lshl_b32 s%d, s%d, 6" % (sT0, sYI))
    e("s_add_u32 s%d, s%d, %d" % (sT0, sT0, EWB + 32))
    store1(sT0)
    e(lh1 + ":")
e("s_waitcnt lgkmcnt(0)")
e("s_barrier")
stamp(5)
e("ds_read_b128 %s, v%d offset:%d" % (vr(vT + 8, 4), vMXa, L_MX))
e("ds_read_b128 %s, v%d offset:%d" % (vr(vT + 12, 4), vMXa, L_MX + 16))
e("s_waitcnt lgkmcnt(0)")
e("v_max3_f32 v%d, v%d, v%d, v%d" % (mx, vT + 8, vT + 9, vT + 10))
e("v_max3_f32 v%d, v%d, v%d, v%d" % (vT + 5, vT + 11, vT + 12, vT + 13))
e("v_max3_f32 v%d, v%d, v%d, v%d" % (mx, mx, vT + 14, vT + 15))
e("v_max_f32 v%d, v%d, v%d" % (mx, mx, vT + 5))
e("v_mul_f32 v%d, s%d, v%d" % (vT + 6, sL2E, mx))
for i in range(4): e("v_fma_f32 v%d, v%d, s%d, -v%d" % (sacc + i, sacc + i, sL2E, vT + 6))
for i in range(4): e("v_exp_f32 v%d, v%d" % (sacc + i, sacc + i))
e("v_cvt_pk_bf16_f32 v%d, v%d, v%d" % (vT + 8, sacc, sacc + 1))
e("v_cvt_pk_bf16_f32 v%d, v%d, v%d" % (vT + 9, sacc + 2, sacc + 3))
e("ds_write_b64 v%d, %s offset:%d" % (vPw, vr(vT + 8, 2), L_P))
e("v_add_f32 v%d, v%d, v%d" % (sacc, sacc, sacc + 1))
e("v_add_f32 v%d, v%d, v%d" % (sacc + 2, sacc + 2, sacc + 3))
e("v_add_f32 v%d, v%d, v%d" % (sacc, sacc, sacc + 2))
e("ds_write_b32 v%d, v%d offset:%d" % (vT + 27, sacc, L_SUM))
e("s_waitcnt lgkmcnt(0)")
e("s_barrier")
for kk in range(4):
    e("ds_read_b128 %s, v%d offset:%d" % (vr(vP + 4 * kk, 4), vPr, L_P + 64 * kk))
ls_ = e.newlabel("L_st")
e("s_cmp_lg_u32 s%d, 7" % sW)
e("s_cbranch_scc1 %s" % ls_)
e("v_lshlrev_b32 v%d, 7, v%d" % (vA1, vN))
e("v_lshl_add_u32 v%d, v%d, 5, v%d" % (vA1, vG, vA1))
e("ds_read_b128 %s, v%d offset:%d" % (vr(vT + 8, 4), vA1, L_SUM))
e("ds_read_b128 %s, v%d offset:%d" % (vr(vT + 12, 4), vA1, L_SUM + 16))
e("s_lshl_b32 s%d, s%d, 7" % (sT0, sYI))
e("s_add_u32 s%d, s%d, %d" % (sT0, sT0, STAT))
e("v_lshlrev_b32 v%d, 3, v%d" % (vA1, vN))
e("s_waitcnt lgkmcnt(0)")
for st in (4, 2, 1):
    for i in range(st): e("v_add_f32 v%d, v%d, v%d" % (vT + 8 + i, vT + 8 + i, vT + 8 + i + st))
allred_g(vT + 8, vT + 9)
e("v_min_u32 v%d, -2, v%d" % (mx, mx))
e("v_and_b32 v%d, 0x7fffffff, v%d" % (mx + 1, vT + 8))
setexec(0xffff)
e("buffer_store_dwordx2 %s, v%d, %s, s%d offen sc1" % (vr(mx, 2), vA1, srd(S_WS), sT0))
setexec(-1)
e(ls_ + ":")
e("s_lshl_b32 s%d, s%d, 14" % (sT0, sYI))
e("s_lshl_b32 s%d, s%d, 7" % (sT1, sW))
e("s_add_u32 s%d, s%d, s%d" % (sT0, sT0, sT1))
e("s_add_u32 s%d, s%d, %d" % (sT0, sT0, PART))
for kk in range(4):
    e("s_waitcnt lgkmcnt(%d)" % (3 - kk))
    for t in range(4):
        a = vACC + 4 * t
        e("v_mfma_f32_16x16x32_bf16 %s, %s, %s, %s" % (vr(a, 4), vr(vP + 4 * kk, 4), vr(vCB + 16 * t + 4 * kk, 4), "0" if kk == 0 else vr(a, 4)))
for i in range(4):
    o = vT + 8 + 2 * i
    e("v_cvt_pk_bf16_f32 v%d, v%d, v%d" % (o, vACC + i, vACC + 4 + i))
    e("v_cvt_pk_bf16_f32 v%d, v%d, v%d" % (o + 1, vACC + 8 + i, vACC + 12 + i))
    e("v_min_u32 v%d, -2, v%d" % (o, o))
    e("v_min_u32 v%d, -2, v%d" % (o + 1, o + 1))
    e("buffer_store_dwordx2 %s, v%d, %s, s%d offen offset:%d sc1" % (vr(o, 2), vPo, srd(S_WS), sT0, 1024 * i))
stamp(6)
e("s_cmp_eq_u32 s%d, 0" % sISD)
e("s_cbranch_scc1 L_fin")
vW2, vW2p, vB1, vXD, vGH, vH2 = 48, 80, 48, 112, 116, 140
if opt("dack", 0): e("s_waitcnt vmcnt(0)")
e("s_barrier")
L_W2 = L_W1 + 43008
DD = opt("dd", 10)
e("v_lshrrev_b32 v%d, 2, v%d" % (vA0, vLANE))
e("v_mul_u32_u24 v%d, 3456, v%d" % (vA0, vA0))
e("v_and_b32 v%d, 3, v%d" % (vA1, vLANE))
e("v_lshl_add_u32 v%d, v%d, 4, v%d" % (vA0, vA1, vA0))
e("s_mul_i32 s%d, s%d, %d" % (sT0, sW, 80 * 3456))
e("s_lshl_b32 s%d, s%d, 6" % (sT1, sRD))
e("s_add_u32 s%d, s%d, s%d" % (sT0, sT0, sT1))
e("s_mul_i32 s%d, s%d, 5120" % (sT2, sW))
e("s_mul_i32 s%d, s%d, 40960" % (sT1, sRD))
e("s_add_u32 s%d, s%d, s%d" % (sT1, sT1, sT2))
e("s_add_u32 s%d, s%d, %d" % (sT3, sT2, L_W2))
e("s_add_u32 s%d, s%d, %d" % (sT2, sT2, L_W1))
n_ = 0
for k in range(5):
    if n_ >= DD: e("s_waitcnt vmcnt(%d)" % (DD - 1))
    e("s_mov_b32 m0, s%d" % sT2)
    e("buffer_load_dwordx4 v%d, %s, s%d offen%s lds" % (vA0, srd(S_W1), sT0, " nt" if opt("nt1", 0) else "")); n_ += 1
    if not opt("w2e", 0):
        if n_ >= DD: e("s_waitcnt vmcnt(%d)" % (DD - 1))
        e("s_mov_b32 m0, s%d" % sT3)
        e("buffer_load_dwordx4 v%d, %s, s%d offen nt lds" % (vL16, srd(S_W2), sT1)); n_ += 1
    if k < 4:
        e("s_add_u32 s%d, s%d, %d" % (sT0, sT0, 16 * 3456))
        e("s_add_u32 s%d, s%d, 1024" % (sT2, sT2))
        e("s_add_u32 s%d, s%d, 1024" % (sT1, sT1))
        e("s_add_u32 s%d, s%d, 1024" % (sT3, sT3))
lw2 = e.newlabel("L_w2")
e("v_lshlrev_b32 v%d, 2, v0" % vA0)
e("s_cmp_ge_u32 s%d, 5" % sW)
e("s_cbranch_scc1 %s" % lw2)
e("buffer_load_dword v%d, v%d, %s, 0 offen" % (vXD, vA0, srd(S_X)))
e("v_mov_b32 v%d, 0x3f803f80" % vA1)
e("ds_write_b32 v%d, v%d offset:%d" % (vA0, vA1, L_ONES))
e(lw2 + ":")
lo = e.newlabel("L_oh")
e("s_cmp_lg_u32 s%d, 7" % sW)
e("s_cbranch_scc1 %s" % lo)
e("v_lshlrev_b32 v%d, 8, v%d" % (vA1, vLANE))
e("s_xor_b32 s%d, s%d, 1" % (sT0, sHF))
e("s_lshl_b32 s%d, s%d, 14" % (sT0, sT0))
poll([("buffer_load_dword v%d, v%d, %s, s%d offen sc1" % (vGH, vA1, srd(S_WS), sT0), vGH, 1)], sleep=8, depth=1)
e(lo + ":")
e("s_waitcnt vmcnt(0) lgkmcnt(0)")
e("s_barrier")
lp5 = e.newlabel("L_p5"); lpd = e.newlabel("L_pd")
e("s_cmp_ge_u32 s%d, 5" % sW)
e("s_cbranch_scc1 %s" % lp5)
e("v_add_u32 v%d, %d, v%d" % (vA1, L_W2, vA0))
for r in range(32):
    e("ds_read_b32 v%d, v%d offset:%d" % (vW2 + r, vA1, 1280 * r))
    if r % 8 == 7: e("s_waitcnt lgkmcnt(0)")
e("s_mov_b32 s%d, 0x05040100" % sT0)
e("s_mov_b32 s%d, 0x07060302" % sT1)
for j in range(16):
    e("v_perm_b32 v%d, v%d, v%d, s%d" % (vW2p + 2 * j, vW2 + 2 * j + 1, vW2 + 2 * j, sT0))
    e("v_perm_b32 v%d, v%d, v%d, s%d" % (vW2p + 2 * j + 1, vW2 + 2 * j + 1, vW2 + 2 * j, sT1))
e("v_and_b32 v%d, 0xffff0000, v%d" % (vXD + 1, vXD))
e("v_lshlrev_b32 v%d, 16, v%d" % (vXD, vXD))
e("v_mov_b32 v%d, 0x3f80" % (vXD + 2))
e("v_mov_b32 v%d, 1.0" % (vXD + 3))
e("s_branch %s" % lpd)
e(lp5 + ":")
e("v_lshrrev_b32 v%d, 2, v%d" % (vA1, vN))
e("v_lshl_add_u32 v%d, v%d, 3, v%d" % (vA1, vG, vA1))
e("v_lshlrev_b32 v%d, 6, v%d" % (vA1, vA1))
e("v_and_b32 v%d, 3, v%d" % (vA2, vN))
e("v_lshl_add_u32 v%d, v%d, 3, v%d" % (vA1, vA2, vA1))
e("s_sub_u32 s%d, s%d, 5" % (sT0, sW))
e("s_mul_i32 s%d, s%d, 14336" % (sT1, sT0))
e("v_add_u32 v%d, s%d, v%d" % (vA1, sT1, vA1))
for j in range(7):
    for t in range(2):
        for u in range(2):
            e("ds_read_b64_tr_b16 %s, v%d offset:%d" % (vr(vB1 + 8 * j + 4 * t + 2 * u, 2), vA1, L_W1 + 2048 * j + 256 * u + 32 * t))
    if j % 2 == 1: e("s_waitcnt lgkmcnt(0)")
e("v_lshlrev_b32 v%d, 4, v%d" % (vA2, vG))
e("s_mul_i32 s%d, s%d, 448" % (sT1, sT0))
e("v_add_u32 v%d, s%d, v%d" % (vA2, sT1, vA2))
e("v_add_u32 v%d, %d, v%d" % (vA3, L_ONES - L_HB, vA2))
e("v_cmp_eq_u32 vcc, 1, v%d" % vN)
e("v_cndmask_b32 v%d, v%d, v%d, vcc" % (vA2, vA2, vA3))
e("s_waitcnt lgkmcnt(0)")
e(lpd + ":")
stamp(7)
lh = e.newlabel("L_dh")
e("s_cmp_ge_u32 s%d, 5" % sW)
e("s_cbranch_scc1 %s" % lh)
NH5 = opt("nh5", 4)
e("s_lshl_b32 s%d, s%d, 1" % (sT0, sRD))
hint_addr(sT0, 120 // NH5 + 1 if NH5 > 1 else 1, 120, vA3)
e("s_mov_b32 s%d, %d" % (sT0, EWC))
poll([("buffer_load_dword v%d, v%d, %s, s%d offen sc1" % (vGH, vA3, srd(S_WS), sT0), vGH, 1)], sleep=opt("sl5", 4), init_masks=[str((1 << NH5) - 1)])
stamp(8)
e("v_lshlrev_b32 v%d, 3, v0" % vA1)
for k in range(3): e("s_mov_b32 s%d, %d" % (sF + k, HP + 5120 * k))
e("v_mov_b32 v%d, 0" % vH2)
e("v_mov_b32 v%d, 0" % (vH2 + 1))
if opt("d5", 0): e("s_sleep %d" % opt("d5", 0))
poll([("\n".join("buffer_load_dword v%d, v%d, %s, s%d offen offset:%d sc1" % (vGH + 4 * k + q, vA0, srd(S_WS), sF + k, 1280 * q) for q in range(3)) + "\nbuffer_load_dword v%d, v%d, %s, s%d offen offset:3840 sc1" % (vGH + 4 * k + 3, vA0, srd(S_WS), sF + k), vGH + 4 * k, 4) for k in range(3)], sleep=1)
stamp(9)
for k in range(12):
    e("v_dot2c_f32_bf16 v%d, v%d, v%d" % (vH2, vGH + k, vXD + 2))
    e("v_dot2c_f32_bf16 v%d, v%d, v%d" % (vH2 + 1, vGH + k, vXD + 3))
e("v_cvt_pk_bf16_f32 v%d, v%d, v%d" % (vT, vH2, vH2 + 1))
unpack(vH2, vT, 1)
e("v_pk_add_f32 %s, %s, %s" % (vr(vH2, 2), vr(vH2, 2), vr(vXD, 2)))
e("v_cvt_pk_bf16_f32 v%d, v%d, v%d" % (vT, vH2, vH2 + 1))
e("ds_write_b32 v%d, v%d offset:%d" % (vA0, vT, L_HB))
unpack(vH2, vT, 1)
e("s_waitcnt lgkmcnt(0)")
e(lh + ":")
e("s_barrier")
lm = e.newlabel("L_dm"); lj = e.newlabel("L_dj")
e("s_cmp_ge_u32 s%d, 5" % sW)
e("s_cbranch_scc1 %s" % lm)
e("ds_write_b64 v%d, %s offset:%d" % (vA1, vr(vH2, 2), L_HF))
e("v_add_f32 v%d, v%d, v%d" % (vT, vH2, vH2 + 1))
wave_red([vT], [sT0])
e("v_mov_b32 v%d, s%d" % (vT + 2, sT0))
e("v_mul_f32 v%d, 0x3c000000, v%d" % (vT + 2, vT + 2))
e("v_sub_f32 v%d, v%d, v%d" % (vT, vH2, vT + 2))
e("v_sub_f32 v%d, v%d, v%d" % (vT + 1, vH2 + 1, vT + 2))
e("v_mul_f32 v%d, v%d, v%d" % (vT, vT, vT))
e("v_fmac_f32 v%d, v%d, v%d" % (vT, vT + 1, vT + 1))
wave_red([vT], [sT0])
e("v_mov_b32 v%d, s%d" % (vT + 3, sT0))
e("s_lshl_b32 s%d, s%d, 3" % (sT0, sW))
e("v_mov_b32 v%d, s%d" % (vT + 4, sT0))
setexec(1)
e("ds_write_b64 v%d, %s offset:%d" % (vT + 4, vr(vT + 2, 2), L_ST))
setexec(-1)
e("s_branch %s" % lj)
e(lm + ":")
for j in range(7):
    e("ds_read_b128 %s, v%d offset:%d" % (vr(vGH + 4 * j, 4), vA2, L_HB + 64 * j))
lz = e.newlabel("L_z")
for j in range(7):
    if j == 6:
        e("s_cmp_eq_u32 s%d, 7" % sW)
        e("s_cbranch_scc1 %s" % lz)
    e("s_waitcnt lgkmcnt(%d)" % (6 - j))
    for t in range(2):
        e("v_mfma_f32_16x16x32_bf16 %s, %s, %s, %s" % (vr(vT + 4 * t, 4), vr(vGH + 4 * j, 4), vr(vB1 + 8 * j + 4 * t, 4), "0" if j == 0 else vr(vT + 4 * t, 4)))
e(lz + ":")
e("v_lshlrev_b32 v%d, 3, v%d" % (vA1, vN))
e("s_sub_u32 s%d, s%d, 5" % (sT0, sW))
e("s_lshl_b32 s%d, s%d, 8" % (sT0, sT0))
e("v_add_u32 v%d, s%d, v%d" % (vA1, sT0, vA1))
setexec(0xffff)
e("s_nop 2")
e("ds_write_b64 v%d, %s offset:%d" % (vA1, vr(vT, 2), L_RED))
e("ds_write_b64 v%d, %s offset:%d" % (vA1, vr(vT + 4, 2), L_RED + 128))
setexec(-1)
e(lj + ":")
e("s_waitcnt lgkmcnt(0)")
e("s_barrier")
stamp(10)
ld2 = e.newlabel("L_d2")
e("s_cmp_ge_u32 s%d, 5" % sW)
e("s_cbranch_scc1 %s" % ld2)
e("v_mov_b32 v%d, 0" % vA2)
e("v_and_b32 v%d, 31, v%d" % (vA3, vLANE))
e("v_lshlrev_b32 v%d, 3, v%d" % (vA3, vA3))
st_ = vT + 8
e("ds_read_b128 %s, v%d offset:%d" % (vr(st_, 4), vA2, L_ST))
e("ds_read_b128 %s, v%d offset:%d" % (vr(st_ + 4, 4), vA2, L_ST + 16))
e("ds_read_b64 %s, v%d offset:%d" % (vr(st_ + 8, 2), vA2, L_ST + 32))
for k in range(3):
    e("ds_read_b64 %s, v%d offset:%d" % (vr(vT + 20 + 2 * k, 2), vA3, L_RED + 256 * k))
e("s_waitcnt lgkmcnt(3)")
mean, m2 = vT, vT + 1
e("v_pk_add_f32 %s, %s, %s" % (vr(vT, 2), vr(st_, 2), vr(st_ + 2, 2)))
e("v_pk_add_f32 %s, %s, %s" % (vr(vT + 2, 2), vr(st_ + 4, 2), vr(st_ + 6, 2)))
e("v_pk_add_f32 %s, %s, %s" % (vr(vT, 2), vr(vT, 2), vr(st_ + 8, 2)))
e("v_pk_add_f32 %s, %s, %s" % (vr(vT, 2), vr(vT, 2), vr(vT + 2, 2)))
e("v_mul_f32 v%d, 0x3e4ccccd, v%d" % (mean, mean))
e("v_mov_b32 v%d, 0" % (vT + 2))
for k in range(5):
    e("v_sub_f32 v%d, v%d, v%d" % (vT + 3, st_ + 2 * k, mean))
    e("v_fmac_f32 v%d, v%d, v%d" % (vT + 2, vT + 3, vT + 3))
e("v_fmac_f32 v%d, 0x43000000, v%d" % (m2, vT + 2))
e("v_mul_f32 v%d, 0x3acccccd, v%d" % (m2, m2))
rbf(mean, mean); rbf(m2, m2)
e("v_add_f32 v%d, 0x3727c5ac, v%d" % (m2, m2))
rbf(m2, m2)
e("v_sqrt_f32 v%d, v%d" % (m2, m2))
rbf(m2, m2)
e("v_rcp_f32 v%d, v%d" % (m2, m2))
e("s_waitcnt lgkmcnt(0)")
e("v_pk_add_f32 %s, %s, %s" % (vr(vT + 20, 2), vr(vT + 20, 2), vr(vT + 22, 2)))
e("v_pk_add_f32 %s, %s, %s" % (vr(vT + 20, 2), vr(vT + 20, 2), vr(vT + 24, 2)))
e("v_fma_f32 v%d, -v%d, v%d, v%d" % (vT + 20, mean, vT + 21, vT + 20))
e("v_mul_f32 v%d, v%d, v%d" % (vT + 20, vT + 20, m2))
e("v_max_f32 v%d, 0, v%d" % (vT + 20, vT + 20))
e("v_mov_b32_dpp v%d, v%d row_shl:1 row_mask:0xf bank_mask:0xf bound_ctrl:0" % (vT + 21, vT + 20))
e("v_cvt_pk_bf16_f32 v%d, v%d, v%d" % (vT + 20, vT + 20, vT + 21))
sF2 = 60
for j in range(16):
    e("v_readlane_b32 s%d, v%d, %d" % (sF2 + j, vT + 20, 2 * j))
for k in range(4): e("v_mov_b32 v%d, 0" % (vT + 2 + k))
for j in range(16):
    for k in range(2):
        e("v_dot2c_f32_bf16 v%d, s%d, v%d" % (vT + 2 + k + 2 * (j & 1), sF2 + j, vW2p + 2 * j + k))
e("s_mul_i32 s%d, s%d, 2560" % (sT0, sRD))
e("s_add_u32 s%d, s%d, %d" % (sT0, sT0, OP))
e("v_pk_add_f32 %s, %s, %s" % (vr(vT + 2, 2), vr(vT + 2, 2), vr(vT + 4, 2)))
e("v_min_u32 v%d, -2, v%d" % (vT + 2, vT + 2))
e("v_min_u32 v%d, -2, v%d" % (vT + 3, vT + 3))
e("buffer_store_dwordx2 %s, v%d, %s, s%d offen sc1" % (vr(vT + 2, 2), vA1, srd(S_WS), sT0))
e(ld2 + ":")
stamp(11)
vGF, vGE = 144, 156
e("s_cmp_eq_u32 s%d, 0" % sFIN)
e("s_cbranch_scc1 L_fin")
e("v_lshrrev_b32 v%d, 3, v%d" % (vA1, vLANE))
e("v_mul_u32_u24 v%d, 2560, v%d" % (vA0, vA1))
e("v_and_b32 v%d, 7, v%d" % (vA3, vLANE))
e("v_lshl_add_u32 v%d, v%d, 4, v%d" % (vA0, vA3, vA0))
e("s_mul_i32 s%d, s%d, %d" % (sT0, sW, 8 * 2560))
e("s_lshl_b32 s%d, s%d, 6" % (sT1, sRD))
e("s_add_u32 s%d, s%d, s%d" % (sT0, sT0, sT1))
e("s_add_u32 s%d, s%d, %d" % (sT0, sT0, OP))
e("s_lshl_b32 s%d, s%d, 3" % (sT3, sW))
e("v_add_u32 v%d, s%d, v%d" % (vA1, sT3, vA1))
for k in range(4): e("v_mov_b32 v%d, 0" % (vGF + k))
e("v_cmp_gt_u32 vcc, 54, v%d" % vA1)
e("s_mov_b64 %s, vcc" % sp(sE0))
e("v_lshlrev_b32 v%d, 4, v%d" % (vA1, vA3))
e("v_lshl_add_u32 v%d, v%d, 2, v%d" % (vA1, vG, vA1))
e("s_lshl_b32 s%d, s%d, 7" % (sT3, sW))
e("v_add_u32 v%d, s%d, v%d" % (vA1, sT3, vA1))
if opt("d6", 0): e("s_sleep %d" % opt("d6", 0))
poll([("buffer_load_dwordx4 %s, v%d, %s, s%d offen sc1" % (vr(vGF, 4), vA0, srd(S_WS), sT0), vGF, 4)], sleep=1, init_masks=[sp(sE0)])
stamp(12)
for k in range(4): e("v_mov_b32 v%d, v%d" % (vT + k, vGF + k))
rs_4to1(vT)
e("v_add_f32_dpp v%d, v%d, v%d row_ror:8 row_mask:0xf bank_mask:0xf" % (vT + 1, vT, vT))
setexec(0x00ff00ff00ff00ff)
e("ds_write_b32 v%d, v%d offset:%d" % (vA1, vT + 1, L_RED + 1024))
setexec(-1)
e("s_waitcnt lgkmcnt(0)")
e("s_barrier")
e("s_cmp_lg_u32 s%d, 0" % sW)
e("s_cbranch_scc1 L_fin")
e("v_lshlrev_b32 v%d, 2, v%d" % (vA0, vLANE))
e("v_add_u32 v%d, s%d, v%d" % (vA1, sT1, vA0))
setexec(0xffffffff)
for i in range(8):
    e("ds_read_b32 v%d, v%d offset:%d" % (vGE + i, vA0, L_RED + 1024 + 128 * i))
e("ds_read_b32 v%d, v%d offset:%d" % (vGE + 8, vA1, L_HF))
e("s_waitcnt lgkmcnt(0)")
for st in (4, 2, 1):
    for i in range(st):
        e("v_add_f32 v%d, v%d, v%d" % (vGE + i, vGE + i, vGE + i + st))
rbf(vGE, vGE)
e("v_add_f32 v%d, v%d, v%d" % (vGE, vGE, vGE + 8))
e("v_cvt_pk_bf16_f32 v%d, v%d, v%d" % (vGE, vGE, vGE))
e("v_lshrrev_b32 v%d, 1, v%d" % (vA1, vA1))
e("buffer_store_short v%d, v%d, %s, 0 offen" % (vGE, vA1, srd(S_OUT)))
setexec(-1)
e("L_fin:")
if DIAG:
    stamp(13)
    if opt("dbg", 0):
        for wgid, base, idxs in ((128, 1, (2, 4, 6, 8, 9, 11, 13)), (0, 9, (1, 3, 4, 6, 7, 8, 10))):
            l = e.newlabel("L_dbg")
            e("s_cmp_lg_u32 s2, %d" % wgid)
            e("s_cbranch_scc1 %s" % l)
            e("s_cmp_lg_u32 s%d, 0" % sW)
            e("s_cbranch_scc1 %s" % l)
            e("v_readlane_b32 s%d, v%d, 0" % (sT0, vTSV))
            for k, ix in enumerate(idxs):
                e("v_readlane_b32 s%d, v%d, %d" % (sT1, vTSV, ix))
                e("s_sub_u32 s%d, s%d, s%d" % (sT1, sT1, sT0))
                e("v_mov_b32 v%d, s%d" % (vA1, sT1))
                e("v_mov_b32 v%d, %d" % (vA0, 4 * (base + k)))
                setexec(1)
                e("buffer_store_dword v%d, v%d, %s, 0 offen" % (vA1, vA0, srd(S_DBG)))
                setexec(-1)
            e(l + ":")
    e("v_lshlrev_b32 v%d, 2, v%d" % (vA0, vLANE))
    e("s_lshl_b32 s%d, s2, 3" % sT0)
    e("s_add_u32 s%d, s%d, s%d" % (sT0, sT0, sW))
    e("s_lshl_b32 s%d, s%d, 8" % (sT0, sT0))
    e("s_add_u32 s%d, s%d, %d" % (sT0, sT0, DIAGO))
    e("buffer_store_dword v%d, v%d, %s, s%d offen" % (vTSV, vA0, srd(S_WS), sT0))
e("L_end:")
e("s_endpgm")
e.raw(""".section .rodata,"a"
.p2align 6
.amdhsa_kernel %s
  .amdhsa_next_free_vgpr %d
  .amdhsa_next_free_sgpr 102
  .amdhsa_accum_offset %d
  .amdhsa_group_segment_fixed_size 0
  .amdhsa_kernarg_size 96
  .amdhsa_user_sgpr_count 2
  .amdhsa_user_sgpr_kernarg_segment_ptr 1
  .amdhsa_system_sgpr_workgroup_id_x 1
.end_amdhsa_kernel""" % (KN, NVGPR, NVGPR))
open(OUTF, "w").write(e.text())
```

```python
import sys
sys.path.insert(0, "gen")
from emit import Emitter

KN = "sequential_preLN__compressed_kv_cla__dense_activation_relu__decode_kernel"
DIAG = "--diag" in sys.argv
OUTF = [a for a in sys.argv[1:] if not a.startswith("--")][0]
def opt(name, default):
    for a in sys.argv:
        if a.startswith("--%s=" % name): return int(a.split("=")[1])
    return default
EWA_AT = opt("ewa", 16)
FLAG_AT = opt("flag", 8)

QA, CP, EWA, QP = 0x0, 0x8000, 0x10000, 0x12000
HP, EWC, STAT, OP, PART, DIAGO = 0x90000, 0x9E000, 0x24000, 0x30000, 0x100000, 0x800000
RDY = 0
EWB = 0x96000
NT = " nt" if opt("nt", 1) else ""
NTC = " nt" if opt("ntc", 1) else ""
WS_BYTES = 0x900000
RS = 1040
L_RED = 0
L_QL = 4096
L_LN = 8448
L_MX = 4096
L_SUM = 4608
L_P = 6656
PRS = 272
L_HB = 4096
L_ONES = 5376
L_ST = 6656
L_HF = 7168
L_QS = 12288
L_CK = L_QS + 16 * RS
LDS_BYTES = L_CK + 128 * RS
L_WUV = 12288
L_WO = L_WUV + 32768
L_W1 = 12288
SPIN = 200000

S_X, S_CKV, S_WQ, S_WUK, S_WUV, S_WO, S_W1, S_W2, S_OUT, S_DBG, S_WS = [4 + 4 * i for i in range(11)]
def srd(b): return "s[%d:%d]" % (b, b + 3)
sW, sA, sB, sCNT, sT0, sT1, sT2, sT3 = 48, 49, 50, 51, 52, 53, 54, 55
sH, sCQ, sXI = 56, 57, 58
sKS, sHF, sYI = 56, 57, 58
sRD, sISD, sFIN = 59, 88, 89
sM = [60, 62, 64, 66, 68, 70, 72, 74]
sTM, sOR = 76, 78
sF = 80
sE0, sE1 = 90, 92
sL2E, sT4 = 94, 95
sTS = 96
def sp(b): return "s[%d:%d]" % (b, b + 1)
e = Emitter()
def vr(b, n): return "v[%d:%d]" % (b, b + n - 1) if n > 1 else "v%d" % b

vLANE, vN, vG = 1, 2, 3
vA0, vA1, vA2, vA3 = 4, 5, 6, 7
vT = 8
vTSV = 40
vL16 = 41
vCL = 44
NVGPR = 248

def stamp(idx):
    if not DIAG: return
    e("s_memrealtime %s" % sp(sTS))
    e("s_waitcnt lgkmcnt(0)")
    e("v_writelane_b32 v%d, s%d, %d" % (vTSV, sTS, idx))
def setexec(m):
    if m == -1: e("s_mov_b64 exec, -1"); return
    e("s_mov_b32 exec_lo, 0x%x" % (m & 0xffffffff))
    e("s_mov_b32 exec_hi, 0x%x" % (m >> 32))
def rbf(dst, src):
    e("v_cvt_pk_bf16_f32 v%d, v%d, v%d" % (dst, src, src))
    e("v_lshlrev_b32 v%d, 16, v%d" % (dst, dst))
def wave_red(vs, sdsts, op="v_add_f32"):
    bc = " bound_ctrl:0" if op == "v_add_f32" else ""
    for sh in (1, 2, 4, 8):
        for v in vs: e("%s_dpp v%d, v%d, v%d row_shr:%d row_mask:0xf bank_mask:0xf%s" % (op, v, v, v, sh, bc))
    for v in vs: e("%s_dpp v%d, v%d, v%d row_bcast:15 row_mask:0xa bank_mask:0xf" % (op, v, v, v))
    for v in vs: e("%s_dpp v%d, v%d, v%d row_bcast:31 row_mask:0xc bank_mask:0xf" % (op, v, v, v))
    for v, s in zip(vs, sdsts): e("v_readlane_b32 s%d, v%d, 63" % (s, v))
def unpack(dst, src, n):
    for i in range(n):
        e("v_lshlrev_b32 v%d, 16, v%d" % (dst + 2 * i, src + i))
        e("v_and_b32 v%d, 0xffff0000, v%d" % (dst + 2 * i + 1, src + i))
PD = opt("pd", 1)
PG = opt("pg", 5)
def poll(loads, sleep=1, init_masks=None, depth=None):
    D = PD if depth is None else depth
    lp = e.newlabel("L_poll"); dn = e.newlabel("L_polld")
    nl = sum(t.count("buffer_load") for t, _, _ in loads)
    for k in range(len(loads)):
        e("s_mov_b64 %s, %s" % (sp(sM[k]), "-1" if not init_masks or init_masks[k] is None else init_masks[k]))
    e("s_mov_b32 s%d, 0" % sCNT)
    def issue():
        for k, (txt, d, n) in enumerate(loads):
            e("s_mov_b64 exec, %s" % sp(sM[k]))
            e(txt)
        e("s_mov_b64 exec, -1")
    for _ in range(D - 1):
        issue()
        e("s_sleep %d" % PG)
    e(lp + ":")
    issue()
    e("s_waitcnt vmcnt(%d)" % ((D - 1) * nl))
    for k, (txt, d, n) in enumerate(loads):
        t = vT + 31
        if n == -2:
            e("v_cmp_gt_i32 %s, 0, v%d" % (sp(sTM), d + 1))
        elif n == 1:
            e("v_cmp_eq_u32 %s, -1, v%d" % (sp(sTM), d))
        else:
            e("v_max_u32 v%d, v%d, v%d" % (t, d, d + 1))
            if n >= 4: e("v_max3_u32 v%d, v%d, v%d, v%d" % (t, t, d + 2, d + 3))
            e("v_cmp_eq_u32 %s, -1, v%d" % (sp(sTM), t))
        e("s_and_b64 %s, %s, %s" % (sp(sM[k]), sp(sM[k]), sp(sTM)))
        if k == 1: e("s_or_b64 %s, %s, %s" % (sp(sOR), sp(sM[0]), sp(sM[k])))
        elif k > 1: e("s_or_b64 %s, %s, %s" % (sp(sOR), sp(sOR), sp(sM[k])))
    e("s_cbranch_scc0 %s" % dn)
    e("s_add_u32 s%d, s%d, 1" % (sCNT, sCNT))
    e("s_cmp_gt_u32 s%d, %d" % (sCNT, SPIN))
    e("s_cbranch_scc1 %s" % dn)
    if sleep and D == 1: e("s_sleep %d" % sleep)
    e("s_branch %s" % lp)
    e(dn + ":")
def rs_8to2(b):
    for i in range(4): e("v_permlane32_swap_b32 v%d, v%d" % (b + i, b + 4 + i))
    for i in range(4): e("v_add_f32 v%d, v%d, v%d" % (b + i, b + i, b + 4 + i))
    for i in range(2): e("v_permlane16_swap_b32 v%d, v%d" % (b + i, b + 2 + i))
    for i in range(2): e("v_add_f32 v%d, v%d, v%d" % (b + i, b + i, b + 2 + i))
def rs_4to1(b):
    for i in range(2): e("v_permlane32_swap_b32 v%d, v%d" % (b + i, b + 2 + i))
    for i in range(2): e("v_add_f32 v%d, v%d, v%d" % (b + i, b + i, b + 2 + i))
    e("v_permlane16_swap_b32 v%d, v%d" % (b, b + 1))
    e("v_add_f32 v%d, v%d, v%d" % (b, b, b + 1))
def allred_g(v, tmp, op="v_add_f32"):
    e("v_mov_b32 v%d, v%d" % (tmp, v))
    e("v_permlane32_swap_b32 v%d, v%d" % (v, tmp))
    e("%s v%d, v%d, v%d" % (op, v, v, tmp))
    e("v_mov_b32 v%d, v%d" % (tmp, v))
    e("v_permlane16_swap_b32 v%d, v%d" % (v, tmp))
    e("%s v%d, v%d, v%d" % (op, v, v, tmp))
def hilo_write(v, vaddr):
    h, a, b = v + 2, v + 3, v + 4
    e("v_cvt_pk_bf16_f32 v%d, v%d, v%d" % (h, v, v + 1))
    e("v_lshlrev_b32 v%d, 16, v%d" % (a, h))
    e("v_and_b32 v%d, 0xffff0000, v%d" % (b, h))
    e("v_sub_f32 v%d, v%d, v%d" % (v, v, a))
    e("v_sub_f32 v%d, v%d, v%d" % (v + 1, v + 1, b))
    e("v_cvt_pk_bf16_f32 v%d, v%d, v%d" % (a, v, v + 1))
    e("ds_write2_b32 v%d, v%d, v%d offset0:0 offset1:68" % (vaddr, h, a))
def rows_gemv_publish(vB, vQLr, vOut, sOut):
    f = vT + 8
    for ks in range(4):
        e("ds_read_b128 %s, v%d offset:%d" % (vr(f + 4 * ks, 4), vQLr, 64 * ks))
    for ks in range(4):
        e("s_waitcnt lgkmcnt(%d)" % (3 - ks))
        e("v_mfma_f32_16x16x32_bf16 %s, %s, %s, %s" % (vr(vT, 4), vr(f + 4 * ks, 4), vr(vB + 4 * ks, 4), "0" if ks == 0 else vr(vT, 4)))
    e("v_add_f32 v%d, v%d, v%d" % (vT, vT, vT + 1))
    e("v_add_f32 v%d, v%d, v%d" % (vT + 2, vT + 2, vT + 3))
    e("v_add_f32 v%d, v%d, v%d" % (vT, vT, vT + 2))
    allred_g(vT, vT + 1)
    e("v_mov_b32_dpp v%d, v%d row_shl:1 row_mask:0xf bank_mask:0xf bound_ctrl:0" % (vT + 1, vT))
    e("v_cvt_pk_bf16_f32 v%d, v%d, v%d" % (vT, vT, vT + 1))
    e("v_min_u32 v%d, -2, v%d" % (vT, vT))
    setexec(0x5555)
    e("buffer_store_dword v%d, v%d, %s, s%d offen sc1" % (vT, vOut, srd(S_WS), sOut))
    setexec(-1)
def flag_check(first_loaded=None):
    lp = e.newlabel("L_fl"); ld = e.newlabel("L_fld"); l1 = e.newlabel("L_fl1")
    e("s_mov_b32 s%d, 0" % sCNT)
    if first_loaded is not None: e("s_branch %s" % l1)
    e(lp + ":")
    setexec(0xff)
    e("v_lshlrev_b32 v%d, 5, v%d" % (vA3, vLANE))
    e("buffer_load_dword v%d, v%d, %s, 0 offen sc1" % (vL16 + 1, vA3, srd(S_DBG)))
    setexec(-1)
    e(l1 + ":")
    e("s_waitcnt vmcnt(0)")
    setexec(0xff)
    e("v_cmp_eq_u32 vcc, 0, v%d" % (vL16 + 1))
    setexec(-1)
    e("s_cbranch_vccz %s" % ld)
    e("s_add_u32 s%d, s%d, 1" % (sCNT, sCNT))
    e("s_cmp_gt_u32 s%d, %d" % (sCNT, SPIN))
    e("s_cbranch_scc1 %s" % ld)
    e("s_sleep 8")
    e("s_branch %s" % lp)
    e(ld + ":")
def store1(soff, val=1):
    e("v_mov_b32 v%d, %d" % (vA3, val))
    e("v_mov_b32 v%d, 0" % (vT + 30))
    setexec(1)
    e("buffer_store_dword v%d, v%d, %s, s%d offen sc1" % (vA3, vT + 30, srd(S_WS), soff))
    setexec(-1)
def rdy_write():
    e("s_lshl_b32 s%d, s2, 6" % sT0)
    e("s_add_u32 s%d, s%d, %d" % (sT0, sT0, RDY))
    store1(sT0)
def rdy_check(dst):
    l = e.newlabel("L_rdy")
    e("s_cmp_ge_u32 s%d, 4" % sW)
    e("s_cbranch_scc1 %s" % l)
    e("v_lshlrev_b32 v%d, 6, v0" % vA0)
    e("s_mov_b32 s%d, %d" % (sT0, RDY))
    poll([("buffer_load_dword v%d, v%d, %s, s%d offen sc1" % (dst, vA0, srd(S_WS), sT0), dst, 1)], sleep=8)
    e(l + ":")
def hint_addr(sidx, step, N, vdst):
    e("v_mul_u32_u24 v%d, %d, v%d" % (vdst, step, vLANE))
    e("v_add_u32 v%d, s%d, v%d" % (vdst, sidx, vdst))
    e("v_subrev_u32 v%d, %d, v%d" % (vT + 30, N, vdst))
    e("v_min_u32 v%d, v%d, v%d" % (vdst, vdst, vT + 30))
    e("v_lshlrev_b32 v%d, 6, v%d" % (vdst, vdst))
def hint_wait(soff, dst, sleep):
    e("v_mov_b32 v%d, 0" % vA3)
    poll([("buffer_load_dword v%d, v%d, %s, s%d offen sc1" % (dst, vA3, srd(S_WS), soff), dst, 1)], sleep=sleep, init_masks=["1"])

e.raw("""; persistent MLA decode + FFN kernel (generated by gen/gen15.py)
; @launch grid=(256,1,1) block=(512,1,1) lds=%d
.amdgcn_target "amdgcn-amd-amdhsa--gfx950"
.text
.globl %s
.p2align 8
.type %s,@function
%s:""" % (LDS_BYTES, KN, KN, KN))
e("s_cmp_ge_u32 s2, 256")
e("s_cbranch_scc1 L_end")
e("s_load_dwordx16 s[64:79], s[0:1], 0")
e("s_add_u32 s2, s2, 248")
e("s_and_b32 s2, s2, 255")
e("s_load_dwordx8 s[80:87], s[0:1], 64")
if opt("dbl", 0):
    e("s_memrealtime s[98:99]")
if DIAG:
    e("v_mov_b32 v%d, 0" % vTSV)
    stamp(0)
e("v_and_b32 v%d, 63, v0" % vLANE)
e("v_lshrrev_b32 v%d, 6, v0" % vA0)
e("v_and_b32 v%d, 15, v0" % vN)
e("v_bfe_u32 v%d, v0, 4, 2" % vG)
e("v_readfirstlane_b32 s%d, v%d" % (sW, vA0))
for i in range(4): e("v_mov_b32 v%d, -1" % (vCL + i))
e("v_lshlrev_b32 v%d, 4, v%d" % (vL16, vLANE))
e("s_bfe_u32 s%d, s2, 0x40003" % sA)
e("s_and_b32 s%d, s2, 7" % sB)
e("s_mov_b32 s%d, 0x3fb8aa3b" % sL2E)
e("s_waitcnt lgkmcnt(0)")
sizes = {S_X: 1280, S_CKV: 8388608, S_WQ: 5242880, S_WUK: 4194304, S_WUV: 4194304, S_WO: 5242880, S_W1: 2211840, S_W2: 2211840, S_OUT: 1280, S_DBG: 256, S_WS: WS_BYTES}
src = {S_X: 64, S_CKV: 66, S_WQ: 68, S_WUK: 70, S_WUV: 72, S_WO: 74, S_W1: 78, S_W2: 80, S_OUT: 82, S_DBG: 84, S_WS: 86}
for b in (S_WS, S_X, S_WQ, S_CKV, S_WUK, S_DBG, S_WUV, S_WO, S_W1, S_W2, S_OUT):
    e("s_mov_b32 s%d, s%d" % (b, src[b]))
    e("s_mov_b32 s%d, s%d" % (b + 1, src[b] + 1))
    e("s_mov_b32 s%d, %d" % (b + 2, sizes[b]))
    e("s_mov_b32 s%d, 0x00020000" % (b + 3))
e("s_cmp_ge_u32 s2, 128")
e("s_cbranch_scc1 L_Y")

vWQ, vWUK, vL1, vL0, vXF, vXR = 48, 148, 164, 170, 184, 190
vBUV, vBO, vG0 = 48, 64, 96
vQLw, vQLr, vOutA = 192, 193, 194
e("s_lshl_b32 s%d, s%d, 2" % (sH, sB))
e("s_lshr_b32 s%d, s%d, 2" % (sT0, sA))
e("s_add_u32 s%d, s%d, s%d" % (sH, sH, sT0))
e("s_and_b32 s%d, s%d, 3" % (sCQ, sA))
e("s_lshl_b32 s%d, s%d, 2" % (sXI, sH))
e("s_add_u32 s%d, s%d, s%d" % (sXI, sXI, sCQ))
sST, sKQ, sUS, sNU = 98, 99, 100, 101
e("s_mul_i32 s%d, s2, 205" % sKQ)
e("s_lshr_b32 s%d, s%d, 11" % (sKQ, sKQ))
e("s_mul_i32 s%d, s%d, 10" % (sT0, sKQ))
e("s_sub_u32 s%d, s2, s%d" % (sST, sT0))
e("s_mul_i32 s%d, s%d, 11" % (sUS, sKQ))
e("s_max_u32 s%d, s%d, 8" % (sT0, sKQ))
e("s_sub_u32 s%d, s%d, 8" % (sT0, sT0))
e("s_sub_u32 s%d, s%d, s%d" % (sUS, sUS, sT0))
e("s_cmp_lt_u32 s%d, 8" % sKQ)
e("s_cselect_b32 s%d, 11, 10" % sNU)
L_WUK = L_WO + 45056
vWQ, vL1, vL0, vXF, vXR = 48, 164, 176, 186, 191
vQF = vG0 + 32; vCF = vG0 + 32; vC2a, vC1a, vUKa = 200, 201, 196
vBUV, vBO = 144, 160
def frag_prep():
    r_, q_, x_ = vT + 26, vT + 27, vT + 28
    e("v_lshrrev_b32 v%d, 2, v%d" % (r_, vN))
    e("v_bfe_u32 v%d, v%d, 1, 1" % (q_, vN))
    e("v_lshl_or_b32 v%d, v%d, 2, v%d" % (x_, vG, r_))
    e("v_xor_b32 v%d, v%d, v%d" % (x_, x_, q_))
    e("s_lshl_b32 s%d, s%d, 1" % (sF + 5, sW))
    e("v_xor_b32 v%d, s%d, v%d" % (x_, sF + 5, x_))
    e("v_lshlrev_b32 v%d, 4, v%d" % (x_, x_))
    e("v_lshlrev_b32 v%d, 4, v%d" % (vC1a, r_))
    e("v_lshl_add_u32 v%d, v%d, 1, v%d" % (vC1a, vG, vC1a))
    e("v_lshl_add_u32 v%d, v%d, 8, v%d" % (vC1a, vC1a, x_))
    e("v_and_b32 v%d, 1, v%d" % (x_, vN))
    e("v_lshl_add_u32 v%d, v%d, 3, v%d" % (vC1a, x_, vC1a))
    for ks in range(4):
        for u in range(2):
            e("ds_read_b64_tr_b16 %s, v%d offset:%d" % (vr(vBUV + 4 * ks + 2 * u, 2), vC1a, L_WUV + (64 * (ks >> 1) + 8 * (ks & 1) + u) * 256))
    e("v_lshl_add_u32 v%d, v%d, 3, v%d" % (vC2a, vG, r_))
    e("v_lshlrev_b32 v%d, 7, v%d" % (vC2a, vC2a))
    e("v_lshl_add_u32 v%d, v%d, 3, v%d" % (vC2a, x_, vC2a))
    e("s_lshl_b32 s%d, s%d, 12" % (sF + 5, sW))
    e("s_add_u32 s%d, s%d, %d" % (sF + 5, sF + 5, L_WO))
    e("v_add_u32 v%d, s%d, v%d" % (vC2a, sF + 5, vC2a))
    e("v_lshrrev_b32 v%d, 1, v%d" % (r_, r_))
    e("v_lshl_or_b32 v%d, v%d, 1, v%d" % (r_, vG, r_))
    e("v_xor_b32 v%d, v%d, v%d" % (r_, r_, q_))
    e("s_waitcnt lgkmcnt(0)")
    for t in range(4):
        e("v_xor_b32 v%d, %d, v%d" % (x_, 2 * t, r_))
        e("v_lshl_add_u32 v%d, v%d, 4, v%d" % (x_, x_, vC2a))
        for j in range(2):
            for u in range(2):
                e("ds_read_b64_tr_b16 %s, v%d offset:%d" % (vr(vBO + 16 * j + 4 * t + 2 * u, 2), x_, 32768 * j + 512 * u))
        if t == 1: e("s_waitcnt lgkmcnt(0)")
    e("s_waitcnt lgkmcnt(0)")
lc1 = e.newlabel("L_c1"); lS = e.newlabel("L_S")
for k in range(16): e("v_mov_b32 v%d, 0" % (vQF + k))
e("v_lshlrev_b32 v%d, 4, v%d" % (vQLw, vN))
e("v_lshl_add_u32 v%d, v%d, 2, v%d" % (vQLw, vG, vQLw))
e("v_mul_u32_u24 v%d, 272, v%d" % (vQLr, vN))
e("v_lshl_add_u32 v%d, v%d, 4, v%d" % (vQLr, vG, vQLr))
e("v_add_u32 v%d, %d, v%d" % (vQLr, L_QL, vQLr))
e("v_lshlrev_b32 v%d, 1, v%d" % (vOutA, vN))
e("s_cmp_ge_u32 s%d, 4" % sW)
e("s_cbranch_scc1 %s" % lS)
e("v_lshlrev_b32 v%d, 2, v%d" % (vA0, vLANE))
for i in range(5):
    e("buffer_load_dword v%d, v%d, %s, 0 offen offset:%d" % (vXF + i, vA0, srd(S_X), 256 * i))
e("v_lshlrev_b32 v%d, 1, v%d" % (vA1, vLANE))
e("s_mul_i32 s%d, s%d, 160" % (sT0, sCQ))
e("s_mul_i32 s%d, s%d, 40" % (sT1, sW))
e("s_add_u32 s%d, s%d, s%d" % (sT0, sT0, sT1))
e("s_lshl_b32 s%d, s%d, 1" % (sT1, sT0))
e("buffer_load_ushort v%d, v%d, %s, s%d offen" % (vXR, vA1, srd(S_X), sT1))
e("s_barrier")
e("v_lshlrev_b32 v%d, 13, v%d" % (vA0, vG))
e("v_lshl_add_u32 v%d, v%d, 4, v%d" % (vA0, vN, vA0))
e("s_lshl_b32 s%d, s%d, 13" % (sT0, sT0))
e("s_lshl_b32 s%d, s%d, 8" % (sT1, sH))
e("s_add_u32 s%d, s%d, s%d" % (sT0, sT0, sT1))
for i in range(10):
    e("buffer_load_dwordx4 %s, v%d, %s, s%d offen%s" % (vr(vWQ + 4 * i, 4), vA0, srd(S_WQ), sT0, NT))
    if i < 9: e("s_add_u32 s%d, s%d, 32768" % (sT0, sT0))
e("s_barrier")
e("s_waitcnt vmcnt(10)")
stamp(1)
a, b_, vM, vS = vT + 10, vT + 11, vT + 12, vT + 13
e("v_readfirstlane_b32 s%d, v%d" % (sT0, vXF))
unpack(vT, vXF, 5)
e("s_lshl_b32 s%d, s%d, 16" % (sT0, sT0))
e("s_mov_b32 s%d, s%d" % (sT1, sT0))
for k in range(5):
    e("v_pk_add_f32 %s, %s, %s neg_lo:[0,1] neg_hi:[0,1]" % (vr(vT + 2 * k, 2), vr(vT + 2 * k, 2), sp(sT0)))
e("v_pk_add_f32 %s, %s, %s" % (vr(vT + 14, 2), vr(vT, 2), vr(vT + 2, 2)))
e("v_pk_mul_f32 %s, %s, %s" % (vr(vT + 16, 2), vr(vT, 2), vr(vT, 2)))
e("v_pk_fma_f32 %s, %s, %s, %s" % (vr(vT + 16, 2), vr(vT + 2, 2), vr(vT + 2, 2), vr(vT + 16, 2)))
for k in range(2, 5):
    e("v_pk_add_f32 %s, %s, %s" % (vr(vT + 14, 2), vr(vT + 14, 2), vr(vT + 2 * k, 2)))
    e("v_pk_fma_f32 %s, %s, %s, %s" % (vr(vT + 16, 2), vr(vT + 2 * k, 2), vr(vT + 2 * k, 2), vr(vT + 16, 2)))
e("v_add_f32 v%d, v%d, v%d" % (a, vT + 14, vT + 15))
e("v_add_f32 v%d, v%d, v%d" % (b_, vT + 16, vT + 17))
wave_red([a, b_], [sT2, sT3])
e("s_mov_b32 s%d, 0x3acccccd" % sT1)
e("v_mov_b32 v%d, s%d" % (vM, sT2))
e("v_mov_b32 v%d, s%d" % (vS, sT3))
e("v_mul_f32 v%d, s%d, v%d" % (vM, sT1, vM))
e("v_mul_f32 v%d, s%d, v%d" % (vS, sT1, vS))
e("v_fma_f32 v%d, -v%d, v%d, v%d" % (vS, vM, vM, vS))
e("v_max_f32 v%d, 0, v%d" % (vS, vS))
e("v_add_f32 v%d, s%d, v%d" % (vM, sT0, vM))
rbf(vM, vM); rbf(vS, vS)
e("v_add_f32 v%d, 0x3727c5ac, v%d" % (vS, vS))
rbf(vS, vS)
e("v_sqrt_f32 v%d, v%d" % (vS, vS))
rbf(vS, vS)
e("v_rcp_f32 v%d, v%d" % (vS + 1, vS))
v = vXR
e("v_lshlrev_b32 v%d, 16, v%d" % (v, v))
e("v_sub_f32 v%d, v%d, v%d" % (v, v, vM))
rbf(v, v)
e("v_mul_f32 v%d, v%d, v%d" % (b_, v, vS + 1))
e("v_fma_f32 v%d, -v%d, v%d, v%d" % (a, b_, vS, v))
e("v_fmac_f32 v%d, v%d, v%d" % (b_, a, vS + 1))
rbf(v, b_)
e("v_and_b32 v%d, 3, v%d" % (vA0, vLANE))
e("v_lshlrev_b32 v%d, 6, v%d" % (vA0, vA0))
e("v_and_b32 v%d, 0x3c, v%d" % (vA1, vLANE))
e("v_add_u32 v%d, v%d, v%d" % (vA0, vA0, vA1))
e("s_lshl_b32 s%d, s%d, 8" % (sT0, sW))
e("v_add_u32 v%d, s%d, v%d" % (vA0, sT0, vA0))
e("ds_write_b32 v%d, v%d offset:%d" % (vA0, vXR, L_LN))
e("v_lshlrev_b32 v%d, 6, v%d" % (vA1, vG))
e("v_add_u32 v%d, s%d, v%d" % (vA1, sT0, vA1))
e("s_waitcnt lgkmcnt(0)")
for k in range(3):
    e("ds_read_b128 %s, v%d offset:%d" % (vr(vL1 + 4 * k, 4), vA1, L_LN + 16 * k))
e("s_lshl_b32 s%d, s%d, 5" % (sF + 3, sB))
e("v_mov_b32 v%d, 0" % (vT + 20))
lf0 = e.newlabel("L_f0")
e("s_cmp_lg_u32 s%d, 0" % sW)
e("s_cbranch_scc1 %s" % lf0)
setexec(1)
e("buffer_load_dword v%d, v%d, %s, s%d offen sc1" % (vL16 + 1, vT + 20, srd(S_DBG), sF + 3))
setexec(-1)
e(lf0 + ":")
e("v_lshlrev_b32 v%d, 1, v%d" % (vA1, vQLw))
e("s_lshl_b32 s%d, s%d, 9" % (sT0, sW))
e("v_add_u32 v%d, s%d, v%d" % (vA1, sT0, vA1))
e("s_mul_i32 s%d, s%d, 544" % (sT0, sW))
e("s_add_u32 s%d, s%d, %d" % (sT0, sT0, L_QL))
e("v_add_u32 v%d, s%d, v%d" % (vQLw, sT0, vQLw))
e("v_lshlrev_b32 v%d, 3, v%d" % (vA2, vLANE))
e("v_lshlrev_b32 v%d, 2, v%d" % (vT + 29, vLANE))
e("s_lshl_b32 s%d, s%d, 13" % (sT0, sW))
e("s_add_u32 s%d, s%d, %d" % (sT0, sT0, L_WUK))
e("v_xor_b32 v%d, v%d, v%d" % (vA0, vN, vG))
for ks in range(4):
    e("v_xor_b32 v%d, %d, v%d" % (vUKa + ks, 4 * ks, vA0))
    e("v_lshlrev_b32 v%d, 4, v%d" % (vUKa + ks, vUKa + ks))
    e("v_lshl_add_u32 v%d, v%d, 8, v%d" % (vUKa + ks, vN, vUKa + ks))
    e("v_add_u32 v%d, s%d, v%d" % (vUKa + ks, sT0, vUKa + ks))
e("v_lshlrev_b32 v%d, 8, v%d" % (vA0, vN))
e("v_lshl_add_u32 v%d, v%d, 4, v%d" % (vA0, vG, vA0))
for k in range(8): e("v_mov_b32 v%d, 0" % (vT + k))
e("s_mov_b32 s%d, 0x00ff00ff" % sE0)
e("s_mov_b32 s%d, 0x00ff00ff" % (sE0 + 1))
e("s_lshl_b32 s%d, s%d, 9" % (sT2, sXI))
e("s_add_u32 s%d, s%d, %d" % (sT2, sT2, QP))
e("s_lshl_b32 s%d, s%d, 11" % (sT3, sH))
e("s_add_u32 s%d, s%d, %d" % (sT3, sT3, QP))
e("s_waitcnt lgkmcnt(0)")
for k in range(10): e("v_lshrrev_b32 v%d, 16, v%d" % (vL0 + k, vL1 + k))
stamp(2)
def a1(extra):
    for i in range(10):
        e("s_waitcnt vmcnt(%d)" % (9 - i + extra))
        for k in range(4):
            e("v_dot2c_f32_bf16 v%d, v%d, v%d" % (vT + 2 * k, vWQ + 4 * i + k, vL0 + i))
            e("v_dot2c_f32_bf16 v%d, v%d, v%d" % (vT + 2 * k + 1, vWQ + 4 * i + k, vL1 + i))
    e("s_nop 3")
la_ = e.newlabel("L_a1"); lb_ = e.newlabel("L_a1")
e("s_cmp_eq_u32 s%d, 0" % sW)
e("s_cbranch_scc1 %s" % la_)
a1(0)
e("s_branch %s" % lb_)
e(la_ + ":")
a1(1)
e(lb_ + ":")
rs_8to2(vT)
e("ds_write_b64 v%d, %s offset:%d" % (vA1, vr(vT, 2), L_RED))
lfo = e.newlabel("L_fo"); lfp = e.newlabel("L_fp"); lf1 = e.newlabel("L_f1")
e("s_mov_b32 s%d, 0" % sCNT)
e("s_cmp_lg_u32 s%d, 0" % sW)
e("s_cbranch_scc1 %s" % lfo)
setexec(1)
e("s_branch %s" % lf1)
e(lfp + ":")
setexec(1)
e("buffer_load_dword v%d, v%d, %s, s%d offen sc1" % (vL16 + 1, vT + 20, srd(S_DBG), sF + 3))
e(lf1 + ":")
e("s_waitcnt vmcnt(0)")
e("v_cmp_eq_u32 vcc, 0, v%d" % (vL16 + 1))
setexec(-1)
e("s_cbranch_vccz %s" % lfo)
e("s_add_u32 s%d, s%d, 1" % (sCNT, sCNT))
e("s_cmp_gt_u32 s%d, %d" % (sCNT, SPIN))
e("s_cbranch_scc1 %s" % lfo)
e("s_sleep 2")
e("s_branch %s" % lfp)
e(lfo + ":")
e("s_waitcnt lgkmcnt(0)")
e("s_barrier")
stamp(3)
lw = e.newlabel("L_a1w")
e("s_cmp_lg_u32 s%d, 0" % sW)
e("s_cbranch_scc1 %s" % lw)
for i in range(4):
    e("ds_read_b64 %s, v%d offset:%d" % (vr(vG0 + 2 * i, 2), vA2, L_RED + 512 * i))
e(lw + ":")
stamp(14)
if DIAG: e("v_writelane_b32 v%d, s%d, 20" % (vTSV, sCNT))
lw = e.newlabel("L_a1w")
e("s_cmp_lg_u32 s%d, 0" % sW)
e("s_cbranch_scc1 %s" % lw)
e("s_waitcnt lgkmcnt(0)")
v = vG0
e("v_pk_add_f32 %s, %s, %s" % (vr(v, 2), vr(v, 2), vr(v + 2, 2)))
e("v_pk_add_f32 %s, %s, %s" % (vr(v + 4, 2), vr(v + 4, 2), vr(v + 6, 2)))
e("v_pk_add_f32 %s, %s, %s" % (vr(v, 2), vr(v, 2), vr(v + 4, 2)))
e("v_min_u32 v%d, -2, v%d" % (v, v))
e("v_min_u32 v%d, -2, v%d" % (v + 1, v + 1))
e("buffer_store_dwordx2 %s, v%d, %s, s%d offen sc1" % (vr(v, 2), vA2, srd(S_WS), sT2))
e(lw + ":")
stamp(16)
if opt("d1", 0): e("s_sleep %d" % opt("d1", 0))
vQ8 = 100
e("s_lshl_b32 s%d, s%d, 8" % (sT0, sW))
e("v_add_u32 v%d, s%d, v%d" % (vT + 28, sT0, vT + 29))
e("v_lshlrev_b32 v%d, 4, v%d" % (vA0, vG))
e("v_add_u32 v%d, s%d, v%d" % (vA0, sT0, vA0))
poll([("buffer_load_dwordx2 %s, v%d, %s, s%d offen offset:%d sc1\nbuffer_load_dwordx2 %s, v%d, %s, s%d offen offset:%d sc1" % (vr(vQ8 + 4 * k, 2), vA2, srd(S_WS), sT3, 1024 * k, vr(vQ8 + 4 * k + 2, 2), vA2, srd(S_WS), sT3, 1024 * k + 512), vQ8 + 4 * k, 4) for k in range(2)], sleep=1)
stamp(15)
if DIAG: e("v_writelane_b32 v%d, s%d, 21" % (vTSV, sCNT))
e("v_pk_add_f32 %s, %s, %s" % (vr(vT, 2), vr(vQ8, 2), vr(vQ8 + 2, 2)))
e("v_pk_add_f32 %s, %s, %s" % (vr(vT + 2, 2), vr(vQ8 + 4, 2), vr(vQ8 + 6, 2)))
e("v_pk_add_f32 %s, %s, %s" % (vr(vT, 2), vr(vT, 2), vr(vT + 2, 2)))
e("v_cvt_pk_bf16_f32 v%d, v%d, v%d" % (vT, vT, vT + 1))
e("ds_write_b32 v%d, v%d offset:%d" % (vT + 28, vT, L_LN))
e("s_waitcnt lgkmcnt(0)")
vQA = 204
for ks in range(4):
    e("ds_read_b128 %s, v%d offset:%d" % (vr(vQA + 4 * ks, 4), vA0, L_LN + 64 * ks))
lr = e.newlabel("L_ew")
e("s_cmp_lg_u32 s%d, 1" % sW)
e("s_cbranch_scc1 %s" % lr)
e("s_lshl_b32 s%d, s%d, 6" % (sT0, sXI))
e("s_add_u32 s%d, s%d, %d" % (sT0, sT0, EWA))
store1(sT0)
e(lr + ":")
e("s_barrier")
vUK = 48
for t in range(2):
    for ks in range(4):
        e("ds_read_b128 %s, v%d offset:%d" % (vr(vUK + 16 * t + 4 * ks, 4), vUKa + ks, 4096 * t))
e("s_lshl_b32 s%d, s%d, 8" % (sT0, sXI))
e("s_lshl_b32 s%d, s%d, 6" % (sT1, sW))
e("s_add_u32 s%d, s%d, s%d" % (sT0, sT0, sT1))
e("v_lshlrev_b32 v%d, 1, v%d" % (vA1, vLANE))
for t in range(2):
    for ks in range(4):
        e("s_waitcnt lgkmcnt(%d)" % (7 - 4 * t - ks))
        e("v_mfma_f32_16x16x32_bf16 %s, %s, %s, %s" % (vr(vT + 4 * t, 4), vr(vQA + 4 * ks, 4), vr(vUK + 16 * t + 4 * ks, 4), "0" if ks == 0 else vr(vT + 4 * t, 4)))
e("v_mov_b32_dpp v%d, v%d quad_perm:[0,1,2,3] row_mask:0x2 bank_mask:0xf" % (vT, vT + 4))
e("v_mov_b32_dpp v%d, v%d row_shl:1 row_mask:0xf bank_mask:0xf bound_ctrl:0" % (vT + 1, vT))
e("v_cvt_pk_bf16_f32 v%d, v%d, v%d" % (vT, vT, vT + 1))
e("v_min_u32 v%d, -2, v%d" % (vT, vT))
setexec(0x55555555)
e("buffer_store_dword v%d, v%d, %s, s%d offen sc1" % (vT, vA1, srd(S_WS), sT0))
setexec(-1)
stamp(4)
e("s_barrier")
e("s_lshr_b32 s%d, s%d, 4" % (sT0, sH))
e("s_lshl_b32 s%d, s%d, 7" % (sT0, sT0))
e("s_and_b32 s%d, s%d, 15" % (sT1, sH))
e("s_lshl_b32 s%d, s%d, 3" % (sT1, sT1))
e("s_add_u32 s%d, s%d, s%d" % (sT0, sT0, sT1))
e("s_add_u32 s%d, s%d, %d" % (sT0, sT0, STAT))
e("s_lshl_b32 s%d, s%d, 12" % (sT1, sW))
e("s_add_u32 s%d, s%d, s%d" % (sT1, sT1, sT0))
e("v_lshlrev_b32 v%d, 8, v%d" % (vA1, vLANE))
e("v_lshlrev_b32 v%d, 15, v%d" % (vA2, vG))
e("v_lshl_add_u32 v%d, v%d, 4, v%d" % (vA2, vN, vA2))
e("s_lshl_b32 s%d, s%d, 19" % (sT2, sW))
e("s_lshl_b32 s%d, s%d, 8" % (sT3, sXI))
e("s_add_u32 s%d, s%d, s%d" % (sT2, sT2, sT3))
e("s_add_u32 s%d, s%d, %d" % (sT2, sT2, PART))
e("s_add_u32 s%d, s%d, 0x20000" % (sT3, sT2))
e("s_add_u32 s%d, s%d, 0x40000" % (sT4, sT2))
e("s_add_u32 s%d, s%d, 0x60000" % (sF, sT2))
e("s_lshl_b32 s%d, s%d, 6" % (sF + 1, sW))
e("v_lshlrev_b32 v%d, 2, v%d" % (vA0, vG))
e("v_add_u32 v%d, s%d, v%d" % (vA0, sF + 1, vA0))
vSo, vSa, vD = vG0, vG0 + 8, vG0 + 12
e("s_barrier")
frag_prep()
stamp(5)
NH3 = opt("nh3", 4)
e("s_and_b32 s%d, s%d, 15" % (sF + 2, sXI))
hint_addr(sF + 2, 16 // NH3 if NH3 > 1 else 1, 16, vA3)
e("v_lshlrev_b32 v%d, 1, v%d" % (vA3, vA3))
e("s_lshl_b32 s%d, s%d, 11" % (sF + 3, sW))
e("s_lshr_b32 s%d, s%d, 4" % (sF + 2, sH))
e("s_lshl_b32 s%d, s%d, 6" % (sF + 2, sF + 2))
e("s_add_u32 s%d, s%d, s%d" % (sF + 3, sF + 3, sF + 2))
e("s_add_u32 s%d, s%d, %d" % (sF + 3, sF + 3, EWB + 32))
poll([("buffer_load_dword v%d, v%d, %s, s%d offen offset:4 sc1" % (vSo, vA1, srd(S_WS), sT1), vSo, 1),
      ("buffer_load_dword v%d, v%d, %s, s%d offen sc1" % (vSo + 1, vA3, srd(S_WS), sF + 3), vSo + 1, 1)], sleep=opt("sl3", 3), init_masks=["0xffff", "0x%x" % ((1 << NH3) - 1)])
stamp(6)
if opt("d3", 0): e("s_sleep %d" % opt("d3", 0))
poll([("buffer_load_dwordx4 %s, v%d, %s, s%d offen sc1" % (vr(vD + 4 * i, 4), vA2, srd(S_WS), [sT2, sT3, sT4, sF][i]), vD + 4 * i, 4) for i in range(4)]
     + [("buffer_load_dwordx2 %s, v%d, %s, s%d offen sc1" % (vr(vSa, 2), vA1, srd(S_WS), sT0), vSa, -2)], sleep=opt("sl3b", 1))
stamp(7)
if DIAG: e("v_writelane_b32 v%d, s%d, 22" % (vTSV, sCNT))
e("v_mov_b32 v%d, v%d" % (vT + 8, vSa))
wave_red([vT + 8], [sT0], "v_max_f32")
e("v_mov_b32 v%d, s%d" % (vT + 9, sT0))
e("v_mul_f32 v%d, s%d, v%d" % (vT + 9, sL2E, vT + 9))
wv = vT + 12
e("v_fma_f32 v%d, v%d, s%d, -v%d" % (wv, vSa, sL2E, vT + 9))
e("v_exp_f32 v%d, v%d" % (wv, wv))
e("v_cvt_pk_bf16_f32 v%d, v%d, v%d" % (wv, wv, wv))
e("v_lshlrev_b32 v%d, 16, v%d" % (wv, wv))
for i in range(4):
    e("ds_bpermute_b32 v%d, v%d, v%d offset:%d" % (vSo + 2 * i + 1, vA0, wv, 16 * i))
e("v_mul_f32 v%d, v%d, v%d" % (wv + 1, wv, vSa + 1))
for k in range(8): e("v_mov_b32 v%d, 0" % (vT + k))
wave_red([wv + 1], [sT0])
for i in range(4):
    e("s_waitcnt lgkmcnt(%d)" % (3 - i))
    e("v_lshrrev_b32 v%d, 16, v%d" % (vSo + 2 * i, vSo + 2 * i + 1))
    for k in range(4):
        e("v_dot2c_f32_bf16 v%d, v%d, v%d" % (vT + 2 * k + 1, vD + 4 * i + k, vSo + 2 * i + 1))
    for k in range(4):
        e("v_dot2c_f32_bf16 v%d, v%d, v%d" % (vT + 2 * k, vD + 4 * i + k, vSo + 2 * i))
e("v_rcp_f32 v%d, s%d" % (vT + 8, sT0))
rs_8to2(vT)
e("v_mul_f32 v%d, v%d, v%d" % (vT, vT, vT + 8))
e("v_mul_f32 v%d, v%d, v%d" % (vT + 1, vT + 1, vT + 8))
hilo_write(vT, vQLw)
e("s_branch %s" % lc1)
e(lS + ":")
e("s_sub_u32 s%d, s%d, 4" % (sT3, sW))
l1 = e.newlabel("L_c")
e("s_cmp_lg_u32 s%d, 4" % sW)
e("s_cbranch_scc1 %s" % l1)
e("s_lshl_b32 s%d, s2, 7" % sT0)
e("s_add_u32 s%d, s%d, %d" % (sT0, sT0, HP))
setexec(0xff)
e("buffer_store_dwordx4 %s, v%d, %s, s%d offen sc1" % (vr(vCL, 4), vL16, srd(S_WS), sT0))
e("s_lshl_b32 s%d, s2, 6" % sT0)
e("s_add_u32 s%d, s%d, %d" % (sT0, sT0, EWC))
setexec(0xf)
e("buffer_store_dwordx4 %s, v%d, %s, s%d offen sc1" % (vr(vCL, 4), vL16, srd(S_WS), sT0))
e("s_lshr_b32 s%d, s%d, 4" % (sT0, sH))
e("s_lshl_b32 s%d, s%d, 7" % (sT0, sT0))
e("s_and_b32 s%d, s%d, 15" % (sT1, sH))
e("s_lshl_b32 s%d, s%d, 3" % (sT1, sT1))
e("s_add_u32 s%d, s%d, s%d" % (sT0, sT0, sT1))
e("s_lshl_b32 s%d, s%d, 12" % (sT1, sCQ))
e("s_add_u32 s%d, s%d, s%d" % (sT0, sT0, sT1))
e("s_add_u32 s%d, s%d, %d" % (sT0, sT0, STAT))
setexec(0xffff)
e("v_lshlrev_b32 v%d, 8, v%d" % (vA0, vLANE))
e("buffer_store_dwordx2 %s, v%d, %s, s%d offen sc1" % (vr(vCL, 2), vA0, srd(S_WS), sT0))
setexec(-1)
e(l1 + ":")
e("s_lshl_b32 s%d, s%d, 7" % (sF, sCQ))
e("s_lshl_b32 s%d, s%d, 5" % (sT1, sT3))
e("s_add_u32 s%d, s%d, s%d" % (sF, sF, sT1))
e("s_lshl_b32 s%d, s%d, 13" % (sF, sF))
e("s_lshl_b32 s%d, s%d, 8" % (sT1, sH))
e("s_add_u32 s%d, s%d, s%d" % (sF, sF, sT1))
e("v_xor_b32 v%d, v%d, v%d" % (vA2, vN, vG))
for k in range(4):
    e("v_xor_b32 v%d, %d, v%d" % (vT + k, 4 * k, vA2))
    e("v_lshlrev_b32 v%d, 4, v%d" % (vT + k, vT + k))
    e("v_lshl_add_u32 v%d, v%d, 13, v%d" % (vT + k, vG, vT + k))
e("s_mov_b32 s%d, s%d" % (sT0, sF))
e("s_lshl_b32 s%d, s%d, 13" % (sT2, sT3))
e("s_add_u32 s%d, s%d, %d" % (sT2, sT2, L_WUK))
e("s_barrier")
e("s_barrier")
for k in range(8):
    e("s_mov_b32 m0, s%d" % sT2)
    e("buffer_load_dwordx4 v%d, %s, s%d offen%s lds" % (vT + (k & 3), srd(S_WUK), sT0, NT))
    if k < 7:
        e("s_add_u32 s%d, s%d, 32768" % (sT0, sT0))
        e("s_add_u32 s%d, s%d, 1024" % (sT2, sT2))
e("s_waitcnt vmcnt(8)")
e("s_barrier")
e("s_waitcnt vmcnt(0)")
stamp(12)
def uv_dma():
    e("v_lshrrev_b32 v%d, 1, v%d" % (vA2, vG))
    e("v_lshlrev_b32 v%d, 2, v%d" % (vA2, vA2))
    e("v_xor_b32 v%d, v%d, v%d" % (vA2, vA2, vN))
    e("s_and_b32 s%d, s%d, 1" % (sT0, sT3))
    e("s_lshl_b32 s%d, s%d, 1" % (sT0, sT0))
    e("v_xor_b32 v%d, s%d, v%d" % (vA2, sT0, vA2))
    for c, cv in enumerate((0, 8, 1, 9)):
        e("v_xor_b32 v%d, %d, v%d" % (vT + c, cv, vA2))
        e("v_lshlrev_b32 v%d, 4, v%d" % (vT + c, vT + c))
        e("v_lshl_add_u32 v%d, v%d, 13, v%d" % (vT + c, vG, vT + c))
    e("s_mov_b32 s%d, s%d" % (sT0, sF))
    e("s_lshl_b32 s%d, s%d, 13" % (sT2, sT3))
    e("s_add_u32 s%d, s%d, %d" % (sT2, sT2, L_WUV))
    for k in range(8):
        e("s_mov_b32 m0, s%d" % sT2)
        e("buffer_load_dwordx4 v%d, %s, s%d offen%s lds" % (vT + 2 * (k >> 2) + (k & 1), srd(S_WUV), sT0, NT))
        if k < 7:
            e("s_add_u32 s%d, s%d, 32768" % (sT0, sT0))
            e("s_add_u32 s%d, s%d, 1024" % (sT2, sT2))
if opt("uve", 0): uv_dma()
e("s_barrier")
e("s_barrier")
if not opt("uve", 0): uv_dma()
lno = e.newlabel("L_no")
e("s_cmp_ge_u32 s2, 120")
e("s_cbranch_scc1 %s" % lno)
e("v_lshrrev_b32 v%d, 3, v%d" % (vA0, vLANE))
e("v_mul_u32_u24 v%d, 1280, v%d" % (vA0, vA0))
e("v_and_b32 v%d, 7, v%d" % (vA1, vLANE))
e("v_and_b32 v%d, 1, v%d" % (vA2, vG))
e("v_xor_b32 v%d, v%d, v%d" % (vA1, vA1, vA2))
e("s_lshl_b32 s%d, s%d, 1" % (sT0, sT3))
e("v_xor_b32 v%d, s%d, v%d" % (vA1, sT0, vA1))
e("v_lshl_add_u32 v%d, v%d, 4, v%d" % (vA0, vA1, vA0))
e("s_lshl_b32 s%d, s%d, 2" % (sT0, sUS))
e("s_add_u32 s%d, s%d, s%d" % (sT0, sT0, sT3))
e("s_mul_i32 s%d, s%d, 10240" % (sT0, sT0))
e("s_lshl_b32 s%d, s%d, 7" % (sT1, sST))
e("s_add_u32 s%d, s%d, s%d" % (sT0, sT0, sT1))
e("s_lshl_b32 s%d, s%d, 10" % (sT2, sT3))
e("s_add_u32 s%d, s%d, %d" % (sT2, sT2, L_WO))
for k in range(11):
    if k == 10:
        e("s_cmp_lt_u32 s%d, 11" % sNU)
        e("s_cbranch_scc1 %s" % lno)
    e("s_mov_b32 m0, s%d" % sT2)
    e("buffer_load_dwordx4 v%d, %s, s%d offen%s lds" % (vA0, srd(S_WO), sT0, NT))
    if k < 10:
        e("s_add_u32 s%d, s%d, 40960" % (sT0, sT0))
        e("s_add_u32 s%d, s%d, 4096" % (sT2, sT2))
e(lno + ":")
e("s_waitcnt vmcnt(0)")
stamp(11)
e("s_barrier")
frag_prep()
e(lc1 + ":")
e("s_lshl_b32 s%d, s%d, 5" % (sT1, sW))
e("s_lshl_b32 s%d, s%d, 8" % (sT0, sXI))
e("s_add_u32 s%d, s%d, s%d" % (sT0, sT0, sT1))
e("s_add_u32 s%d, s%d, %d" % (sT0, sT0, CP))
e("s_waitcnt lgkmcnt(0)")
e("s_barrier")
setexec(0x00ff00ff00ff00ff)
for ks in range(4):
    e("ds_read_b128 %s, v%d offset:%d" % (vr(vCF + 4 * ks, 4), vQLr, 64 * ks))
setexec(-1)
for ks in range(4):
    e("s_waitcnt lgkmcnt(%d)" % (3 - ks))
    e("v_mfma_f32_16x16x32_bf16 %s, %s, %s, %s" % (vr(vT, 4), vr(vCF + 4 * ks, 4), vr(vBUV + 4 * ks, 4), "0" if ks == 0 else vr(vT, 4)))
e("v_add_f32 v%d, v%d, v%d" % (vT, vT, vT + 1))
e("v_add_f32 v%d, v%d, v%d" % (vT + 2, vT + 2, vT + 3))
e("v_add_f32 v%d, v%d, v%d" % (vT, vT, vT + 2))
e("v_mov_b32 v%d, v%d" % (vT + 1, vT))
e("v_permlane16_swap_b32 v%d, v%d" % (vT, vT + 1))
e("v_add_f32 v%d, v%d, v%d" % (vT, vT, vT + 1))
e("v_mov_b32_dpp v%d, v%d row_shl:1 row_mask:0xf bank_mask:0xf bound_ctrl:0" % (vT + 1, vT))
e("v_cvt_pk_bf16_f32 v%d, v%d, v%d" % (vT, vT, vT + 1))
e("v_min_u32 v%d, -2, v%d" % (vT, vT))
setexec(0x5555)
e("buffer_store_dword v%d, v%d, %s, s%d offen sc1" % (vT, vOutA, srd(S_WS), sT0))
setexec(-1)
stamp(8)
e("s_cmp_ge_u32 s2, 120")
e("s_cbranch_scc1 L_fin")
vG2 = 204
e("v_lshlrev_b32 v%d, 8, v%d" % (vA0, vN))
e("v_lshl_add_u32 v%d, v%d, 4, v%d" % (vA0, vG, vA0))
e("s_add_u32 s%d, s%d, s%d" % (sT1, sUS, sW))
e("s_lshr_b32 s%d, s%d, 2" % (sT0, sT1))
e("s_lshl_b32 s%d, s%d, 10" % (sT0, sT0))
e("s_and_b32 s%d, s%d, 3" % (sT1, sT1))
e("s_lshl_b32 s%d, s%d, 6" % (sT1, sT1))
e("s_add_u32 s%d, s%d, s%d" % (sT0, sT0, sT1))
e("s_add_u32 s%d, s%d, %d" % (sT0, sT0, CP))
for k in range(8): e("v_mov_b32 v%d, 0" % (vG2 + k))
e("s_mov_b32 s%d, 0x000f000f" % sE0)
e("s_mov_b32 s%d, 0x000f000f" % (sE0 + 1))
e("s_add_u32 s%d, s%d, 8" % (sT1, sW))
e("s_cmp_lt_u32 s%d, s%d" % (sT1, sNU))
e("s_cselect_b64 %s, %s, 0" % (sp(sE1), sp(sE0)))
e("s_cselect_b32 s%d, 1, 0" % sT4)
e("v_lshlrev_b32 v%d, 2, v%d" % (vA1, vLANE))
e("s_lshl_b32 s%d, s%d, 8" % (sT1, sW))
e("v_add_u32 v%d, s%d, v%d" % (vA2, sT1, vA1))
e("s_lshl_b32 s%d, s2, 6" % sT2)
e("s_add_u32 s%d, s%d, %d" % (sT2, sT2, EWC))
if opt("d4", 0): e("s_sleep %d" % opt("d4", 0))
poll([("buffer_load_dwordx4 %s, v%d, %s, s%d offen offset:%d sc1" % (vr(vG2 + 4 * j, 4), vA0, srd(S_WS), sT0, 2048 * j), vG2 + 4 * j, 4) for j in range(2)], sleep=1, init_masks=[sp(sE0), sp(sE1)])
lr = e.newlabel("L_ew")
e("s_cmp_lg_u32 s%d, 0" % sW)
e("s_cbranch_scc1 %s" % lr)
store1(sT2)
e(lr + ":")
stamp(9)
e("s_waitcnt lgkmcnt(0)")
for t in range(4):
    e("v_mfma_f32_16x16x32_bf16 %s, %s, %s, 0" % (vr(vT + 4 * t, 4), vr(vG2, 4), vr(vBO + 4 * t, 4)))
l2u = e.newlabel("L_2u")
e("s_cmp_eq_u32 s%d, 0" % sT4)
e("s_cbranch_scc1 %s" % l2u)
for t in range(4):
    e("v_mfma_f32_16x16x32_bf16 %s, %s, %s, %s" % (vr(vT + 4 * t, 4), vr(vG2 + 4, 4), vr(vBO + 16 + 4 * t, 4), vr(vT + 4 * t, 4)))
e(l2u + ":")
e("s_lshl_b32 s%d, s2, 7" % sT0)
e("s_add_u32 s%d, s%d, %d" % (sT0, sT0, HP))
setexec(0xffff)
e("s_nop 4")
for t in range(4):
    b = vT + 4 * t
    e("v_add_f32 v%d, v%d, v%d" % (b, b, b + 1))
    e("v_add_f32 v%d, v%d, v%d" % (b + 2, b + 2, b + 3))
    e("v_add_f32 v%d, v%d, v%d" % (b, b, b + 2))
    e("ds_write_b32 v%d, v%d offset:%d" % (vA2, b, L_RED + 64 * t))
setexec(-1)
e("s_waitcnt lgkmcnt(0)")
e("s_barrier")
e("s_cmp_lg_u32 s%d, 0" % sW)
e("s_cbranch_scc1 L_fin")
e("v_lshlrev_b32 v%d, 3, v%d" % (vA2, vLANE))
setexec(0xffffffff)
for i in range(8):
    e("ds_read_b64 %s, v%d offset:%d" % (vr(vG2 + 8 + 2 * i, 2), vA2, L_RED + 256 * i))
e("s_waitcnt lgkmcnt(0)")
for st in (4, 2, 1):
    for i in range(st):
        e("v_pk_add_f32 %s, %s, %s" % (vr(vG2 + 8 + 2 * i, 2), vr(vG2 + 8 + 2 * i, 2), vr(vG2 + 8 + 2 * (i + st), 2)))
e("v_cvt_pk_bf16_f32 v%d, v%d, v%d" % (vG2 + 8, vG2 + 8, vG2 + 9))
e("v_min_u32 v%d, -2, v%d" % (vG2 + 8, vG2 + 8))
e("buffer_store_dword v%d, v%d, %s, s%d offen sc1" % (vG2 + 8, vA1, srd(S_WS), sT0))
setexec(-1)
stamp(10)
e("s_branch L_fin")

vCA, vCB, vGQ, vACC, vP = 48, 112, 176, 208, 224
e("L_Y:")
if opt("cpf", 0):
    lp_ = e.newlabel("L_cpf")
    e("s_cmp_lg_u32 s%d, 14" % sA)
    e("s_cbranch_scc1 %s" % lp_)
    e("s_getpc_b64 s[%d:%d]" % (sTM, sTM + 1))
    e.raw("L_pcref:")
    e.raw("    s_sub_u32 s%d, s%d, (L_pcref - %s)" % (sTM, sTM, KN))
    e.raw("    s_subb_u32 s%d, s%d, 0" % (sTM + 1, sTM + 1))
    e("v_lshlrev_b32 v%d, 4, v0" % vA0)
    for k in range(opt("cpf", 0)):
        e("global_load_dwordx4 %s, v%d, s[%d:%d]" % (vr(48 + 4 * k, 4), vA0, sTM, sTM + 1))
        e("v_add_u32 v%d, 8192, v%d" % (vA0, vA0))
    e(lp_ + ":")
l5 = e.newlabel("L_c"); l6 = e.newlabel("L_c"); l7 = e.newlabel("L_c")
e("s_cmp_lt_u32 s2, 248")
e("s_cbranch_scc1 %s" % l5)
e("s_lshl_b32 s%d, s%d, 13" % (sT2, sB))
e("s_lshl_b32 s%d, s%d, 10" % (sT3, sW))
e("s_add_u32 s%d, s%d, s%d" % (sT2, sT2, sT3))
e("s_add_u32 s%d, s%d, %d" % (sT2, sT2, QP))
e("buffer_store_dwordx4 %s, v%d, %s, s%d offen sc1" % (vr(vCL, 4), vL16, srd(S_WS), sT2))
e("s_lshl_b32 s%d, s%d, 12" % (sT2, sB))
e("s_and_b32 s%d, s%d, 3" % (sT3, sW))
e("s_lshl_b32 s%d, s%d, 10" % (sT3, sT3))
e("s_add_u32 s%d, s%d, s%d" % (sT2, sT2, sT3))
e("s_lshr_b32 s%d, s%d, 2" % (sT3, sW))
e("s_lshl_b32 s%d, s%d, 15" % (sT3, sT3))
e("s_add_u32 s%d, s%d, s%d" % (sT2, sT2, sT3))
e("buffer_store_dwordx4 %s, v%d, %s, s%d offen sc1" % (vr(vCL, 4), vL16, srd(S_WS), sT2))
e("s_cmp_lt_u32 s%d, 6" % sW)
e("s_cbranch_scc1 %s" % l6)
e("s_lshl_b32 s%d, s%d, 10" % (sT2, sB))
e("s_mov_b32 s%d, %d" % (sT3, EWA))
e("s_cmp_eq_u32 s%d, 6" % sW)
e("s_cselect_b32 s%d, %d, s%d" % (sT3, EWB, sT3))
e("s_add_u32 s%d, s%d, s%d" % (sT2, sT2, sT3))
e("buffer_store_dwordx4 %s, v%d, %s, s%d offen sc1" % (vr(vCL, 4), vL16, srd(S_WS), sT2))
e(l6 + ":")
e("s_waitcnt vmcnt(0)")
e("s_barrier")
e("s_cmp_lg_u32 s%d, 0" % sW)
e("s_cbranch_scc1 %s" % l7)
e("s_lshl_b32 s%d, s%d, 5" % (sT2, sB))
e("v_mov_b32 v%d, 1" % vA3)
setexec(1)
e("buffer_store_dword v%d, v%d, %s, s%d offen sc1" % (vA3, vL16, srd(S_DBG), sT2))
setexec(-1)
stamp(17)
e(l7 + ":")
e("s_barrier")
e(l5 + ":")
e("s_lshl_b32 s%d, s%d, 3" % (sKS, sB))
e("s_lshr_b32 s%d, s%d, 1" % (sT0, sA))
e("s_add_u32 s%d, s%d, s%d" % (sKS, sKS, sT0))
e("s_and_b32 s%d, s%d, 1" % (sHF, sA))
e("s_lshl_b32 s%d, s%d, 1" % (sYI, sKS))
e("s_add_u32 s%d, s%d, s%d" % (sYI, sYI, sHF))
e("s_lshr_b32 s%d, s%d, 1" % (sT1, sA))
e("s_lshl_b32 s%d, s%d, 3" % (sT1, sT1))
e("s_add_u32 s%d, s%d, s%d" % (sT1, sT1, sB))
e("s_and_b32 s%d, s%d, 1" % (sT0, sA))
e("s_lshl_b32 s%d, s%d, 1" % (sRD, sT1))
e("s_add_u32 s%d, s%d, s%d" % (sRD, sRD, sT0))
e("s_cmp_lt_u32 s%d, 27" % sT1)
e("s_cselect_b32 s%d, 1, 0" % sISD)
e("s_cmp_lt_u32 s%d, 20" % sT1)
e("s_cselect_b32 s%d, 1, 0" % sFIN)
e("s_cmp_eq_u32 s%d, 0" % sT0)
e("s_cselect_b32 s%d, s%d, 0" % (sFIN, sFIN))
def y_dma():
    e("s_lshl_b32 s%d, s%d, 7" % (sT0, sKS))
    e("s_lshl_b32 s%d, s%d, 4" % (sT2, sW))
    e("s_add_u32 s%d, s%d, s%d" % (sT0, sT0, sT2))
    e("s_lshl_b32 s%d, s%d, 10" % (sT0, sT0))
    e("s_mul_i32 s%d, s%d, %d" % (sT2, sT2, RS))
    e("s_add_u32 s%d, s%d, %d" % (sT2, sT2, L_CK))
    for j in range(2):
        e("s_xor_b32 s%d, s%d, %d" % (sT3, sHF, j))
        e("s_lshl_b32 s%d, s%d, 13" % (sT1, sT3))
        e("s_add_u32 s%d, s%d, s%d" % (sT1, sT1, sT0))
        e("s_mul_i32 s%d, s%d, %d" % (sT3, sT3, 8 * RS))
        e("s_add_u32 s%d, s%d, s%d" % (sT3, sT3, sT2))
        for i in range(8):
            e("s_mov_b32 m0, s%d" % sT3)
            e("buffer_load_dwordx4 v%d, %s, s%d offen%s lds" % (vL16, srd(S_CKV), sT1, NTC))
            if i < 7:
                e("s_add_u32 s%d, s%d, 1024" % (sT1, sT1))
                e("s_add_u32 s%d, s%d, %d" % (sT3, sT3, RS))
def y_pclr():
    e("s_lshl_b32 s%d, s%d, 14" % (sT0, sYI))
    e("s_lshl_b32 s%d, s%d, 11" % (sT1, sW))
    e("s_add_u32 s%d, s%d, s%d" % (sT0, sT0, sT1))
    e("s_add_u32 s%d, s%d, %d" % (sT0, sT0, PART))
    for i in range(2):
        e("buffer_store_dwordx4 %s, v%d, %s, s%d offen offset:%d sc1" % (vr(vCL, 4), vL16, srd(S_WS), sT0, 1024 * i))
def y_clr():
    if not opt("ypc", 1): y_pclr()
    l3 = e.newlabel("L_c")
    e("s_cmp_eq_u32 s%d, 0" % sISD)
    e("s_cbranch_scc1 %s" % l3)
    e("s_cmp_gt_u32 s%d, 2" % sW)
    e("s_cbranch_scc1 %s" % l3)
    e("s_mul_i32 s%d, s%d, 2560" % (sT0, sRD))
    e("s_add_u32 s%d, s%d, %d" % (sT0, sT0, OP))
    e("v_lshlrev_b32 v%d, 4, v0" % vA3)
    e("v_cmp_gt_u32 vcc, 160, v0")
    e("s_mov_b64 exec, vcc")
    e("buffer_store_dwordx4 %s, v%d, %s, s%d offen sc1" % (vr(vCL, 4), vA3, srd(S_WS), sT0))
    setexec(-1)
    e(l3 + ":")
if opt("yord", 0):
    y_clr()
    e("s_waitcnt vmcnt(0)")
    for _ in range(opt("ydel", 0)): e("s_sleep 16")
    y_dma()
else:
    for _ in range(opt("ydel", 0)): e("s_sleep 16")
    y_dma()
    y_clr()
vFr = 43
e("v_mul_u32_u24 v%d, %d, v%d" % (vFr, RS, vN))
e("v_lshl_add_u32 v%d, v%d, 4, v%d" % (vFr, vG, vFr))
e("s_mul_i32 s%d, s%d, %d" % (sT0, sW, 16 * RS))
e("s_add_u32 s%d, s%d, %d" % (sT0, sT0, L_CK))
e("v_add_u32 v%d, s%d, v%d" % (vA1, sT0, vFr))
lr = e.newlabel("L_r")
e("s_cmp_lg_u32 s%d, 0" % sW)
e("s_cbranch_scc1 %s" % lr)
flag_check()
e(lr + ":")
e("s_waitcnt vmcnt(0)")
stamp(1)
if opt("ypc", 1): y_pclr()
for ks in range(16):
    e("ds_read_b128 %s, v%d offset:%d" % (vr(vCA + 4 * ks, 4), vA1, 64 * ks))
    if ks == 7: e("s_waitcnt lgkmcnt(0)")
e("s_barrier")
stamp(2)
e("s_lshl_b32 s%d, s%d, 4" % (sT0, sHF))
e("s_lshl_b32 s%d, s%d, 1" % (sT1, sW))
e("s_add_u32 s%d, s%d, s%d" % (sT0, sT0, sT1))
e("s_lshl_b32 s%d, s%d, 10" % (sT2, sT0))
vQG = 240
for k in range(2):
    e("buffer_load_dwordx4 %s, v%d, %s, s%d offen offset:%d sc1" % (vr(vQG + 4 * k, 4), vL16, srd(S_WS), sT2, 1024 * k))
e("v_lshrrev_b32 v%d, 2, v%d" % (vA1, vN))
e("v_lshl_add_u32 v%d, v%d, 3, v%d" % (vA1, vG, vA1))
e("v_mul_u32_u24 v%d, %d, v%d" % (vA1, RS, vA1))
e("v_and_b32 v%d, 3, v%d" % (vA3, vN))
e("v_lshl_add_u32 v%d, v%d, 3, v%d" % (vA1, vA3, vA1))
e("s_lshl_b32 s%d, s%d, 7" % (sT0, sW))
e("s_add_u32 s%d, s%d, %d" % (sT0, sT0, L_CK))
e("v_add_u32 v%d, s%d, v%d" % (vA1, sT0, vA1))
e("v_add_u32 v%d, %d, v%d" % (vA2, 64 * RS, vA1))
e("s_waitcnt lgkmcnt(0)")
cnt = 0
for t in range(4):
    for kk in range(4):
        for u in range(2):
            e("ds_read_b64_tr_b16 %s, v%d offset:%d" % (vr(vCB + 16 * t + 4 * kk + 2 * u, 2), vA1 if kk < 2 else vA2, (32 * (kk & 1) + 4 * u) * RS + 32 * t))
            cnt += 1
            if cnt % 8 == 0: e("s_waitcnt lgkmcnt(0)")
vQSw, vQSr, vMXa, vPw, vPr, vPo = 240 - 16 + 16, 0, 0, 0, 0, 0
vQSw, vQSr, vMXa, vPw, vPr, vPo = vT + 20, vT + 21, vT + 22, vT + 23, vT + 24, vT + 25
e("s_mul_i32 s%d, s%d, %d" % (sT0, sW, 2 * RS))
e("s_add_u32 s%d, s%d, %d" % (sT0, sT0, L_QS))
e("v_add_u32 v%d, s%d, v%d" % (vQSw, sT0, vL16))
e("v_add_u32 v%d, %d, v%d" % (vQSr, L_QS, vFr))
e("v_lshlrev_b32 v%d, 5, v%d" % (vMXa, vN))
e("v_mul_u32_u24 v%d, %d, v%d" % (vPr, PRS, vN))
e("v_lshl_add_u32 v%d, v%d, 3, v%d" % (vPw, vG, vPr))
e("s_lshl_b32 s%d, s%d, 5" % (sT0, sW))
e("v_add_u32 v%d, s%d, v%d" % (vPw, sT0, vPw))
e("v_lshl_add_u32 v%d, v%d, 4, v%d" % (vPr, vG, vPr))
e("v_lshlrev_b32 v%d, 12, v%d" % (vPo, vG))
e("v_lshl_add_u32 v%d, v%d, 3, v%d" % (vPo, vN, vPo))
e("s_lshl_b32 s%d, s%d, 2" % (sT4, sW))
e("v_add_u32 v%d, s%d, v%d" % (vT + 26, sT4, vMXa))
e("v_lshlrev_b32 v%d, 7, v%d" % (vT + 27, vN))
e("v_lshl_add_u32 v%d, v%d, 2, v%d" % (vT + 27, vG, vT + 27))
e("s_lshl_b32 s%d, s%d, 4" % (sT4, sW))
e("v_add_u32 v%d, s%d, v%d" % (vT + 27, sT4, vT + 27))
e("s_lshl_b32 s%d, s%d, 4" % (sT0, sHF))
e("s_lshl_b32 s%d, s%d, 1" % (sT1, sW))
e("s_add_u32 s%d, s%d, s%d" % (sT0, sT0, sT1))
e("s_lshl_b32 s%d, s%d, 10" % (sT2, sT0))
NH2 = opt("nh2", 4)
e("s_lshl_b32 s%d, s%d, 8" % (sT0, sT0))
e("s_add_u32 s%d, s%d, %d" % (sT0, sT0, EWA))
e("s_and_b32 s%d, s%d, 7" % (sT1, sKS))
hint_addr(sT1, 8 // NH2 if NH2 > 1 else 1, 8, vA3)
lq = e.newlabel("L_qok")
e("s_waitcnt vmcnt(0)")
e("v_max3_u32 v%d, v%d, v%d, v%d" % (vT, vQG, vQG + 1, vQG + 2))
e("v_max3_u32 v%d, v%d, v%d, v%d" % (vT, vT, vQG + 3, vQG + 4))
e("v_max3_u32 v%d, v%d, v%d, v%d" % (vT, vT, vQG + 5, vQG + 6))
e("v_max_u32 v%d, v%d, v%d" % (vT, vT, vQG + 7))
e("v_cmp_eq_u32 vcc, -1, v%d" % vT)
e("s_cbranch_vccz %s" % lq)
poll([("buffer_load_dword v%d, v%d, %s, s%d offen sc1" % (vGQ, vA3, srd(S_WS), sT0), vGQ, 1)], sleep=opt("sl2", 3), init_masks=["0x%x" % ((1 << NH2) - 1)])
stamp(3)
poll([("buffer_load_dwordx4 %s, v%d, %s, s%d offen offset:%d sc1" % (vr(vQG + 4 * k, 4), vL16, srd(S_WS), sT2, 1024 * k), vQG + 4 * k, 4) for k in range(2)], sleep=1)
e(lq + ":")
stamp(4)
for k in range(2):
    e("ds_write_b128 v%d, %s offset:%d" % (vQSw, vr(vQG + 4 * k, 4), RS * k))
e("s_waitcnt lgkmcnt(0)")
e("s_barrier")
lmk = e.newlabel("L_mk")
e("s_cmp_lg_u32 s%d, 7" % sW)
e("s_cbranch_scc1 %s" % lmk)
e("s_lshl_b32 s%d, s%d, 7" % (sT0, sYI))
e("s_add_u32 s%d, s%d, %d" % (sT0, sT0, STAT))
e("v_lshlrev_b32 v%d, 3, v%d" % (vA1, vN))
e("v_mov_b32 v%d, 0" % (vT + 8))
e("v_mov_b32 v%d, -1.0" % (vT + 9))
setexec(0xffff)
e("buffer_store_dwordx2 %s, v%d, %s, s%d offen sc1" % (vr(vT + 8, 2), vA1, srd(S_WS), sT0))
setexec(-1)
e("s_lshl_b32 s%d, s%d, 6" % (sT0, sYI))
e("s_add_u32 s%d, s%d, %d" % (sT0, sT0, EWB))
store1(sT0)
e(lmk + ":")
L_W2 = L_W1 + 43008
if opt("w2e", 0):
    lwe = e.newlabel("L_w2e")
    e("s_cmp_eq_u32 s%d, 0" % sISD)
    e("s_cbranch_scc1 %s" % lwe)
    e("s_mul_i32 s%d, s%d, 5120" % (sF + 1, sW))
    e("s_mul_i32 s%d, s%d, 40960" % (sF, sRD))
    e("s_add_u32 s%d, s%d, s%d" % (sF, sF, sF + 1))
    e("s_add_u32 s%d, s%d, %d" % (sF + 1, sF + 1, L_W2))
    for k in range(5):
        e("s_mov_b32 m0, s%d" % (sF + 1))
        e("buffer_load_dwordx4 v%d, %s, s%d offen nt lds" % (vL16, srd(S_W2), sF))
        if k < 4:
            e("s_add_u32 s%d, s%d, 1024" % (sF, sF))
            e("s_add_u32 s%d, s%d, 1024" % (sF + 1, sF + 1))
    e(lwe + ":")
sacc = vT
for half in range(2):
    for k in range(8):
        e("ds_read_b128 %s, v%d offset:%d" % (vr(vGQ + 4 * k, 4), vQSr, 64 * (8 * half + k)))
    for k in range(8):
        ks = 8 * half + k
        e("s_waitcnt lgkmcnt(%d)" % (7 - k))
        e("v_mfma_f32_16x16x32_bf16 %s, %s, %s, %s" % (vr(sacc, 4), vr(vCA + 4 * ks, 4), vr(vGQ + 4 * k, 4), "0" if ks == 0 else vr(sacc, 4)))
if opt('mk', 0) == 0:
    lh1 = e.newlabel("L_h1")
    e("s_cmp_lg_u32 s%d, 6" % sW)
    e("s_cbranch_scc1 %s" % lh1)
    e("s_lshl_b32 s%d, s%d, 6" % (sT0, sYI))
    e("s_add_u32 s%d, s%d, %d" % (sT0, sT0, EWB + 32))
    store1(sT0)
    e(lh1 + ":")
e("s_mov_b32 s%d, 0x3db504f3" % sT0)
e("v_cvt_pk_bf16_f32 v%d, v%d, v%d" % (vT + 4, sacc, sacc + 1))
e("v_cvt_pk_bf16_f32 v%d, v%d, v%d" % (vT + 5, sacc + 2, sacc + 3))
unpack(sacc, vT + 4, 2)
for i in range(4): e("v_mul_f32 v%d, s%d, v%d" % (sacc + i, sT0, sacc + i))
e("v_cvt_pk_bf16_f32 v%d, v%d, v%d" % (vT + 4, sacc, sacc + 1))
e("v_cvt_pk_bf16_f32 v%d, v%d, v%d" % (vT + 5, sacc + 2, sacc + 3))
unpack(sacc, vT + 4, 2)
mx = vT + 4
e("v_max3_f32 v%d, v%d, v%d, v%d" % (mx, sacc, sacc + 1, sacc + 2))
e("v_max_f32 v%d, v%d, v%d" % (mx, mx, sacc + 3))
allred_g(mx, vT + 5, "v_max_f32")
e("ds_write_b32 v%d, v%d offset:%d" % (vT + 26, mx, L_MX))
if opt('mk', 0) == 1:
    lh1 = e.newlabel("L_h1")
    e("s_cmp_lg_u32 s%d, 6" % sW)
    e("s_cbranch_scc1 %s" % lh1)
    e("s_lshl_b32 s%d, s%d, 6" % (sT0, sYI))
    e("s_add_u32 s%d, s%d, %d" % (sT0, sT0, EWB + 32))
    store1(sT0)
    e(lh1 + ":")
e("s_waitcnt lgkmcnt(0)")
e("s_barrier")
stamp(5)
e("ds_read_b128 %s, v%d offset:%d" % (vr(vT + 8, 4), vMXa, L_MX))
e("ds_read_b128 %s, v%d offset:%d" % (vr(vT + 12, 4), vMXa, L_MX + 16))
e("s_waitcnt lgkmcnt(0)")
e("v_max3_f32 v%d, v%d, v%d, v%d" % (mx, vT + 8, vT + 9, vT + 10))
e("v_max3_f32 v%d, v%d, v%d, v%d" % (vT + 5, vT + 11, vT + 12, vT + 13))
e("v_max3_f32 v%d, v%d, v%d, v%d" % (mx, mx, vT + 14, vT + 15))
e("v_max_f32 v%d, v%d, v%d" % (mx, mx, vT + 5))
e("v_mul_f32 v%d, s%d, v%d" % (vT + 6, sL2E, mx))
for i in range(4): e("v_fma_f32 v%d, v%d, s%d, -v%d" % (sacc + i, sacc + i, sL2E, vT + 6))
for i in range(4): e("v_exp_f32 v%d, v%d" % (sacc + i, sacc + i))
e("v_cvt_pk_bf16_f32 v%d, v%d, v%d" % (vT + 8, sacc, sacc + 1))
e("v_cvt_pk_bf16_f32 v%d, v%d, v%d" % (vT + 9, sacc + 2, sacc + 3))
e("ds_write_b64 v%d, %s offset:%d" % (vPw, vr(vT + 8, 2), L_P))
e("v_add_f32 v%d, v%d, v%d" % (sacc, sacc, sacc + 1))
e("v_add_f32 v%d, v%d, v%d" % (sacc + 2, sacc + 2, sacc + 3))
e("v_add_f32 v%d, v%d, v%d" % (sacc, sacc, sacc + 2))
e("ds_write_b32 v%d, v%d offset:%d" % (vT + 27, sacc, L_SUM))
e("s_waitcnt lgkmcnt(0)")
e("s_barrier")
for kk in range(4):
    e("ds_read_b128 %s, v%d offset:%d" % (vr(vP + 4 * kk, 4), vPr, L_P + 64 * kk))
ls_ = e.newlabel("L_st")
e("s_cmp_lg_u32 s%d, 7" % sW)
e("s_cbranch_scc1 %s" % ls_)
e("v_lshlrev_b32 v%d, 7, v%d" % (vA1, vN))
e("v_lshl_add_u32 v%d, v%d, 5, v%d" % (vA1, vG, vA1))
e("ds_read_b128 %s, v%d offset:%d" % (vr(vT + 8, 4), vA1, L_SUM))
e("ds_read_b128 %s, v%d offset:%d" % (vr(vT + 12, 4), vA1, L_SUM + 16))
e("s_lshl_b32 s%d, s%d, 7" % (sT0, sYI))
e("s_add_u32 s%d, s%d, %d" % (sT0, sT0, STAT))
e("v_lshlrev_b32 v%d, 3, v%d" % (vA1, vN))
e("s_waitcnt lgkmcnt(0)")
for st in (4, 2, 1):
    for i in range(st): e("v_add_f32 v%d, v%d, v%d" % (vT + 8 + i, vT + 8 + i, vT + 8 + i + st))
allred_g(vT + 8, vT + 9)
e("v_min_u32 v%d, -2, v%d" % (mx, mx))
e("v_and_b32 v%d, 0x7fffffff, v%d" % (mx + 1, vT + 8))
setexec(0xffff)
e("buffer_store_dwordx2 %s, v%d, %s, s%d offen sc1" % (vr(mx, 2), vA1, srd(S_WS), sT0))
setexec(-1)
e(ls_ + ":")
e("s_lshl_b32 s%d, s%d, 14" % (sT0, sYI))
e("s_lshl_b32 s%d, s%d, 7" % (sT1, sW))
e("s_add_u32 s%d, s%d, s%d" % (sT0, sT0, sT1))
e("s_add_u32 s%d, s%d, %d" % (sT0, sT0, PART))
for kk in range(4):
    e("s_waitcnt lgkmcnt(%d)" % (3 - kk))
    for t in range(4):
        a = vACC + 4 * t
        e("v_mfma_f32_16x16x32_bf16 %s, %s, %s, %s" % (vr(a, 4), vr(vP + 4 * kk, 4), vr(vCB + 16 * t + 4 * kk, 4), "0" if kk == 0 else vr(a, 4)))
for i in range(4):
    o = vT + 8 + 2 * i
    e("v_cvt_pk_bf16_f32 v%d, v%d, v%d" % (o, vACC + i, vACC + 4 + i))
    e("v_cvt_pk_bf16_f32 v%d, v%d, v%d" % (o + 1, vACC + 8 + i, vACC + 12 + i))
    e("v_min_u32 v%d, -2, v%d" % (o, o))
    e("v_min_u32 v%d, -2, v%d" % (o + 1, o + 1))
    e("buffer_store_dwordx2 %s, v%d, %s, s%d offen offset:%d sc1" % (vr(o, 2), vPo, srd(S_WS), sT0, 1024 * i))
stamp(6)
e("s_cmp_eq_u32 s%d, 0" % sISD)
e("s_cbranch_scc1 L_fin")
vW2, vW2p, vB1, vXD, vGH, vH2 = 48, 80, 48, 112, 116, 140
if opt("dack", 0): e("s_waitcnt vmcnt(0)")
e("s_barrier")
L_W2 = L_W1 + 43008
DD = opt("dd", 10)
e("v_lshrrev_b32 v%d, 2, v%d" % (vA0, vLANE))
e("v_mul_u32_u24 v%d, 3456, v%d" % (vA0, vA0))
e("v_and_b32 v%d, 3, v%d" % (vA1, vLANE))
e("v_lshl_add_u32 v%d, v%d, 4, v%d" % (vA0, vA1, vA0))
e("s_mul_i32 s%d, s%d, %d" % (sT0, sW, 80 * 3456))
e("s_lshl_b32 s%d, s%d, 6" % (sT1, sRD))
e("s_add_u32 s%d, s%d, s%d" % (sT0, sT0, sT1))
e("s_mul_i32 s%d, s%d, 5120" % (sT2, sW))
e("s_mul_i32 s%d, s%d, 40960" % (sT1, sRD))
e("s_add_u32 s%d, s%d, s%d" % (sT1, sT1, sT2))
e("s_add_u32 s%d, s%d, %d" % (sT3, sT2, L_W2))
e("s_add_u32 s%d, s%d, %d" % (sT2, sT2, L_W1))
n_ = 0
for k in range(5):
    if n_ >= DD: e("s_waitcnt vmcnt(%d)" % (DD - 1))
    e("s_mov_b32 m0, s%d" % sT2)
    e("buffer_load_dwordx4 v%d, %s, s%d offen%s lds" % (vA0, srd(S_W1), sT0, " nt" if opt("nt1", 0) else "")); n_ += 1
    if not opt("w2e", 0):
        if n_ >= DD: e("s_waitcnt vmcnt(%d)" % (DD - 1))
        e("s_mov_b32 m0, s%d" % sT3)
        e("buffer_load_dwordx4 v%d, %s, s%d offen nt lds" % (vL16, srd(S_W2), sT1)); n_ += 1
    if k < 4:
        e("s_add_u32 s%d, s%d, %d" % (sT0, sT0, 16 * 3456))
        e("s_add_u32 s%d, s%d, 1024" % (sT2, sT2))
        e("s_add_u32 s%d, s%d, 1024" % (sT1, sT1))
        e("s_add_u32 s%d, s%d, 1024" % (sT3, sT3))
lw2 = e.newlabel("L_w2")
e("v_lshlrev_b32 v%d, 2, v0" % vA0)
e("s_cmp_ge_u32 s%d, 5" % sW)
e("s_cbranch_scc1 %s" % lw2)
e("buffer_load_dword v%d, v%d, %s, 0 offen" % (vXD, vA0, srd(S_X)))
e("v_mov_b32 v%d, 0x3f803f80" % vA1)
e("ds_write_b32 v%d, v%d offset:%d" % (vA0, vA1, L_ONES))
e(lw2 + ":")
lo = e.newlabel("L_oh")
e("s_cmp_lg_u32 s%d, 7" % sW)
e("s_cbranch_scc1 %s" % lo)
e("v_lshlrev_b32 v%d, 8, v%d" % (vA1, vLANE))
e("s_xor_b32 s%d, s%d, 1" % (sT0, sHF))
e("s_lshl_b32 s%d, s%d, 14" % (sT0, sT0))
poll([("buffer_load_dword v%d, v%d, %s, s%d offen sc1" % (vGH, vA1, srd(S_WS), sT0), vGH, 1)], sleep=8, depth=1)
e(lo + ":")
e("s_waitcnt vmcnt(0) lgkmcnt(0)")
e("s_barrier")
lp5 = e.newlabel("L_p5"); lpd = e.newlabel("L_pd")
e("s_cmp_ge_u32 s%d, 5" % sW)
e("s_cbranch_scc1 %s" % lp5)
e("v_add_u32 v%d, %d, v%d" % (vA1, L_W2, vA0))
for r in range(32):
    e("ds_read_b32 v%d, v%d offset:%d" % (vW2 + r, vA1, 1280 * r))
    if r % 8 == 7: e("s_waitcnt lgkmcnt(0)")
e("s_mov_b32 s%d, 0x05040100" % sT0)
e("s_mov_b32 s%d, 0x07060302" % sT1)
for j in range(16):
    e("v_perm_b32 v%d, v%d, v%d, s%d" % (vW2p + 2 * j, vW2 + 2 * j + 1, vW2 + 2 * j, sT0))
    e("v_perm_b32 v%d, v%d, v%d, s%d" % (vW2p + 2 * j + 1, vW2 + 2 * j + 1, vW2 + 2 * j, sT1))
e("v_and_b32 v%d, 0xffff0000, v%d" % (vXD + 1, vXD))
e("v_lshlrev_b32 v%d, 16, v%d" % (vXD, vXD))
e("v_mov_b32 v%d, 0x3f80" % (vXD + 2))
e("v_mov_b32 v%d, 1.0" % (vXD + 3))
e("s_branch %s" % lpd)
e(lp5 + ":")
e("v_lshrrev_b32 v%d, 2, v%d" % (vA1, vN))
e("v_lshl_add_u32 v%d, v%d, 3, v%d" % (vA1, vG, vA1))
e("v_lshlrev_b32 v%d, 6, v%d" % (vA1, vA1))
e("v_and_b32 v%d, 3, v%d" % (vA2, vN))
e("v_lshl_add_u32 v%d, v%d, 3, v%d" % (vA1, vA2, vA1))
e("s_sub_u32 s%d, s%d, 5" % (sT0, sW))
e("s_mul_i32 s%d, s%d, 14336" % (sT1, sT0))
e("v_add_u32 v%d, s%d, v%d" % (vA1, sT1, vA1))
for j in range(7):
    for t in range(2):
        for u in range(2):
            e("ds_read_b64_tr_b16 %s, v%d offset:%d" % (vr(vB1 + 8 * j + 4 * t + 2 * u, 2), vA1, L_W1 + 2048 * j + 256 * u + 32 * t))
    if j % 2 == 1: e("s_waitcnt lgkmcnt(0)")
e("v_lshlrev_b32 v%d, 4, v%d" % (vA2, vG))
e("s_mul_i32 s%d, s%d, 448" % (sT1, sT0))
e("v_add_u32 v%d, s%d, v%d" % (vA2, sT1, vA2))
e("v_add_u32 v%d, %d, v%d" % (vA3, L_ONES - L_HB, vA2))
e("v_cmp_eq_u32 vcc, 1, v%d" % vN)
e("v_cndmask_b32 v%d, v%d, v%d, vcc" % (vA2, vA2, vA3))
e("s_waitcnt lgkmcnt(0)")
e(lpd + ":")
stamp(7)
lh = e.newlabel("L_dh")
e("s_cmp_ge_u32 s%d, 5" % sW)
e("s_cbranch_scc1 %s" % lh)
NH5 = opt("nh5", 4)
e("s_lshl_b32 s%d, s%d, 1" % (sT0, sRD))
hint_addr(sT0, 120 // NH5 - 1 if NH5 > 1 else 1, 120, vA3)
e("s_mov_b32 s%d, %d" % (sT0, EWC))
poll([("buffer_load_dword v%d, v%d, %s, s%d offen sc1" % (vGH, vA3, srd(S_WS), sT0), vGH, 1)], sleep=opt("sl5", 4), init_masks=["0x%x" % ((1 << NH5) - 1)])
stamp(8)
e("v_lshlrev_b32 v%d, 3, v0" % vA1)
for k in range(3): e("s_mov_b32 s%d, %d" % (sF + k, HP + 5120 * k))
e("v_mov_b32 v%d, 0" % vH2)
e("v_mov_b32 v%d, 0" % (vH2 + 1))
if opt("d5", 0): e("s_sleep %d" % opt("d5", 0))
poll([("\n".join("buffer_load_dword v%d, v%d, %s, s%d offen offset:%d sc1" % (vGH + 4 * k + q, vA0, srd(S_WS), sF + k, 1280 * q) for q in range(3)) + "\nbuffer_load_dword v%d, v%d, %s, s%d offen offset:3840 sc1" % (vGH + 4 * k + 3, vA0, srd(S_WS), sF + k), vGH + 4 * k, 4) for k in range(3)], sleep=1)
stamp(9)
for k in range(12):
    e("v_dot2c_f32_bf16 v%d, v%d, v%d" % (vH2, vGH + k, vXD + 2))
    e("v_dot2c_f32_bf16 v%d, v%d, v%d" % (vH2 + 1, vGH + k, vXD + 3))
e("v_cvt_pk_bf16_f32 v%d, v%d, v%d" % (vT, vH2, vH2 + 1))
unpack(vH2, vT, 1)
e("v_pk_add_f32 %s, %s, %s" % (vr(vH2, 2), vr(vH2, 2), vr(vXD, 2)))
e("v_cvt_pk_bf16_f32 v%d, v%d, v%d" % (vT, vH2, vH2 + 1))
e("ds_write_b32 v%d, v%d offset:%d" % (vA0, vT, L_HB))
unpack(vH2, vT, 1)
e("s_waitcnt lgkmcnt(0)")
e(lh + ":")
e("s_barrier")
lm = e.newlabel("L_dm"); lj = e.newlabel("L_dj")
e("s_cmp_ge_u32 s%d, 5" % sW)
e("s_cbranch_scc1 %s" % lm)
e("ds_write_b64 v%d, %s offset:%d" % (vA1, vr(vH2, 2), L_HF))
e("v_add_f32 v%d, v%d, v%d" % (vT, vH2, vH2 + 1))
wave_red([vT], [sT0])
e("v_mov_b32 v%d, s%d" % (vT + 2, sT0))
e("v_mul_f32 v%d, 0x3c000000, v%d" % (vT + 2, vT + 2))
e("v_sub_f32 v%d, v%d, v%d" % (vT, vH2, vT + 2))
e("v_sub_f32 v%d, v%d, v%d" % (vT + 1, vH2 + 1, vT + 2))
e("v_mul_f32 v%d, v%d, v%d" % (vT, vT, vT))
e("v_fmac_f32 v%d, v%d, v%d" % (vT, vT + 1, vT + 1))
wave_red([vT], [sT0])
e("v_mov_b32 v%d, s%d" % (vT + 3, sT0))
e("s_lshl_b32 s%d, s%d, 3" % (sT0, sW))
e("v_mov_b32 v%d, s%d" % (vT + 4, sT0))
setexec(1)
e("ds_write_b64 v%d, %s offset:%d" % (vT + 4, vr(vT + 2, 2), L_ST))
setexec(-1)
e("s_branch %s" % lj)
e(lm + ":")
for j in range(7):
    e("ds_read_b128 %s, v%d offset:%d" % (vr(vGH + 4 * j, 4), vA2, L_HB + 64 * j))
lz = e.newlabel("L_z")
for j in range(7):
    if j == 6:
        e("s_cmp_eq_u32 s%d, 7" % sW)
        e("s_cbranch_scc1 %s" % lz)
    e("s_waitcnt lgkmcnt(%d)" % (6 - j))
    for t in range(2):
        e("v_mfma_f32_16x16x32_bf16 %s, %s, %s, %s" % (vr(vT + 4 * t, 4), vr(vGH + 4 * j, 4), vr(vB1 + 8 * j + 4 * t, 4), "0" if j == 0 else vr(vT + 4 * t, 4)))
e(lz + ":")
e("v_lshlrev_b32 v%d, 3, v%d" % (vA1, vN))
e("s_sub_u32 s%d, s%d, 5" % (sT0, sW))
e("s_lshl_b32 s%d, s%d, 8" % (sT0, sT0))
e("v_add_u32 v%d, s%d, v%d" % (vA1, sT0, vA1))
setexec(0xffff)
e("s_nop 2")
e("ds_write_b64 v%d, %s offset:%d" % (vA1, vr(vT, 2), L_RED))
e("ds_write_b64 v%d, %s offset:%d" % (vA1, vr(vT + 4, 2), L_RED + 128))
setexec(-1)
e(lj + ":")
e("s_waitcnt lgkmcnt(0)")
e("s_barrier")
stamp(10)
ld2 = e.newlabel("L_d2")
e("s_cmp_ge_u32 s%d, 5" % sW)
e("s_cbranch_scc1 %s" % ld2)
e("v_mov_b32 v%d, 0" % vA2)
e("v_and_b32 v%d, 31, v%d" % (vA3, vLANE))
e("v_lshlrev_b32 v%d, 3, v%d" % (vA3, vA3))
st_ = vT + 8
e("ds_read_b128 %s, v%d offset:%d" % (vr(st_, 4), vA2, L_ST))
e("ds_read_b128 %s, v%d offset:%d" % (vr(st_ + 4, 4), vA2, L_ST + 16))
e("ds_read_b64 %s, v%d offset:%d" % (vr(st_ + 8, 2), vA2, L_ST + 32))
for k in range(3):
    e("ds_read_b64 %s, v%d offset:%d" % (vr(vT + 20 + 2 * k, 2), vA3, L_RED + 256 * k))
e("s_waitcnt lgkmcnt(3)")
mean, m2 = vT, vT + 1
e("v_pk_add_f32 %s, %s, %s" % (vr(vT, 2), vr(st_, 2), vr(st_ + 2, 2)))
e("v_pk_add_f32 %s, %s, %s" % (vr(vT + 2, 2), vr(st_ + 4, 2), vr(st_ + 6, 2)))
e("v_pk_add_f32 %s, %s, %s" % (vr(vT, 2), vr(vT, 2), vr(st_ + 8, 2)))
e("v_pk_add_f32 %s, %s, %s" % (vr(vT, 2), vr(vT, 2), vr(vT + 2, 2)))
e("v_mul_f32 v%d, 0x3e4ccccd, v%d" % (mean, mean))
e("v_mov_b32 v%d, 0" % (vT + 2))
for k in range(5):
    e("v_sub_f32 v%d, v%d, v%d" % (vT + 3, st_ + 2 * k, mean))
    e("v_fmac_f32 v%d, v%d, v%d" % (vT + 2, vT + 3, vT + 3))
e("v_fmac_f32 v%d, 0x43000000, v%d" % (m2, vT + 2))
e("v_mul_f32 v%d, 0x3acccccd, v%d" % (m2, m2))
rbf(mean, mean); rbf(m2, m2)
e("v_add_f32 v%d, 0x3727c5ac, v%d" % (m2, m2))
rbf(m2, m2)
e("v_sqrt_f32 v%d, v%d" % (m2, m2))
rbf(m2, m2)
e("v_rcp_f32 v%d, v%d" % (m2, m2))
e("s_waitcnt lgkmcnt(0)")
e("v_pk_add_f32 %s, %s, %s" % (vr(vT + 20, 2), vr(vT + 20, 2), vr(vT + 22, 2)))
e("v_pk_add_f32 %s, %s, %s" % (vr(vT + 20, 2), vr(vT + 20, 2), vr(vT + 24, 2)))
e("v_fma_f32 v%d, -v%d, v%d, v%d" % (vT + 20, mean, vT + 21, vT + 20))
e("v_mul_f32 v%d, v%d, v%d" % (vT + 20, vT + 20, m2))
e("v_max_f32 v%d, 0, v%d" % (vT + 20, vT + 20))
e("v_mov_b32_dpp v%d, v%d row_shl:1 row_mask:0xf bank_mask:0xf bound_ctrl:0" % (vT + 21, vT + 20))
e("v_cvt_pk_bf16_f32 v%d, v%d, v%d" % (vT + 20, vT + 20, vT + 21))
sF2 = 60
for j in range(16):
    e("v_readlane_b32 s%d, v%d, %d" % (sF2 + j, vT + 20, 2 * j))
for k in range(4): e("v_mov_b32 v%d, 0" % (vT + 2 + k))
for j in range(16):
    for k in range(2):
        e("v_dot2c_f32_bf16 v%d, s%d, v%d" % (vT + 2 + k + 2 * (j & 1), sF2 + j, vW2p + 2 * j + k))
e("s_mul_i32 s%d, s%d, 2560" % (sT0, sRD))
e("s_add_u32 s%d, s%d, %d" % (sT0, sT0, OP))
e("v_pk_add_f32 %s, %s, %s" % (vr(vT + 2, 2), vr(vT + 2, 2), vr(vT + 4, 2)))
e("v_min_u32 v%d, -2, v%d" % (vT + 2, vT + 2))
e("v_min_u32 v%d, -2, v%d" % (vT + 3, vT + 3))
e("buffer_store_dwordx2 %s, v%d, %s, s%d offen sc1" % (vr(vT + 2, 2), vA1, srd(S_WS), sT0))
e(ld2 + ":")
stamp(11)
vGF, vGE = 144, 156
e("s_cmp_eq_u32 s%d, 0" % sFIN)
e("s_cbranch_scc1 L_fin")
e("v_lshrrev_b32 v%d, 3, v%d" % (vA1, vLANE))
e("v_mul_u32_u24 v%d, 2560, v%d" % (vA0, vA1))
e("v_and_b32 v%d, 7, v%d" % (vA3, vLANE))
e("v_lshl_add_u32 v%d, v%d, 4, v%d" % (vA0, vA3, vA0))
e("s_mul_i32 s%d, s%d, %d" % (sT0, sW, 8 * 2560))
e("s_lshl_b32 s%d, s%d, 6" % (sT1, sRD))
e("s_add_u32 s%d, s%d, s%d" % (sT0, sT0, sT1))
e("s_add_u32 s%d, s%d, %d" % (sT0, sT0, OP))
e("s_lshl_b32 s%d, s%d, 3" % (sT3, sW))
e("v_add_u32 v%d, s%d, v%d" % (vA1, sT3, vA1))
for k in range(4): e("v_mov_b32 v%d, 0" % (vGF + k))
e("v_cmp_gt_u32 vcc, 54, v%d" % vA1)
e("s_mov_b64 %s, vcc" % sp(sE0))
e("v_lshlrev_b32 v%d, 4, v%d" % (vA1, vA3))
e("v_lshl_add_u32 v%d, v%d, 2, v%d" % (vA1, vG, vA1))
e("s_lshl_b32 s%d, s%d, 7" % (sT3, sW))
e("v_add_u32 v%d, s%d, v%d" % (vA1, sT3, vA1))
if opt("d6", 0): e("s_sleep %d" % opt("d6", 0))
poll([("buffer_load_dwordx4 %s, v%d, %s, s%d offen sc1" % (vr(vGF, 4), vA0, srd(S_WS), sT0), vGF, 4)], sleep=1, init_masks=[sp(sE0)])
stamp(12)
for k in range(4): e("v_mov_b32 v%d, v%d" % (vT + k, vGF + k))
rs_4to1(vT)
e("v_add_f32_dpp v%d, v%d, v%d row_ror:8 row_mask:0xf bank_mask:0xf" % (vT + 1, vT, vT))
setexec(0x00ff00ff00ff00ff)
e("ds_write_b32 v%d, v%d offset:%d" % (vA1, vT + 1, L_RED + 1024))
setexec(-1)
e("s_waitcnt lgkmcnt(0)")
e("s_barrier")
e("s_cmp_lg_u32 s%d, 0" % sW)
e("s_cbranch_scc1 L_fin")
e("v_lshlrev_b32 v%d, 2, v%d" % (vA0, vLANE))
e("v_add_u32 v%d, s%d, v%d" % (vA1, sT1, vA0))
setexec(0xffffffff)
for i in range(8):
    e("ds_read_b32 v%d, v%d offset:%d" % (vGE + i, vA0, L_RED + 1024 + 128 * i))
e("ds_read_b32 v%d, v%d offset:%d" % (vGE + 8, vA1, L_HF))
e("s_waitcnt lgkmcnt(0)")
for st in (4, 2, 1):
    for i in range(st):
        e("v_add_f32 v%d, v%d, v%d" % (vGE + i, vGE + i, vGE + i + st))
rbf(vGE, vGE)
e("v_add_f32 v%d, v%d, v%d" % (vGE, vGE, vGE + 8))
e("v_cvt_pk_bf16_f32 v%d, v%d, v%d" % (vGE, vGE, vGE))
e("v_lshrrev_b32 v%d, 1, v%d" % (vA1, vA1))
e("buffer_store_short v%d, v%d, %s, 0 offen" % (vGE, vA1, srd(S_OUT)))
setexec(-1)
e("L_fin:")
if DIAG:
    stamp(13)
    if opt("dbg", 0):
        for wgid, base, idxs in ((128, 1, (2, 4, 6, 8, 9, 11, 13)), (0, 9, (1, 3, 4, 6, 7, 8, 10))):
            l = e.newlabel("L_dbg")
            e("s_cmp_lg_u32 s2, %d" % wgid)
            e("s_cbranch_scc1 %s" % l)
            e("s_cmp_lg_u32 s%d, 0" % sW)
            e("s_cbranch_scc1 %s" % l)
            e("v_readlane_b32 s%d, v%d, 0" % (sT0, vTSV))
            for k, ix in enumerate(idxs):
                e("v_readlane_b32 s%d, v%d, %d" % (sT1, vTSV, ix))
                e("s_sub_u32 s%d, s%d, s%d" % (sT1, sT1, sT0))
                e("v_mov_b32 v%d, s%d" % (vA1, sT1))
                e("v_mov_b32 v%d, %d" % (vA0, 4 * (base + k)))
                setexec(1)
                e("buffer_store_dword v%d, v%d, %s, 0 offen" % (vA1, vA0, srd(S_DBG)))
                setexec(-1)
            e(l + ":")
    e("v_lshlrev_b32 v%d, 2, v%d" % (vA0, vLANE))
    e("s_lshl_b32 s%d, s2, 3" % sT0)
    e("s_add_u32 s%d, s%d, s%d" % (sT0, sT0, sW))
    e("s_lshl_b32 s%d, s%d, 8" % (sT0, sT0))
    e("s_add_u32 s%d, s%d, %d" % (sT0, sT0, DIAGO))
    e("buffer_store_dword v%d, v%d, %s, s%d offen" % (vTSV, vA0, srd(S_WS), sT0))
e("L_end:")
e("s_endpgm")
e.raw(""".section .rodata,"a"
.p2align 6
.amdhsa_kernel %s
  .amdhsa_next_free_vgpr %d
  .amdhsa_next_free_sgpr 102
  .amdhsa_accum_offset %d
  .amdhsa_group_segment_fixed_size 0
  .amdhsa_kernarg_size 96
  .amdhsa_user_sgpr_count 2
  .amdhsa_user_sgpr_kernarg_segment_ptr 1
  .amdhsa_system_sgpr_workgroup_id_x 1
.end_amdhsa_kernel""" % (KN, NVGPR, NVGPR))
open(OUTF, "w").write(e.text())
```

```python
import sys
sys.path.insert(0, "gen")
from emit import Emitter

KN = "sequential_preLN__compressed_kv_cla__dense_activation_relu__decode_kernel"
DIAG = "--diag" in sys.argv
OUTF = [a for a in sys.argv[1:] if not a.startswith("--")][0]
def opt(name, default):
    for a in sys.argv:
        if a.startswith("--%s=" % name): return int(a.split("=")[1])
    return default
EWA_AT = opt("ewa", 16)
FLAG_AT = opt("flag", 8)

QA, CP, EWA, QP = 0x0, 0x8000, 0x10000, 0x12000
HP, EWC, STAT, OP, PART, DIAGO = 0x90000, 0x9E000, 0x24000, 0x30000, 0x100000, 0x800000
RDY = 0
EWB = 0x96000
NT = " nt" if opt("nt", 1) else ""
NTC = " nt" if opt("ntc", 1) else ""
WS_BYTES = 0x900000
RS = 1040
L_RED = 0
L_QL = 4096
L_LN = 8448
L_MX = 4096
L_SUM = 4608
L_P = 6656
PRS = 272
L_HB = 4096
L_ONES = 5376
L_ST = 6656
L_HF = 7168
L_QS = 12288
L_CK = L_QS + 16 * RS
LDS_BYTES = L_CK + 128 * RS
L_WUV = 12288
L_WO = L_WUV + 32768
L_W1 = 12288
SPIN = 200000

S_X, S_CKV, S_WQ, S_WUK, S_WUV, S_WO, S_W1, S_W2, S_OUT, S_DBG, S_WS = [4 + 4 * i for i in range(11)]
def srd(b): return "s[%d:%d]" % (b, b + 3)
sW, sA, sB, sCNT, sT0, sT1, sT2, sT3 = 48, 49, 50, 51, 52, 53, 54, 55
sH, sCQ, sXI = 56, 57, 58
sKS, sHF, sYI = 56, 57, 58
sRD, sISD, sFIN = 59, 88, 89
sM = [60, 62, 64, 66, 68, 70, 72, 74]
sTM, sOR = 76, 78
sF = 80
sE0, sE1 = 90, 92
sL2E, sT4 = 94, 95
sTS = 96
def sp(b): return "s[%d:%d]" % (b, b + 1)
e = Emitter()
def vr(b, n): return "v[%d:%d]" % (b, b + n - 1) if n > 1 else "v%d" % b

vLANE, vN, vG = 1, 2, 3
vA0, vA1, vA2, vA3 = 4, 5, 6, 7
vT = 8
vTSV = 40
vL16 = 41
vCL = 44
NVGPR = 248

LITE = "--lite" in sys.argv
def stamp(idx):
    if not DIAG: return
    if LITE and idx not in (0, 13): return
    e("s_memrealtime %s" % sp(sTS))
    e("s_waitcnt lgkmcnt(0)")
    e("v_writelane_b32 v%d, s%d, %d" % (vTSV, sTS, idx))
def setexec(m):
    if m == -1: e("s_mov_b64 exec, -1"); return
    e("s_mov_b32 exec_lo, 0x%x" % (m & 0xffffffff))
    e("s_mov_b32 exec_hi, 0x%x" % (m >> 32))
def rbf(dst, src):
    e("v_cvt_pk_bf16_f32 v%d, v%d, v%d" % (dst, src, src))
    e("v_lshlrev_b32 v%d, 16, v%d" % (dst, dst))
def wave_red(vs, sdsts, op="v_add_f32"):
    bc = " bound_ctrl:0" if op == "v_add_f32" else ""
    for sh in (1, 2, 4, 8):
        for v in vs: e("%s_dpp v%d, v%d, v%d row_shr:%d row_mask:0xf bank_mask:0xf%s" % (op, v, v, v, sh, bc))
    for v in vs: e("%s_dpp v%d, v%d, v%d row_bcast:15 row_mask:0xa bank_mask:0xf" % (op, v, v, v))
    for v in vs: e("%s_dpp v%d, v%d, v%d row_bcast:31 row_mask:0xc bank_mask:0xf" % (op, v, v, v))
    for v, s in zip(vs, sdsts): e("v_readlane_b32 s%d, v%d, 63" % (s, v))
def unpack(dst, src, n):
    for i in range(n):
        e("v_lshlrev_b32 v%d, 16, v%d" % (dst + 2 * i, src + i))
        e("v_and_b32 v%d, 0xffff0000, v%d" % (dst + 2 * i + 1, src + i))
PD = opt("pd", 1)
PG = opt("pg", 5)
def poll(loads, sleep=1, init_masks=None, depth=None):
    D = PD if depth is None else depth
    lp = e.newlabel("L_poll"); dn = e.newlabel("L_polld")
    nl = sum(t.count("buffer_load") for t, _, _ in loads)
    for k in range(len(loads)):
        e("s_mov_b64 %s, %s" % (sp(sM[k]), "-1" if not init_masks or init_masks[k] is None else init_masks[k]))
    e("s_mov_b32 s%d, 0" % sCNT)
    def issue():
        for k, (txt, d, n) in enumerate(loads):
            e("s_mov_b64 exec, %s" % sp(sM[k]))
            e(txt)
        e("s_mov_b64 exec, -1")
    for _ in range(D - 1):
        issue()
        e("s_sleep %d" % PG)
    e(lp + ":")
    issue()
    e("s_waitcnt vmcnt(%d)" % ((D - 1) * nl))
    for k, (txt, d, n) in enumerate(loads):
        t = vT + 31
        if n == -2:
            e("v_cmp_gt_i32 %s, 0, v%d" % (sp(sTM), d + 1))
        elif n == 1:
            e("v_cmp_eq_u32 %s, -1, v%d" % (sp(sTM), d))
        else:
            e("v_max_u32 v%d, v%d, v%d" % (t, d, d + 1))
            if n >= 4: e("v_max3_u32 v%d, v%d, v%d, v%d" % (t, t, d + 2, d + 3))
            e("v_cmp_eq_u32 %s, -1, v%d" % (sp(sTM), t))
        e("s_and_b64 %s, %s, %s" % (sp(sM[k]), sp(sM[k]), sp(sTM)))
        if k == 1: e("s_or_b64 %s, %s, %s" % (sp(sOR), sp(sM[0]), sp(sM[k])))
        elif k > 1: e("s_or_b64 %s, %s, %s" % (sp(sOR), sp(sOR), sp(sM[k])))
    e("s_cbranch_scc0 %s" % dn)
    e("s_add_u32 s%d, s%d, 1" % (sCNT, sCNT))
    e("s_cmp_gt_u32 s%d, %d" % (sCNT, SPIN))
    e("s_cbranch_scc1 %s" % dn)
    if sleep and D == 1: e("s_sleep %d" % sleep)
    e("s_branch %s" % lp)
    e(dn + ":")
def rs_8to2(b):
    for i in range(4): e("v_permlane32_swap_b32 v%d, v%d" % (b + i, b + 4 + i))
    for i in range(4): e("v_add_f32 v%d, v%d, v%d" % (b + i, b + i, b + 4 + i))
    for i in range(2): e("v_permlane16_swap_b32 v%d, v%d" % (b + i, b + 2 + i))
    for i in range(2): e("v_add_f32 v%d, v%d, v%d" % (b + i, b + i, b + 2 + i))
def rs_4to1(b):
    for i in range(2): e("v_permlane32_swap_b32 v%d, v%d" % (b + i, b + 2 + i))
    for i in range(2): e("v_add_f32 v%d, v%d, v%d" % (b + i, b + i, b + 2 + i))
    e("v_permlane16_swap_b32 v%d, v%d" % (b, b + 1))
    e("v_add_f32 v%d, v%d, v%d" % (b, b, b + 1))
def allred_g(v, tmp, op="v_add_f32"):
    e("v_mov_b32 v%d, v%d" % (tmp, v))
    e("v_permlane32_swap_b32 v%d, v%d" % (v, tmp))
    e("%s v%d, v%d, v%d" % (op, v, v, tmp))
    e("v_mov_b32 v%d, v%d" % (tmp, v))
    e("v_permlane16_swap_b32 v%d, v%d" % (v, tmp))
    e("%s v%d, v%d, v%d" % (op, v, v, tmp))
def hilo_write(v, vaddr):
    h, a, b = v + 2, v + 3, v + 4
    e("v_cvt_pk_bf16_f32 v%d, v%d, v%d" % (h, v, v + 1))
    e("v_lshlrev_b32 v%d, 16, v%d" % (a, h))
    e("v_and_b32 v%d, 0xffff0000, v%d" % (b, h))
    e("v_sub_f32 v%d, v%d, v%d" % (v, v, a))
    e("v_sub_f32 v%d, v%d, v%d" % (v + 1, v + 1, b))
    e("v_cvt_pk_bf16_f32 v%d, v%d, v%d" % (a, v, v + 1))
    e("ds_write2_b32 v%d, v%d, v%d offset0:0 offset1:68" % (vaddr, h, a))
def rows_gemv_publish(vB, vQLr, vOut, sOut):
    f = vT + 8
    for ks in range(4):
        e("ds_read_b128 %s, v%d offset:%d" % (vr(f + 4 * ks, 4), vQLr, 64 * ks))
    for ks in range(4):
        e("s_waitcnt lgkmcnt(%d)" % (3 - ks))
        e("v_mfma_f32_16x16x32_bf16 %s, %s, %s, %s" % (vr(vT, 4), vr(f + 4 * ks, 4), vr(vB + 4 * ks, 4), "0" if ks == 0 else vr(vT, 4)))
    e("v_add_f32 v%d, v%d, v%d" % (vT, vT, vT + 1))
    e("v_add_f32 v%d, v%d, v%d" % (vT + 2, vT + 2, vT + 3))
    e("v_add_f32 v%d, v%d, v%d" % (vT, vT, vT + 2))
    allred_g(vT, vT + 1)
    e("v_mov_b32_dpp v%d, v%d row_shl:1 row_mask:0xf bank_mask:0xf bound_ctrl:0" % (vT + 1, vT))
    e("v_cvt_pk_bf16_f32 v%d, v%d, v%d" % (vT, vT, vT + 1))
    e("v_min_u32 v%d, -2, v%d" % (vT, vT))
    setexec(0x5555)
    e("buffer_store_dword v%d, v%d, %s, s%d offen sc1" % (vT, vOut, srd(S_WS), sOut))
    setexec(-1)
def flag_check(first_loaded=None):
    lp = e.newlabel("L_fl"); ld = e.newlabel("L_fld"); l1 = e.newlabel("L_fl1")
    e("s_mov_b32 s%d, 0" % sCNT)
    if first_loaded is not None: e("s_branch %s" % l1)
    e(lp + ":")
    setexec(0xff)
    e("v_lshlrev_b32 v%d, 5, v%d" % (vA3, vLANE))
    e("buffer_load_dword v%d, v%d, %s, 0 offen sc1" % (vL16 + 1, vA3, srd(S_DBG)))
    setexec(-1)
    e(l1 + ":")
    e("s_waitcnt vmcnt(0)")
    setexec(0xff)
    e("v_cmp_eq_u32 vcc, 0, v%d" % (vL16 + 1))
    setexec(-1)
    e("s_cbranch_vccz %s" % ld)
    e("s_add_u32 s%d, s%d, 1" % (sCNT, sCNT))
    e("s_cmp_gt_u32 s%d, %d" % (sCNT, SPIN))
    e("s_cbranch_scc1 %s" % ld)
    e("s_sleep 8")
    e("s_branch %s" % lp)
    e(ld + ":")
def store1(soff, val=1):
    e("v_mov_b32 v%d, %d" % (vA3, val))
    e("v_mov_b32 v%d, 0" % (vT + 30))
    setexec(1)
    e("buffer_store_dword v%d, v%d, %s, s%d offen sc1" % (vA3, vT + 30, srd(S_WS), soff))
    setexec(-1)
def rdy_write():
    e("s_lshl_b32 s%d, s2, 6" % sT0)
    e("s_add_u32 s%d, s%d, %d" % (sT0, sT0, RDY))
    store1(sT0)
def rdy_check(dst):
    l = e.newlabel("L_rdy")
    e("s_cmp_ge_u32 s%d, 4" % sW)
    e("s_cbranch_scc1 %s" % l)
    e("v_lshlrev_b32 v%d, 6, v0" % vA0)
    e("s_mov_b32 s%d, %d" % (sT0, RDY))
    poll([("buffer_load_dword v%d, v%d, %s, s%d offen sc1" % (dst, vA0, srd(S_WS), sT0), dst, 1)], sleep=8)
    e(l + ":")
def hint_addr(sidx, step, N, vdst):
    e("v_mul_u32_u24 v%d, %d, v%d" % (vdst, step, vLANE))
    e("v_add_u32 v%d, s%d, v%d" % (vdst, sidx, vdst))
    e("v_subrev_u32 v%d, %d, v%d" % (vT + 30, N, vdst))
    e("v_min_u32 v%d, v%d, v%d" % (vdst, vdst, vT + 30))
    e("v_lshlrev_b32 v%d, 6, v%d" % (vdst, vdst))
def hint_wait(soff, dst, sleep):
    e("v_mov_b32 v%d, 0" % vA3)
    poll([("buffer_load_dword v%d, v%d, %s, s%d offen sc1" % (dst, vA3, srd(S_WS), soff), dst, 1)], sleep=sleep, init_masks=["1"])

e.raw("""; persistent MLA decode + FFN kernel (generated by gen/gen15.py)
; @launch grid=(256,1,1) block=(512,1,1) lds=%d
.amdgcn_target "amdgcn-amd-amdhsa--gfx950"
.text
.globl %s
.p2align 8
.type %s,@function
%s:""" % (LDS_BYTES, KN, KN, KN))
e("s_cmp_ge_u32 s2, 256")
e("s_cbranch_scc1 L_end")
e("s_load_dwordx16 s[64:79], s[0:1], 0")
e("s_add_u32 s2, s2, 248")
e("s_and_b32 s2, s2, 255")
e("s_load_dwordx8 s[80:87], s[0:1], 64")
CPE = opt("cpe", 16)
if CPE:
    e("s_getpc_b64 s[%d:%d]" % (92, 93))
    e.raw("L_pcref0:")
    e.raw("    s_sub_u32 s92, s92, (L_pcref0 - %s)" % KN)
    e.raw("    s_subb_u32 s93, s93, 0")
    e("s_bfe_u32 s94, s2, 0x%x0003" % opt("cpb", 1))
    e("s_lshl_b32 s94, s94, 13")
    e("v_lshlrev_b32 v%d, 4, v0" % 4)
    e("v_add_u32 v4, s94, v4")
    e("v_subrev_u32 v5, %d, v4" % (CPE * 1024))
    e("v_min_u32 v4, v4, v5")
    e("global_load_dwordx4 v[232:235], v4, s[92:93]")
if opt("dbl", 0):
    e("s_memrealtime s[98:99]")
if DIAG:
    e("v_mov_b32 v%d, 0" % vTSV)
    stamp(0)
e("v_and_b32 v%d, 63, v0" % vLANE)
e("v_lshrrev_b32 v%d, 6, v0" % vA0)
e("v_and_b32 v%d, 15, v0" % vN)
e("v_bfe_u32 v%d, v0, 4, 2" % vG)
e("v_readfirstlane_b32 s%d, v%d" % (sW, vA0))
for i in range(4): e("v_mov_b32 v%d, -1" % (vCL + i))
e("v_lshlrev_b32 v%d, 4, v%d" % (vL16, vLANE))
e("s_bfe_u32 s%d, s2, 0x40003" % sA)
e("s_and_b32 s%d, s2, 7" % sB)
e("s_mov_b32 s%d, 0x3fb8aa3b" % sL2E)
e("s_waitcnt lgkmcnt(0)")
sizes = {S_X: 1280, S_CKV: 8388608, S_WQ: 5242880, S_WUK: 4194304, S_WUV: 4194304, S_WO: 5242880, S_W1: 2211840, S_W2: 2211840, S_OUT: 1280, S_DBG: 256, S_WS: WS_BYTES}
src = {S_X: 64, S_CKV: 66, S_WQ: 68, S_WUK: 70, S_WUV: 72, S_WO: 74, S_W1: 78, S_W2: 80, S_OUT: 82, S_DBG: 84, S_WS: 86}
for b in (S_WS, S_X, S_WQ, S_CKV, S_WUK, S_DBG, S_WUV, S_WO, S_W1, S_W2, S_OUT):
    e("s_mov_b32 s%d, s%d" % (b, src[b]))
    e("s_mov_b32 s%d, s%d" % (b + 1, src[b] + 1))
    e("s_mov_b32 s%d, %d" % (b + 2, sizes[b]))
    e("s_mov_b32 s%d, 0x00020000" % (b + 3))
if opt("tlb", 0):
    lt = e.newlabel("L_tlb")
    e("s_cmp_lg_u32 s%d, 6" % sW)
    e("s_cbranch_scc1 %s" % lt)
    e("v_lshlrev_b32 v%d, 20, v%d" % (vA0, vLANE))
    setexec(0xff)
    for k, b in enumerate((S_WS, S_OUT, S_WUV, S_WO, S_W1, S_W2)):
        e("buffer_load_dword v%d, v%d, %s, 0 offen" % (226 + k, vA0, srd(b)))
    setexec(-1)
    e(lt + ":")
e("s_cmp_ge_u32 s2, 128")
e("s_cbranch_scc1 L_Y")

vWQ, vWUK, vL1, vL0, vXF, vXR = 48, 148, 164, 170, 184, 190
vBUV, vBO, vG0 = 48, 64, 96
vQLw, vQLr, vOutA = 192, 193, 194
e("s_lshl_b32 s%d, s%d, 2" % (sH, sB))
e("s_lshr_b32 s%d, s%d, 2" % (sT0, sA))
e("s_add_u32 s%d, s%d, s%d" % (sH, sH, sT0))
e("s_and_b32 s%d, s%d, 3" % (sCQ, sA))
e("s_lshl_b32 s%d, s%d, 2" % (sXI, sH))
e("s_add_u32 s%d, s%d, s%d" % (sXI, sXI, sCQ))
sST, sKQ, sUS, sNU = 98, 99, 100, 101
e("s_mul_i32 s%d, s2, 205" % sKQ)
e("s_lshr_b32 s%d, s%d, 11" % (sKQ, sKQ))
e("s_mul_i32 s%d, s%d, 10" % (sT0, sKQ))
e("s_sub_u32 s%d, s2, s%d" % (sST, sT0))
e("s_mul_i32 s%d, s%d, 11" % (sUS, sKQ))
e("s_max_u32 s%d, s%d, 8" % (sT0, sKQ))
e("s_sub_u32 s%d, s%d, 8" % (sT0, sT0))
e("s_sub_u32 s%d, s%d, s%d" % (sUS, sUS, sT0))
e("s_cmp_lt_u32 s%d, 8" % sKQ)
e("s_cselect_b32 s%d, 11, 10" % sNU)
L_WUK = L_WO + 45056
vWQ, vL1, vL0, vXF, vXR = 48, 164, 176, 186, 191
vQF = vG0 + 32; vCF = vG0 + 32; vC2a, vC1a, vUKa = 200, 201, 196
vBUV, vBO = 144, 160
def frag_prep():
    r_, q_, x_ = vT + 26, vT + 27, vT + 28
    e("v_lshrrev_b32 v%d, 2, v%d" % (r_, vN))
    e("v_bfe_u32 v%d, v%d, 1, 1" % (q_, vN))
    e("v_lshl_or_b32 v%d, v%d, 2, v%d" % (x_, vG, r_))
    e("v_xor_b32 v%d, v%d, v%d" % (x_, x_, q_))
    e("s_lshl_b32 s%d, s%d, 1" % (sF + 5, sW))
    e("v_xor_b32 v%d, s%d, v%d" % (x_, sF + 5, x_))
    e("v_lshlrev_b32 v%d, 4, v%d" % (x_, x_))
    e("v_lshlrev_b32 v%d, 4, v%d" % (vC1a, r_))
    e("v_lshl_add_u32 v%d, v%d, 1, v%d" % (vC1a, vG, vC1a))
    e("v_lshl_add_u32 v%d, v%d, 8, v%d" % (vC1a, vC1a, x_))
    e("v_and_b32 v%d, 1, v%d" % (x_, vN))
    e("v_lshl_add_u32 v%d, v%d, 3, v%d" % (vC1a, x_, vC1a))
    for ks in range(4):
        for u in range(2):
            e("ds_read_b64_tr_b16 %s, v%d offset:%d" % (vr(vBUV + 4 * ks + 2 * u, 2), vC1a, L_WUV + (64 * (ks >> 1) + 8 * (ks & 1) + u) * 256))
    e("v_lshl_add_u32 v%d, v%d, 3, v%d" % (vC2a, vG, r_))
    e("v_lshlrev_b32 v%d, 7, v%d" % (vC2a, vC2a))
    e("v_lshl_add_u32 v%d, v%d, 3, v%d" % (vC2a, x_, vC2a))
    e("s_lshl_b32 s%d, s%d, 12" % (sF + 5, sW))
    e("s_add_u32 s%d, s%d, %d" % (sF + 5, sF + 5, L_WO))
    e("v_add_u32 v%d, s%d, v%d" % (vC2a, sF + 5, vC2a))
    e("v_lshrrev_b32 v%d, 1, v%d" % (r_, r_))
    e("v_lshl_or_b32 v%d, v%d, 1, v%d" % (r_, vG, r_))
    e("v_xor_b32 v%d, v%d, v%d" % (r_, r_, q_))
    e("s_waitcnt lgkmcnt(0)")
    for t in range(4):
        e("v_xor_b32 v%d, %d, v%d" % (x_, 2 * t, r_))
        e("v_lshl_add_u32 v%d, v%d, 4, v%d" % (x_, x_, vC2a))
        for j in range(2):
            for u in range(2):
                e("ds_read_b64_tr_b16 %s, v%d offset:%d" % (vr(vBO + 16 * j + 4 * t + 2 * u, 2), x_, 32768 * j + 512 * u))
        if t == 1: e("s_waitcnt lgkmcnt(0)")
    e("s_waitcnt lgkmcnt(0)")
lc1 = e.newlabel("L_c1"); lS = e.newlabel("L_S")
for k in range(16): e("v_mov_b32 v%d, 0" % (vQF + k))
e("v_lshlrev_b32 v%d, 4, v%d" % (vQLw, vN))
e("v_lshl_add_u32 v%d, v%d, 2, v%d" % (vQLw, vG, vQLw))
e("v_mul_u32_u24 v%d, 272, v%d" % (vQLr, vN))
e("v_lshl_add_u32 v%d, v%d, 4, v%d" % (vQLr, vG, vQLr))
e("v_add_u32 v%d, %d, v%d" % (vQLr, L_QL, vQLr))
e("v_lshlrev_b32 v%d, 1, v%d" % (vOutA, vN))
e("s_cmp_ge_u32 s%d, 4" % sW)
e("s_cbranch_scc1 %s" % lS)
e("v_lshlrev_b32 v%d, 2, v%d" % (vA0, vLANE))
for i in range(5):
    e("buffer_load_dword v%d, v%d, %s, 0 offen offset:%d" % (vXF + i, vA0, srd(S_X), 256 * i))
e("v_lshlrev_b32 v%d, 1, v%d" % (vA1, vLANE))
e("s_mul_i32 s%d, s%d, 160" % (sT0, sCQ))
e("s_mul_i32 s%d, s%d, 40" % (sT1, sW))
e("s_add_u32 s%d, s%d, s%d" % (sT0, sT0, sT1))
e("s_lshl_b32 s%d, s%d, 1" % (sT1, sT0))
e("buffer_load_ushort v%d, v%d, %s, s%d offen" % (vXR, vA1, srd(S_X), sT1))
e("s_barrier")
e("v_lshlrev_b32 v%d, 13, v%d" % (vA0, vG))
e("v_lshl_add_u32 v%d, v%d, 4, v%d" % (vA0, vN, vA0))
e("s_lshl_b32 s%d, s%d, 13" % (sT0, sT0))
e("s_lshl_b32 s%d, s%d, 8" % (sT1, sH))
e("s_add_u32 s%d, s%d, s%d" % (sT0, sT0, sT1))
for i in range(10):
    e("buffer_load_dwordx4 %s, v%d, %s, s%d offen%s" % (vr(vWQ + 4 * i, 4), vA0, srd(S_WQ), sT0, NT))
    if i < 9: e("s_add_u32 s%d, s%d, 32768" % (sT0, sT0))
e("s_barrier")
e("s_waitcnt vmcnt(10)")
stamp(1)
a, b_, vM, vS = vT + 10, vT + 11, vT + 12, vT + 13
e("v_readfirstlane_b32 s%d, v%d" % (sT0, vXF))
unpack(vT, vXF, 5)
e("s_lshl_b32 s%d, s%d, 16" % (sT0, sT0))
e("s_mov_b32 s%d, s%d" % (sT1, sT0))
for k in range(5):
    e("v_pk_add_f32 %s, %s, %s neg_lo:[0,1] neg_hi:[0,1]" % (vr(vT + 2 * k, 2), vr(vT + 2 * k, 2), sp(sT0)))
e("v_pk_add_f32 %s, %s, %s" % (vr(vT + 14, 2), vr(vT, 2), vr(vT + 2, 2)))
e("v_pk_mul_f32 %s, %s, %s" % (vr(vT + 16, 2), vr(vT, 2), vr(vT, 2)))
e("v_pk_fma_f32 %s, %s, %s, %s" % (vr(vT + 16, 2), vr(vT + 2, 2), vr(vT + 2, 2), vr(vT + 16, 2)))
for k in range(2, 5):
    e("v_pk_add_f32 %s, %s, %s" % (vr(vT + 14, 2), vr(vT + 14, 2), vr(vT + 2 * k, 2)))
    e("v_pk_fma_f32 %s, %s, %s, %s" % (vr(vT + 16, 2), vr(vT + 2 * k, 2), vr(vT + 2 * k, 2), vr(vT + 16, 2)))
e("v_add_f32 v%d, v%d, v%d" % (a, vT + 14, vT + 15))
e("v_add_f32 v%d, v%d, v%d" % (b_, vT + 16, vT + 17))
wave_red([a, b_], [sT2, sT3])
e("s_mov_b32 s%d, 0x3acccccd" % sT1)
e("v_mov_b32 v%d, s%d" % (vM, sT2))
e("v_mov_b32 v%d, s%d" % (vS, sT3))
e("v_mul_f32 v%d, s%d, v%d" % (vM, sT1, vM))
e("v_mul_f32 v%d, s%d, v%d" % (vS, sT1, vS))
e("v_fma_f32 v%d, -v%d, v%d, v%d" % (vS, vM, vM, vS))
e("v_max_f32 v%d, 0, v%d" % (vS, vS))
e("v_add_f32 v%d, s%d, v%d" % (vM, sT0, vM))
rbf(vM, vM); rbf(vS, vS)
e("v_add_f32 v%d, 0x3727c5ac, v%d" % (vS, vS))
rbf(vS, vS)
e("v_sqrt_f32 v%d, v%d" % (vS, vS))
rbf(vS, vS)
e("v_rcp_f32 v%d, v%d" % (vS + 1, vS))
v = vXR
e("v_lshlrev_b32 v%d, 16, v%d" % (v, v))
e("v_sub_f32 v%d, v%d, v%d" % (v, v, vM))
rbf(v, v)
e("v_mul_f32 v%d, v%d, v%d" % (b_, v, vS + 1))
e("v_fma_f32 v%d, -v%d, v%d, v%d" % (a, b_, vS, v))
e("v_fmac_f32 v%d, v%d, v%d" % (b_, a, vS + 1))
rbf(v, b_)
e("v_and_b32 v%d, 3, v%d" % (vA0, vLANE))
e("v_lshlrev_b32 v%d, 6, v%d" % (vA0, vA0))
e("v_and_b32 v%d, 0x3c, v%d" % (vA1, vLANE))
e("v_add_u32 v%d, v%d, v%d" % (vA0, vA0, vA1))
e("s_lshl_b32 s%d, s%d, 8" % (sT0, sW))
e("v_add_u32 v%d, s%d, v%d" % (vA0, sT0, vA0))
e("ds_write_b32 v%d, v%d offset:%d" % (vA0, vXR, L_LN))
e("v_lshlrev_b32 v%d, 6, v%d" % (vA1, vG))
e("v_add_u32 v%d, s%d, v%d" % (vA1, sT0, vA1))
e("s_waitcnt lgkmcnt(0)")
for k in range(3):
    e("ds_read_b128 %s, v%d offset:%d" % (vr(vL1 + 4 * k, 4), vA1, L_LN + 16 * k))
e("s_lshl_b32 s%d, s%d, 5" % (sF + 3, sB))
e("v_mov_b32 v%d, 0" % (vT + 20))
lf0 = e.newlabel("L_f0")
e("s_cmp_lg_u32 s%d, 0" % sW)
e("s_cbranch_scc1 %s" % lf0)
setexec(1)
e("buffer_load_dword v%d, v%d, %s, s%d offen sc1" % (vL16 + 1, vT + 20, srd(S_DBG), sF + 3))
setexec(-1)
e(lf0 + ":")
e("v_lshlrev_b32 v%d, 1, v%d" % (vA1, vQLw))
e("s_lshl_b32 s%d, s%d, 9" % (sT0, sW))
e("v_add_u32 v%d, s%d, v%d" % (vA1, sT0, vA1))
e("s_mul_i32 s%d, s%d, 544" % (sT0, sW))
e("s_add_u32 s%d, s%d, %d" % (sT0, sT0, L_QL))
e("v_add_u32 v%d, s%d, v%d" % (vQLw, sT0, vQLw))
e("v_lshlrev_b32 v%d, 3, v%d" % (vA2, vLANE))
e("v_lshlrev_b32 v%d, 2, v%d" % (vT + 29, vLANE))
e("s_lshl_b32 s%d, s%d, 13" % (sT0, sW))
e("s_add_u32 s%d, s%d, %d" % (sT0, sT0, L_WUK))
e("v_xor_b32 v%d, v%d, v%d" % (vA0, vN, vG))
for ks in range(4):
    e("v_xor_b32 v%d, %d, v%d" % (vUKa + ks, 4 * ks, vA0))
    e("v_lshlrev_b32 v%d, 4, v%d" % (vUKa + ks, vUKa + ks))
    e("v_lshl_add_u32 v%d, v%d, 8, v%d" % (vUKa + ks, vN, vUKa + ks))
    e("v_add_u32 v%d, s%d, v%d" % (vUKa + ks, sT0, vUKa + ks))
e("v_lshlrev_b32 v%d, 8, v%d" % (vA0, vN))
e("v_lshl_add_u32 v%d, v%d, 4, v%d" % (vA0, vG, vA0))
for k in range(8): e("v_mov_b32 v%d, 0" % (vT + k))
e("s_mov_b32 s%d, 0x00ff00ff" % sE0)
e("s_mov_b32 s%d, 0x00ff00ff" % (sE0 + 1))
e("s_lshl_b32 s%d, s%d, 9" % (sT2, sXI))
e("s_add_u32 s%d, s%d, %d" % (sT2, sT2, QP))
e("s_lshl_b32 s%d, s%d, 11" % (sT3, sH))
e("s_add_u32 s%d, s%d, %d" % (sT3, sT3, QP))
e("s_waitcnt lgkmcnt(0)")
for k in range(10): e("v_lshrrev_b32 v%d, 16, v%d" % (vL0 + k, vL1 + k))
stamp(2)
def a1(extra):
    for i in range(10):
        e("s_waitcnt vmcnt(%d)" % (9 - i + extra))
        for k in range(4):
            e("v_dot2c_f32_bf16 v%d, v%d, v%d" % (vT + 2 * k, vWQ + 4 * i + k, vL0 + i))
            e("v_dot2c_f32_bf16 v%d, v%d, v%d" % (vT + 2 * k + 1, vWQ + 4 * i + k, vL1 + i))
    e("s_nop 3")
la_ = e.newlabel("L_a1"); lb_ = e.newlabel("L_a1")
e("s_cmp_eq_u32 s%d, 0" % sW)
e("s_cbranch_scc1 %s" % la_)
a1(0)
e("s_branch %s" % lb_)
e(la_ + ":")
a1(1)
e(lb_ + ":")
rs_8to2(vT)
e("ds_write_b64 v%d, %s offset:%d" % (vA1, vr(vT, 2), L_RED))
lfo = e.newlabel("L_fo"); lfp = e.newlabel("L_fp"); lf1 = e.newlabel("L_f1")
e("s_mov_b32 s%d, 0" % sCNT)
e("s_cmp_lg_u32 s%d, 0" % sW)
e("s_cbranch_scc1 %s" % lfo)
setexec(1)
e("s_branch %s" % lf1)
e(lfp + ":")
setexec(1)
e("buffer_load_dword v%d, v%d, %s, s%d offen sc1" % (vL16 + 1, vT + 20, srd(S_DBG), sF + 3))
e(lf1 + ":")
e("s_waitcnt vmcnt(0)")
e("v_cmp_eq_u32 vcc, 0, v%d" % (vL16 + 1))
setexec(-1)
e("s_cbranch_vccz %s" % lfo)
e("s_add_u32 s%d, s%d, 1" % (sCNT, sCNT))
e("s_cmp_gt_u32 s%d, %d" % (sCNT, SPIN))
e("s_cbranch_scc1 %s" % lfo)
e("s_sleep 2")
e("s_branch %s" % lfp)
e(lfo + ":")
e("s_waitcnt lgkmcnt(0)")
e("s_barrier")
stamp(3)
lw = e.newlabel("L_a1w")
e("s_cmp_lg_u32 s%d, 0" % sW)
e("s_cbranch_scc1 %s" % lw)
for i in range(4):
    e("ds_read_b64 %s, v%d offset:%d" % (vr(vG0 + 2 * i, 2), vA2, L_RED + 512 * i))
e(lw + ":")
stamp(14)
if DIAG: e("v_writelane_b32 v%d, s%d, 20" % (vTSV, sCNT))
lw = e.newlabel("L_a1w")
e("s_cmp_lg_u32 s%d, 0" % sW)
e("s_cbranch_scc1 %s" % lw)
e("s_waitcnt lgkmcnt(0)")
v = vG0
e("v_pk_add_f32 %s, %s, %s" % (vr(v, 2), vr(v, 2), vr(v + 2, 2)))
e("v_pk_add_f32 %s, %s, %s" % (vr(v + 4, 2), vr(v + 4, 2), vr(v + 6, 2)))
e("v_pk_add_f32 %s, %s, %s" % (vr(v, 2), vr(v, 2), vr(v + 4, 2)))
e("v_min_u32 v%d, -2, v%d" % (v, v))
e("v_min_u32 v%d, -2, v%d" % (v + 1, v + 1))
e("buffer_store_dwordx2 %s, v%d, %s, s%d offen sc1" % (vr(v, 2), vA2, srd(S_WS), sT2))
e(lw + ":")
stamp(16)
if opt("d1", 4): e("s_sleep %d" % opt("d1", 4))
vQ8 = 100
e("s_lshl_b32 s%d, s%d, 8" % (sT0, sW))
e("v_add_u32 v%d, s%d, v%d" % (vT + 28, sT0, vT + 29))
e("v_lshlrev_b32 v%d, 4, v%d" % (vA0, vG))
e("v_add_u32 v%d, s%d, v%d" % (vA0, sT0, vA0))
poll([("buffer_load_dwordx2 %s, v%d, %s, s%d offen offset:%d sc1\nbuffer_load_dwordx2 %s, v%d, %s, s%d offen offset:%d sc1" % (vr(vQ8 + 4 * k, 2), vA2, srd(S_WS), sT3, 1024 * k, vr(vQ8 + 4 * k + 2, 2), vA2, srd(S_WS), sT3, 1024 * k + 512), vQ8 + 4 * k, 4) for k in range(2)], sleep=1)
stamp(15)
if DIAG: e("v_writelane_b32 v%d, s%d, 21" % (vTSV, sCNT))
e("v_pk_add_f32 %s, %s, %s" % (vr(vT, 2), vr(vQ8, 2), vr(vQ8 + 2, 2)))
e("v_pk_add_f32 %s, %s, %s" % (vr(vT + 2, 2), vr(vQ8 + 4, 2), vr(vQ8 + 6, 2)))
e("v_pk_add_f32 %s, %s, %s" % (vr(vT, 2), vr(vT, 2), vr(vT + 2, 2)))
e("v_cvt_pk_bf16_f32 v%d, v%d, v%d" % (vT, vT, vT + 1))
e("ds_write_b32 v%d, v%d offset:%d" % (vT + 28, vT, L_LN))
e("s_waitcnt lgkmcnt(0)")
vQA = 204
for ks in range(4):
    e("ds_read_b128 %s, v%d offset:%d" % (vr(vQA + 4 * ks, 4), vA0, L_LN + 64 * ks))
lr = e.newlabel("L_ew")
e("s_cmp_lg_u32 s%d, 1" % sW)
e("s_cbranch_scc1 %s" % lr)
e("s_lshl_b32 s%d, s%d, 6" % (sT0, sXI))
e("s_add_u32 s%d, s%d, %d" % (sT0, sT0, EWA))
store1(sT0)
e(lr + ":")
e("s_barrier")
vUK = 48
for t in range(2):
    for ks in range(4):
        e("ds_read_b128 %s, v%d offset:%d" % (vr(vUK + 16 * t + 4 * ks, 4), vUKa + ks, 4096 * t))
e("s_lshl_b32 s%d, s%d, 8" % (sT0, sXI))
e("s_lshl_b32 s%d, s%d, 6" % (sT1, sW))
e("s_add_u32 s%d, s%d, s%d" % (sT0, sT0, sT1))
e("v_lshlrev_b32 v%d, 1, v%d" % (vA1, vLANE))
for t in range(2):
    for ks in range(4):
        e("s_waitcnt lgkmcnt(%d)" % (7 - 4 * t - ks))
        e("v_mfma_f32_16x16x32_bf16 %s, %s, %s, %s" % (vr(vT + 4 * t, 4), vr(vQA + 4 * ks, 4), vr(vUK + 16 * t + 4 * ks, 4), "0" if ks == 0 else vr(vT + 4 * t, 4)))
e("v_mov_b32_dpp v%d, v%d quad_perm:[0,1,2,3] row_mask:0x2 bank_mask:0xf" % (vT, vT + 4))
e("v_mov_b32_dpp v%d, v%d row_shl:1 row_mask:0xf bank_mask:0xf bound_ctrl:0" % (vT + 1, vT))
e("v_cvt_pk_bf16_f32 v%d, v%d, v%d" % (vT, vT, vT + 1))
e("v_min_u32 v%d, -2, v%d" % (vT, vT))
setexec(0x55555555)
e("buffer_store_dword v%d, v%d, %s, s%d offen sc1" % (vT, vA1, srd(S_WS), sT0))
setexec(-1)
stamp(4)
e("s_barrier")
e("s_lshr_b32 s%d, s%d, 4" % (sT0, sH))
e("s_lshl_b32 s%d, s%d, 7" % (sT0, sT0))
e("s_and_b32 s%d, s%d, 15" % (sT1, sH))
e("s_lshl_b32 s%d, s%d, 3" % (sT1, sT1))
e("s_add_u32 s%d, s%d, s%d" % (sT0, sT0, sT1))
e("s_add_u32 s%d, s%d, %d" % (sT0, sT0, STAT))
e("s_lshl_b32 s%d, s%d, 12" % (sT1, sW))
e("s_add_u32 s%d, s%d, s%d" % (sT1, sT1, sT0))
e("v_lshlrev_b32 v%d, 8, v%d" % (vA1, vLANE))
e("v_lshlrev_b32 v%d, 15, v%d" % (vA2, vG))
e("v_lshl_add_u32 v%d, v%d, 4, v%d" % (vA2, vN, vA2))
e("s_lshl_b32 s%d, s%d, 19" % (sT2, sW))
e("s_lshl_b32 s%d, s%d, 8" % (sT3, sXI))
e("s_add_u32 s%d, s%d, s%d" % (sT2, sT2, sT3))
e("s_add_u32 s%d, s%d, %d" % (sT2, sT2, PART))
e("s_add_u32 s%d, s%d, 0x20000" % (sT3, sT2))
e("s_add_u32 s%d, s%d, 0x40000" % (sT4, sT2))
e("s_add_u32 s%d, s%d, 0x60000" % (sF, sT2))
e("s_lshl_b32 s%d, s%d, 6" % (sF + 1, sW))
e("v_lshlrev_b32 v%d, 2, v%d" % (vA0, vG))
e("v_add_u32 v%d, s%d, v%d" % (vA0, sF + 1, vA0))
vSo, vSa, vD = vG0, vG0 + 8, vG0 + 12
e("s_barrier")
frag_prep()
stamp(5)
NH3 = opt("nh3", 4)
e("s_and_b32 s%d, s%d, 15" % (sF + 2, sXI))
hint_addr(sF + 2, 16 // NH3 if NH3 > 1 else 1, 16, vA3)
e("v_lshlrev_b32 v%d, 1, v%d" % (vA3, vA3))
e("s_lshl_b32 s%d, s%d, 11" % (sF + 3, sW))
e("s_lshr_b32 s%d, s%d, 4" % (sF + 2, sH))
e("s_lshl_b32 s%d, s%d, 6" % (sF + 2, sF + 2))
e("s_add_u32 s%d, s%d, s%d" % (sF + 3, sF + 3, sF + 2))
e("s_add_u32 s%d, s%d, %d" % (sF + 3, sF + 3, EWB + 32))
poll([("buffer_load_dword v%d, v%d, %s, s%d offen offset:4 sc1" % (vSo, vA1, srd(S_WS), sT1), vSo, 1),
      ("buffer_load_dword v%d, v%d, %s, s%d offen sc1" % (vSo + 1, vA3, srd(S_WS), sF + 3), vSo + 1, 1)], sleep=opt("sl3", 3), init_masks=["0xffff", "0x%x" % ((1 << NH3) - 1)])
stamp(6)
if opt("d3", 0): e("s_sleep %d" % opt("d3", 0))
poll([("buffer_load_dwordx4 %s, v%d, %s, s%d offen sc1" % (vr(vD + 4 * i, 4), vA2, srd(S_WS), [sT2, sT3, sT4, sF][i]), vD + 4 * i, 4) for i in range(4)]
     + [("buffer_load_dwordx2 %s, v%d, %s, s%d offen sc1" % (vr(vSa, 2), vA1, srd(S_WS), sT0), vSa, -2)], sleep=opt("sl3b", 1))
stamp(7)
if DIAG: e("v_writelane_b32 v%d, s%d, 22" % (vTSV, sCNT))
e("v_mov_b32 v%d, v%d" % (vT + 8, vSa))
wave_red([vT + 8], [sT0], "v_max_f32")
e("v_mov_b32 v%d, s%d" % (vT + 9, sT0))
e("v_mul_f32 v%d, s%d, v%d" % (vT + 9, sL2E, vT + 9))
wv = vT + 12
e("v_fma_f32 v%d, v%d, s%d, -v%d" % (wv, vSa, sL2E, vT + 9))
e("v_exp_f32 v%d, v%d" % (wv, wv))
e("v_cvt_pk_bf16_f32 v%d, v%d, v%d" % (wv, wv, wv))
e("v_lshlrev_b32 v%d, 16, v%d" % (wv, wv))
for i in range(4):
    e("ds_bpermute_b32 v%d, v%d, v%d offset:%d" % (vSo + 2 * i + 1, vA0, wv, 16 * i))
e("v_mul_f32 v%d, v%d, v%d" % (wv + 1, wv, vSa + 1))
for k in range(8): e("v_mov_b32 v%d, 0" % (vT + k))
wave_red([wv + 1], [sT0])
for i in range(4):
    e("s_waitcnt lgkmcnt(%d)" % (3 - i))
    e("v_lshrrev_b32 v%d, 16, v%d" % (vSo + 2 * i, vSo + 2 * i + 1))
    for k in range(4):
        e("v_dot2c_f32_bf16 v%d, v%d, v%d" % (vT + 2 * k + 1, vD + 4 * i + k, vSo + 2 * i + 1))
    for k in range(4):
        e("v_dot2c_f32_bf16 v%d, v%d, v%d" % (vT + 2 * k, vD + 4 * i + k, vSo + 2 * i))
e("v_rcp_f32 v%d, s%d" % (vT + 8, sT0))
rs_8to2(vT)
e("v_mul_f32 v%d, v%d, v%d" % (vT, vT, vT + 8))
e("v_mul_f32 v%d, v%d, v%d" % (vT + 1, vT + 1, vT + 8))
hilo_write(vT, vQLw)
e("s_branch %s" % lc1)
e(lS + ":")
e("s_sub_u32 s%d, s%d, 4" % (sT3, sW))
l1 = e.newlabel("L_c")
e("s_cmp_lg_u32 s%d, 4" % sW)
e("s_cbranch_scc1 %s" % l1)
e("s_lshl_b32 s%d, s2, 7" % sT0)
e("s_add_u32 s%d, s%d, %d" % (sT0, sT0, HP))
setexec(0xff)
e("buffer_store_dwordx4 %s, v%d, %s, s%d offen sc1" % (vr(vCL, 4), vL16, srd(S_WS), sT0))
e("s_lshl_b32 s%d, s2, 6" % sT0)
e("s_add_u32 s%d, s%d, %d" % (sT0, sT0, EWC))
setexec(0xf)
e("buffer_store_dwordx4 %s, v%d, %s, s%d offen sc1" % (vr(vCL, 4), vL16, srd(S_WS), sT0))
e("s_lshr_b32 s%d, s%d, 4" % (sT0, sH))
e("s_lshl_b32 s%d, s%d, 7" % (sT0, sT0))
e("s_and_b32 s%d, s%d, 15" % (sT1, sH))
e("s_lshl_b32 s%d, s%d, 3" % (sT1, sT1))
e("s_add_u32 s%d, s%d, s%d" % (sT0, sT0, sT1))
e("s_lshl_b32 s%d, s%d, 12" % (sT1, sCQ))
e("s_add_u32 s%d, s%d, s%d" % (sT0, sT0, sT1))
e("s_add_u32 s%d, s%d, %d" % (sT0, sT0, STAT))
setexec(0xffff)
e("v_lshlrev_b32 v%d, 8, v%d" % (vA0, vLANE))
e("buffer_store_dwordx2 %s, v%d, %s, s%d offen sc1" % (vr(vCL, 2), vA0, srd(S_WS), sT0))
setexec(-1)
e(l1 + ":")
e("s_lshl_b32 s%d, s%d, 7" % (sF, sCQ))
e("s_lshl_b32 s%d, s%d, 5" % (sT1, sT3))
e("s_add_u32 s%d, s%d, s%d" % (sF, sF, sT1))
e("s_lshl_b32 s%d, s%d, 13" % (sF, sF))
e("s_lshl_b32 s%d, s%d, 8" % (sT1, sH))
e("s_add_u32 s%d, s%d, s%d" % (sF, sF, sT1))
e("v_xor_b32 v%d, v%d, v%d" % (vA2, vN, vG))
for k in range(4):
    e("v_xor_b32 v%d, %d, v%d" % (vT + k, 4 * k, vA2))
    e("v_lshlrev_b32 v%d, 4, v%d" % (vT + k, vT + k))
    e("v_lshl_add_u32 v%d, v%d, 13, v%d" % (vT + k, vG, vT + k))
e("s_mov_b32 s%d, s%d" % (sT0, sF))
e("s_lshl_b32 s%d, s%d, 13" % (sT2, sT3))
e("s_add_u32 s%d, s%d, %d" % (sT2, sT2, L_WUK))
e("s_barrier")
e("s_barrier")
for k in range(8):
    e("s_mov_b32 m0, s%d" % sT2)
    e("buffer_load_dwordx4 v%d, %s, s%d offen%s lds" % (vT + (k & 3), srd(S_WUK), sT0, NT))
    if k < 7:
        e("s_add_u32 s%d, s%d, 32768" % (sT0, sT0))
        e("s_add_u32 s%d, s%d, 1024" % (sT2, sT2))
e("s_waitcnt vmcnt(8)")
e("s_barrier")
e("s_waitcnt vmcnt(0)")
stamp(12)
def uv_dma():
    e("v_lshrrev_b32 v%d, 1, v%d" % (vA2, vG))
    e("v_lshlrev_b32 v%d, 2, v%d" % (vA2, vA2))
    e("v_xor_b32 v%d, v%d, v%d" % (vA2, vA2, vN))
    e("s_and_b32 s%d, s%d, 1" % (sT0, sT3))
    e("s_lshl_b32 s%d, s%d, 1" % (sT0, sT0))
    e("v_xor_b32 v%d, s%d, v%d" % (vA2, sT0, vA2))
    for c, cv in enumerate((0, 8, 1, 9)):
        e("v_xor_b32 v%d, %d, v%d" % (vT + c, cv, vA2))
        e("v_lshlrev_b32 v%d, 4, v%d" % (vT + c, vT + c))
        e("v_lshl_add_u32 v%d, v%d, 13, v%d" % (vT + c, vG, vT + c))
    e("s_mov_b32 s%d, s%d" % (sT0, sF))
    e("s_lshl_b32 s%d, s%d, 13" % (sT2, sT3))
    e("s_add_u32 s%d, s%d, %d" % (sT2, sT2, L_WUV))
    for k in range(8):
        e("s_mov_b32 m0, s%d" % sT2)
        e("buffer_load_dwordx4 v%d, %s, s%d offen%s lds" % (vT + 2 * (k >> 2) + (k & 1), srd(S_WUV), sT0, NT))
        if k < 7:
            e("s_add_u32 s%d, s%d, 32768" % (sT0, sT0))
            e("s_add_u32 s%d, s%d, 1024" % (sT2, sT2))
if opt("uve", 0): uv_dma()
e("s_barrier")
e("s_barrier")
if not opt("uve", 0): uv_dma()
lno = e.newlabel("L_no")
e("s_cmp_ge_u32 s2, 120")
e("s_cbranch_scc1 %s" % lno)
e("v_lshrrev_b32 v%d, 3, v%d" % (vA0, vLANE))
e("v_mul_u32_u24 v%d, 1280, v%d" % (vA0, vA0))
e("v_and_b32 v%d, 7, v%d" % (vA1, vLANE))
e("v_and_b32 v%d, 1, v%d" % (vA2, vG))
e("v_xor_b32 v%d, v%d, v%d" % (vA1, vA1, vA2))
e("s_lshl_b32 s%d, s%d, 1" % (sT0, sT3))
e("v_xor_b32 v%d, s%d, v%d" % (vA1, sT0, vA1))
e("v_lshl_add_u32 v%d, v%d, 4, v%d" % (vA0, vA1, vA0))
e("s_lshl_b32 s%d, s%d, 2" % (sT0, sUS))
e("s_add_u32 s%d, s%d, s%d" % (sT0, sT0, sT3))
e("s_mul_i32 s%d, s%d, 10240" % (sT0, sT0))
e("s_lshl_b32 s%d, s%d, 7" % (sT1, sST))
e("s_add_u32 s%d, s%d, s%d" % (sT0, sT0, sT1))
e("s_lshl_b32 s%d, s%d, 10" % (sT2, sT3))
e("s_add_u32 s%d, s%d, %d" % (sT2, sT2, L_WO))
for k in range(11):
    if k == 10:
        e("s_cmp_lt_u32 s%d, 11" % sNU)
        e("s_cbranch_scc1 %s" % lno)
    e("s_mov_b32 m0, s%d" % sT2)
    e("buffer_load_dwordx4 v%d, %s, s%d offen%s lds" % (vA0, srd(S_WO), sT0, NT))
    if k < 10:
        e("s_add_u32 s%d, s%d, 40960" % (sT0, sT0))
        e("s_add_u32 s%d, s%d, 4096" % (sT2, sT2))
e(lno + ":")
e("s_waitcnt vmcnt(0)")
stamp(11)
e("s_barrier")
frag_prep()
e(lc1 + ":")
e("s_lshl_b32 s%d, s%d, 5" % (sT1, sW))
e("s_lshl_b32 s%d, s%d, 8" % (sT0, sXI))
e("s_add_u32 s%d, s%d, s%d" % (sT0, sT0, sT1))
e("s_add_u32 s%d, s%d, %d" % (sT0, sT0, CP))
e("s_waitcnt lgkmcnt(0)")
e("s_barrier")
setexec(0x00ff00ff00ff00ff)
for ks in range(4):
    e("ds_read_b128 %s, v%d offset:%d" % (vr(vCF + 4 * ks, 4), vQLr, 64 * ks))
setexec(-1)
for ks in range(4):
    e("s_waitcnt lgkmcnt(%d)" % (3 - ks))
    e("v_mfma_f32_16x16x32_bf16 %s, %s, %s, %s" % (vr(vT, 4), vr(vCF + 4 * ks, 4), vr(vBUV + 4 * ks, 4), "0" if ks == 0 else vr(vT, 4)))
e("v_add_f32 v%d, v%d, v%d" % (vT, vT, vT + 1))
e("v_add_f32 v%d, v%d, v%d" % (vT + 2, vT + 2, vT + 3))
e("v_add_f32 v%d, v%d, v%d" % (vT, vT, vT + 2))
e("v_mov_b32 v%d, v%d" % (vT + 1, vT))
e("v_permlane16_swap_b32 v%d, v%d" % (vT, vT + 1))
e("v_add_f32 v%d, v%d, v%d" % (vT, vT, vT + 1))
e("v_mov_b32_dpp v%d, v%d row_shl:1 row_mask:0xf bank_mask:0xf bound_ctrl:0" % (vT + 1, vT))
e("v_cvt_pk_bf16_f32 v%d, v%d, v%d" % (vT, vT, vT + 1))
e("v_min_u32 v%d, -2, v%d" % (vT, vT))
setexec(0x5555)
e("buffer_store_dword v%d, v%d, %s, s%d offen sc1" % (vT, vOutA, srd(S_WS), sT0))
setexec(-1)
stamp(8)
e("s_cmp_ge_u32 s2, 120")
e("s_cbranch_scc1 L_fin")
vG2 = 204
e("v_lshlrev_b32 v%d, 8, v%d" % (vA0, vN))
e("v_lshl_add_u32 v%d, v%d, 4, v%d" % (vA0, vG, vA0))
e("s_add_u32 s%d, s%d, s%d" % (sT1, sUS, sW))
e("s_lshr_b32 s%d, s%d, 2" % (sT0, sT1))
e("s_lshl_b32 s%d, s%d, 10" % (sT0, sT0))
e("s_and_b32 s%d, s%d, 3" % (sT1, sT1))
e("s_lshl_b32 s%d, s%d, 6" % (sT1, sT1))
e("s_add_u32 s%d, s%d, s%d" % (sT0, sT0, sT1))
e("s_add_u32 s%d, s%d, %d" % (sT0, sT0, CP))
for k in range(8): e("v_mov_b32 v%d, 0" % (vG2 + k))
e("s_mov_b32 s%d, 0x000f000f" % sE0)
e("s_mov_b32 s%d, 0x000f000f" % (sE0 + 1))
e("s_add_u32 s%d, s%d, 8" % (sT1, sW))
e("s_cmp_lt_u32 s%d, s%d" % (sT1, sNU))
e("s_cselect_b64 %s, %s, 0" % (sp(sE1), sp(sE0)))
e("s_cselect_b32 s%d, 1, 0" % sT4)
e("v_lshlrev_b32 v%d, 2, v%d" % (vA1, vLANE))
e("s_lshl_b32 s%d, s%d, 8" % (sT1, sW))
e("v_add_u32 v%d, s%d, v%d" % (vA2, sT1, vA1))
e("s_lshl_b32 s%d, s2, 6" % sT2)
e("s_add_u32 s%d, s%d, %d" % (sT2, sT2, EWC))
if opt("d4", 0): e("s_sleep %d" % opt("d4", 0))
poll([("buffer_load_dwordx4 %s, v%d, %s, s%d offen offset:%d sc1" % (vr(vG2 + 4 * j, 4), vA0, srd(S_WS), sT0, 2048 * j), vG2 + 4 * j, 4) for j in range(2)], sleep=1, init_masks=[sp(sE0), sp(sE1)])
lr = e.newlabel("L_ew")
e("s_cmp_lg_u32 s%d, 0" % sW)
e("s_cbranch_scc1 %s" % lr)
store1(sT2)
e(lr + ":")
stamp(9)
e("s_waitcnt lgkmcnt(0)")
for t in range(4):
    e("v_mfma_f32_16x16x32_bf16 %s, %s, %s, 0" % (vr(vT + 4 * t, 4), vr(vG2, 4), vr(vBO + 4 * t, 4)))
l2u = e.newlabel("L_2u")
e("s_cmp_eq_u32 s%d, 0" % sT4)
e("s_cbranch_scc1 %s" % l2u)
for t in range(4):
    e("v_mfma_f32_16x16x32_bf16 %s, %s, %s, %s" % (vr(vT + 4 * t, 4), vr(vG2 + 4, 4), vr(vBO + 16 + 4 * t, 4), vr(vT + 4 * t, 4)))
e(l2u + ":")
e("s_lshl_b32 s%d, s2, 7" % sT0)
e("s_add_u32 s%d, s%d, %d" % (sT0, sT0, HP))
setexec(0xffff)
e("s_nop 4")
for t in range(4):
    b = vT + 4 * t
    e("v_add_f32 v%d, v%d, v%d" % (b, b, b + 1))
    e("v_add_f32 v%d, v%d, v%d" % (b + 2, b + 2, b + 3))
    e("v_add_f32 v%d, v%d, v%d" % (b, b, b + 2))
    e("ds_write_b32 v%d, v%d offset:%d" % (vA2, b, L_RED + 64 * t))
setexec(-1)
e("s_waitcnt lgkmcnt(0)")
e("s_barrier")
e("s_cmp_lg_u32 s%d, 0" % sW)
e("s_cbranch_scc1 L_fin")
e("v_lshlrev_b32 v%d, 3, v%d" % (vA2, vLANE))
setexec(0xffffffff)
for i in range(8):
    e("ds_read_b64 %s, v%d offset:%d" % (vr(vG2 + 8 + 2 * i, 2), vA2, L_RED + 256 * i))
e("s_waitcnt lgkmcnt(0)")
for st in (4, 2, 1):
    for i in range(st):
        e("v_pk_add_f32 %s, %s, %s" % (vr(vG2 + 8 + 2 * i, 2), vr(vG2 + 8 + 2 * i, 2), vr(vG2 + 8 + 2 * (i + st), 2)))
e("v_cvt_pk_bf16_f32 v%d, v%d, v%d" % (vG2 + 8, vG2 + 8, vG2 + 9))
e("v_min_u32 v%d, -2, v%d" % (vG2 + 8, vG2 + 8))
e("buffer_store_dword v%d, v%d, %s, s%d offen sc1" % (vG2 + 8, vA1, srd(S_WS), sT0))
setexec(-1)
stamp(10)
e("s_branch L_fin")

vCA, vCB, vGQ, vACC, vP = 48, 112, 176, 208, 224
e("L_Y:")
if opt("cpf", 0):
    lp_ = e.newlabel("L_cpf")
    e("s_cmp_lg_u32 s%d, 14" % sA)
    e("s_cbranch_scc1 %s" % lp_)
    e("s_getpc_b64 s[%d:%d]" % (sTM, sTM + 1))
    e.raw("L_pcref:")
    e.raw("    s_sub_u32 s%d, s%d, (L_pcref - %s)" % (sTM, sTM, KN))
    e.raw("    s_subb_u32 s%d, s%d, 0" % (sTM + 1, sTM + 1))
    e("v_lshlrev_b32 v%d, 4, v0" % vA0)
    for k in range(opt("cpf", 0)):
        e("global_load_dwordx4 %s, v%d, s[%d:%d]" % (vr(48 + 4 * k, 4), vA0, sTM, sTM + 1))
        e("v_add_u32 v%d, 8192, v%d" % (vA0, vA0))
    e(lp_ + ":")
l5 = e.newlabel("L_c"); l6 = e.newlabel("L_c"); l7 = e.newlabel("L_c")
e("s_cmp_lt_u32 s2, 248")
e("s_cbranch_scc1 %s" % l5)
e("s_lshl_b32 s%d, s%d, 13" % (sT2, sB))
e("s_lshl_b32 s%d, s%d, 10" % (sT3, sW))
e("s_add_u32 s%d, s%d, s%d" % (sT2, sT2, sT3))
e("s_add_u32 s%d, s%d, %d" % (sT2, sT2, QP))
e("buffer_store_dwordx4 %s, v%d, %s, s%d offen sc1" % (vr(vCL, 4), vL16, srd(S_WS), sT2))
e("s_lshl_b32 s%d, s%d, 12" % (sT2, sB))
e("s_and_b32 s%d, s%d, 3" % (sT3, sW))
e("s_lshl_b32 s%d, s%d, 10" % (sT3, sT3))
e("s_add_u32 s%d, s%d, s%d" % (sT2, sT2, sT3))
e("s_lshr_b32 s%d, s%d, 2" % (sT3, sW))
e("s_lshl_b32 s%d, s%d, 15" % (sT3, sT3))
e("s_add_u32 s%d, s%d, s%d" % (sT2, sT2, sT3))
e("buffer_store_dwordx4 %s, v%d, %s, s%d offen sc1" % (vr(vCL, 4), vL16, srd(S_WS), sT2))
e("s_cmp_lt_u32 s%d, 6" % sW)
e("s_cbranch_scc1 %s" % l6)
e("s_lshl_b32 s%d, s%d, 10" % (sT2, sB))
e("s_mov_b32 s%d, %d" % (sT3, EWA))
e("s_cmp_eq_u32 s%d, 6" % sW)
e("s_cselect_b32 s%d, %d, s%d" % (sT3, EWB, sT3))
e("s_add_u32 s%d, s%d, s%d" % (sT2, sT2, sT3))
e("buffer_store_dwordx4 %s, v%d, %s, s%d offen sc1" % (vr(vCL, 4), vL16, srd(S_WS), sT2))
e(l6 + ":")
e("s_waitcnt vmcnt(0)")
e("s_barrier")
e("s_cmp_lg_u32 s%d, 0" % sW)
e("s_cbranch_scc1 %s" % l7)
e("s_lshl_b32 s%d, s%d, 5" % (sT2, sB))
e("v_mov_b32 v%d, 1" % vA3)
setexec(1)
e("buffer_store_dword v%d, v%d, %s, s%d offen sc1" % (vA3, vL16, srd(S_DBG), sT2))
setexec(-1)
stamp(17)
e(l7 + ":")
e("s_barrier")
e(l5 + ":")
e("s_lshl_b32 s%d, s%d, 3" % (sKS, sB))
e("s_lshr_b32 s%d, s%d, 1" % (sT0, sA))
e("s_add_u32 s%d, s%d, s%d" % (sKS, sKS, sT0))
e("s_and_b32 s%d, s%d, 1" % (sHF, sA))
e("s_lshl_b32 s%d, s%d, 1" % (sYI, sKS))
e("s_add_u32 s%d, s%d, s%d" % (sYI, sYI, sHF))
e("s_lshr_b32 s%d, s%d, 1" % (sT1, sA))
e("s_lshl_b32 s%d, s%d, 3" % (sT1, sT1))
e("s_add_u32 s%d, s%d, s%d" % (sT1, sT1, sB))
e("s_and_b32 s%d, s%d, 1" % (sT0, sA))
e("s_lshl_b32 s%d, s%d, 1" % (sRD, sT1))
e("s_add_u32 s%d, s%d, s%d" % (sRD, sRD, sT0))
e("s_cmp_lt_u32 s%d, 27" % sT1)
e("s_cselect_b32 s%d, 1, 0" % sISD)
e("s_cmp_lt_u32 s%d, 20" % sT1)
e("s_cselect_b32 s%d, 1, 0" % sFIN)
e("s_cmp_eq_u32 s%d, 0" % sT0)
e("s_cselect_b32 s%d, s%d, 0" % (sFIN, sFIN))
def y_dma():
    e("s_lshl_b32 s%d, s%d, 7" % (sT0, sKS))
    e("s_lshl_b32 s%d, s%d, 4" % (sT2, sW))
    e("s_add_u32 s%d, s%d, s%d" % (sT0, sT0, sT2))
    e("s_lshl_b32 s%d, s%d, 10" % (sT0, sT0))
    e("s_mul_i32 s%d, s%d, %d" % (sT2, sT2, RS))
    e("s_add_u32 s%d, s%d, %d" % (sT2, sT2, L_CK))
    for j in range(2):
        e("s_xor_b32 s%d, s%d, %d" % (sT3, sHF, j))
        e("s_lshl_b32 s%d, s%d, 13" % (sT1, sT3))
        e("s_add_u32 s%d, s%d, s%d" % (sT1, sT1, sT0))
        e("s_mul_i32 s%d, s%d, %d" % (sT3, sT3, 8 * RS))
        e("s_add_u32 s%d, s%d, s%d" % (sT3, sT3, sT2))
        for i in range(8):
            e("s_mov_b32 m0, s%d" % sT3)
            e("buffer_load_dwordx4 v%d, %s, s%d offen%s lds" % (vL16, srd(S_CKV), sT1, NTC))
            if i < 7:
                e("s_add_u32 s%d, s%d, 1024" % (sT1, sT1))
                e("s_add_u32 s%d, s%d, %d" % (sT3, sT3, RS))
def y_pclr():
    e("s_lshl_b32 s%d, s%d, 14" % (sT0, sYI))
    e("s_lshl_b32 s%d, s%d, 11" % (sT1, sW))
    e("s_add_u32 s%d, s%d, s%d" % (sT0, sT0, sT1))
    e("s_add_u32 s%d, s%d, %d" % (sT0, sT0, PART))
    for i in range(2):
        e("buffer_store_dwordx4 %s, v%d, %s, s%d offen offset:%d sc1" % (vr(vCL, 4), vL16, srd(S_WS), sT0, 1024 * i))
def y_clr():
    if not opt("ypc", 1): y_pclr()
    l3 = e.newlabel("L_c")
    e("s_cmp_eq_u32 s%d, 0" % sISD)
    e("s_cbranch_scc1 %s" % l3)
    e("s_cmp_gt_u32 s%d, 2" % sW)
    e("s_cbranch_scc1 %s" % l3)
    e("s_mul_i32 s%d, s%d, 2560" % (sT0, sRD))
    e("s_add_u32 s%d, s%d, %d" % (sT0, sT0, OP))
    e("v_lshlrev_b32 v%d, 4, v0" % vA3)
    e("v_cmp_gt_u32 vcc, 160, v0")
    e("s_mov_b64 exec, vcc")
    e("buffer_store_dwordx4 %s, v%d, %s, s%d offen sc1" % (vr(vCL, 4), vA3, srd(S_WS), sT0))
    setexec(-1)
    e(l3 + ":")
if opt("yord", 0):
    y_clr()
    e("s_waitcnt vmcnt(0)")
    for _ in range(opt("ydel", 0)): e("s_sleep 16")
    y_dma()
else:
    for _ in range(opt("ydel", 0)): e("s_sleep 16")
    y_dma()
    y_clr()
vFr = 43
e("v_mul_u32_u24 v%d, %d, v%d" % (vFr, RS, vN))
e("v_lshl_add_u32 v%d, v%d, 4, v%d" % (vFr, vG, vFr))
e("s_mul_i32 s%d, s%d, %d" % (sT0, sW, 16 * RS))
e("s_add_u32 s%d, s%d, %d" % (sT0, sT0, L_CK))
e("v_add_u32 v%d, s%d, v%d" % (vA1, sT0, vFr))
lr = e.newlabel("L_r")
e("s_cmp_lg_u32 s%d, 0" % sW)
e("s_cbranch_scc1 %s" % lr)
flag_check()
e(lr + ":")
e("s_waitcnt vmcnt(0)")
stamp(1)
if opt("ypc", 1): y_pclr()
for ks in range(16):
    e("ds_read_b128 %s, v%d offset:%d" % (vr(vCA + 4 * ks, 4), vA1, 64 * ks))
    if ks == 7: e("s_waitcnt lgkmcnt(0)")
e("s_barrier")
stamp(2)
e("s_lshl_b32 s%d, s%d, 4" % (sT0, sHF))
e("s_lshl_b32 s%d, s%d, 1" % (sT1, sW))
e("s_add_u32 s%d, s%d, s%d" % (sT0, sT0, sT1))
e("s_lshl_b32 s%d, s%d, 10" % (sT2, sT0))
vQG = 240
for k in range(2):
    e("buffer_load_dwordx4 %s, v%d, %s, s%d offen offset:%d sc1" % (vr(vQG + 4 * k, 4), vL16, srd(S_WS), sT2, 1024 * k))
e("v_lshrrev_b32 v%d, 2, v%d" % (vA1, vN))
e("v_lshl_add_u32 v%d, v%d, 3, v%d" % (vA1, vG, vA1))
e("v_mul_u32_u24 v%d, %d, v%d" % (vA1, RS, vA1))
e("v_and_b32 v%d, 3, v%d" % (vA3, vN))
e("v_lshl_add_u32 v%d, v%d, 3, v%d" % (vA1, vA3, vA1))
e("s_lshl_b32 s%d, s%d, 7" % (sT0, sW))
e("s_add_u32 s%d, s%d, %d" % (sT0, sT0, L_CK))
e("v_add_u32 v%d, s%d, v%d" % (vA1, sT0, vA1))
e("v_add_u32 v%d, %d, v%d" % (vA2, 64 * RS, vA1))
e("s_waitcnt lgkmcnt(0)")
cnt = 0
for t in range(4):
    for kk in range(4):
        for u in range(2):
            e("ds_read_b64_tr_b16 %s, v%d offset:%d" % (vr(vCB + 16 * t + 4 * kk + 2 * u, 2), vA1 if kk < 2 else vA2, (32 * (kk & 1) + 4 * u) * RS + 32 * t))
            cnt += 1
            if cnt % 8 == 0: e("s_waitcnt lgkmcnt(0)")
vQSw, vQSr, vMXa, vPw, vPr, vPo = 240 - 16 + 16, 0, 0, 0, 0, 0
vQSw, vQSr, vMXa, vPw, vPr, vPo = vT + 20, vT + 21, vT + 22, vT + 23, vT + 24, vT + 25
e("s_mul_i32 s%d, s%d, %d" % (sT0, sW, 2 * RS))
e("s_add_u32 s%d, s%d, %d" % (sT0, sT0, L_QS))
e("v_add_u32 v%d, s%d, v%d" % (vQSw, sT0, vL16))
e("v_add_u32 v%d, %d, v%d" % (vQSr, L_QS, vFr))
e("v_lshlrev_b32 v%d, 5, v%d" % (vMXa, vN))
e("v_mul_u32_u24 v%d, %d, v%d" % (vPr, PRS, vN))
e("v_lshl_add_u32 v%d, v%d, 3, v%d" % (vPw, vG, vPr))
e("s_lshl_b32 s%d, s%d, 5" % (sT0, sW))
e("v_add_u32 v%d, s%d, v%d" % (vPw, sT0, vPw))
e("v_lshl_add_u32 v%d, v%d, 4, v%d" % (vPr, vG, vPr))
e("v_lshlrev_b32 v%d, 12, v%d" % (vPo, vG))
e("v_lshl_add_u32 v%d, v%d, 3, v%d" % (vPo, vN, vPo))
e("s_lshl_b32 s%d, s%d, 2" % (sT4, sW))
e("v_add_u32 v%d, s%d, v%d" % (vT + 26, sT4, vMXa))
e("v_lshlrev_b32 v%d, 7, v%d" % (vT + 27, vN))
e("v_lshl_add_u32 v%d, v%d, 2, v%d" % (vT + 27, vG, vT + 27))
e("s_lshl_b32 s%d, s%d, 4" % (sT4, sW))
e("v_add_u32 v%d, s%d, v%d" % (vT + 27, sT4, vT + 27))
e("s_lshl_b32 s%d, s%d, 4" % (sT0, sHF))
e("s_lshl_b32 s%d, s%d, 1" % (sT1, sW))
e("s_add_u32 s%d, s%d, s%d" % (sT0, sT0, sT1))
e("s_lshl_b32 s%d, s%d, 10" % (sT2, sT0))
NH2 = opt("nh2", 4)
e("s_lshl_b32 s%d, s%d, 8" % (sT0, sT0))
e("s_add_u32 s%d, s%d, %d" % (sT0, sT0, EWA))
e("s_and_b32 s%d, s%d, 7" % (sT1, sKS))
hint_addr(sT1, 8 // NH2 if NH2 > 1 else 1, 8, vA3)
lq = e.newlabel("L_qok")
e("s_waitcnt vmcnt(0)")
e("v_max3_u32 v%d, v%d, v%d, v%d" % (vT, vQG, vQG + 1, vQG + 2))
e("v_max3_u32 v%d, v%d, v%d, v%d" % (vT, vT, vQG + 3, vQG + 4))
e("v_max3_u32 v%d, v%d, v%d, v%d" % (vT, vT, vQG + 5, vQG + 6))
e("v_max_u32 v%d, v%d, v%d" % (vT, vT, vQG + 7))
e("v_cmp_eq_u32 vcc, -1, v%d" % vT)
e("s_cbranch_vccz %s" % lq)
poll([("buffer_load_dword v%d, v%d, %s, s%d offen sc1" % (vGQ, vA3, srd(S_WS), sT0), vGQ, 1)], sleep=opt("sl2", 3), init_masks=["0x%x" % ((1 << NH2) - 1)])
stamp(3)
poll([("buffer_load_dwordx4 %s, v%d, %s, s%d offen offset:%d sc1" % (vr(vQG + 4 * k, 4), vL16, srd(S_WS), sT2, 1024 * k), vQG + 4 * k, 4) for k in range(2)], sleep=1)
e(lq + ":")
stamp(4)
for k in range(2):
    e("ds_write_b128 v%d, %s offset:%d" % (vQSw, vr(vQG + 4 * k, 4), RS * k))
e("s_waitcnt lgkmcnt(0)")
e("s_barrier")
lmk = e.newlabel("L_mk")
e("s_cmp_lg_u32 s%d, 7" % sW)
e("s_cbranch_scc1 %s" % lmk)
e("s_lshl_b32 s%d, s%d, 7" % (sT0, sYI))
e("s_add_u32 s%d, s%d, %d" % (sT0, sT0, STAT))
e("v_lshlrev_b32 v%d, 3, v%d" % (vA1, vN))
e("v_mov_b32 v%d, 0" % (vT + 8))
e("v_mov_b32 v%d, -1.0" % (vT + 9))
setexec(0xffff)
e("buffer_store_dwordx2 %s, v%d, %s, s%d offen sc1" % (vr(vT + 8, 2), vA1, srd(S_WS), sT0))
setexec(-1)
e("s_lshl_b32 s%d, s%d, 6" % (sT0, sYI))
e("s_add_u32 s%d, s%d, %d" % (sT0, sT0, EWB))
store1(sT0)
e(lmk + ":")
L_W2 = L_W1 + 43008
if opt("w2e", 0):
    lwe = e.newlabel("L_w2e")
    e("s_cmp_eq_u32 s%d, 0" % sISD)
    e("s_cbranch_scc1 %s" % lwe)
    e("s_mul_i32 s%d, s%d, 5120" % (sF + 1, sW))
    e("s_mul_i32 s%d, s%d, 40960" % (sF, sRD))
    e("s_add_u32 s%d, s%d, s%d" % (sF, sF, sF + 1))
    e("s_add_u32 s%d, s%d, %d" % (sF + 1, sF + 1, L_W2))
    for k in range(5):
        e("s_mov_b32 m0, s%d" % (sF + 1))
        e("buffer_load_dwordx4 v%d, %s, s%d offen nt lds" % (vL16, srd(S_W2), sF))
        if k < 4:
            e("s_add_u32 s%d, s%d, 1024" % (sF, sF))
            e("s_add_u32 s%d, s%d, 1024" % (sF + 1, sF + 1))
    e(lwe + ":")
sacc = vT
for half in range(2):
    for k in range(8):
        e("ds_read_b128 %s, v%d offset:%d" % (vr(vGQ + 4 * k, 4), vQSr, 64 * (8 * half + k)))
    for k in range(8):
        ks = 8 * half + k
        e("s_waitcnt lgkmcnt(%d)" % (7 - k))
        e("v_mfma_f32_16x16x32_bf16 %s, %s, %s, %s" % (vr(sacc, 4), vr(vCA + 4 * ks, 4), vr(vGQ + 4 * k, 4), "0" if ks == 0 else vr(sacc, 4)))
if opt('mk', 0) == 0:
    lh1 = e.newlabel("L_h1")
    e("s_cmp_lg_u32 s%d, 6" % sW)
    e("s_cbranch_scc1 %s" % lh1)
    e("s_lshl_b32 s%d, s%d, 6" % (sT0, sYI))
    e("s_add_u32 s%d, s%d, %d" % (sT0, sT0, EWB + 32))
    store1(sT0)
    e(lh1 + ":")
e("s_mov_b32 s%d, 0x3db504f3" % sT0)
e("v_cvt_pk_bf16_f32 v%d, v%d, v%d" % (vT + 4, sacc, sacc + 1))
e("v_cvt_pk_bf16_f32 v%d, v%d, v%d" % (vT + 5, sacc + 2, sacc + 3))
unpack(sacc, vT + 4, 2)
for i in range(4): e("v_mul_f32 v%d, s%d, v%d" % (sacc + i, sT0, sacc + i))
e("v_cvt_pk_bf16_f32 v%d, v%d, v%d" % (vT + 4, sacc, sacc + 1))
e("v_cvt_pk_bf16_f32 v%d, v%d, v%d" % (vT + 5, sacc + 2, sacc + 3))
unpack(sacc, vT + 4, 2)
mx = vT + 4
e("v_max3_f32 v%d, v%d, v%d, v%d" % (mx, sacc, sacc + 1, sacc + 2))
e("v_max_f32 v%d, v%d, v%d" % (mx, mx, sacc + 3))
allred_g(mx, vT + 5, "v_max_f32")
e("ds_write_b32 v%d, v%d offset:%d" % (vT + 26, mx, L_MX))
if opt('mk', 0) == 1:
    lh1 = e.newlabel("L_h1")
    e("s_cmp_lg_u32 s%d, 6" % sW)
    e("s_cbranch_scc1 %s" % lh1)
    e("s_lshl_b32 s%d, s%d, 6" % (sT0, sYI))
    e("s_add_u32 s%d, s%d, %d" % (sT0, sT0, EWB + 32))
    store1(sT0)
    e(lh1 + ":")
e("s_waitcnt lgkmcnt(0)")
e("s_barrier")
stamp(5)
e("ds_read_b128 %s, v%d offset:%d" % (vr(vT + 8, 4), vMXa, L_MX))
e("ds_read_b128 %s, v%d offset:%d" % (vr(vT + 12, 4), vMXa, L_MX + 16))
e("s_waitcnt lgkmcnt(0)")
e("v_max3_f32 v%d, v%d, v%d, v%d" % (mx, vT + 8, vT + 9, vT + 10))
e("v_max3_f32 v%d, v%d, v%d, v%d" % (vT + 5, vT + 11, vT + 12, vT + 13))
e("v_max3_f32 v%d, v%d, v%d, v%d" % (mx, mx, vT + 14, vT + 15))
e("v_max_f32 v%d, v%d, v%d" % (mx, mx, vT + 5))
e("v_mul_f32 v%d, s%d, v%d" % (vT + 6, sL2E, mx))
for i in range(4): e("v_fma_f32 v%d, v%d, s%d, -v%d" % (sacc + i, sacc + i, sL2E, vT + 6))
for i in range(4): e("v_exp_f32 v%d, v%d" % (sacc + i, sacc + i))
e("v_cvt_pk_bf16_f32 v%d, v%d, v%d" % (vT + 8, sacc, sacc + 1))
e("v_cvt_pk_bf16_f32 v%d, v%d, v%d" % (vT + 9, sacc + 2, sacc + 3))
e("ds_write_b64 v%d, %s offset:%d" % (vPw, vr(vT + 8, 2), L_P))
e("v_add_f32 v%d, v%d, v%d" % (sacc, sacc, sacc + 1))
e("v_add_f32 v%d, v%d, v%d" % (sacc + 2, sacc + 2, sacc + 3))
e("v_add_f32 v%d, v%d, v%d" % (sacc, sacc, sacc + 2))
e("ds_write_b32 v%d, v%d offset:%d" % (vT + 27, sacc, L_SUM))
e("s_waitcnt lgkmcnt(0)")
e("s_barrier")
for kk in range(4):
    e("ds_read_b128 %s, v%d offset:%d" % (vr(vP + 4 * kk, 4), vPr, L_P + 64 * kk))
ls_ = e.newlabel("L_st")
e("s_cmp_lg_u32 s%d, 7" % sW)
e("s_cbranch_scc1 %s" % ls_)
e("v_lshlrev_b32 v%d, 7, v%d" % (vA1, vN))
e("v_lshl_add_u32 v%d, v%d, 5, v%d" % (vA1, vG, vA1))
e("ds_read_b128 %s, v%d offset:%d" % (vr(vT + 8, 4), vA1, L_SUM))
e("ds_read_b128 %s, v%d offset:%d" % (vr(vT + 12, 4), vA1, L_SUM + 16))
e("s_lshl_b32 s%d, s%d, 7" % (sT0, sYI))
e("s_add_u32 s%d, s%d, %d" % (sT0, sT0, STAT))
e("v_lshlrev_b32 v%d, 3, v%d" % (vA1, vN))
e("s_waitcnt lgkmcnt(0)")
for st in (4, 2, 1):
    for i in range(st): e("v_add_f32 v%d, v%d, v%d" % (vT + 8 + i, vT + 8 + i, vT + 8 + i + st))
allred_g(vT + 8, vT + 9)
e("v_min_u32 v%d, -2, v%d" % (mx, mx))
e("v_and_b32 v%d, 0x7fffffff, v%d" % (mx + 1, vT + 8))
setexec(0xffff)
e("buffer_store_dwordx2 %s, v%d, %s, s%d offen sc1" % (vr(mx, 2), vA1, srd(S_WS), sT0))
setexec(-1)
e(ls_ + ":")
e("s_lshl_b32 s%d, s%d, 14" % (sT0, sYI))
e("s_lshl_b32 s%d, s%d, 7" % (sT1, sW))
e("s_add_u32 s%d, s%d, s%d" % (sT0, sT0, sT1))
e("s_add_u32 s%d, s%d, %d" % (sT0, sT0, PART))
for kk in range(4):
    e("s_waitcnt lgkmcnt(%d)" % (3 - kk))
    for t in range(4):
        a = vACC + 4 * t
        e("v_mfma_f32_16x16x32_bf16 %s, %s, %s, %s" % (vr(a, 4), vr(vP + 4 * kk, 4), vr(vCB + 16 * t + 4 * kk, 4), "0" if kk == 0 else vr(a, 4)))
for i in range(4):
    o = vT + 8 + 2 * i
    e("v_cvt_pk_bf16_f32 v%d, v%d, v%d" % (o, vACC + i, vACC + 4 + i))
    e("v_cvt_pk_bf16_f32 v%d, v%d, v%d" % (o + 1, vACC + 8 + i, vACC + 12 + i))
    e("v_min_u32 v%d, -2, v%d" % (o, o))
    e("v_min_u32 v%d, -2, v%d" % (o + 1, o + 1))
    e("buffer_store_dwordx2 %s, v%d, %s, s%d offen offset:%d sc1" % (vr(o, 2), vPo, srd(S_WS), sT0, 1024 * i))
stamp(6)
e("s_cmp_eq_u32 s%d, 0" % sISD)
e("s_cbranch_scc1 L_fin")
vW2, vW2p, vB1, vXD, vGH, vH2 = 48, 80, 48, 112, 116, 140
if opt("dack", 0): e("s_waitcnt vmcnt(0)")
e("s_barrier")
L_W2 = L_W1 + 43008
DD = opt("dd", 10)
e("v_lshrrev_b32 v%d, 2, v%d" % (vA0, vLANE))
e("v_mul_u32_u24 v%d, 3456, v%d" % (vA0, vA0))
e("v_and_b32 v%d, 3, v%d" % (vA1, vLANE))
e("v_lshl_add_u32 v%d, v%d, 4, v%d" % (vA0, vA1, vA0))
e("s_mul_i32 s%d, s%d, %d" % (sT0, sW, 80 * 3456))
e("s_lshl_b32 s%d, s%d, 6" % (sT1, sRD))
e("s_add_u32 s%d, s%d, s%d" % (sT0, sT0, sT1))
e("s_mul_i32 s%d, s%d, 5120" % (sT2, sW))
e("s_mul_i32 s%d, s%d, 40960" % (sT1, sRD))
e("s_add_u32 s%d, s%d, s%d" % (sT1, sT1, sT2))
e("s_add_u32 s%d, s%d, %d" % (sT3, sT2, L_W2))
e("s_add_u32 s%d, s%d, %d" % (sT2, sT2, L_W1))
n_ = 0
for k in range(5):
    if n_ >= DD: e("s_waitcnt vmcnt(%d)" % (DD - 1))
    e("s_mov_b32 m0, s%d" % sT2)
    e("buffer_load_dwordx4 v%d, %s, s%d offen%s lds" % (vA0, srd(S_W1), sT0, " nt" if opt("nt1", 1) else "")); n_ += 1
    if not opt("w2e", 0):
        if n_ >= DD: e("s_waitcnt vmcnt(%d)" % (DD - 1))
        e("s_mov_b32 m0, s%d" % sT3)
        e("buffer_load_dwordx4 v%d, %s, s%d offen nt lds" % (vL16, srd(S_W2), sT1)); n_ += 1
    if k < 4:
        e("s_add_u32 s%d, s%d, %d" % (sT0, sT0, 16 * 3456))
        e("s_add_u32 s%d, s%d, 1024" % (sT2, sT2))
        e("s_add_u32 s%d, s%d, 1024" % (sT1, sT1))
        e("s_add_u32 s%d, s%d, 1024" % (sT3, sT3))
lw2 = e.newlabel("L_w2")
e("v_lshlrev_b32 v%d, 2, v0" % vA0)
e("s_cmp_ge_u32 s%d, 5" % sW)
e("s_cbranch_scc1 %s" % lw2)
e("buffer_load_dword v%d, v%d, %s, 0 offen" % (vXD, vA0, srd(S_X)))
e("v_mov_b32 v%d, 0x3f803f80" % vA1)
e("ds_write_b32 v%d, v%d offset:%d" % (vA0, vA1, L_ONES))
e(lw2 + ":")
lo = e.newlabel("L_oh")
e("s_cmp_lg_u32 s%d, 7" % sW)
e("s_cbranch_scc1 %s" % lo)
e("v_lshlrev_b32 v%d, 8, v%d" % (vA1, vLANE))
e("s_xor_b32 s%d, s%d, 1" % (sT0, sHF))
e("s_lshl_b32 s%d, s%d, 14" % (sT0, sT0))
poll([("buffer_load_dword v%d, v%d, %s, s%d offen sc1" % (vGH, vA1, srd(S_WS), sT0), vGH, 1)], sleep=8, depth=1)
e(lo + ":")
e("s_waitcnt vmcnt(0) lgkmcnt(0)")
e("s_barrier")
lp5 = e.newlabel("L_p5"); lpd = e.newlabel("L_pd")
e("s_cmp_ge_u32 s%d, 5" % sW)
e("s_cbranch_scc1 %s" % lp5)
e("v_add_u32 v%d, %d, v%d" % (vA1, L_W2, vA0))
for r in range(32):
    e("ds_read_b32 v%d, v%d offset:%d" % (vW2 + r, vA1, 1280 * r))
    if r % 8 == 7: e("s_waitcnt lgkmcnt(0)")
e("s_mov_b32 s%d, 0x05040100" % sT0)
e("s_mov_b32 s%d, 0x07060302" % sT1)
for j in range(16):
    e("v_perm_b32 v%d, v%d, v%d, s%d" % (vW2p + 2 * j, vW2 + 2 * j + 1, vW2 + 2 * j, sT0))
    e("v_perm_b32 v%d, v%d, v%d, s%d" % (vW2p + 2 * j + 1, vW2 + 2 * j + 1, vW2 + 2 * j, sT1))
e("v_and_b32 v%d, 0xffff0000, v%d" % (vXD + 1, vXD))
e("v_lshlrev_b32 v%d, 16, v%d" % (vXD, vXD))
e("v_mov_b32 v%d, 0x3f80" % (vXD + 2))
e("v_mov_b32 v%d, 1.0" % (vXD + 3))
e("s_branch %s" % lpd)
e(lp5 + ":")
e("v_lshrrev_b32 v%d, 2, v%d" % (vA1, vN))
e("v_lshl_add_u32 v%d, v%d, 3, v%d" % (vA1, vG, vA1))
e("v_lshlrev_b32 v%d, 6, v%d" % (vA1, vA1))
e("v_and_b32 v%d, 3, v%d" % (vA2, vN))
e("v_lshl_add_u32 v%d, v%d, 3, v%d" % (vA1, vA2, vA1))
e("s_sub_u32 s%d, s%d, 5" % (sT0, sW))
e("s_mul_i32 s%d, s%d, 14336" % (sT1, sT0))
e("v_add_u32 v%d, s%d, v%d" % (vA1, sT1, vA1))
for j in range(7):
    for t in range(2):
        for u in range(2):
            e("ds_read_b64_tr_b16 %s, v%d offset:%d" % (vr(vB1 + 8 * j + 4 * t + 2 * u, 2), vA1, L_W1 + 2048 * j + 256 * u + 32 * t))
    if j % 2 == 1: e("s_waitcnt lgkmcnt(0)")
e("v_lshlrev_b32 v%d, 4, v%d" % (vA2, vG))
e("s_mul_i32 s%d, s%d, 448" % (sT1, sT0))
e("v_add_u32 v%d, s%d, v%d" % (vA2, sT1, vA2))
e("v_add_u32 v%d, %d, v%d" % (vA3, L_ONES - L_HB, vA2))
e("v_cmp_eq_u32 vcc, 1, v%d" % vN)
e("v_cndmask_b32 v%d, v%d, v%d, vcc" % (vA2, vA2, vA3))
e("s_waitcnt lgkmcnt(0)")
e(lpd + ":")
stamp(7)
lh = e.newlabel("L_dh")
e("s_cmp_ge_u32 s%d, 5" % sW)
e("s_cbranch_scc1 %s" % lh)
NH5 = opt("nh5", 4)
e("s_lshl_b32 s%d, s%d, 1" % (sT0, sRD))
hint_addr(sT0, 120 // NH5 - 1 if NH5 > 1 else 1, 120, vA3)
e("s_mov_b32 s%d, %d" % (sT0, EWC))
poll([("buffer_load_dword v%d, v%d, %s, s%d offen sc1" % (vGH, vA3, srd(S_WS), sT0), vGH, 1)], sleep=opt("sl5", 4), init_masks=["0x%x" % ((1 << NH5) - 1)])
stamp(8)
e("v_lshlrev_b32 v%d, 3, v0" % vA1)
for k in range(3): e("s_mov_b32 s%d, %d" % (sF + k, HP + 5120 * k))
e("v_mov_b32 v%d, 0" % vH2)
e("v_mov_b32 v%d, 0" % (vH2 + 1))
if opt("d5", 0): e("s_sleep %d" % opt("d5", 0))
poll([("\n".join("buffer_load_dword v%d, v%d, %s, s%d offen offset:%d sc1" % (vGH + 4 * k + q, vA0, srd(S_WS), sF + k, 1280 * q) for q in range(3)) + "\nbuffer_load_dword v%d, v%d, %s, s%d offen offset:3840 sc1" % (vGH + 4 * k + 3, vA0, srd(S_WS), sF + k), vGH + 4 * k, 4) for k in range(3)], sleep=1)
stamp(9)
for k in range(12):
    e("v_dot2c_f32_bf16 v%d, v%d, v%d" % (vH2, vGH + k, vXD + 2))
    e("v_dot2c_f32_bf16 v%d, v%d, v%d" % (vH2 + 1, vGH + k, vXD + 3))
e("v_cvt_pk_bf16_f32 v%d, v%d, v%d" % (vT, vH2, vH2 + 1))
unpack(vH2, vT, 1)
e("v_pk_add_f32 %s, %s, %s" % (vr(vH2, 2), vr(vH2, 2), vr(vXD, 2)))
e("v_cvt_pk_bf16_f32 v%d, v%d, v%d" % (vT, vH2, vH2 + 1))
e("ds_write_b32 v%d, v%d offset:%d" % (vA0, vT, L_HB))
unpack(vH2, vT, 1)
e("s_waitcnt lgkmcnt(0)")
e(lh + ":")
e("s_barrier")
lm = e.newlabel("L_dm"); lj = e.newlabel("L_dj")
e("s_cmp_ge_u32 s%d, 5" % sW)
e("s_cbranch_scc1 %s" % lm)
e("ds_write_b64 v%d, %s offset:%d" % (vA1, vr(vH2, 2), L_HF))
e("v_add_f32 v%d, v%d, v%d" % (vT, vH2, vH2 + 1))
wave_red([vT], [sT0])
e("v_mov_b32 v%d, s%d" % (vT + 2, sT0))
e("v_mul_f32 v%d, 0x3c000000, v%d" % (vT + 2, vT + 2))
e("v_sub_f32 v%d, v%d, v%d" % (vT, vH2, vT + 2))
e("v_sub_f32 v%d, v%d, v%d" % (vT + 1, vH2 + 1, vT + 2))
e("v_mul_f32 v%d, v%d, v%d" % (vT, vT, vT))
e("v_fmac_f32 v%d, v%d, v%d" % (vT, vT + 1, vT + 1))
wave_red([vT], [sT0])
e("v_mov_b32 v%d, s%d" % (vT + 3, sT0))
e("s_lshl_b32 s%d, s%d, 3" % (sT0, sW))
e("v_mov_b32 v%d, s%d" % (vT + 4, sT0))
setexec(1)
e("ds_write_b64 v%d, %s offset:%d" % (vT + 4, vr(vT + 2, 2), L_ST))
setexec(-1)
e("s_branch %s" % lj)
e(lm + ":")
for j in range(7):
    e("ds_read_b128 %s, v%d offset:%d" % (vr(vGH + 4 * j, 4), vA2, L_HB + 64 * j))
lz = e.newlabel("L_z")
for j in range(7):
    if j == 6:
        e("s_cmp_eq_u32 s%d, 7" % sW)
        e("s_cbranch_scc1 %s" % lz)
    e("s_waitcnt lgkmcnt(%d)" % (6 - j))
    for t in range(2):
        e("v_mfma_f32_16x16x32_bf16 %s, %s, %s, %s" % (vr(vT + 4 * t, 4), vr(vGH + 4 * j, 4), vr(vB1 + 8 * j + 4 * t, 4), "0" if j == 0 else vr(vT + 4 * t, 4)))
e(lz + ":")
e("v_lshlrev_b32 v%d, 3, v%d" % (vA1, vN))
e("s_sub_u32 s%d, s%d, 5" % (sT0, sW))
e("s_lshl_b32 s%d, s%d, 8" % (sT0, sT0))
e("v_add_u32 v%d, s%d, v%d" % (vA1, sT0, vA1))
setexec(0xffff)
e("s_nop 2")
e("ds_write_b64 v%d, %s offset:%d" % (vA1, vr(vT, 2), L_RED))
e("ds_write_b64 v%d, %s offset:%d" % (vA1, vr(vT + 4, 2), L_RED + 128))
setexec(-1)
e(lj + ":")
e("s_waitcnt lgkmcnt(0)")
e("s_barrier")
stamp(10)
ld2 = e.newlabel("L_d2")
e("s_cmp_ge_u32 s%d, 5" % sW)
e("s_cbranch_scc1 %s" % ld2)
e("v_mov_b32 v%d, 0" % vA2)
e("v_and_b32 v%d, 31, v%d" % (vA3, vLANE))
e("v_lshlrev_b32 v%d, 3, v%d" % (vA3, vA3))
st_ = vT + 8
e("ds_read_b128 %s, v%d offset:%d" % (vr(st_, 4), vA2, L_ST))
e("ds_read_b128 %s, v%d offset:%d" % (vr(st_ + 4, 4), vA2, L_ST + 16))
e("ds_read_b64 %s, v%d offset:%d" % (vr(st_ + 8, 2), vA2, L_ST + 32))
for k in range(3):
    e("ds_read_b64 %s, v%d offset:%d" % (vr(vT + 20 + 2 * k, 2), vA3, L_RED + 256 * k))
e("s_waitcnt lgkmcnt(3)")
mean, m2 = vT, vT + 1
e("v_pk_add_f32 %s, %s, %s" % (vr(vT, 2), vr(st_, 2), vr(st_ + 2, 2)))
e("v_pk_add_f32 %s, %s, %s" % (vr(vT + 2, 2), vr(st_ + 4, 2), vr(st_ + 6, 2)))
e("v_pk_add_f32 %s, %s, %s" % (vr(vT, 2), vr(vT, 2), vr(st_ + 8, 2)))
e("v_pk_add_f32 %s, %s, %s" % (vr(vT, 2), vr(vT, 2), vr(vT + 2, 2)))
e("v_mul_f32 v%d, 0x3e4ccccd, v%d" % (mean, mean))
e("v_mov_b32 v%d, 0" % (vT + 2))
for k in range(5):
    e("v_sub_f32 v%d, v%d, v%d" % (vT + 3, st_ + 2 * k, mean))
    e("v_fmac_f32 v%d, v%d, v%d" % (vT + 2, vT + 3, vT + 3))
e("v_fmac_f32 v%d, 0x43000000, v%d" % (m2, vT + 2))
e("v_mul_f32 v%d, 0x3acccccd, v%d" % (m2, m2))
rbf(mean, mean); rbf(m2, m2)
e("v_add_f32 v%d, 0x3727c5ac, v%d" % (m2, m2))
rbf(m2, m2)
e("v_sqrt_f32 v%d, v%d" % (m2, m2))
rbf(m2, m2)
e("v_rcp_f32 v%d, v%d" % (m2, m2))
e("s_waitcnt lgkmcnt(0)")
e("v_pk_add_f32 %s, %s, %s" % (vr(vT + 20, 2), vr(vT + 20, 2), vr(vT + 22, 2)))
e("v_pk_add_f32 %s, %s, %s" % (vr(vT + 20, 2), vr(vT + 20, 2), vr(vT + 24, 2)))
e("v_fma_f32 v%d, -v%d, v%d, v%d" % (vT + 20, mean, vT + 21, vT + 20))
e("v_mul_f32 v%d, v%d, v%d" % (vT + 20, vT + 20, m2))
e("v_max_f32 v%d, 0, v%d" % (vT + 20, vT + 20))
e("v_mov_b32_dpp v%d, v%d row_shl:1 row_mask:0xf bank_mask:0xf bound_ctrl:0" % (vT + 21, vT + 20))
e("v_cvt_pk_bf16_f32 v%d, v%d, v%d" % (vT + 20, vT + 20, vT + 21))
sF2 = 60
for j in range(16):
    e("v_readlane_b32 s%d, v%d, %d" % (sF2 + j, vT + 20, 2 * j))
for k in range(4): e("v_mov_b32 v%d, 0" % (vT + 2 + k))
for j in range(16):
    for k in range(2):
        e("v_dot2c_f32_bf16 v%d, s%d, v%d" % (vT + 2 + k + 2 * (j & 1), sF2 + j, vW2p + 2 * j + k))
e("s_mul_i32 s%d, s%d, 2560" % (sT0, sRD))
e("s_add_u32 s%d, s%d, %d" % (sT0, sT0, OP))
e("v_pk_add_f32 %s, %s, %s" % (vr(vT + 2, 2), vr(vT + 2, 2), vr(vT + 4, 2)))
e("v_min_u32 v%d, -2, v%d" % (vT + 2, vT + 2))
e("v_min_u32 v%d, -2, v%d" % (vT + 3, vT + 3))
e("buffer_store_dwordx2 %s, v%d, %s, s%d offen sc1" % (vr(vT + 2, 2), vA1, srd(S_WS), sT0))
e(ld2 + ":")
stamp(11)
vGF, vGE = 144, 156
e("s_cmp_eq_u32 s%d, 0" % sFIN)
e("s_cbranch_scc1 L_fin")
e("v_lshrrev_b32 v%d, 3, v%d" % (vA1, vLANE))
e("v_mul_u32_u24 v%d, 2560, v%d" % (vA0, vA1))
e("v_and_b32 v%d, 7, v%d" % (vA3, vLANE))
e("v_lshl_add_u32 v%d, v%d, 4, v%d" % (vA0, vA3, vA0))
e("s_mul_i32 s%d, s%d, %d" % (sT0, sW, 8 * 2560))
e("s_lshl_b32 s%d, s%d, 6" % (sT1, sRD))
e("s_add_u32 s%d, s%d, s%d" % (sT0, sT0, sT1))
e("s_add_u32 s%d, s%d, %d" % (sT0, sT0, OP))
e("s_lshl_b32 s%d, s%d, 3" % (sT3, sW))
e("v_add_u32 v%d, s%d, v%d" % (vA1, sT3, vA1))
for k in range(4): e("v_mov_b32 v%d, 0" % (vGF + k))
e("v_cmp_gt_u32 vcc, 54, v%d" % vA1)
e("s_mov_b64 %s, vcc" % sp(sE0))
e("v_lshlrev_b32 v%d, 4, v%d" % (vA1, vA3))
e("v_lshl_add_u32 v%d, v%d, 2, v%d" % (vA1, vG, vA1))
e("s_lshl_b32 s%d, s%d, 7" % (sT3, sW))
e("v_add_u32 v%d, s%d, v%d" % (vA1, sT3, vA1))
if opt("d6", 4): e("s_sleep %d" % opt("d6", 4))
poll([("buffer_load_dwordx4 %s, v%d, %s, s%d offen sc1" % (vr(vGF, 4), vA0, srd(S_WS), sT0), vGF, 4)], sleep=1, init_masks=[sp(sE0)])
stamp(12)
for k in range(4): e("v_mov_b32 v%d, v%d" % (vT + k, vGF + k))
rs_4to1(vT)
e("v_add_f32_dpp v%d, v%d, v%d row_ror:8 row_mask:0xf bank_mask:0xf" % (vT + 1, vT, vT))
setexec(0x00ff00ff00ff00ff)
e("ds_write_b32 v%d, v%d offset:%d" % (vA1, vT + 1, L_RED + 1024))
setexec(-1)
e("s_waitcnt lgkmcnt(0)")
e("s_barrier")
e("s_cmp_lg_u32 s%d, 0" % sW)
e("s_cbranch_scc1 L_fin")
e("v_lshlrev_b32 v%d, 2, v%d" % (vA0, vLANE))
e("v_add_u32 v%d, s%d, v%d" % (vA1, sT1, vA0))
setexec(0xffffffff)
for i in range(8):
    e("ds_read_b32 v%d, v%d offset:%d" % (vGE + i, vA0, L_RED + 1024 + 128 * i))
e("ds_read_b32 v%d, v%d offset:%d" % (vGE + 8, vA1, L_HF))
e("s_waitcnt lgkmcnt(0)")
for st in (4, 2, 1):
    for i in range(st):
        e("v_add_f32 v%d, v%d, v%d" % (vGE + i, vGE + i, vGE + i + st))
rbf(vGE, vGE)
e("v_add_f32 v%d, v%d, v%d" % (vGE, vGE, vGE + 8))
e("v_cvt_pk_bf16_f32 v%d, v%d, v%d" % (vGE, vGE, vGE))
e("v_lshrrev_b32 v%d, 1, v%d" % (vA1, vA1))
e("buffer_store_short v%d, v%d, %s, 0 offen" % (vGE, vA1, srd(S_OUT)))
setexec(-1)
e("L_fin:")
if DIAG:
    stamp(13)
    if opt("dbg", 0):
        for wgid, base, idxs in ((128, 1, (2, 4, 6, 8, 9, 11, 13)), (0, 9, (1, 3, 4, 6, 7, 8, 10))):
            l = e.newlabel("L_dbg")
            e("s_cmp_lg_u32 s2, %d" % wgid)
            e("s_cbranch_scc1 %s" % l)
            e("s_cmp_lg_u32 s%d, 0" % sW)
            e("s_cbranch_scc1 %s" % l)
            e("v_readlane_b32 s%d, v%d, 0" % (sT0, vTSV))
            for k, ix in enumerate(idxs):
                e("v_readlane_b32 s%d, v%d, %d" % (sT1, vTSV, ix))
                e("s_sub_u32 s%d, s%d, s%d" % (sT1, sT1, sT0))
                e("v_mov_b32 v%d, s%d" % (vA1, sT1))
                e("v_mov_b32 v%d, %d" % (vA0, 4 * (base + k)))
                setexec(1)
                e("buffer_store_dword v%d, v%d, %s, 0 offen" % (vA1, vA0, srd(S_DBG)))
                setexec(-1)
            e(l + ":")
    e("v_lshlrev_b32 v%d, 2, v%d" % (vA0, vLANE))
    e("s_lshl_b32 s%d, s2, 3" % sT0)
    e("s_add_u32 s%d, s%d, s%d" % (sT0, sT0, sW))
    e("s_lshl_b32 s%d, s%d, 8" % (sT0, sT0))
    e("s_add_u32 s%d, s%d, %d" % (sT0, sT0, DIAGO))
    e("buffer_store_dword v%d, v%d, %s, s%d offen" % (vTSV, vA0, srd(S_WS), sT0))
e("L_end:")
e("s_endpgm")
e.raw(""".section .rodata,"a"
.p2align 6
.amdhsa_kernel %s
  .amdhsa_next_free_vgpr %d
  .amdhsa_next_free_sgpr 102
  .amdhsa_accum_offset %d
  .amdhsa_group_segment_fixed_size 0
  .amdhsa_kernarg_size 96
  .amdhsa_user_sgpr_count 2
  .amdhsa_user_sgpr_kernarg_segment_ptr 1
  .amdhsa_system_sgpr_workgroup_id_x 1
.end_amdhsa_kernel""" % (KN, NVGPR, NVGPR))
open(OUTF, "w").write(e.text())
```

```python
import sys
sys.path.insert(0, "gen")
from emit import Emitter

KN = "sequential_preLN__compressed_kv_cla__dense_activation_relu__decode_kernel"
DIAG = "--diag" in sys.argv
OUTF = [a for a in sys.argv[1:] if not a.startswith("--")][0]
def opt(name, default):
    for a in sys.argv:
        if a.startswith("--%s=" % name): return int(a.split("=")[1])
    return default
EWA_AT = opt("ewa", 16)
FLAG_AT = opt("flag", 8)

QA, CP, EWA, QP = 0x0, 0x8000, 0x10000, 0x12000
HP, EWC, STAT, OP, PART, DIAGO = 0x90000, 0x9E000, 0x24000, 0x30000, 0x100000, 0x800000
RDY = 0
EWB = 0x96000
NT = " nt" if opt("nt", 1) else ""
NTC = " nt" if opt("ntc", 1) else ""
WS_BYTES = 0x900000
RS = 1040
L_RED = 0
L_QL = 4096
L_LN = 8448
L_MX = 4096
L_SUM = 4608
L_P = 6656
PRS = 272
L_HB = 4096
L_ONES = 5376
L_ST = 6656
L_HF = 7168
L_QS = 12288
L_CK = L_QS + 16 * RS
LDS_BYTES = L_CK + 128 * RS
L_WUV = 12288
L_WO = L_WUV + 32768
L_W1 = 12288
SPIN = 200000

S_X, S_CKV, S_WQ, S_WUK, S_WUV, S_WO, S_W1, S_W2, S_OUT, S_DBG, S_WS = [4 + 4 * i for i in range(11)]
def srd(b): return "s[%d:%d]" % (b, b + 3)
sW, sA, sB, sCNT, sT0, sT1, sT2, sT3 = 48, 49, 50, 51, 52, 53, 54, 55
sH, sCQ, sXI = 56, 57, 58
sKS, sHF, sYI = 56, 57, 58
sRD, sISD, sFIN = 59, 88, 89
sM = [60, 62, 64, 66, 68, 70, 72, 74]
sTM, sOR = 76, 78
sF = 80
sE0, sE1 = 90, 92
sL2E, sT4 = 94, 95
sTS = 96
def sp(b): return "s[%d:%d]" % (b, b + 1)
e = Emitter()
def vr(b, n): return "v[%d:%d]" % (b, b + n - 1) if n > 1 else "v%d" % b

vLANE, vN, vG = 1, 2, 3
vA0, vA1, vA2, vA3 = 4, 5, 6, 7
vT = 8
vTSV = 40
vL16 = 41
vCL = 44
NVGPR = 248

LITE = "--lite" in sys.argv
def stamp(idx):
    if not DIAG: return
    if LITE and idx not in (0, 13): return
    e("s_memrealtime %s" % sp(sTS))
    e("s_waitcnt lgkmcnt(0)")
    e("v_writelane_b32 v%d, s%d, %d" % (vTSV, sTS, idx))
def setexec(m):
    if m == -1: e("s_mov_b64 exec, -1"); return
    e("s_mov_b32 exec_lo, 0x%x" % (m & 0xffffffff))
    e("s_mov_b32 exec_hi, 0x%x" % (m >> 32))
def rbf(dst, src):
    e("v_cvt_pk_bf16_f32 v%d, v%d, v%d" % (dst, src, src))
    e("v_lshlrev_b32 v%d, 16, v%d" % (dst, dst))
def wave_red(vs, sdsts, op="v_add_f32"):
    bc = " bound_ctrl:0" if op == "v_add_f32" else ""
    for sh in (1, 2, 4, 8):
        for v in vs: e("%s_dpp v%d, v%d, v%d row_shr:%d row_mask:0xf bank_mask:0xf%s" % (op, v, v, v, sh, bc))
    for v in vs: e("%s_dpp v%d, v%d, v%d row_bcast:15 row_mask:0xa bank_mask:0xf" % (op, v, v, v))
    for v in vs: e("%s_dpp v%d, v%d, v%d row_bcast:31 row_mask:0xc bank_mask:0xf" % (op, v, v, v))
    for v, s in zip(vs, sdsts): e("v_readlane_b32 s%d, v%d, 63" % (s, v))
def unpack(dst, src, n):
    for i in range(n):
        e("v_lshlrev_b32 v%d, 16, v%d" % (dst + 2 * i, src + i))
        e("v_and_b32 v%d, 0xffff0000, v%d" % (dst + 2 * i + 1, src + i))
PD = opt("pd", 1)
PG = opt("pg", 5)
def poll(loads, sleep=1, init_masks=None, depth=None):
    D = PD if depth is None else depth
    lp = e.newlabel("L_poll"); dn = e.newlabel("L_polld")
    nl = sum(t.count("buffer_load") for t, _, _ in loads)
    for k in range(len(loads)):
        e("s_mov_b64 %s, %s" % (sp(sM[k]), "-1" if not init_masks or init_masks[k] is None else init_masks[k]))
    e("s_mov_b32 s%d, 0" % sCNT)
    def issue():
        for k, (txt, d, n) in enumerate(loads):
            e("s_mov_b64 exec, %s" % sp(sM[k]))
            e(txt)
        e("s_mov_b64 exec, -1")
    for _ in range(D - 1):
        issue()
        e("s_sleep %d" % PG)
    e(lp + ":")
    issue()
    e("s_waitcnt vmcnt(%d)" % ((D - 1) * nl))
    for k, (txt, d, n) in enumerate(loads):
        t = vT + 31
        if n == -2:
            e("v_cmp_gt_i32 %s, 0, v%d" % (sp(sTM), d + 1))
        elif n == 1:
            e("v_cmp_eq_u32 %s, -1, v%d" % (sp(sTM), d))
        else:
            e("v_max_u32 v%d, v%d, v%d" % (t, d, d + 1))
            if n >= 4: e("v_max3_u32 v%d, v%d, v%d, v%d" % (t, t, d + 2, d + 3))
            e("v_cmp_eq_u32 %s, -1, v%d" % (sp(sTM), t))
        e("s_and_b64 %s, %s, %s" % (sp(sM[k]), sp(sM[k]), sp(sTM)))
        if k == 1: e("s_or_b64 %s, %s, %s" % (sp(sOR), sp(sM[0]), sp(sM[k])))
        elif k > 1: e("s_or_b64 %s, %s, %s" % (sp(sOR), sp(sOR), sp(sM[k])))
    e("s_cbranch_scc0 %s" % dn)
    e("s_add_u32 s%d, s%d, 1" % (sCNT, sCNT))
    e("s_cmp_gt_u32 s%d, %d" % (sCNT, SPIN))
    e("s_cbranch_scc1 %s" % dn)
    if sleep and D == 1: e("s_sleep %d" % sleep)
    e("s_branch %s" % lp)
    e(dn + ":")
def rs_8to2(b):
    for i in range(4): e("v_permlane32_swap_b32 v%d, v%d" % (b + i, b + 4 + i))
    for i in range(4): e("v_add_f32 v%d, v%d, v%d" % (b + i, b + i, b + 4 + i))
    for i in range(2): e("v_permlane16_swap_b32 v%d, v%d" % (b + i, b + 2 + i))
    for i in range(2): e("v_add_f32 v%d, v%d, v%d" % (b + i, b + i, b + 2 + i))
def rs_4to1(b):
    for i in range(2): e("v_permlane32_swap_b32 v%d, v%d" % (b + i, b + 2 + i))
    for i in range(2): e("v_add_f32 v%d, v%d, v%d" % (b + i, b + i, b + 2 + i))
    e("v_permlane16_swap_b32 v%d, v%d" % (b, b + 1))
    e("v_add_f32 v%d, v%d, v%d" % (b, b, b + 1))
def allred_g(v, tmp, op="v_add_f32"):
    e("v_mov_b32 v%d, v%d" % (tmp, v))
    e("v_permlane32_swap_b32 v%d, v%d" % (v, tmp))
    e("%s v%d, v%d, v%d" % (op, v, v, tmp))
    e("v_mov_b32 v%d, v%d" % (tmp, v))
    e("v_permlane16_swap_b32 v%d, v%d" % (v, tmp))
    e("%s v%d, v%d, v%d" % (op, v, v, tmp))
def hilo_write(v, vaddr):
    h, a, b = v + 2, v + 3, v + 4
    e("v_cvt_pk_bf16_f32 v%d, v%d, v%d" % (h, v, v + 1))
    e("v_lshlrev_b32 v%d, 16, v%d" % (a, h))
    e("v_and_b32 v%d, 0xffff0000, v%d" % (b, h))
    e("v_sub_f32 v%d, v%d, v%d" % (v, v, a))
    e("v_sub_f32 v%d, v%d, v%d" % (v + 1, v + 1, b))
    e("v_cvt_pk_bf16_f32 v%d, v%d, v%d" % (a, v, v + 1))
    e("ds_write2_b32 v%d, v%d, v%d offset0:0 offset1:68" % (vaddr, h, a))
def rows_gemv_publish(vB, vQLr, vOut, sOut):
    f = vT + 8
    for ks in range(4):
        e("ds_read_b128 %s, v%d offset:%d" % (vr(f + 4 * ks, 4), vQLr, 64 * ks))
    for ks in range(4):
        e("s_waitcnt lgkmcnt(%d)" % (3 - ks))
        e("v_mfma_f32_16x16x32_bf16 %s, %s, %s, %s" % (vr(vT, 4), vr(f + 4 * ks, 4), vr(vB + 4 * ks, 4), "0" if ks == 0 else vr(vT, 4)))
    e("v_add_f32 v%d, v%d, v%d" % (vT, vT, vT + 1))
    e("v_add_f32 v%d, v%d, v%d" % (vT + 2, vT + 2, vT + 3))
    e("v_add_f32 v%d, v%d, v%d" % (vT, vT, vT + 2))
    allred_g(vT, vT + 1)
    e("v_mov_b32_dpp v%d, v%d row_shl:1 row_mask:0xf bank_mask:0xf bound_ctrl:0" % (vT + 1, vT))
    e("v_cvt_pk_bf16_f32 v%d, v%d, v%d" % (vT, vT, vT + 1))
    e("v_min_u32 v%d, -2, v%d" % (vT, vT))
    setexec(0x5555)
    e("buffer_store_dword v%d, v%d, %s, s%d offen sc1" % (vT, vOut, srd(S_WS), sOut))
    setexec(-1)
def flag_check(first_loaded=None):
    lp = e.newlabel("L_fl"); ld = e.newlabel("L_fld"); l1 = e.newlabel("L_fl1")
    e("s_mov_b32 s%d, 0" % sCNT)
    if first_loaded is not None: e("s_branch %s" % l1)
    e(lp + ":")
    setexec(0xff)
    e("v_lshlrev_b32 v%d, 5, v%d" % (vA3, vLANE))
    e("buffer_load_dword v%d, v%d, %s, 0 offen sc1" % (vL16 + 1, vA3, srd(S_DBG)))
    setexec(-1)
    e(l1 + ":")
    e("s_waitcnt vmcnt(0)")
    setexec(0xff)
    e("v_cmp_eq_u32 vcc, 0, v%d" % (vL16 + 1))
    setexec(-1)
    e("s_cbranch_vccz %s" % ld)
    e("s_add_u32 s%d, s%d, 1" % (sCNT, sCNT))
    e("s_cmp_gt_u32 s%d, %d" % (sCNT, SPIN))
    e("s_cbranch_scc1 %s" % ld)
    e("s_sleep 8")
    e("s_branch %s" % lp)
    e(ld + ":")
def store1(soff, val=1):
    e("v_mov_b32 v%d, %d" % (vA3, val))
    e("v_mov_b32 v%d, 0" % (vT + 30))
    setexec(1)
    e("buffer_store_dword v%d, v%d, %s, s%d offen sc1" % (vA3, vT + 30, srd(S_WS), soff))
    setexec(-1)
def rdy_write():
    e("s_lshl_b32 s%d, s2, 6" % sT0)
    e("s_add_u32 s%d, s%d, %d" % (sT0, sT0, RDY))
    store1(sT0)
def rdy_check(dst):
    l = e.newlabel("L_rdy")
    e("s_cmp_ge_u32 s%d, 4" % sW)
    e("s_cbranch_scc1 %s" % l)
    e("v_lshlrev_b32 v%d, 6, v0" % vA0)
    e("s_mov_b32 s%d, %d" % (sT0, RDY))
    poll([("buffer_load_dword v%d, v%d, %s, s%d offen sc1" % (dst, vA0, srd(S_WS), sT0), dst, 1)], sleep=8)
    e(l + ":")
def hint_addr(sidx, step, N, vdst):
    e("v_mul_u32_u24 v%d, %d, v%d" % (vdst, step, vLANE))
    e("v_add_u32 v%d, s%d, v%d" % (vdst, sidx, vdst))
    e("v_subrev_u32 v%d, %d, v%d" % (vT + 30, N, vdst))
    e("v_min_u32 v%d, v%d, v%d" % (vdst, vdst, vT + 30))
    e("v_lshlrev_b32 v%d, 6, v%d" % (vdst, vdst))
def hint_wait(soff, dst, sleep):
    e("v_mov_b32 v%d, 0" % vA3)
    poll([("buffer_load_dword v%d, v%d, %s, s%d offen sc1" % (dst, vA3, srd(S_WS), soff), dst, 1)], sleep=sleep, init_masks=["1"])

e.raw("""; persistent MLA decode + FFN kernel (generated by gen/gen18.py)
; @launch grid=(256,1,1) block=(512,1,1) lds=%d
.amdgcn_target "amdgcn-amd-amdhsa--gfx950"
.text
.globl %s
.p2align 8
.type %s,@function
%s:""" % (LDS_BYTES, KN, KN, KN))
e("s_cmp_ge_u32 s2, 256")
e("s_cbranch_scc1 L_end")
e("s_load_dwordx16 s[64:79], s[0:1], 0")
if opt("xmap", 0) == 0:
    e("s_add_u32 s2, s2, 248")
    e("s_and_b32 s2, s2, 255")
else:
    e("s_bfe_u32 s48, s2, 0x10002")
    if opt("xmap", 0) == 2: e("s_xor_b32 s48, s48, 1")
    e("s_lshl_b32 s48, s48, 7")
    e("s_and_b32 s49, s2, 3")
    e("s_lshl_b32 s49, s49, 1")
    e("s_lshr_b32 s50, s2, 7")
    e("s_add_u32 s49, s49, s50")
    e("s_and_b32 s2, s2, 0x78")
    e("s_xor_b32 s2, s2, 0x78")
    e("s_add_u32 s2, s2, s49")
    e("s_add_u32 s2, s2, s48")
e("s_load_dwordx8 s[80:87], s[0:1], 64")
CPE = opt("cpe", 16)
if CPE:
    e("s_getpc_b64 s[%d:%d]" % (92, 93))
    e.raw("L_pcref0:")
    e.raw("    s_sub_u32 s92, s92, (L_pcref0 - %s)" % KN)
    e.raw("    s_subb_u32 s93, s93, 0")
    e("s_bfe_u32 s94, s2, 0x%x0003" % opt("cpb", 1))
    e("s_lshl_b32 s94, s94, 13")
    e("v_lshlrev_b32 v%d, 4, v0" % 4)
    e("v_add_u32 v4, s94, v4")
    e.raw("    v_min_u32 v4, ((L_end - %s - 16) & 0xfffffff0), v4" % KN)
    e("global_load_dwordx4 v[232:235], v4, s[92:93]")
if opt("dbl", 0):
    e("s_memrealtime s[98:99]")
if DIAG:
    e("v_mov_b32 v%d, 0" % vTSV)
    stamp(0)
e("v_and_b32 v%d, 63, v0" % vLANE)
e("v_lshrrev_b32 v%d, 6, v0" % vA0)
e("v_and_b32 v%d, 15, v0" % vN)
e("v_bfe_u32 v%d, v0, 4, 2" % vG)
e("v_readfirstlane_b32 s%d, v%d" % (sW, vA0))
for i in range(4): e("v_mov_b32 v%d, -1" % (vCL + i))
e("v_lshlrev_b32 v%d, 4, v%d" % (vL16, vLANE))
e("s_bfe_u32 s%d, s2, 0x40003" % sA)
e("s_and_b32 s%d, s2, 7" % sB)
e("s_mov_b32 s%d, 0x3fb8aa3b" % sL2E)
sizes = {S_X: 1280, S_CKV: 8388608, S_WQ: 5242880, S_WUK: 4194304, S_WUV: 4194304, S_WO: 5242880, S_W1: 2211840, S_W2: 2211840, S_OUT: 1280, S_DBG: 256, S_WS: WS_BYTES}
src = {S_X: 64, S_CKV: 66, S_WQ: 68, S_WUK: 70, S_WUV: 72, S_WO: 74, S_W1: 78, S_W2: 80, S_OUT: 82, S_DBG: 84, S_WS: 86}
ALLS = (S_WS, S_X, S_WQ, S_CKV, S_WUK, S_DBG, S_WUV, S_WO, S_W1, S_W2, S_OUT)
for b in ALLS:
    e("s_mov_b32 s%d, %d" % (b + 2, sizes[b]))
    e("s_mov_b32 s%d, 0x00020000" % (b + 3))
def srds():
    e("s_waitcnt lgkmcnt(0)")
    for b in ALLS:
        e("s_mov_b64 s[%d:%d], s[%d:%d]" % (b, b + 1, src[b], src[b] + 1))
e("s_cmp_ge_u32 s2, 128")
e("s_cbranch_scc1 L_Y")

vWQ, vWUK, vL1, vL0, vXF, vXR = 48, 148, 164, 170, 184, 190
vBUV, vBO, vG0 = 48, 64, 96
vQLw, vQLr, vOutA = 192, 193, 194
e("s_lshl_b32 s%d, s%d, 2" % (sH, sB))
e("s_lshr_b32 s%d, s%d, 2" % (sT0, sA))
e("s_add_u32 s%d, s%d, s%d" % (sH, sH, sT0))
e("s_and_b32 s%d, s%d, 3" % (sCQ, sA))
e("s_lshl_b32 s%d, s%d, 2" % (sXI, sH))
e("s_add_u32 s%d, s%d, s%d" % (sXI, sXI, sCQ))
sST, sKQ, sUS, sNU = 98, 99, 100, 101
e("s_mul_i32 s%d, s2, 205" % sKQ)
e("s_lshr_b32 s%d, s%d, 11" % (sKQ, sKQ))
e("s_mul_i32 s%d, s%d, 10" % (sT0, sKQ))
e("s_sub_u32 s%d, s2, s%d" % (sST, sT0))
e("s_mul_i32 s%d, s%d, 11" % (sUS, sKQ))
e("s_max_u32 s%d, s%d, 8" % (sT0, sKQ))
e("s_sub_u32 s%d, s%d, 8" % (sT0, sT0))
e("s_sub_u32 s%d, s%d, s%d" % (sUS, sUS, sT0))
e("s_cmp_lt_u32 s%d, 8" % sKQ)
e("s_cselect_b32 s%d, 11, 10" % sNU)
L_WUK = L_WO + 45056
vWQ, vL1, vL0, vXF, vXR = 48, 164, 176, 186, 191
vQF = vG0 + 32; vCF = vG0 + 32; vC2a, vC1a, vUKa = 200, 201, 196
vBUV, vBO = 144, 160
def frag_prep():
    r_, q_, x_ = vT + 26, vT + 27, vT + 28
    e("v_lshrrev_b32 v%d, 2, v%d" % (r_, vN))
    e("v_bfe_u32 v%d, v%d, 1, 1" % (q_, vN))
    e("v_lshl_or_b32 v%d, v%d, 2, v%d" % (x_, vG, r_))
    e("v_xor_b32 v%d, v%d, v%d" % (x_, x_, q_))
    e("s_lshl_b32 s%d, s%d, 1" % (sF + 5, sW))
    e("v_xor_b32 v%d, s%d, v%d" % (x_, sF + 5, x_))
    e("v_lshlrev_b32 v%d, 4, v%d" % (x_, x_))
    e("v_lshlrev_b32 v%d, 4, v%d" % (vC1a, r_))
    e("v_lshl_add_u32 v%d, v%d, 1, v%d" % (vC1a, vG, vC1a))
    e("v_lshl_add_u32 v%d, v%d, 8, v%d" % (vC1a, vC1a, x_))
    e("v_and_b32 v%d, 1, v%d" % (x_, vN))
    e("v_lshl_add_u32 v%d, v%d, 3, v%d" % (vC1a, x_, vC1a))
    for ks in range(4):
        for u in range(2):
            e("ds_read_b64_tr_b16 %s, v%d offset:%d" % (vr(vBUV + 4 * ks + 2 * u, 2), vC1a, L_WUV + (64 * (ks >> 1) + 8 * (ks & 1) + u) * 256))
    e("v_lshl_add_u32 v%d, v%d, 3, v%d" % (vC2a, vG, r_))
    e("v_lshlrev_b32 v%d, 7, v%d" % (vC2a, vC2a))
    e("v_lshl_add_u32 v%d, v%d, 3, v%d" % (vC2a, x_, vC2a))
    e("s_lshl_b32 s%d, s%d, 12" % (sF + 5, sW))
    e("s_add_u32 s%d, s%d, %d" % (sF + 5, sF + 5, L_WO))
    e("v_add_u32 v%d, s%d, v%d" % (vC2a, sF + 5, vC2a))
    e("v_lshrrev_b32 v%d, 1, v%d" % (r_, r_))
    e("v_lshl_or_b32 v%d, v%d, 1, v%d" % (r_, vG, r_))
    e("v_xor_b32 v%d, v%d, v%d" % (r_, r_, q_))
    e("s_waitcnt lgkmcnt(0)")
    for t in range(4):
        e("v_xor_b32 v%d, %d, v%d" % (x_, 2 * t, r_))
        e("v_lshl_add_u32 v%d, v%d, 4, v%d" % (x_, x_, vC2a))
        for j in range(2):
            for u in range(2):
                e("ds_read_b64_tr_b16 %s, v%d offset:%d" % (vr(vBO + 16 * j + 4 * t + 2 * u, 2), x_, 32768 * j + 512 * u))
        if t == 1: e("s_waitcnt lgkmcnt(0)")
    e("s_waitcnt lgkmcnt(0)")
lc1 = e.newlabel("L_c1"); lS = e.newlabel("L_S")
for k in range(16): e("v_mov_b32 v%d, 0" % (vQF + k))
e("v_lshlrev_b32 v%d, 4, v%d" % (vQLw, vN))
e("v_lshl_add_u32 v%d, v%d, 2, v%d" % (vQLw, vG, vQLw))
e("v_mul_u32_u24 v%d, 272, v%d" % (vQLr, vN))
e("v_lshl_add_u32 v%d, v%d, 4, v%d" % (vQLr, vG, vQLr))
e("v_add_u32 v%d, %d, v%d" % (vQLr, L_QL, vQLr))
e("v_lshlrev_b32 v%d, 1, v%d" % (vOutA, vN))
e("v_lshlrev_b32 v%d, 2, v%d" % (vA0, vLANE))
e("v_lshlrev_b32 v%d, 1, v%d" % (vA1, vLANE))
e("s_mul_i32 s%d, s%d, 160" % (sT0, sCQ))
e("s_mul_i32 s%d, s%d, 40" % (sT1, sW))
e("s_add_u32 s%d, s%d, s%d" % (sT0, sT0, sT1))
e("s_lshl_b32 s%d, s%d, 1" % (sT1, sT0))
e("v_lshlrev_b32 v%d, 13, v%d" % (vA2, vG))
e("v_lshl_add_u32 v%d, v%d, 4, v%d" % (vA2, vN, vA2))
e("s_lshl_b32 s%d, s%d, 13" % (sT0, sT0))
e("s_lshl_b32 s%d, s%d, 8" % (sT2, sH))
e("s_add_u32 s%d, s%d, s%d" % (sT0, sT0, sT2))
srds()
e("s_cmp_ge_u32 s%d, 4" % sW)
e("s_cbranch_scc1 %s" % lS)
for i in range(5):
    e("buffer_load_dword v%d, v%d, %s, 0 offen offset:%d" % (vXF + i, vA0, srd(S_X), 256 * i))
e("buffer_load_ushort v%d, v%d, %s, s%d offen" % (vXR, vA1, srd(S_X), sT1))
e("s_barrier")
for i in range(10):
    e("buffer_load_dwordx4 %s, v%d, %s, s%d offen%s" % (vr(vWQ + 4 * i, 4), vA2, srd(S_WQ), sT0, NT))
    if i < 9: e("s_add_u32 s%d, s%d, 32768" % (sT0, sT0))
e("s_barrier")
e("s_waitcnt vmcnt(10)")
stamp(1)
a, b_, vM, vS = vT + 10, vT + 11, vT + 12, vT + 13
e("v_readfirstlane_b32 s%d, v%d" % (sT0, vXF))
unpack(vT, vXF, 5)
e("s_lshl_b32 s%d, s%d, 16" % (sT0, sT0))
e("s_mov_b32 s%d, s%d" % (sT1, sT0))
for k in range(5):
    e("v_pk_add_f32 %s, %s, %s neg_lo:[0,1] neg_hi:[0,1]" % (vr(vT + 2 * k, 2), vr(vT + 2 * k, 2), sp(sT0)))
e("v_pk_add_f32 %s, %s, %s" % (vr(vT + 14, 2), vr(vT, 2), vr(vT + 2, 2)))
e("v_pk_mul_f32 %s, %s, %s" % (vr(vT + 16, 2), vr(vT, 2), vr(vT, 2)))
e("v_pk_fma_f32 %s, %s, %s, %s" % (vr(vT + 16, 2), vr(vT + 2, 2), vr(vT + 2, 2), vr(vT + 16, 2)))
for k in range(2, 5):
    e("v_pk_add_f32 %s, %s, %s" % (vr(vT + 14, 2), vr(vT + 14, 2), vr(vT + 2 * k, 2)))
    e("v_pk_fma_f32 %s, %s, %s, %s" % (vr(vT + 16, 2), vr(vT + 2 * k, 2), vr(vT + 2 * k, 2), vr(vT + 16, 2)))
e("v_add_f32 v%d, v%d, v%d" % (a, vT + 14, vT + 15))
e("v_add_f32 v%d, v%d, v%d" % (b_, vT + 16, vT + 17))
wave_red([a, b_], [sT2, sT3])
e("s_mov_b32 s%d, 0x3acccccd" % sT1)
e("v_mov_b32 v%d, s%d" % (vM, sT2))
e("v_mov_b32 v%d, s%d" % (vS, sT3))
e("v_mul_f32 v%d, s%d, v%d" % (vM, sT1, vM))
e("v_mul_f32 v%d, s%d, v%d" % (vS, sT1, vS))
e("v_fma_f32 v%d, -v%d, v%d, v%d" % (vS, vM, vM, vS))
e("v_max_f32 v%d, 0, v%d" % (vS, vS))
e("v_add_f32 v%d, s%d, v%d" % (vM, sT0, vM))
rbf(vM, vM); rbf(vS, vS)
e("v_add_f32 v%d, 0x3727c5ac, v%d" % (vS, vS))
rbf(vS, vS)
e("v_sqrt_f32 v%d, v%d" % (vS, vS))
rbf(vS, vS)
e("v_rcp_f32 v%d, v%d" % (vS + 1, vS))
v = vXR
e("v_lshlrev_b32 v%d, 16, v%d" % (v, v))
e("v_sub_f32 v%d, v%d, v%d" % (v, v, vM))
rbf(v, v)
e("v_mul_f32 v%d, v%d, v%d" % (b_, v, vS + 1))
e("v_fma_f32 v%d, -v%d, v%d, v%d" % (a, b_, vS, v))
e("v_fmac_f32 v%d, v%d, v%d" % (b_, a, vS + 1))
rbf(v, b_)
e("v_and_b32 v%d, 3, v%d" % (vA0, vLANE))
e("v_lshlrev_b32 v%d, 6, v%d" % (vA0, vA0))
e("v_and_b32 v%d, 0x3c, v%d" % (vA1, vLANE))
e("v_add_u32 v%d, v%d, v%d" % (vA0, vA0, vA1))
e("s_lshl_b32 s%d, s%d, 8" % (sT0, sW))
e("v_add_u32 v%d, s%d, v%d" % (vA0, sT0, vA0))
e("ds_write_b32 v%d, v%d offset:%d" % (vA0, vXR, L_LN))
e("v_lshlrev_b32 v%d, 6, v%d" % (vA1, vG))
e("v_add_u32 v%d, s%d, v%d" % (vA1, sT0, vA1))
e("s_waitcnt lgkmcnt(0)")
for k in range(3):
    e("ds_read_b128 %s, v%d offset:%d" % (vr(vL1 + 4 * k, 4), vA1, L_LN + 16 * k))
e("s_lshl_b32 s%d, s%d, 5" % (sF + 3, sB))
e("v_mov_b32 v%d, 0" % (vT + 20))
lf0 = e.newlabel("L_f0")
e("s_cmp_lg_u32 s%d, 0" % sW)
e("s_cbranch_scc1 %s" % lf0)
setexec(1)
e("buffer_load_dword v%d, v%d, %s, s%d offen sc1" % (vL16 + 1, vT + 20, srd(S_DBG), sF + 3))
setexec(-1)
e(lf0 + ":")
e("v_lshlrev_b32 v%d, 1, v%d" % (vA1, vQLw))
e("s_lshl_b32 s%d, s%d, 9" % (sT0, sW))
e("v_add_u32 v%d, s%d, v%d" % (vA1, sT0, vA1))
e("s_mul_i32 s%d, s%d, 544" % (sT0, sW))
e("s_add_u32 s%d, s%d, %d" % (sT0, sT0, L_QL))
e("v_add_u32 v%d, s%d, v%d" % (vQLw, sT0, vQLw))
e("v_lshlrev_b32 v%d, 3, v%d" % (vA2, vLANE))
e("v_lshlrev_b32 v%d, 2, v%d" % (vT + 29, vLANE))
e("s_lshl_b32 s%d, s%d, 13" % (sT0, sW))
e("s_add_u32 s%d, s%d, %d" % (sT0, sT0, L_WUK))
e("v_xor_b32 v%d, v%d, v%d" % (vA0, vN, vG))
for ks in range(4):
    e("v_xor_b32 v%d, %d, v%d" % (vUKa + ks, 4 * ks, vA0))
    e("v_lshlrev_b32 v%d, 4, v%d" % (vUKa + ks, vUKa + ks))
    e("v_lshl_add_u32 v%d, v%d, 8, v%d" % (vUKa + ks, vN, vUKa + ks))
    e("v_add_u32 v%d, s%d, v%d" % (vUKa + ks, sT0, vUKa + ks))
e("v_lshlrev_b32 v%d, 8, v%d" % (vA0, vN))
e("v_lshl_add_u32 v%d, v%d, 4, v%d" % (vA0, vG, vA0))
for k in range(8): e("v_mov_b32 v%d, 0" % (vT + k))
e("s_mov_b32 s%d, 0x00ff00ff" % sE0)
e("s_mov_b32 s%d, 0x00ff00ff" % (sE0 + 1))
e("s_lshl_b32 s%d, s%d, 9" % (sT2, sXI))
e("s_add_u32 s%d, s%d, %d" % (sT2, sT2, QP))
e("s_lshl_b32 s%d, s%d, 11" % (sT3, sH))
e("s_add_u32 s%d, s%d, %d" % (sT3, sT3, QP))
e("s_waitcnt lgkmcnt(0)")
for k in range(10): e("v_lshrrev_b32 v%d, 16, v%d" % (vL0 + k, vL1 + k))
stamp(2)
def a1(extra):
    for i in range(10):
        e("s_waitcnt vmcnt(%d)" % (9 - i + extra))
        for k in range(4):
            e("v_dot2c_f32_bf16 v%d, v%d, v%d" % (vT + 2 * k, vWQ + 4 * i + k, vL0 + i))
            e("v_dot2c_f32_bf16 v%d, v%d, v%d" % (vT + 2 * k + 1, vWQ + 4 * i + k, vL1 + i))
    e("s_nop 3")
la_ = e.newlabel("L_a1"); lb_ = e.newlabel("L_a1")
e("s_cmp_eq_u32 s%d, 0" % sW)
e("s_cbranch_scc1 %s" % la_)
a1(0)
e("s_branch %s" % lb_)
e(la_ + ":")
a1(1)
e(lb_ + ":")
rs_8to2(vT)
e("ds_write_b64 v%d, %s offset:%d" % (vA1, vr(vT, 2), L_RED))
lfo = e.newlabel("L_fo"); lfp = e.newlabel("L_fp"); lf1 = e.newlabel("L_f1")
e("s_mov_b32 s%d, 0" % sCNT)
e("s_cmp_lg_u32 s%d, 0" % sW)
e("s_cbranch_scc1 %s" % lfo)
setexec(1)
e("s_branch %s" % lf1)
e(lfp + ":")
setexec(1)
e("buffer_load_dword v%d, v%d, %s, s%d offen sc1" % (vL16 + 1, vT + 20, srd(S_DBG), sF + 3))
e(lf1 + ":")
e("s_waitcnt vmcnt(0)")
e("v_cmp_eq_u32 vcc, 0, v%d" % (vL16 + 1))
setexec(-1)
e("s_cbranch_vccz %s" % lfo)
e("s_add_u32 s%d, s%d, 1" % (sCNT, sCNT))
e("s_cmp_gt_u32 s%d, %d" % (sCNT, SPIN))
e("s_cbranch_scc1 %s" % lfo)
e("s_sleep 2")
e("s_branch %s" % lfp)
e(lfo + ":")
e("s_waitcnt lgkmcnt(0)")
e("s_barrier")
stamp(3)
lw = e.newlabel("L_a1w")
e("s_cmp_lg_u32 s%d, 0" % sW)
e("s_cbranch_scc1 %s" % lw)
for i in range(4):
    e("ds_read_b64 %s, v%d offset:%d" % (vr(vG0 + 2 * i, 2), vA2, L_RED + 512 * i))
e(lw + ":")
stamp(14)
if DIAG: e("v_writelane_b32 v%d, s%d, 20" % (vTSV, sCNT))
lw = e.newlabel("L_a1w")
e("s_cmp_lg_u32 s%d, 0" % sW)
e("s_cbranch_scc1 %s" % lw)
e("s_waitcnt lgkmcnt(0)")
v = vG0
e("v_pk_add_f32 %s, %s, %s" % (vr(v, 2), vr(v, 2), vr(v + 2, 2)))
e("v_pk_add_f32 %s, %s, %s" % (vr(v + 4, 2), vr(v + 4, 2), vr(v + 6, 2)))
e("v_pk_add_f32 %s, %s, %s" % (vr(v, 2), vr(v, 2), vr(v + 4, 2)))
e("v_min_u32 v%d, -2, v%d" % (v, v))
e("v_min_u32 v%d, -2, v%d" % (v + 1, v + 1))
e("buffer_store_dwordx2 %s, v%d, %s, s%d offen sc1" % (vr(v, 2), vA2, srd(S_WS), sT2))
e(lw + ":")
stamp(16)
if opt("d1", 4): e("s_sleep %d" % opt("d1", 4))
vQ8 = 100
e("s_lshl_b32 s%d, s%d, 8" % (sT0, sW))
e("v_add_u32 v%d, s%d, v%d" % (vT + 28, sT0, vT + 29))
e("v_lshlrev_b32 v%d, 4, v%d" % (vA0, vG))
e("v_add_u32 v%d, s%d, v%d" % (vA0, sT0, vA0))
poll([("buffer_load_dwordx2 %s, v%d, %s, s%d offen offset:%d sc1\nbuffer_load_dwordx2 %s, v%d, %s, s%d offen offset:%d sc1" % (vr(vQ8 + 4 * k, 2), vA2, srd(S_WS), sT3, 1024 * k, vr(vQ8 + 4 * k + 2, 2), vA2, srd(S_WS), sT3, 1024 * k + 512), vQ8 + 4 * k, 4) for k in range(2)], sleep=1)
stamp(15)
if DIAG: e("v_writelane_b32 v%d, s%d, 21" % (vTSV, sCNT))
e("v_pk_add_f32 %s, %s, %s" % (vr(vT, 2), vr(vQ8, 2), vr(vQ8 + 2, 2)))
e("v_pk_add_f32 %s, %s, %s" % (vr(vT + 2, 2), vr(vQ8 + 4, 2), vr(vQ8 + 6, 2)))
e("v_pk_add_f32 %s, %s, %s" % (vr(vT, 2), vr(vT, 2), vr(vT + 2, 2)))
e("v_cvt_pk_bf16_f32 v%d, v%d, v%d" % (vT, vT, vT + 1))
e("ds_write_b32 v%d, v%d offset:%d" % (vT + 28, vT, L_LN))
e("s_waitcnt lgkmcnt(0)")
vQA = 204
for ks in range(4):
    e("ds_read_b128 %s, v%d offset:%d" % (vr(vQA + 4 * ks, 4), vA0, L_LN + 64 * ks))
lr = e.newlabel("L_ew")
e("s_cmp_lg_u32 s%d, 1" % sW)
e("s_cbranch_scc1 %s" % lr)
e("s_lshl_b32 s%d, s%d, 6" % (sT0, sXI))
e("s_add_u32 s%d, s%d, %d" % (sT0, sT0, EWA))
store1(sT0)
e(lr + ":")
e("s_barrier")
vUK = 48
for t in range(2):
    for ks in range(4):
        e("ds_read_b128 %s, v%d offset:%d" % (vr(vUK + 16 * t + 4 * ks, 4), vUKa + ks, 4096 * t))
e("s_lshl_b32 s%d, s%d, 8" % (sT0, sXI))
e("s_lshl_b32 s%d, s%d, 6" % (sT1, sW))
e("s_add_u32 s%d, s%d, s%d" % (sT0, sT0, sT1))
e("v_lshlrev_b32 v%d, 1, v%d" % (vA1, vLANE))
for t in range(2):
    for ks in range(4):
        e("s_waitcnt lgkmcnt(%d)" % (7 - 4 * t - ks))
        e("v_mfma_f32_16x16x32_bf16 %s, %s, %s, %s" % (vr(vT + 4 * t, 4), vr(vQA + 4 * ks, 4), vr(vUK + 16 * t + 4 * ks, 4), "0" if ks == 0 else vr(vT + 4 * t, 4)))
e("v_mov_b32_dpp v%d, v%d quad_perm:[0,1,2,3] row_mask:0x2 bank_mask:0xf" % (vT, vT + 4))
e("v_mov_b32_dpp v%d, v%d row_shl:1 row_mask:0xf bank_mask:0xf bound_ctrl:0" % (vT + 1, vT))
e("v_cvt_pk_bf16_f32 v%d, v%d, v%d" % (vT, vT, vT + 1))
e("v_min_u32 v%d, -2, v%d" % (vT, vT))
setexec(0x55555555)
e("buffer_store_dword v%d, v%d, %s, s%d offen sc1" % (vT, vA1, srd(S_WS), sT0))
setexec(-1)
stamp(4)
e("s_barrier")
e("s_lshr_b32 s%d, s%d, 4" % (sT0, sH))
e("s_lshl_b32 s%d, s%d, 7" % (sT0, sT0))
e("s_and_b32 s%d, s%d, 15" % (sT1, sH))
e("s_lshl_b32 s%d, s%d, 3" % (sT1, sT1))
e("s_add_u32 s%d, s%d, s%d" % (sT0, sT0, sT1))
e("s_add_u32 s%d, s%d, %d" % (sT0, sT0, STAT))
e("s_lshl_b32 s%d, s%d, 12" % (sT1, sW))
e("s_add_u32 s%d, s%d, s%d" % (sT1, sT1, sT0))
e("v_lshlrev_b32 v%d, 8, v%d" % (vA1, vLANE))
e("v_lshlrev_b32 v%d, 15, v%d" % (vA2, vG))
e("v_lshl_add_u32 v%d, v%d, 4, v%d" % (vA2, vN, vA2))
e("s_lshl_b32 s%d, s%d, 19" % (sT2, sW))
e("s_lshl_b32 s%d, s%d, 8" % (sT3, sXI))
e("s_add_u32 s%d, s%d, s%d" % (sT2, sT2, sT3))
e("s_add_u32 s%d, s%d, %d" % (sT2, sT2, PART))
e("s_add_u32 s%d, s%d, 0x20000" % (sT3, sT2))
e("s_add_u32 s%d, s%d, 0x40000" % (sT4, sT2))
e("s_add_u32 s%d, s%d, 0x60000" % (sF, sT2))
e("s_lshl_b32 s%d, s%d, 6" % (sF + 1, sW))
e("v_lshlrev_b32 v%d, 2, v%d" % (vA0, vG))
e("v_add_u32 v%d, s%d, v%d" % (vA0, sF + 1, vA0))
vSo, vSa, vD = vG0, vG0 + 8, vG0 + 12
e("s_barrier")
frag_prep()
stamp(5)
NH3 = opt("nh3", 4)
e("s_and_b32 s%d, s%d, 15" % (sF + 2, sXI))
hint_addr(sF + 2, 16 // NH3 if NH3 > 1 else 1, 16, vA3)
e("v_lshlrev_b32 v%d, 1, v%d" % (vA3, vA3))
e("s_lshl_b32 s%d, s%d, 11" % (sF + 3, sW))
e("s_lshr_b32 s%d, s%d, 4" % (sF + 2, sH))
e("s_lshl_b32 s%d, s%d, 6" % (sF + 2, sF + 2))
e("s_add_u32 s%d, s%d, s%d" % (sF + 3, sF + 3, sF + 2))
e("s_add_u32 s%d, s%d, %d" % (sF + 3, sF + 3, EWB + 32))
poll([("buffer_load_dword v%d, v%d, %s, s%d offen offset:4 sc1" % (vSo, vA1, srd(S_WS), sT1), vSo, 1),
      ("buffer_load_dword v%d, v%d, %s, s%d offen sc1" % (vSo + 1, vA3, srd(S_WS), sF + 3), vSo + 1, 1)], sleep=opt("sl3", 3), init_masks=["0xffff", "0x%x" % ((1 << NH3) - 1)])
stamp(6)
if opt("d3", 0): e("s_sleep %d" % opt("d3", 0))
poll([("buffer_load_dwordx4 %s, v%d, %s, s%d offen sc1" % (vr(vD + 4 * i, 4), vA2, srd(S_WS), [sT2, sT3, sT4, sF][i]), vD + 4 * i, 4) for i in range(4)]
     + [("buffer_load_dwordx2 %s, v%d, %s, s%d offen sc1" % (vr(vSa, 2), vA1, srd(S_WS), sT0), vSa, -2)], sleep=opt("sl3b", 1))
stamp(7)
if DIAG: e("v_writelane_b32 v%d, s%d, 22" % (vTSV, sCNT))
e("v_mov_b32 v%d, v%d" % (vT + 8, vSa))
wave_red([vT + 8], [sT0], "v_max_f32")
e("v_mov_b32 v%d, s%d" % (vT + 9, sT0))
e("v_mul_f32 v%d, s%d, v%d" % (vT + 9, sL2E, vT + 9))
wv = vT + 12
e("v_fma_f32 v%d, v%d, s%d, -v%d" % (wv, vSa, sL2E, vT + 9))
e("v_exp_f32 v%d, v%d" % (wv, wv))
e("v_cvt_pk_bf16_f32 v%d, v%d, v%d" % (wv, wv, wv))
e("v_lshlrev_b32 v%d, 16, v%d" % (wv, wv))
for i in range(4):
    e("ds_bpermute_b32 v%d, v%d, v%d offset:%d" % (vSo + 2 * i + 1, vA0, wv, 16 * i))
e("v_mul_f32 v%d, v%d, v%d" % (wv + 1, wv, vSa + 1))
for k in range(8): e("v_mov_b32 v%d, 0" % (vT + k))
wave_red([wv + 1], [sT0])
for i in range(4):
    e("s_waitcnt lgkmcnt(%d)" % (3 - i))
    e("v_lshrrev_b32 v%d, 16, v%d" % (vSo + 2 * i, vSo + 2 * i + 1))
    for k in range(4):
        e("v_dot2c_f32_bf16 v%d, v%d, v%d" % (vT + 2 * k + 1, vD + 4 * i + k, vSo + 2 * i + 1))
    for k in range(4):
        e("v_dot2c_f32_bf16 v%d, v%d, v%d" % (vT + 2 * k, vD + 4 * i + k, vSo + 2 * i))
e("v_rcp_f32 v%d, s%d" % (vT + 8, sT0))
rs_8to2(vT)
e("v_mul_f32 v%d, v%d, v%d" % (vT, vT, vT + 8))
e("v_mul_f32 v%d, v%d, v%d" % (vT + 1, vT + 1, vT + 8))
hilo_write(vT, vQLw)
e("s_branch %s" % lc1)
e(lS + ":")
e("s_sub_u32 s%d, s%d, 4" % (sT3, sW))
if opt("xl", 0):
    lxl = e.newlabel("L_xl"); lx6 = e.newlabel("L_x6")
    e("s_cmp_lg_u32 s%d, 15" % sA)
    e("s_cbranch_scc1 %s" % lxl)
    e("s_lshl_b32 s%d, s%d, 13" % (sT2, sB))
    e("s_lshl_b32 s%d, s%d, 11" % (sT0, sT3))
    e("s_add_u32 s%d, s%d, s%d" % (sT2, sT2, sT0))
    e("s_add_u32 s%d, s%d, %d" % (sT2, sT2, QP))
    for k in range(2):
        e("buffer_store_dwordx4 %s, v%d, %s, s%d offen offset:%d sc1" % (vr(vCL, 4), vL16, srd(S_WS), sT2, 1024 * k))
    e("s_lshl_b32 s%d, s%d, 12" % (sT2, sB))
    e("s_lshl_b32 s%d, s%d, 10" % (sT0, sT3))
    e("s_add_u32 s%d, s%d, s%d" % (sT2, sT2, sT0))
    e("buffer_store_dwordx4 %s, v%d, %s, s%d offen sc1" % (vr(vCL, 4), vL16, srd(S_WS), sT2))
    e("s_add_u32 s%d, s%d, %d" % (sT2, sT2, CP))
    e("buffer_store_dwordx4 %s, v%d, %s, s%d offen sc1" % (vr(vCL, 4), vL16, srd(S_WS), sT2))
    e("s_cmp_ge_u32 s%d, 2" % sT3)
    e("s_cbranch_scc1 %s" % lx6)
    e("s_lshl_b32 s%d, s%d, 10" % (sT2, sB))
    e("s_mov_b32 s%d, %d" % (sT0, EWA))
    e("s_cmp_eq_u32 s%d, 1" % sT3)
    e("s_cselect_b32 s%d, %d, s%d" % (sT0, EWB, sT0))
    e("s_add_u32 s%d, s%d, s%d" % (sT2, sT2, sT0))
    e("buffer_store_dwordx4 %s, v%d, %s, s%d offen sc1" % (vr(vCL, 4), vL16, srd(S_WS), sT2))
    e(lx6 + ":")
    e("v_mov_b32 v%d, 0" % vA1)
    e("ds_write_b32 v%d, v%d offset:%d" % (vA1, vA1, L_QL))
    e("s_waitcnt lgkmcnt(0)")
    e(lxl + ":")
l1 = e.newlabel("L_c")
e("s_cmp_lg_u32 s%d, 4" % sW)
e("s_cbranch_scc1 %s" % l1)
e("s_lshl_b32 s%d, s2, 7" % sT0)
e("s_add_u32 s%d, s%d, %d" % (sT0, sT0, HP))
setexec(0xff)
e("buffer_store_dwordx4 %s, v%d, %s, s%d offen sc1" % (vr(vCL, 4), vL16, srd(S_WS), sT0))
e("s_lshl_b32 s%d, s2, 6" % sT0)
e("s_add_u32 s%d, s%d, %d" % (sT0, sT0, EWC))
setexec(0xf)
e("buffer_store_dwordx4 %s, v%d, %s, s%d offen sc1" % (vr(vCL, 4), vL16, srd(S_WS), sT0))
e("s_lshr_b32 s%d, s%d, 4" % (sT0, sH))
e("s_lshl_b32 s%d, s%d, 7" % (sT0, sT0))
e("s_and_b32 s%d, s%d, 15" % (sT1, sH))
e("s_lshl_b32 s%d, s%d, 3" % (sT1, sT1))
e("s_add_u32 s%d, s%d, s%d" % (sT0, sT0, sT1))
e("s_lshl_b32 s%d, s%d, 12" % (sT1, sCQ))
e("s_add_u32 s%d, s%d, s%d" % (sT0, sT0, sT1))
e("s_add_u32 s%d, s%d, %d" % (sT0, sT0, STAT))
setexec(0xffff)
e("v_lshlrev_b32 v%d, 8, v%d" % (vA0, vLANE))
e("buffer_store_dwordx2 %s, v%d, %s, s%d offen sc1" % (vr(vCL, 2), vA0, srd(S_WS), sT0))
setexec(-1)
e(l1 + ":")
e("s_lshl_b32 s%d, s%d, 7" % (sF, sCQ))
e("s_lshl_b32 s%d, s%d, 5" % (sT1, sT3))
e("s_add_u32 s%d, s%d, s%d" % (sF, sF, sT1))
e("s_lshl_b32 s%d, s%d, 13" % (sF, sF))
e("s_lshl_b32 s%d, s%d, 8" % (sT1, sH))
e("s_add_u32 s%d, s%d, s%d" % (sF, sF, sT1))
e("v_xor_b32 v%d, v%d, v%d" % (vA2, vN, vG))
for k in range(4):
    e("v_xor_b32 v%d, %d, v%d" % (vT + k, 4 * k, vA2))
    e("v_lshlrev_b32 v%d, 4, v%d" % (vT + k, vT + k))
    e("v_lshl_add_u32 v%d, v%d, 13, v%d" % (vT + k, vG, vT + k))
e("s_mov_b32 s%d, s%d" % (sT0, sF))
e("s_lshl_b32 s%d, s%d, 13" % (sT2, sT3))
e("s_add_u32 s%d, s%d, %d" % (sT2, sT2, L_WUK))
e("s_barrier")
e("s_barrier")
if opt("xl", 0):
    lxm = e.newlabel("L_xm"); lx7 = e.newlabel("L_x7")
    e("s_cmp_lg_u32 s%d, 15" % sA)
    e("s_cbranch_scc1 %s" % lxm)
    e("s_waitcnt vmcnt(0)")
    e("v_mov_b32 v%d, 1" % vA3)
    e("v_mov_b32 v%d, 0" % vA1)
    setexec(1)
    e("ds_add_rtn_u32 v%d, v%d, v%d offset:%d" % (vA0, vA1, vA3, L_QL))
    e("s_waitcnt lgkmcnt(0)")
    e("v_cmp_eq_u32 vcc, 3, v%d" % vA0)
    e("s_mov_b64 exec, vcc")
    e("s_lshl_b32 s%d, s%d, 5" % (sT1, sB))
    e("s_cbranch_execz %s" % lx7)
    e("buffer_store_dword v%d, v%d, %s, s%d offen sc1" % (vA3, vA1, srd(S_DBG), sT1))
    e(lx7 + ":")
    setexec(-1)
    stamp(17)
    e(lxm + ":")
for k in range(8):
    e("s_mov_b32 m0, s%d" % sT2)
    e("buffer_load_dwordx4 v%d, %s, s%d offen%s lds" % (vT + (k & 3), srd(S_WUK), sT0, NT))
    if k < 7:
        e("s_add_u32 s%d, s%d, 32768" % (sT0, sT0))
        e("s_add_u32 s%d, s%d, 1024" % (sT2, sT2))
e("s_waitcnt vmcnt(8)")
e("s_barrier")
e("s_waitcnt vmcnt(0)")
stamp(12)
def uv_dma():
    e("v_lshrrev_b32 v%d, 1, v%d" % (vA2, vG))
    e("v_lshlrev_b32 v%d, 2, v%d" % (vA2, vA2))
    e("v_xor_b32 v%d, v%d, v%d" % (vA2, vA2, vN))
    e("s_and_b32 s%d, s%d, 1" % (sT0, sT3))
    e("s_lshl_b32 s%d, s%d, 1" % (sT0, sT0))
    e("v_xor_b32 v%d, s%d, v%d" % (vA2, sT0, vA2))
    for c, cv in enumerate((0, 8, 1, 9)):
        e("v_xor_b32 v%d, %d, v%d" % (vT + c, cv, vA2))
        e("v_lshlrev_b32 v%d, 4, v%d" % (vT + c, vT + c))
        e("v_lshl_add_u32 v%d, v%d, 13, v%d" % (vT + c, vG, vT + c))
    e("s_mov_b32 s%d, s%d" % (sT0, sF))
    e("s_lshl_b32 s%d, s%d, 13" % (sT2, sT3))
    e("s_add_u32 s%d, s%d, %d" % (sT2, sT2, L_WUV))
    for k in range(8):
        e("s_mov_b32 m0, s%d" % sT2)
        e("buffer_load_dwordx4 v%d, %s, s%d offen%s lds" % (vT + 2 * (k >> 2) + (k & 1), srd(S_WUV), sT0, NT))
        if k < 7:
            e("s_add_u32 s%d, s%d, 32768" % (sT0, sT0))
            e("s_add_u32 s%d, s%d, 1024" % (sT2, sT2))
if opt("uve", 0): uv_dma()
e("s_barrier")
e("s_barrier")
if not opt("uve", 0): uv_dma()
lno = e.newlabel("L_no")
e("s_cmp_ge_u32 s2, 120")
e("s_cbranch_scc1 %s" % lno)
e("v_lshrrev_b32 v%d, 3, v%d" % (vA0, vLANE))
e("v_mul_u32_u24 v%d, 1280, v%d" % (vA0, vA0))
e("v_and_b32 v%d, 7, v%d" % (vA1, vLANE))
e("v_and_b32 v%d, 1, v%d" % (vA2, vG))
e("v_xor_b32 v%d, v%d, v%d" % (vA1, vA1, vA2))
e("s_lshl_b32 s%d, s%d, 1" % (sT0, sT3))
e("v_xor_b32 v%d, s%d, v%d" % (vA1, sT0, vA1))
e("v_lshl_add_u32 v%d, v%d, 4, v%d" % (vA0, vA1, vA0))
e("s_lshl_b32 s%d, s%d, 2" % (sT0, sUS))
e("s_add_u32 s%d, s%d, s%d" % (sT0, sT0, sT3))
e("s_mul_i32 s%d, s%d, 10240" % (sT0, sT0))
e("s_lshl_b32 s%d, s%d, 7" % (sT1, sST))
e("s_add_u32 s%d, s%d, s%d" % (sT0, sT0, sT1))
e("s_lshl_b32 s%d, s%d, 10" % (sT2, sT3))
e("s_add_u32 s%d, s%d, %d" % (sT2, sT2, L_WO))
for k in range(11):
    if k == 10:
        e("s_cmp_lt_u32 s%d, 11" % sNU)
        e("s_cbranch_scc1 %s" % lno)
    e("s_mov_b32 m0, s%d" % sT2)
    e("buffer_load_dwordx4 v%d, %s, s%d offen%s lds" % (vA0, srd(S_WO), sT0, NT))
    if k < 10:
        e("s_add_u32 s%d, s%d, 40960" % (sT0, sT0))
        e("s_add_u32 s%d, s%d, 4096" % (sT2, sT2))
e(lno + ":")
e("s_waitcnt vmcnt(0)")
stamp(11)
e("s_barrier")
frag_prep()
e(lc1 + ":")
e("s_lshl_b32 s%d, s%d, 5" % (sT1, sW))
e("s_lshl_b32 s%d, s%d, 8" % (sT0, sXI))
e("s_add_u32 s%d, s%d, s%d" % (sT0, sT0, sT1))
e("s_add_u32 s%d, s%d, %d" % (sT0, sT0, CP))
e("s_waitcnt lgkmcnt(0)")
e("s_barrier")
setexec(0x00ff00ff00ff00ff)
for ks in range(4):
    e("ds_read_b128 %s, v%d offset:%d" % (vr(vCF + 4 * ks, 4), vQLr, 64 * ks))
setexec(-1)
for ks in range(4):
    e("s_waitcnt lgkmcnt(%d)" % (3 - ks))
    e("v_mfma_f32_16x16x32_bf16 %s, %s, %s, %s" % (vr(vT, 4), vr(vCF + 4 * ks, 4), vr(vBUV + 4 * ks, 4), "0" if ks == 0 else vr(vT, 4)))
e("v_add_f32 v%d, v%d, v%d" % (vT, vT, vT + 1))
e("v_add_f32 v%d, v%d, v%d" % (vT + 2, vT + 2, vT + 3))
e("v_add_f32 v%d, v%d, v%d" % (vT, vT, vT + 2))
e("v_mov_b32 v%d, v%d" % (vT + 1, vT))
e("v_permlane16_swap_b32 v%d, v%d" % (vT, vT + 1))
e("v_add_f32 v%d, v%d, v%d" % (vT, vT, vT + 1))
e("v_mov_b32_dpp v%d, v%d row_shl:1 row_mask:0xf bank_mask:0xf bound_ctrl:0" % (vT + 1, vT))
e("v_cvt_pk_bf16_f32 v%d, v%d, v%d" % (vT, vT, vT + 1))
e("v_min_u32 v%d, -2, v%d" % (vT, vT))
setexec(0x5555)
e("buffer_store_dword v%d, v%d, %s, s%d offen sc1" % (vT, vOutA, srd(S_WS), sT0))
setexec(-1)
stamp(8)
e("s_cmp_ge_u32 s2, 120")
e("s_cbranch_scc1 L_fin")
vG2 = 204
e("v_lshlrev_b32 v%d, 8, v%d" % (vA0, vN))
e("v_lshl_add_u32 v%d, v%d, 4, v%d" % (vA0, vG, vA0))
e("s_add_u32 s%d, s%d, s%d" % (sT1, sUS, sW))
e("s_lshr_b32 s%d, s%d, 2" % (sT0, sT1))
e("s_lshl_b32 s%d, s%d, 10" % (sT0, sT0))
e("s_and_b32 s%d, s%d, 3" % (sT1, sT1))
e("s_lshl_b32 s%d, s%d, 6" % (sT1, sT1))
e("s_add_u32 s%d, s%d, s%d" % (sT0, sT0, sT1))
e("s_add_u32 s%d, s%d, %d" % (sT0, sT0, CP))
for k in range(8): e("v_mov_b32 v%d, 0" % (vG2 + k))
e("s_mov_b32 s%d, 0x000f000f" % sE0)
e("s_mov_b32 s%d, 0x000f000f" % (sE0 + 1))
e("s_add_u32 s%d, s%d, 8" % (sT1, sW))
e("s_cmp_lt_u32 s%d, s%d" % (sT1, sNU))
e("s_cselect_b64 %s, %s, 0" % (sp(sE1), sp(sE0)))
e("s_cselect_b32 s%d, 1, 0" % sT4)
e("v_lshlrev_b32 v%d, 2, v%d" % (vA1, vLANE))
e("s_lshl_b32 s%d, s%d, 8" % (sT1, sW))
e("v_add_u32 v%d, s%d, v%d" % (vA2, sT1, vA1))
e("s_lshl_b32 s%d, s2, 6" % sT2)
e("s_add_u32 s%d, s%d, %d" % (sT2, sT2, EWC))
if opt("d4", 0): e("s_sleep %d" % opt("d4", 0))
poll([("buffer_load_dwordx4 %s, v%d, %s, s%d offen offset:%d sc1" % (vr(vG2 + 4 * j, 4), vA0, srd(S_WS), sT0, 2048 * j), vG2 + 4 * j, 4) for j in range(2)], sleep=1, init_masks=[sp(sE0), sp(sE1)])
lr = e.newlabel("L_ew")
e("s_cmp_lg_u32 s%d, 0" % sW)
e("s_cbranch_scc1 %s" % lr)
store1(sT2)
e(lr + ":")
stamp(9)
e("s_waitcnt lgkmcnt(0)")
for t in range(4):
    e("v_mfma_f32_16x16x32_bf16 %s, %s, %s, 0" % (vr(vT + 4 * t, 4), vr(vG2, 4), vr(vBO + 4 * t, 4)))
l2u = e.newlabel("L_2u")
e("s_cmp_eq_u32 s%d, 0" % sT4)
e("s_cbranch_scc1 %s" % l2u)
for t in range(4):
    e("v_mfma_f32_16x16x32_bf16 %s, %s, %s, %s" % (vr(vT + 4 * t, 4), vr(vG2 + 4, 4), vr(vBO + 16 + 4 * t, 4), vr(vT + 4 * t, 4)))
e(l2u + ":")
e("s_lshl_b32 s%d, s2, 7" % sT0)
e("s_add_u32 s%d, s%d, %d" % (sT0, sT0, HP))
setexec(0xffff)
e("s_nop 4")
for t in range(4):
    b = vT + 4 * t
    e("v_add_f32 v%d, v%d, v%d" % (b, b, b + 1))
    e("v_add_f32 v%d, v%d, v%d" % (b + 2, b + 2, b + 3))
    e("v_add_f32 v%d, v%d, v%d" % (b, b, b + 2))
    e("ds_write_b32 v%d, v%d offset:%d" % (vA2, b, L_RED + 64 * t))
setexec(-1)
e("s_waitcnt lgkmcnt(0)")
e("s_barrier")
e("s_cmp_lg_u32 s%d, 0" % sW)
e("s_cbranch_scc1 L_fin")
e("v_lshlrev_b32 v%d, 3, v%d" % (vA2, vLANE))
setexec(0xffffffff)
for i in range(8):
    e("ds_read_b64 %s, v%d offset:%d" % (vr(vG2 + 8 + 2 * i, 2), vA2, L_RED + 256 * i))
e("s_waitcnt lgkmcnt(0)")
for st in (4, 2, 1):
    for i in range(st):
        e("v_pk_add_f32 %s, %s, %s" % (vr(vG2 + 8 + 2 * i, 2), vr(vG2 + 8 + 2 * i, 2), vr(vG2 + 8 + 2 * (i + st), 2)))
e("v_cvt_pk_bf16_f32 v%d, v%d, v%d" % (vG2 + 8, vG2 + 8, vG2 + 9))
e("v_min_u32 v%d, -2, v%d" % (vG2 + 8, vG2 + 8))
e("buffer_store_dword v%d, v%d, %s, s%d offen sc1" % (vG2 + 8, vA1, srd(S_WS), sT0))
setexec(-1)
stamp(10)
e("s_branch L_fin")

vCA, vCB, vGQ, vACC, vP = 48, 112, 176, 208, 224
e("L_Y:")
e("s_lshl_b32 s%d, s%d, 3" % (sKS, sB))
e("s_lshr_b32 s%d, s%d, 1" % (sT0, sA))
e("s_add_u32 s%d, s%d, s%d" % (sKS, sKS, sT0))
e("s_and_b32 s%d, s%d, 1" % (sHF, sA))
e("s_lshl_b32 s%d, s%d, 1" % (sYI, sKS))
e("s_add_u32 s%d, s%d, s%d" % (sYI, sYI, sHF))
e("s_lshr_b32 s%d, s%d, 1" % (sT1, sA))
e("s_lshl_b32 s%d, s%d, 3" % (sT1, sT1))
e("s_add_u32 s%d, s%d, s%d" % (sT1, sT1, sB))
e("s_and_b32 s%d, s%d, 1" % (sT0, sA))
e("s_lshl_b32 s%d, s%d, 1" % (sRD, sT1))
e("s_add_u32 s%d, s%d, s%d" % (sRD, sRD, sT0))
e("s_cmp_lt_u32 s%d, 27" % sT1)
e("s_cselect_b32 s%d, 1, 0" % sISD)
e("s_cmp_lt_u32 s%d, 20" % sT1)
e("s_cselect_b32 s%d, 1, 0" % sFIN)
e("s_cmp_eq_u32 s%d, 0" % sT0)
e("s_cselect_b32 s%d, s%d, 0" % (sFIN, sFIN))
srds()
if opt("cpf", 0):
    lp_ = e.newlabel("L_cpf")
    e("s_cmp_lg_u32 s%d, 14" % sA)
    e("s_cbranch_scc1 %s" % lp_)
    e("s_getpc_b64 s[%d:%d]" % (sTM, sTM + 1))
    e.raw("L_pcref:")
    e.raw("    s_sub_u32 s%d, s%d, (L_pcref - %s)" % (sTM, sTM, KN))
    e.raw("    s_subb_u32 s%d, s%d, 0" % (sTM + 1, sTM + 1))
    e("v_lshlrev_b32 v%d, 4, v0" % vA0)
    for k in range(opt("cpf", 0)):
        e("global_load_dwordx4 %s, v%d, s[%d:%d]" % (vr(48 + 4 * k, 4), vA0, sTM, sTM + 1))
        e("v_add_u32 v%d, 8192, v%d" % (vA0, vA0))
    e(lp_ + ":")
l5 = e.newlabel("L_c"); l6 = e.newlabel("L_c"); l7 = e.newlabel("L_c")
e("s_cmp_lt_u32 s2, %d" % (248 if not opt("xl", 0) else 1000))
e("s_cbranch_scc1 %s" % l5)
e("s_lshl_b32 s%d, s%d, 13" % (sT2, sB))
e("s_lshl_b32 s%d, s%d, 10" % (sT3, sW))
e("s_add_u32 s%d, s%d, s%d" % (sT2, sT2, sT3))
e("s_add_u32 s%d, s%d, %d" % (sT2, sT2, QP))
e("buffer_store_dwordx4 %s, v%d, %s, s%d offen sc1" % (vr(vCL, 4), vL16, srd(S_WS), sT2))
e("s_lshl_b32 s%d, s%d, 12" % (sT2, sB))
e("s_and_b32 s%d, s%d, 3" % (sT3, sW))
e("s_lshl_b32 s%d, s%d, 10" % (sT3, sT3))
e("s_add_u32 s%d, s%d, s%d" % (sT2, sT2, sT3))
e("s_lshr_b32 s%d, s%d, 2" % (sT3, sW))
e("s_lshl_b32 s%d, s%d, 15" % (sT3, sT3))
e("s_add_u32 s%d, s%d, s%d" % (sT2, sT2, sT3))
e("buffer_store_dwordx4 %s, v%d, %s, s%d offen sc1" % (vr(vCL, 4), vL16, srd(S_WS), sT2))
e("s_cmp_lt_u32 s%d, 6" % sW)
e("s_cbranch_scc1 %s" % l6)
e("s_lshl_b32 s%d, s%d, 10" % (sT2, sB))
e("s_mov_b32 s%d, %d" % (sT3, EWA))
e("s_cmp_eq_u32 s%d, 6" % sW)
e("s_cselect_b32 s%d, %d, s%d" % (sT3, EWB, sT3))
e("s_add_u32 s%d, s%d, s%d" % (sT2, sT2, sT3))
e("buffer_store_dwordx4 %s, v%d, %s, s%d offen sc1" % (vr(vCL, 4), vL16, srd(S_WS), sT2))
e(l6 + ":")
e("s_waitcnt vmcnt(0)")
e("s_barrier")
e("s_cmp_lg_u32 s%d, 0" % sW)
e("s_cbranch_scc1 %s" % l7)
e("s_lshl_b32 s%d, s%d, 5" % (sT2, sB))
e("v_mov_b32 v%d, 1" % vA3)
setexec(1)
e("buffer_store_dword v%d, v%d, %s, s%d offen sc1" % (vA3, vL16, srd(S_DBG), sT2))
setexec(-1)
stamp(17)
e(l7 + ":")
e("s_barrier")
e(l5 + ":")
def y_dma():
    e("s_lshl_b32 s%d, s%d, 7" % (sT0, sKS))
    e("s_lshl_b32 s%d, s%d, 4" % (sT2, sW))
    e("s_add_u32 s%d, s%d, s%d" % (sT0, sT0, sT2))
    e("s_lshl_b32 s%d, s%d, 10" % (sT0, sT0))
    e("s_mul_i32 s%d, s%d, %d" % (sT2, sT2, RS))
    e("s_add_u32 s%d, s%d, %d" % (sT2, sT2, L_CK))
    for j in range(2):
        e("s_xor_b32 s%d, s%d, %d" % (sT3, sHF, j))
        e("s_lshl_b32 s%d, s%d, 13" % (sT1, sT3))
        e("s_add_u32 s%d, s%d, s%d" % (sT1, sT1, sT0))
        e("s_mul_i32 s%d, s%d, %d" % (sT3, sT3, 8 * RS))
        e("s_add_u32 s%d, s%d, s%d" % (sT3, sT3, sT2))
        for i in range(8):
            e("s_mov_b32 m0, s%d" % sT3)
            e("buffer_load_dwordx4 v%d, %s, s%d offen%s lds" % (vL16, srd(S_CKV), sT1, NTC))
            if i < 7:
                e("s_add_u32 s%d, s%d, 1024" % (sT1, sT1))
                e("s_add_u32 s%d, s%d, %d" % (sT3, sT3, RS))
def y_pclr():
    e("s_lshl_b32 s%d, s%d, 14" % (sT0, sYI))
    e("s_lshl_b32 s%d, s%d, 11" % (sT1, sW))
    e("s_add_u32 s%d, s%d, s%d" % (sT0, sT0, sT1))
    e("s_add_u32 s%d, s%d, %d" % (sT0, sT0, PART))
    for i in range(2):
        e("buffer_store_dwordx4 %s, v%d, %s, s%d offen offset:%d sc1" % (vr(vCL, 4), vL16, srd(S_WS), sT0, 1024 * i))
def y_clr():
    if not opt("ypc", 1): y_pclr()
    l3 = e.newlabel("L_c")
    e("s_cmp_eq_u32 s%d, 0" % sISD)
    e("s_cbranch_scc1 %s" % l3)
    e("s_cmp_gt_u32 s%d, 2" % sW)
    e("s_cbranch_scc1 %s" % l3)
    e("s_mul_i32 s%d, s%d, 2560" % (sT0, sRD))
    e("s_add_u32 s%d, s%d, %d" % (sT0, sT0, OP))
    e("v_lshlrev_b32 v%d, 4, v0" % vA3)
    e("v_cmp_gt_u32 vcc, 160, v0")
    e("s_mov_b64 exec, vcc")
    e("buffer_store_dwordx4 %s, v%d, %s, s%d offen sc1" % (vr(vCL, 4), vA3, srd(S_WS), sT0))
    setexec(-1)
    e(l3 + ":")
if opt("yord", 0):
    y_clr()
    e("s_waitcnt vmcnt(0)")
    for _ in range(opt("ydel", 0)): e("s_sleep 16")
    y_dma()
else:
    for _ in range(opt("ydel", 0)): e("s_sleep 16")
    y_dma()
    y_clr()
vFr = 43
e("v_mul_u32_u24 v%d, %d, v%d" % (vFr, RS, vN))
e("v_lshl_add_u32 v%d, v%d, 4, v%d" % (vFr, vG, vFr))
e("s_mul_i32 s%d, s%d, %d" % (sT0, sW, 16 * RS))
e("s_add_u32 s%d, s%d, %d" % (sT0, sT0, L_CK))
e("v_add_u32 v%d, s%d, v%d" % (vA1, sT0, vFr))
lr = e.newlabel("L_r")
e("s_cmp_lg_u32 s%d, 0" % sW)
e("s_cbranch_scc1 %s" % lr)
flag_check()
e(lr + ":")
e("s_waitcnt vmcnt(0)")
stamp(1)
if opt("ypc", 1): y_pclr()
for ks in range(16):
    e("ds_read_b128 %s, v%d offset:%d" % (vr(vCA + 4 * ks, 4), vA1, 64 * ks))
    if ks == 7: e("s_waitcnt lgkmcnt(0)")
e("s_barrier")
stamp(2)
e("s_lshl_b32 s%d, s%d, 4" % (sT0, sHF))
e("s_lshl_b32 s%d, s%d, 1" % (sT1, sW))
e("s_add_u32 s%d, s%d, s%d" % (sT0, sT0, sT1))
e("s_lshl_b32 s%d, s%d, 10" % (sT2, sT0))
vQG = 240
for k in range(2):
    e("buffer_load_dwordx4 %s, v%d, %s, s%d offen offset:%d sc1" % (vr(vQG + 4 * k, 4), vL16, srd(S_WS), sT2, 1024 * k))
e("v_lshrrev_b32 v%d, 2, v%d" % (vA1, vN))
e("v_lshl_add_u32 v%d, v%d, 3, v%d" % (vA1, vG, vA1))
e("v_mul_u32_u24 v%d, %d, v%d" % (vA1, RS, vA1))
e("v_and_b32 v%d, 3, v%d" % (vA3, vN))
e("v_lshl_add_u32 v%d, v%d, 3, v%d" % (vA1, vA3, vA1))
e("s_lshl_b32 s%d, s%d, 7" % (sT0, sW))
e("s_add_u32 s%d, s%d, %d" % (sT0, sT0, L_CK))
e("v_add_u32 v%d, s%d, v%d" % (vA1, sT0, vA1))
e("v_add_u32 v%d, %d, v%d" % (vA2, 64 * RS, vA1))
e("s_waitcnt lgkmcnt(0)")
cnt = 0
for t in range(4):
    for kk in range(4):
        for u in range(2):
            e("ds_read_b64_tr_b16 %s, v%d offset:%d" % (vr(vCB + 16 * t + 4 * kk + 2 * u, 2), vA1 if kk < 2 else vA2, (32 * (kk & 1) + 4 * u) * RS + 32 * t))
            cnt += 1
            if cnt % 8 == 0: e("s_waitcnt lgkmcnt(0)")
vQSw, vQSr, vMXa, vPw, vPr, vPo = 240 - 16 + 16, 0, 0, 0, 0, 0
vQSw, vQSr, vMXa, vPw, vPr, vPo = vT + 20, vT + 21, vT + 22, vT + 23, vT + 24, vT + 25
e("s_mul_i32 s%d, s%d, %d" % (sT0, sW, 2 * RS))
e("s_add_u32 s%d, s%d, %d" % (sT0, sT0, L_QS))
e("v_add_u32 v%d, s%d, v%d" % (vQSw, sT0, vL16))
e("v_add_u32 v%d, %d, v%d" % (vQSr, L_QS, vFr))
e("v_lshlrev_b32 v%d, 5, v%d" % (vMXa, vN))
e("v_mul_u32_u24 v%d, %d, v%d" % (vPr, PRS, vN))
e("v_lshl_add_u32 v%d, v%d, 3, v%d" % (vPw, vG, vPr))
e("s_lshl_b32 s%d, s%d, 5" % (sT0, sW))
e("v_add_u32 v%d, s%d, v%d" % (vPw, sT0, vPw))
e("v_lshl_add_u32 v%d, v%d, 4, v%d" % (vPr, vG, vPr))
e("v_lshlrev_b32 v%d, 12, v%d" % (vPo, vG))
e("v_lshl_add_u32 v%d, v%d, 3, v%d" % (vPo, vN, vPo))
e("s_lshl_b32 s%d, s%d, 2" % (sT4, sW))
e("v_add_u32 v%d, s%d, v%d" % (vT + 26, sT4, vMXa))
e("v_lshlrev_b32 v%d, 7, v%d" % (vT + 27, vN))
e("v_lshl_add_u32 v%d, v%d, 2, v%d" % (vT + 27, vG, vT + 27))
e("s_lshl_b32 s%d, s%d, 4" % (sT4, sW))
e("v_add_u32 v%d, s%d, v%d" % (vT + 27, sT4, vT + 27))
e("s_lshl_b32 s%d, s%d, 4" % (sT0, sHF))
e("s_lshl_b32 s%d, s%d, 1" % (sT1, sW))
e("s_add_u32 s%d, s%d, s%d" % (sT0, sT0, sT1))
e("s_lshl_b32 s%d, s%d, 10" % (sT2, sT0))
NH2 = opt("nh2", 4)
e("s_lshl_b32 s%d, s%d, 8" % (sT0, sT0))
e("s_add_u32 s%d, s%d, %d" % (sT0, sT0, EWA))
e("s_and_b32 s%d, s%d, 7" % (sT1, sKS))
hint_addr(sT1, 8 // NH2 if NH2 > 1 else 1, 8, vA3)
lq = e.newlabel("L_qok")
e("s_waitcnt vmcnt(0)")
e("v_max3_u32 v%d, v%d, v%d, v%d" % (vT, vQG, vQG + 1, vQG + 2))
e("v_max3_u32 v%d, v%d, v%d, v%d" % (vT, vT, vQG + 3, vQG + 4))
e("v_max3_u32 v%d, v%d, v%d, v%d" % (vT, vT, vQG + 5, vQG + 6))
e("v_max_u32 v%d, v%d, v%d" % (vT, vT, vQG + 7))
e("v_cmp_eq_u32 vcc, -1, v%d" % vT)
e("s_cbranch_vccz %s" % lq)
poll([("buffer_load_dword v%d, v%d, %s, s%d offen sc1" % (vGQ, vA3, srd(S_WS), sT0), vGQ, 1)], sleep=opt("sl2", 3), init_masks=["0x%x" % ((1 << NH2) - 1)])
stamp(3)
poll([("buffer_load_dwordx4 %s, v%d, %s, s%d offen offset:%d sc1" % (vr(vQG + 4 * k, 4), vL16, srd(S_WS), sT2, 1024 * k), vQG + 4 * k, 4) for k in range(2)], sleep=1)
e(lq + ":")
stamp(4)
for k in range(2):
    e("ds_write_b128 v%d, %s offset:%d" % (vQSw, vr(vQG + 4 * k, 4), RS * k))
e("s_waitcnt lgkmcnt(0)")
e("s_barrier")
lmk = e.newlabel("L_mk")
e("s_cmp_lg_u32 s%d, 7" % sW)
e("s_cbranch_scc1 %s" % lmk)
e("s_lshl_b32 s%d, s%d, 7" % (sT0, sYI))
e("s_add_u32 s%d, s%d, %d" % (sT0, sT0, STAT))
e("v_lshlrev_b32 v%d, 3, v%d" % (vA1, vN))
e("v_mov_b32 v%d, 0" % (vT + 8))
e("v_mov_b32 v%d, -1.0" % (vT + 9))
setexec(0xffff)
e("buffer_store_dwordx2 %s, v%d, %s, s%d offen sc1" % (vr(vT + 8, 2), vA1, srd(S_WS), sT0))
setexec(-1)
e("s_lshl_b32 s%d, s%d, 6" % (sT0, sYI))
e("s_add_u32 s%d, s%d, %d" % (sT0, sT0, EWB))
store1(sT0)
e(lmk + ":")
L_W2 = L_W1 + 43008
if opt("w2e", 0):
    lwe = e.newlabel("L_w2e")
    e("s_cmp_eq_u32 s%d, 0" % sISD)
    e("s_cbranch_scc1 %s" % lwe)
    e("s_mul_i32 s%d, s%d, 5120" % (sF + 1, sW))
    e("s_mul_i32 s%d, s%d, 40960" % (sF, sRD))
    e("s_add_u32 s%d, s%d, s%d" % (sF, sF, sF + 1))
    e("s_add_u32 s%d, s%d, %d" % (sF + 1, sF + 1, L_W2))
    for k in range(5):
        e("s_mov_b32 m0, s%d" % (sF + 1))
        e("buffer_load_dwordx4 v%d, %s, s%d offen nt lds" % (vL16, srd(S_W2), sF))
        if k < 4:
            e("s_add_u32 s%d, s%d, 1024" % (sF, sF))
            e("s_add_u32 s%d, s%d, 1024" % (sF + 1, sF + 1))
    e(lwe + ":")
sacc = vT
for half in range(2):
    for k in range(8):
        e("ds_read_b128 %s, v%d offset:%d" % (vr(vGQ + 4 * k, 4), vQSr, 64 * (8 * half + k)))
    for k in range(8):
        ks = 8 * half + k
        e("s_waitcnt lgkmcnt(%d)" % (7 - k))
        e("v_mfma_f32_16x16x32_bf16 %s, %s, %s, %s" % (vr(sacc, 4), vr(vCA + 4 * ks, 4), vr(vGQ + 4 * k, 4), "0" if ks == 0 else vr(sacc, 4)))
if opt('mk', 0) == 0:
    lh1 = e.newlabel("L_h1")
    e("s_cmp_lg_u32 s%d, 6" % sW)
    e("s_cbranch_scc1 %s" % lh1)
    e("s_lshl_b32 s%d, s%d, 6" % (sT0, sYI))
    e("s_add_u32 s%d, s%d, %d" % (sT0, sT0, EWB + 32))
    store1(sT0)
    e(lh1 + ":")
e("s_mov_b32 s%d, 0x3db504f3" % sT0)
e("v_cvt_pk_bf16_f32 v%d, v%d, v%d" % (vT + 4, sacc, sacc + 1))
e("v_cvt_pk_bf16_f32 v%d, v%d, v%d" % (vT + 5, sacc + 2, sacc + 3))
unpack(sacc, vT + 4, 2)
for i in range(4): e("v_mul_f32 v%d, s%d, v%d" % (sacc + i, sT0, sacc + i))
e("v_cvt_pk_bf16_f32 v%d, v%d, v%d" % (vT + 4, sacc, sacc + 1))
e("v_cvt_pk_bf16_f32 v%d, v%d, v%d" % (vT + 5, sacc + 2, sacc + 3))
unpack(sacc, vT + 4, 2)
mx = vT + 4
e("v_max3_f32 v%d, v%d, v%d, v%d" % (mx, sacc, sacc + 1, sacc + 2))
e("v_max_f32 v%d, v%d, v%d" % (mx, mx, sacc + 3))
allred_g(mx, vT + 5, "v_max_f32")
e("ds_write_b32 v%d, v%d offset:%d" % (vT + 26, mx, L_MX))
if opt('mk', 0) == 1:
    lh1 = e.newlabel("L_h1")
    e("s_cmp_lg_u32 s%d, 6" % sW)
    e("s_cbranch_scc1 %s" % lh1)
    e("s_lshl_b32 s%d, s%d, 6" % (sT0, sYI))
    e("s_add_u32 s%d, s%d, %d" % (sT0, sT0, EWB + 32))
    store1(sT0)
    e(lh1 + ":")
e("s_waitcnt lgkmcnt(0)")
e("s_barrier")
stamp(5)
e("ds_read_b128 %s, v%d offset:%d" % (vr(vT + 8, 4), vMXa, L_MX))
e("ds_read_b128 %s, v%d offset:%d" % (vr(vT + 12, 4), vMXa, L_MX + 16))
e("s_waitcnt lgkmcnt(0)")
e("v_max3_f32 v%d, v%d, v%d, v%d" % (mx, vT + 8, vT + 9, vT + 10))
e("v_max3_f32 v%d, v%d, v%d, v%d" % (vT + 5, vT + 11, vT + 12, vT + 13))
e("v_max3_f32 v%d, v%d, v%d, v%d" % (mx, mx, vT + 14, vT + 15))
e("v_max_f32 v%d, v%d, v%d" % (mx, mx, vT + 5))
e("v_mul_f32 v%d, s%d, v%d" % (vT + 6, sL2E, mx))
for i in range(4): e("v_fma_f32 v%d, v%d, s%d, -v%d" % (sacc + i, sacc + i, sL2E, vT + 6))
for i in range(4): e("v_exp_f32 v%d, v%d" % (sacc + i, sacc + i))
e("v_cvt_pk_bf16_f32 v%d, v%d, v%d" % (vT + 8, sacc, sacc + 1))
e("v_cvt_pk_bf16_f32 v%d, v%d, v%d" % (vT + 9, sacc + 2, sacc + 3))
e("ds_write_b64 v%d, %s offset:%d" % (vPw, vr(vT + 8, 2), L_P))
e("v_add_f32 v%d, v%d, v%d" % (sacc, sacc, sacc + 1))
e("v_add_f32 v%d, v%d, v%d" % (sacc + 2, sacc + 2, sacc + 3))
e("v_add_f32 v%d, v%d, v%d" % (sacc, sacc, sacc + 2))
e("ds_write_b32 v%d, v%d offset:%d" % (vT + 27, sacc, L_SUM))
e("s_waitcnt lgkmcnt(0)")
e("s_barrier")
for kk in range(4):
    e("ds_read_b128 %s, v%d offset:%d" % (vr(vP + 4 * kk, 4), vPr, L_P + 64 * kk))
ls_ = e.newlabel("L_st")
e("s_cmp_lg_u32 s%d, 7" % sW)
e("s_cbranch_scc1 %s" % ls_)
e("v_lshlrev_b32 v%d, 7, v%d" % (vA1, vN))
e("v_lshl_add_u32 v%d, v%d, 5, v%d" % (vA1, vG, vA1))
e("ds_read_b128 %s, v%d offset:%d" % (vr(vT + 8, 4), vA1, L_SUM))
e("ds_read_b128 %s, v%d offset:%d" % (vr(vT + 12, 4), vA1, L_SUM + 16))
e("s_lshl_b32 s%d, s%d, 7" % (sT0, sYI))
e("s_add_u32 s%d, s%d, %d" % (sT0, sT0, STAT))
e("v_lshlrev_b32 v%d, 3, v%d" % (vA1, vN))
e("s_waitcnt lgkmcnt(0)")
for st in (4, 2, 1):
    for i in range(st): e("v_add_f32 v%d, v%d, v%d" % (vT + 8 + i, vT + 8 + i, vT + 8 + i + st))
allred_g(vT + 8, vT + 9)
e("v_min_u32 v%d, -2, v%d" % (mx, mx))
e("v_and_b32 v%d, 0x7fffffff, v%d" % (mx + 1, vT + 8))
setexec(0xffff)
e("buffer_store_dwordx2 %s, v%d, %s, s%d offen sc1" % (vr(mx, 2), vA1, srd(S_WS), sT0))
setexec(-1)
e(ls_ + ":")
e("s_lshl_b32 s%d, s%d, 14" % (sT0, sYI))
e("s_lshl_b32 s%d, s%d, 7" % (sT1, sW))
e("s_add_u32 s%d, s%d, s%d" % (sT0, sT0, sT1))
e("s_add_u32 s%d, s%d, %d" % (sT0, sT0, PART))
for kk in range(4):
    e("s_waitcnt lgkmcnt(%d)" % (3 - kk))
    for t in range(4):
        a = vACC + 4 * t
        e("v_mfma_f32_16x16x32_bf16 %s, %s, %s, %s" % (vr(a, 4), vr(vP + 4 * kk, 4), vr(vCB + 16 * t + 4 * kk, 4), "0" if kk == 0 else vr(a, 4)))
for i in range(4):
    o = vT + 8 + 2 * i
    e("v_cvt_pk_bf16_f32 v%d, v%d, v%d" % (o, vACC + i, vACC + 4 + i))
    e("v_cvt_pk_bf16_f32 v%d, v%d, v%d" % (o + 1, vACC + 8 + i, vACC + 12 + i))
    e("v_min_u32 v%d, -2, v%d" % (o, o))
    e("v_min_u32 v%d, -2, v%d" % (o + 1, o + 1))
    e("buffer_store_dwordx2 %s, v%d, %s, s%d offen offset:%d sc1" % (vr(o, 2), vPo, srd(S_WS), sT0, 1024 * i))
stamp(6)
e("s_cmp_eq_u32 s%d, 0" % sISD)
e("s_cbranch_scc1 L_fin")
vW2, vW2p, vB1, vXD, vGH, vH2 = 48, 80, 48, 112, 116, 140
if opt("dack", 0): e("s_waitcnt vmcnt(0)")
e("s_barrier")
L_W2 = L_W1 + 43008
DD = opt("dd", 10)
e("v_lshrrev_b32 v%d, 2, v%d" % (vA0, vLANE))
e("v_mul_u32_u24 v%d, 3456, v%d" % (vA0, vA0))
e("v_and_b32 v%d, 3, v%d" % (vA1, vLANE))
e("v_lshl_add_u32 v%d, v%d, 4, v%d" % (vA0, vA1, vA0))
e("s_mul_i32 s%d, s%d, %d" % (sT0, sW, 80 * 3456))
e("s_lshl_b32 s%d, s%d, 6" % (sT1, sRD))
e("s_add_u32 s%d, s%d, s%d" % (sT0, sT0, sT1))
e("s_mul_i32 s%d, s%d, 5120" % (sT2, sW))
e("s_mul_i32 s%d, s%d, 40960" % (sT1, sRD))
e("s_add_u32 s%d, s%d, s%d" % (sT1, sT1, sT2))
e("s_add_u32 s%d, s%d, %d" % (sT3, sT2, L_W2))
e("s_add_u32 s%d, s%d, %d" % (sT2, sT2, L_W1))
n_ = 0
for k in range(5):
    if n_ >= DD: e("s_waitcnt vmcnt(%d)" % (DD - 1))
    e("s_mov_b32 m0, s%d" % sT2)
    e("buffer_load_dwordx4 v%d, %s, s%d offen%s lds" % (vA0, srd(S_W1), sT0, " nt" if opt("nt1", 1) else "")); n_ += 1
    if not opt("w2e", 0):
        if n_ >= DD: e("s_waitcnt vmcnt(%d)" % (DD - 1))
        e("s_mov_b32 m0, s%d" % sT3)
        e("buffer_load_dwordx4 v%d, %s, s%d offen nt lds" % (vL16, srd(S_W2), sT1)); n_ += 1
    if k < 4:
        e("s_add_u32 s%d, s%d, %d" % (sT0, sT0, 16 * 3456))
        e("s_add_u32 s%d, s%d, 1024" % (sT2, sT2))
        e("s_add_u32 s%d, s%d, 1024" % (sT1, sT1))
        e("s_add_u32 s%d, s%d, 1024" % (sT3, sT3))
lw2 = e.newlabel("L_w2")
e("v_lshlrev_b32 v%d, 2, v0" % vA0)
e("s_cmp_ge_u32 s%d, 5" % sW)
e("s_cbranch_scc1 %s" % lw2)
e("buffer_load_dword v%d, v%d, %s, 0 offen" % (vXD, vA0, srd(S_X)))
e("v_mov_b32 v%d, 0x3f803f80" % vA1)
e("ds_write_b32 v%d, v%d offset:%d" % (vA0, vA1, L_ONES))
e(lw2 + ":")
lo = e.newlabel("L_oh")
e("s_cmp_lg_u32 s%d, 7" % sW)
e("s_cbranch_scc1 %s" % lo)
e("v_lshlrev_b32 v%d, 8, v%d" % (vA1, vLANE))
e("s_xor_b32 s%d, s%d, 1" % (sT0, sHF))
e("s_lshl_b32 s%d, s%d, 14" % (sT0, sT0))
poll([("buffer_load_dword v%d, v%d, %s, s%d offen sc1" % (vGH, vA1, srd(S_WS), sT0), vGH, 1)], sleep=8, depth=1)
e(lo + ":")
e("s_waitcnt vmcnt(0) lgkmcnt(0)")
e("s_barrier")
lp5 = e.newlabel("L_p5"); lpd = e.newlabel("L_pd")
e("s_cmp_ge_u32 s%d, 5" % sW)
e("s_cbranch_scc1 %s" % lp5)
e("v_add_u32 v%d, %d, v%d" % (vA1, L_W2, vA0))
for r in range(32):
    e("ds_read_b32 v%d, v%d offset:%d" % (vW2 + r, vA1, 1280 * r))
    if r % 8 == 7: e("s_waitcnt lgkmcnt(0)")
e("s_mov_b32 s%d, 0x05040100" % sT0)
e("s_mov_b32 s%d, 0x07060302" % sT1)
for j in range(16):
    e("v_perm_b32 v%d, v%d, v%d, s%d" % (vW2p + 2 * j, vW2 + 2 * j + 1, vW2 + 2 * j, sT0))
    e("v_perm_b32 v%d, v%d, v%d, s%d" % (vW2p + 2 * j + 1, vW2 + 2 * j + 1, vW2 + 2 * j, sT1))
e("v_and_b32 v%d, 0xffff0000, v%d" % (vXD + 1, vXD))
e("v_lshlrev_b32 v%d, 16, v%d" % (vXD, vXD))
e("v_mov_b32 v%d, 0x3f80" % (vXD + 2))
e("v_mov_b32 v%d, 1.0" % (vXD + 3))
e("s_branch %s" % lpd)
e(lp5 + ":")
e("v_lshrrev_b32 v%d, 2, v%d" % (vA1, vN))
e("v_lshl_add_u32 v%d, v%d, 3, v%d" % (vA1, vG, vA1))
e("v_lshlrev_b32 v%d, 6, v%d" % (vA1, vA1))
e("v_and_b32 v%d, 3, v%d" % (vA2, vN))
e("v_lshl_add_u32 v%d, v%d, 3, v%d" % (vA1, vA2, vA1))
e("s_sub_u32 s%d, s%d, 5" % (sT0, sW))
e("s_mul_i32 s%d, s%d, 14336" % (sT1, sT0))
e("v_add_u32 v%d, s%d, v%d" % (vA1, sT1, vA1))
for j in range(7):
    for t in range(2):
        for u in range(2):
            e("ds_read_b64_tr_b16 %s, v%d offset:%d" % (vr(vB1 + 8 * j + 4 * t + 2 * u, 2), vA1, L_W1 + 2048 * j + 256 * u + 32 * t))
    if j % 2 == 1: e("s_waitcnt lgkmcnt(0)")
e("v_lshlrev_b32 v%d, 4, v%d" % (vA2, vG))
e("s_mul_i32 s%d, s%d, 448" % (sT1, sT0))
e("v_add_u32 v%d, s%d, v%d" % (vA2, sT1, vA2))
e("v_add_u32 v%d, %d, v%d" % (vA3, L_ONES - L_HB, vA2))
e("v_cmp_eq_u32 vcc, 1, v%d" % vN)
e("v_cndmask_b32 v%d, v%d, v%d, vcc" % (vA2, vA2, vA3))
e("s_waitcnt lgkmcnt(0)")
e(lpd + ":")
stamp(7)
lh = e.newlabel("L_dh")
e("s_cmp_ge_u32 s%d, 5" % sW)
e("s_cbranch_scc1 %s" % lh)
NH5 = opt("nh5", 4)
e("s_lshl_b32 s%d, s%d, 1" % (sT0, sRD))
hint_addr(sT0, 120 // NH5 - 1 if NH5 > 1 else 1, 120, vA3)
e("s_mov_b32 s%d, %d" % (sT0, EWC))
poll([("buffer_load_dword v%d, v%d, %s, s%d offen sc1" % (vGH, vA3, srd(S_WS), sT0), vGH, 1)], sleep=opt("sl5", 4), init_masks=["0x%x" % ((1 << NH5) - 1)])
stamp(8)
e("v_lshlrev_b32 v%d, 3, v0" % vA1)
for k in range(3): e("s_mov_b32 s%d, %d" % (sF + k, HP + 5120 * k))
e("v_mov_b32 v%d, 0" % vH2)
e("v_mov_b32 v%d, 0" % (vH2 + 1))
if opt("d5", 0): e("s_sleep %d" % opt("d5", 0))
poll([("\n".join("buffer_load_dword v%d, v%d, %s, s%d offen offset:%d sc1" % (vGH + 4 * k + q, vA0, srd(S_WS), sF + k, 1280 * q) for q in range(3)) + "\nbuffer_load_dword v%d, v%d, %s, s%d offen offset:3840 sc1" % (vGH + 4 * k + 3, vA0, srd(S_WS), sF + k), vGH + 4 * k, 4) for k in range(3)], sleep=1)
stamp(9)
for k in range(12):
    e("v_dot2c_f32_bf16 v%d, v%d, v%d" % (vH2, vGH + k, vXD + 2))
    e("v_dot2c_f32_bf16 v%d, v%d, v%d" % (vH2 + 1, vGH + k, vXD + 3))
e("v_cvt_pk_bf16_f32 v%d, v%d, v%d" % (vT, vH2, vH2 + 1))
unpack(vH2, vT, 1)
e("v_pk_add_f32 %s, %s, %s" % (vr(vH2, 2), vr(vH2, 2), vr(vXD, 2)))
e("v_cvt_pk_bf16_f32 v%d, v%d, v%d" % (vT, vH2, vH2 + 1))
e("ds_write_b32 v%d, v%d offset:%d" % (vA0, vT, L_HB))
unpack(vH2, vT, 1)
e("s_waitcnt lgkmcnt(0)")
e(lh + ":")
e("s_barrier")
lm = e.newlabel("L_dm"); lj = e.newlabel("L_dj")
e("s_cmp_ge_u32 s%d, 5" % sW)
e("s_cbranch_scc1 %s" % lm)
e("ds_write_b64 v%d, %s offset:%d" % (vA1, vr(vH2, 2), L_HF))
e("v_add_f32 v%d, v%d, v%d" % (vT, vH2, vH2 + 1))
wave_red([vT], [sT0])
e("v_mov_b32 v%d, s%d" % (vT + 2, sT0))
e("v_mul_f32 v%d, 0x3c000000, v%d" % (vT + 2, vT + 2))
e("v_sub_f32 v%d, v%d, v%d" % (vT, vH2, vT + 2))
e("v_sub_f32 v%d, v%d, v%d" % (vT + 1, vH2 + 1, vT + 2))
e("v_mul_f32 v%d, v%d, v%d" % (vT, vT, vT))
e("v_fmac_f32 v%d, v%d, v%d" % (vT, vT + 1, vT + 1))
wave_red([vT], [sT0])
e("v_mov_b32 v%d, s%d" % (vT + 3, sT0))
e("s_lshl_b32 s%d, s%d, 3" % (sT0, sW))
e("v_mov_b32 v%d, s%d" % (vT + 4, sT0))
setexec(1)
e("ds_write_b64 v%d, %s offset:%d" % (vT + 4, vr(vT + 2, 2), L_ST))
setexec(-1)
e("s_branch %s" % lj)
e(lm + ":")
for j in range(7):
    e("ds_read_b128 %s, v%d offset:%d" % (vr(vGH + 4 * j, 4), vA2, L_HB + 64 * j))
lz = e.newlabel("L_z")
for j in range(7):
    if j == 6:
        e("s_cmp_eq_u32 s%d, 7" % sW)
        e("s_cbranch_scc1 %s" % lz)
    e("s_waitcnt lgkmcnt(%d)" % (6 - j))
    for t in range(2):
        e("v_mfma_f32_16x16x32_bf16 %s, %s, %s, %s" % (vr(vT + 4 * t, 4), vr(vGH + 4 * j, 4), vr(vB1 + 8 * j + 4 * t, 4), "0" if j == 0 else vr(vT + 4 * t, 4)))
e(lz + ":")
e("v_lshlrev_b32 v%d, 3, v%d" % (vA1, vN))
e("s_sub_u32 s%d, s%d, 5" % (sT0, sW))
e("s_lshl_b32 s%d, s%d, 8" % (sT0, sT0))
e("v_add_u32 v%d, s%d, v%d" % (vA1, sT0, vA1))
setexec(0xffff)
e("s_nop 2")
e("ds_write_b64 v%d, %s offset:%d" % (vA1, vr(vT, 2), L_RED))
e("ds_write_b64 v%d, %s offset:%d" % (vA1, vr(vT + 4, 2), L_RED + 128))
setexec(-1)
e(lj + ":")
e("s_waitcnt lgkmcnt(0)")
e("s_barrier")
stamp(10)
ld2 = e.newlabel("L_d2")
e("s_cmp_ge_u32 s%d, 5" % sW)
e("s_cbranch_scc1 %s" % ld2)
e("v_mov_b32 v%d, 0" % vA2)
e("v_and_b32 v%d, 31, v%d" % (vA3, vLANE))
e("v_lshlrev_b32 v%d, 3, v%d" % (vA3, vA3))
st_ = vT + 8
e("ds_read_b128 %s, v%d offset:%d" % (vr(st_, 4), vA2, L_ST))
e("ds_read_b128 %s, v%d offset:%d" % (vr(st_ + 4, 4), vA2, L_ST + 16))
e("ds_read_b64 %s, v%d offset:%d" % (vr(st_ + 8, 2), vA2, L_ST + 32))
for k in range(3):
    e("ds_read_b64 %s, v%d offset:%d" % (vr(vT + 20 + 2 * k, 2), vA3, L_RED + 256 * k))
e("s_waitcnt lgkmcnt(3)")
mean, m2 = vT, vT + 1
e("v_pk_add_f32 %s, %s, %s" % (vr(vT, 2), vr(st_, 2), vr(st_ + 2, 2)))
e("v_pk_add_f32 %s, %s, %s" % (vr(vT + 2, 2), vr(st_ + 4, 2), vr(st_ + 6, 2)))
e("v_pk_add_f32 %s, %s, %s" % (vr(vT, 2), vr(vT, 2), vr(st_ + 8, 2)))
e("v_pk_add_f32 %s, %s, %s" % (vr(vT, 2), vr(vT, 2), vr(vT + 2, 2)))
e("v_mul_f32 v%d, 0x3e4ccccd, v%d" % (mean, mean))
e("v_mov_b32 v%d, 0" % (vT + 2))
for k in range(5):
    e("v_sub_f32 v%d, v%d, v%d" % (vT + 3, st_ + 2 * k, mean))
    e("v_fmac_f32 v%d, v%d, v%d" % (vT + 2, vT + 3, vT + 3))
e("v_fmac_f32 v%d, 0x43000000, v%d" % (m2, vT + 2))
e("v_mul_f32 v%d, 0x3acccccd, v%d" % (m2, m2))
rbf(mean, mean); rbf(m2, m2)
e("v_add_f32 v%d, 0x3727c5ac, v%d" % (m2, m2))
rbf(m2, m2)
e("v_sqrt_f32 v%d, v%d" % (m2, m2))
rbf(m2, m2)
e("v_rcp_f32 v%d, v%d" % (m2, m2))
e("s_waitcnt lgkmcnt(0)")
e("v_pk_add_f32 %s, %s, %s" % (vr(vT + 20, 2), vr(vT + 20, 2), vr(vT + 22, 2)))
e("v_pk_add_f32 %s, %s, %s" % (vr(vT + 20, 2), vr(vT + 20, 2), vr(vT + 24, 2)))
e("v_fma_f32 v%d, -v%d, v%d, v%d" % (vT + 20, mean, vT + 21, vT + 20))
e("v_mul_f32 v%d, v%d, v%d" % (vT + 20, vT + 20, m2))
e("v_max_f32 v%d, 0, v%d" % (vT + 20, vT + 20))
e("v_mov_b32_dpp v%d, v%d row_shl:1 row_mask:0xf bank_mask:0xf bound_ctrl:0" % (vT + 21, vT + 20))
e("v_cvt_pk_bf16_f32 v%d, v%d, v%d" % (vT + 20, vT + 20, vT + 21))
sF2 = 60
for j in range(16):
    e("v_readlane_b32 s%d, v%d, %d" % (sF2 + j, vT + 20, 2 * j))
for k in range(4): e("v_mov_b32 v%d, 0" % (vT + 2 + k))
for j in range(16):
    for k in range(2):
        e("v_dot2c_f32_bf16 v%d, s%d, v%d" % (vT + 2 + k + 2 * (j & 1), sF2 + j, vW2p + 2 * j + k))
e("s_mul_i32 s%d, s%d, 2560" % (sT0, sRD))
e("s_add_u32 s%d, s%d, %d" % (sT0, sT0, OP))
e("v_pk_add_f32 %s, %s, %s" % (vr(vT + 2, 2), vr(vT + 2, 2), vr(vT + 4, 2)))
e("v_min_u32 v%d, -2, v%d" % (vT + 2, vT + 2))
e("v_min_u32 v%d, -2, v%d" % (vT + 3, vT + 3))
e("buffer_store_dwordx2 %s, v%d, %s, s%d offen sc1" % (vr(vT + 2, 2), vA1, srd(S_WS), sT0))
e(ld2 + ":")
stamp(11)
vGF, vGE = 144, 156
e("s_cmp_eq_u32 s%d, 0" % sFIN)
e("s_cbranch_scc1 L_fin")
e("v_lshrrev_b32 v%d, 3, v%d" % (vA1, vLANE))
e("v_mul_u32_u24 v%d, 2560, v%d" % (vA0, vA1))
e("v_and_b32 v%d, 7, v%d" % (vA3, vLANE))
e("v_lshl_add_u32 v%d, v%d, 4, v%d" % (vA0, vA3, vA0))
e("s_mul_i32 s%d, s%d, %d" % (sT0, sW, 8 * 2560))
e("s_lshl_b32 s%d, s%d, 6" % (sT1, sRD))
e("s_add_u32 s%d, s%d, s%d" % (sT0, sT0, sT1))
e("s_add_u32 s%d, s%d, %d" % (sT0, sT0, OP))
e("s_lshl_b32 s%d, s%d, 3" % (sT3, sW))
e("v_add_u32 v%d, s%d, v%d" % (vA1, sT3, vA1))
for k in range(4): e("v_mov_b32 v%d, 0" % (vGF + k))
e("v_cmp_gt_u32 vcc, 54, v%d" % vA1)
e("s_mov_b64 %s, vcc" % sp(sE0))
e("v_lshlrev_b32 v%d, 4, v%d" % (vA1, vA3))
e("v_lshl_add_u32 v%d, v%d, 2, v%d" % (vA1, vG, vA1))
e("s_lshl_b32 s%d, s%d, 7" % (sT3, sW))
e("v_add_u32 v%d, s%d, v%d" % (vA1, sT3, vA1))
if opt("d6", 4): e("s_sleep %d" % opt("d6", 4))
poll([("buffer_load_dwordx4 %s, v%d, %s, s%d offen sc1" % (vr(vGF, 4), vA0, srd(S_WS), sT0), vGF, 4)], sleep=1, init_masks=[sp(sE0)])
stamp(12)
for k in range(4): e("v_mov_b32 v%d, v%d" % (vT + k, vGF + k))
rs_4to1(vT)
e("v_add_f32_dpp v%d, v%d, v%d row_ror:8 row_mask:0xf bank_mask:0xf" % (vT + 1, vT, vT))
setexec(0x00ff00ff00ff00ff)
e("ds_write_b32 v%d, v%d offset:%d" % (vA1, vT + 1, L_RED + 1024))
setexec(-1)
e("s_waitcnt lgkmcnt(0)")
e("s_barrier")
e("s_cmp_lg_u32 s%d, 0" % sW)
e("s_cbranch_scc1 L_fin")
e("v_lshlrev_b32 v%d, 2, v%d" % (vA0, vLANE))
e("v_add_u32 v%d, s%d, v%d" % (vA1, sT1, vA0))
setexec(0xffffffff)
for i in range(8):
    e("ds_read_b32 v%d, v%d offset:%d" % (vGE + i, vA0, L_RED + 1024 + 128 * i))
e("ds_read_b32 v%d, v%d offset:%d" % (vGE + 8, vA1, L_HF))
e("s_waitcnt lgkmcnt(0)")
for st in (4, 2, 1):
    for i in range(st):
        e("v_add_f32 v%d, v%d, v%d" % (vGE + i, vGE + i, vGE + i + st))
rbf(vGE, vGE)
e("v_add_f32 v%d, v%d, v%d" % (vGE, vGE, vGE + 8))
e("v_cvt_pk_bf16_f32 v%d, v%d, v%d" % (vGE, vGE, vGE))
e("v_lshrrev_b32 v%d, 1, v%d" % (vA1, vA1))
e("buffer_store_short v%d, v%d, %s, 0 offen" % (vGE, vA1, srd(S_OUT)))
setexec(-1)
e("L_fin:")
if DIAG:
    stamp(13)
    if opt("dbg", 0):
        for wgid, base, idxs in ((128, 1, (2, 4, 6, 8, 9, 11, 13)), (0, 9, (1, 3, 4, 6, 7, 8, 10))):
            l = e.newlabel("L_dbg")
            e("s_cmp_lg_u32 s2, %d" % wgid)
            e("s_cbranch_scc1 %s" % l)
            e("s_cmp_lg_u32 s%d, 0" % sW)
            e("s_cbranch_scc1 %s" % l)
            e("v_readlane_b32 s%d, v%d, 0" % (sT0, vTSV))
            for k, ix in enumerate(idxs):
                e("v_readlane_b32 s%d, v%d, %d" % (sT1, vTSV, ix))
                e("s_sub_u32 s%d, s%d, s%d" % (sT1, sT1, sT0))
                e("v_mov_b32 v%d, s%d" % (vA1, sT1))
                e("v_mov_b32 v%d, %d" % (vA0, 4 * (base + k)))
                setexec(1)
                e("buffer_store_dword v%d, v%d, %s, 0 offen" % (vA1, vA0, srd(S_DBG)))
                setexec(-1)
            e(l + ":")
    e("v_lshlrev_b32 v%d, 2, v%d" % (vA0, vLANE))
    e("s_lshl_b32 s%d, s2, 3" % sT0)
    e("s_add_u32 s%d, s%d, s%d" % (sT0, sT0, sW))
    e("s_lshl_b32 s%d, s%d, 8" % (sT0, sT0))
    e("s_add_u32 s%d, s%d, %d" % (sT0, sT0, DIAGO))
    e("buffer_store_dword v%d, v%d, %s, s%d offen" % (vTSV, vA0, srd(S_WS), sT0))
e("L_end:")
e("s_endpgm")
e.raw(""".section .rodata,"a"
.p2align 6
.amdhsa_kernel %s
  .amdhsa_next_free_vgpr %d
  .amdhsa_next_free_sgpr 102
  .amdhsa_accum_offset %d
  .amdhsa_group_segment_fixed_size 0
  .amdhsa_kernarg_size 96
  .amdhsa_user_sgpr_count 2
  .amdhsa_user_sgpr_kernarg_segment_ptr 1
  .amdhsa_system_sgpr_workgroup_id_x 1
.end_amdhsa_kernel""" % (KN, NVGPR, NVGPR))
open(OUTF, "w").write(e.text())
```

```python
import sys
sys.path.insert(0, "gen")
from emit import Emitter

KN = "sequential_preLN__compressed_kv_cla__dense_activation_relu__decode_kernel"
DIAG = "--diag" in sys.argv
OUTF = [a for a in sys.argv[1:] if not a.startswith("--")][0]
def opt(name, default):
    for a in sys.argv:
        if a.startswith("--%s=" % name): return int(a.split("=")[1])
    return default
EWA_AT = opt("ewa", 16)
FLAG_AT = opt("flag", 8)

QA, CP, EWA, QP = 0x0, 0x8000, 0x10000, 0x12000
HP, EWC, STAT, OP, PART, DIAGO = 0x90000, 0x9E000, 0x24000, 0x30000, 0x100000, 0x800000
RDY = 0
EWB = 0x96000
NT = " nt" if opt("nt", 1) else ""
NTC = " nt" if opt("ntc", 1) else ""
WS_BYTES = 0x900000
RS = 1040
L_RED = 0
L_QL = 4096
L_LN = 8448
L_MX = 4096
L_SUM = 4608
L_P = 6656
PRS = 272
L_HB = 4096
L_ONES = 5376
L_ST = 6656
L_HF = 7168
L_QS = 12288
L_CK = L_QS + 16 * RS
LDS_BYTES = L_CK + 128 * RS
L_WUV = 12288
L_WO = L_WUV + 32768
L_W1 = 12288
SPIN = 200000

S_X, S_CKV, S_WQ, S_WUK, S_WUV, S_WO, S_W1, S_W2, S_OUT, S_DBG, S_WS = [4 + 4 * i for i in range(11)]
def srd(b): return "s[%d:%d]" % (b, b + 3)
sW, sA, sB, sCNT, sT0, sT1, sT2, sT3 = 48, 49, 50, 51, 52, 53, 54, 55
sH, sCQ, sXI = 56, 57, 58
sKS, sHF, sYI = 56, 57, 58
sRD, sISD, sFIN = 59, 88, 89
sM = [60, 62, 64, 66, 68, 70, 72, 74]
sTM, sOR = 76, 78
sF = 80
sE0, sE1 = 90, 92
sL2E, sT4 = 94, 95
sTS = 96
def sp(b): return "s[%d:%d]" % (b, b + 1)
e = Emitter()
def vr(b, n): return "v[%d:%d]" % (b, b + n - 1) if n > 1 else "v%d" % b

vLANE, vN, vG = 1, 2, 3
vA0, vA1, vA2, vA3 = 4, 5, 6, 7
vT = 8
vTSV = 40
vL16 = 41
vCL = 44
NVGPR = 248

LITE = "--lite" in sys.argv
def stamp(idx):
    if not DIAG: return
    if LITE and idx not in (0, 13): return
    e("s_memrealtime %s" % sp(sTS))
    e("s_waitcnt lgkmcnt(0)")
    e("v_writelane_b32 v%d, s%d, %d" % (vTSV, sTS, idx))
def setexec(m):
    if m == -1: e("s_mov_b64 exec, -1"); return
    e("s_mov_b32 exec_lo, 0x%x" % (m & 0xffffffff))
    e("s_mov_b32 exec_hi, 0x%x" % (m >> 32))
def rbf(dst, src):
    e("v_cvt_pk_bf16_f32 v%d, v%d, v%d" % (dst, src, src))
    e("v_lshlrev_b32 v%d, 16, v%d" % (dst, dst))
def wave_red(vs, sdsts, op="v_add_f32"):
    bc = " bound_ctrl:0" if op == "v_add_f32" else ""
    for sh in (1, 2, 4, 8):
        for v in vs: e("%s_dpp v%d, v%d, v%d row_shr:%d row_mask:0xf bank_mask:0xf%s" % (op, v, v, v, sh, bc))
    for v in vs: e("%s_dpp v%d, v%d, v%d row_bcast:15 row_mask:0xa bank_mask:0xf" % (op, v, v, v))
    for v in vs: e("%s_dpp v%d, v%d, v%d row_bcast:31 row_mask:0xc bank_mask:0xf" % (op, v, v, v))
    for v, s in zip(vs, sdsts): e("v_readlane_b32 s%d, v%d, 63" % (s, v))
def unpack(dst, src, n):
    for i in range(n):
        e("v_lshlrev_b32 v%d, 16, v%d" % (dst + 2 * i, src + i))
        e("v_and_b32 v%d, 0xffff0000, v%d" % (dst + 2 * i + 1, src + i))
PD = opt("pd", 1)
PG = opt("pg", 5)
def poll(loads, sleep=1, init_masks=None, depth=None):
    D = PD if depth is None else depth
    lp = e.newlabel("L_poll"); dn = e.newlabel("L_polld")
    nl = sum(t.count("buffer_load") for t, _, _ in loads)
    for k in range(len(loads)):
        e("s_mov_b64 %s, %s" % (sp(sM[k]), "-1" if not init_masks or init_masks[k] is None else init_masks[k]))
    e("s_mov_b32 s%d, 0" % sCNT)
    def issue():
        for k, (txt, d, n) in enumerate(loads):
            e("s_mov_b64 exec, %s" % sp(sM[k]))
            e(txt)
        e("s_mov_b64 exec, -1")
    for _ in range(D - 1):
        issue()
        e("s_sleep %d" % PG)
    e(lp + ":")
    issue()
    e("s_waitcnt vmcnt(%d)" % ((D - 1) * nl))
    for k, (txt, d, n) in enumerate(loads):
        t = vT + 31
        if n == -2:
            e("v_cmp_gt_i32 %s, 0, v%d" % (sp(sTM), d + 1))
        elif n == 1:
            e("v_cmp_eq_u32 %s, -1, v%d" % (sp(sTM), d))
        else:
            e("v_max_u32 v%d, v%d, v%d" % (t, d, d + 1))
            if n >= 4: e("v_max3_u32 v%d, v%d, v%d, v%d" % (t, t, d + 2, d + 3))
            e("v_cmp_eq_u32 %s, -1, v%d" % (sp(sTM), t))
        e("s_and_b64 %s, %s, %s" % (sp(sM[k]), sp(sM[k]), sp(sTM)))
        if k == 1: e("s_or_b64 %s, %s, %s" % (sp(sOR), sp(sM[0]), sp(sM[k])))
        elif k > 1: e("s_or_b64 %s, %s, %s" % (sp(sOR), sp(sOR), sp(sM[k])))
    e("s_cbranch_scc0 %s" % dn)
    e("s_add_u32 s%d, s%d, 1" % (sCNT, sCNT))
    e("s_cmp_gt_u32 s%d, %d" % (sCNT, SPIN))
    e("s_cbranch_scc1 %s" % dn)
    if sleep and D == 1: e("s_sleep %d" % sleep)
    e("s_branch %s" % lp)
    e(dn + ":")
def rs_8to2(b):
    for i in range(4): e("v_permlane32_swap_b32 v%d, v%d" % (b + i, b + 4 + i))
    for i in range(4): e("v_add_f32 v%d, v%d, v%d" % (b + i, b + i, b + 4 + i))
    for i in range(2): e("v_permlane16_swap_b32 v%d, v%d" % (b + i, b + 2 + i))
    for i in range(2): e("v_add_f32 v%d, v%d, v%d" % (b + i, b + i, b + 2 + i))
def rs_4to1(b):
    for i in range(2): e("v_permlane32_swap_b32 v%d, v%d" % (b + i, b + 2 + i))
    for i in range(2): e("v_add_f32 v%d, v%d, v%d" % (b + i, b + i, b + 2 + i))
    e("v_permlane16_swap_b32 v%d, v%d" % (b, b + 1))
    e("v_add_f32 v%d, v%d, v%d" % (b, b, b + 1))
def allred_g(v, tmp, op="v_add_f32"):
    e("v_mov_b32 v%d, v%d" % (tmp, v))
    e("v_permlane32_swap_b32 v%d, v%d" % (v, tmp))
    e("%s v%d, v%d, v%d" % (op, v, v, tmp))
    e("v_mov_b32 v%d, v%d" % (tmp, v))
    e("v_permlane16_swap_b32 v%d, v%d" % (v, tmp))
    e("%s v%d, v%d, v%d" % (op, v, v, tmp))
def hilo_write(v, vaddr):
    h, a, b = v + 2, v + 3, v + 4
    e("v_cvt_pk_bf16_f32 v%d, v%d, v%d" % (h, v, v + 1))
    e("v_lshlrev_b32 v%d, 16, v%d" % (a, h))
    e("v_and_b32 v%d, 0xffff0000, v%d" % (b, h))
    e("v_sub_f32 v%d, v%d, v%d" % (v, v, a))
    e("v_sub_f32 v%d, v%d, v%d" % (v + 1, v + 1, b))
    e("v_cvt_pk_bf16_f32 v%d, v%d, v%d" % (a, v, v + 1))
    e("ds_write2_b32 v%d, v%d, v%d offset0:0 offset1:68" % (vaddr, h, a))
def rows_gemv_publish(vB, vQLr, vOut, sOut):
    f = vT + 8
    for ks in range(4):
        e("ds_read_b128 %s, v%d offset:%d" % (vr(f + 4 * ks, 4), vQLr, 64 * ks))
    for ks in range(4):
        e("s_waitcnt lgkmcnt(%d)" % (3 - ks))
        e("v_mfma_f32_16x16x32_bf16 %s, %s, %s, %s" % (vr(vT, 4), vr(f + 4 * ks, 4), vr(vB + 4 * ks, 4), "0" if ks == 0 else vr(vT, 4)))
    e("v_add_f32 v%d, v%d, v%d" % (vT, vT, vT + 1))
    e("v_add_f32 v%d, v%d, v%d" % (vT + 2, vT + 2, vT + 3))
    e("v_add_f32 v%d, v%d, v%d" % (vT, vT, vT + 2))
    allred_g(vT, vT + 1)
    e("v_mov_b32_dpp v%d, v%d row_shl:1 row_mask:0xf bank_mask:0xf bound_ctrl:0" % (vT + 1, vT))
    e("v_cvt_pk_bf16_f32 v%d, v%d, v%d" % (vT, vT, vT + 1))
    e("v_min_u32 v%d, -2, v%d" % (vT, vT))
    setexec(0x5555)
    e("buffer_store_dword v%d, v%d, %s, s%d offen sc1" % (vT, vOut, srd(S_WS), sOut))
    setexec(-1)
def flag_check(first_loaded=None):
    lp = e.newlabel("L_fl"); ld = e.newlabel("L_fld"); l1 = e.newlabel("L_fl1")
    e("s_mov_b32 s%d, 0" % sCNT)
    if first_loaded is not None: e("s_branch %s" % l1)
    e(lp + ":")
    setexec(0xff)
    e("v_lshlrev_b32 v%d, 5, v%d" % (vA3, vLANE))
    e("buffer_load_dword v%d, v%d, %s, 0 offen sc1" % (vL16 + 1, vA3, srd(S_DBG)))
    setexec(-1)
    e(l1 + ":")
    e("s_waitcnt vmcnt(0)")
    setexec(0xff)
    e("v_cmp_eq_u32 vcc, 0, v%d" % (vL16 + 1))
    setexec(-1)
    e("s_cbranch_vccz %s" % ld)
    e("s_add_u32 s%d, s%d, 1" % (sCNT, sCNT))
    e("s_cmp_gt_u32 s%d, %d" % (sCNT, SPIN))
    e("s_cbranch_scc1 %s" % ld)
    e("s_sleep 8")
    e("s_branch %s" % lp)
    e(ld + ":")
def store1(soff, val=1):
    e("v_mov_b32 v%d, %d" % (vA3, val))
    e("v_mov_b32 v%d, 0" % (vT + 30))
    setexec(1)
    e("buffer_store_dword v%d, v%d, %s, s%d offen sc1" % (vA3, vT + 30, srd(S_WS), soff))
    setexec(-1)
def rdy_write():
    e("s_lshl_b32 s%d, s2, 6" % sT0)
    e("s_add_u32 s%d, s%d, %d" % (sT0, sT0, RDY))
    store1(sT0)
def rdy_check(dst):
    l = e.newlabel("L_rdy")
    e("s_cmp_ge_u32 s%d, 4" % sW)
    e("s_cbranch_scc1 %s" % l)
    e("v_lshlrev_b32 v%d, 6, v0" % vA0)
    e("s_mov_b32 s%d, %d" % (sT0, RDY))
    poll([("buffer_load_dword v%d, v%d, %s, s%d offen sc1" % (dst, vA0, srd(S_WS), sT0), dst, 1)], sleep=8)
    e(l + ":")
def hint_addr(sidx, step, N, vdst):
    e("v_mul_u32_u24 v%d, %d, v%d" % (vdst, step, vLANE))
    e("v_add_u32 v%d, s%d, v%d" % (vdst, sidx, vdst))
    e("v_subrev_u32 v%d, %d, v%d" % (vT + 30, N, vdst))
    e("v_min_u32 v%d, v%d, v%d" % (vdst, vdst, vT + 30))
    e("v_lshlrev_b32 v%d, 6, v%d" % (vdst, vdst))
def hint_wait(soff, dst, sleep):
    e("v_mov_b32 v%d, 0" % vA3)
    poll([("buffer_load_dword v%d, v%d, %s, s%d offen sc1" % (dst, vA3, srd(S_WS), soff), dst, 1)], sleep=sleep, init_masks=["1"])

e.raw("""; Single persistent kernel: pre-LN MLA decode attention (weight absorption) + pre-LN ReLU FFN.
; Generated by my own generator script (gen/gen18.py); 256 workgroups (1 per CU) x 8 waves.
;   X workgroups (128): LN1 -> q partials -> q -> q_abs = q.W_uk ; later softmax-merge + W_uv ; W_o partials.
;   Y workgroups (128): scores/softmax/P.c_kv on 128 keys x 16 heads (MFMA) ; later LN2 + W1/ReLU/W2 and final sum.
; Hand-offs go through d_ws with sc1 stores/loads; every dword is validated against a marker (0xFFFFFFFF) that
; is written in this launch first (bootstrap flags live in the zeroed d_debug). All spins are bounded.
; @launch grid=(256,1,1) block=(512,1,1) lds=%d
.amdgcn_target "amdgcn-amd-amdhsa--gfx950"
.text
.globl %s
.p2align 8
.type %s,@function
%s:""" % (LDS_BYTES, KN, KN, KN))
e("s_cmp_ge_u32 s2, 256")
e("s_cbranch_scc1 L_end")
e("s_load_dwordx16 s[64:79], s[0:1], 0")
if opt("xmap", 0) == 0:
    e("s_add_u32 s2, s2, 248")
    e("s_and_b32 s2, s2, 255")
else:
    e("s_bfe_u32 s48, s2, 0x10002")
    if opt("xmap", 0) == 2: e("s_xor_b32 s48, s48, 1")
    e("s_lshl_b32 s48, s48, 7")
    e("s_and_b32 s49, s2, 3")
    e("s_lshl_b32 s49, s49, 1")
    e("s_lshr_b32 s50, s2, 7")
    e("s_add_u32 s49, s49, s50")
    e("s_and_b32 s2, s2, 0x78")
    e("s_xor_b32 s2, s2, 0x78")
    e("s_add_u32 s2, s2, s49")
    e("s_add_u32 s2, s2, s48")
e("s_load_dwordx8 s[80:87], s[0:1], 64")
CPE = opt("cpe", 16)
if CPE:
    e("s_getpc_b64 s[%d:%d]" % (92, 93))
    e.raw("L_pcref0:")
    e.raw("    s_sub_u32 s92, s92, (L_pcref0 - %s)" % KN)
    e.raw("    s_subb_u32 s93, s93, 0")
    e("s_bfe_u32 s94, s2, 0x%x0003" % opt("cpb", 1))
    e("s_lshl_b32 s94, s94, 13")
    e("v_lshlrev_b32 v%d, 4, v0" % 4)
    e("v_add_u32 v4, s94, v4")
    e.raw("    v_min_u32 v4, ((L_end - %s - 16) & 0xfffffff0), v4" % KN)
    e("global_load_dwordx4 v[232:235], v4, s[92:93]")
if opt("dbl", 0):
    e("s_memrealtime s[98:99]")
if DIAG:
    e("v_mov_b32 v%d, 0" % vTSV)
    stamp(0)
e("v_and_b32 v%d, 63, v0" % vLANE)
e("v_lshrrev_b32 v%d, 6, v0" % vA0)
e("v_and_b32 v%d, 15, v0" % vN)
e("v_bfe_u32 v%d, v0, 4, 2" % vG)
e("v_readfirstlane_b32 s%d, v%d" % (sW, vA0))
for i in range(4): e("v_mov_b32 v%d, -1" % (vCL + i))
e("v_lshlrev_b32 v%d, 4, v%d" % (vL16, vLANE))
e("s_bfe_u32 s%d, s2, 0x40003" % sA)
e("s_and_b32 s%d, s2, 7" % sB)
e("s_mov_b32 s%d, 0x3fb8aa3b" % sL2E)
sizes = {S_X: 1280, S_CKV: 8388608, S_WQ: 5242880, S_WUK: 4194304, S_WUV: 4194304, S_WO: 5242880, S_W1: 2211840, S_W2: 2211840, S_OUT: 1280, S_DBG: 256, S_WS: WS_BYTES}
src = {S_X: 64, S_CKV: 66, S_WQ: 68, S_WUK: 70, S_WUV: 72, S_WO: 74, S_W1: 78, S_W2: 80, S_OUT: 82, S_DBG: 84, S_WS: 86}
ALLS = (S_WS, S_X, S_WQ, S_CKV, S_WUK, S_DBG, S_WUV, S_WO, S_W1, S_W2, S_OUT)
for b in ALLS:
    e("s_mov_b32 s%d, %d" % (b + 2, sizes[b]))
    e("s_mov_b32 s%d, 0x00020000" % (b + 3))
def srds():
    e("s_waitcnt lgkmcnt(0)")
    for b in ALLS:
        e("s_mov_b64 s[%d:%d], s[%d:%d]" % (b, b + 1, src[b], src[b] + 1))
e("s_cmp_ge_u32 s2, 128")
e("s_cbranch_scc1 L_Y")

vWQ, vWUK, vL1, vL0, vXF, vXR = 48, 148, 164, 170, 184, 190
vBUV, vBO, vG0 = 48, 64, 96
vQLw, vQLr, vOutA = 192, 193, 194
e("s_lshl_b32 s%d, s%d, 2" % (sH, sB))
e("s_lshr_b32 s%d, s%d, 2" % (sT0, sA))
e("s_add_u32 s%d, s%d, s%d" % (sH, sH, sT0))
e("s_and_b32 s%d, s%d, 3" % (sCQ, sA))
e("s_lshl_b32 s%d, s%d, 2" % (sXI, sH))
e("s_add_u32 s%d, s%d, s%d" % (sXI, sXI, sCQ))
sST, sKQ, sUS, sNU = 98, 99, 100, 101
e("s_mul_i32 s%d, s2, 205" % sKQ)
e("s_lshr_b32 s%d, s%d, 11" % (sKQ, sKQ))
e("s_mul_i32 s%d, s%d, 10" % (sT0, sKQ))
e("s_sub_u32 s%d, s2, s%d" % (sST, sT0))
e("s_mul_i32 s%d, s%d, 11" % (sUS, sKQ))
e("s_max_u32 s%d, s%d, 8" % (sT0, sKQ))
e("s_sub_u32 s%d, s%d, 8" % (sT0, sT0))
e("s_sub_u32 s%d, s%d, s%d" % (sUS, sUS, sT0))
e("s_cmp_lt_u32 s%d, 8" % sKQ)
e("s_cselect_b32 s%d, 11, 10" % sNU)
L_WUK = L_WO + 45056
vWQ, vL1, vL0, vXF, vXR = 48, 164, 176, 186, 191
vQF = vG0 + 32; vCF = vG0 + 32; vC2a, vC1a, vUKa = 200, 201, 196
vBUV, vBO = 144, 160
def frag_prep():
    r_, q_, x_ = vT + 26, vT + 27, vT + 28
    e("v_lshrrev_b32 v%d, 2, v%d" % (r_, vN))
    e("v_bfe_u32 v%d, v%d, 1, 1" % (q_, vN))
    e("v_lshl_or_b32 v%d, v%d, 2, v%d" % (x_, vG, r_))
    e("v_xor_b32 v%d, v%d, v%d" % (x_, x_, q_))
    e("s_lshl_b32 s%d, s%d, 1" % (sF + 5, sW))
    e("v_xor_b32 v%d, s%d, v%d" % (x_, sF + 5, x_))
    e("v_lshlrev_b32 v%d, 4, v%d" % (x_, x_))
    e("v_lshlrev_b32 v%d, 4, v%d" % (vC1a, r_))
    e("v_lshl_add_u32 v%d, v%d, 1, v%d" % (vC1a, vG, vC1a))
    e("v_lshl_add_u32 v%d, v%d, 8, v%d" % (vC1a, vC1a, x_))
    e("v_and_b32 v%d, 1, v%d" % (x_, vN))
    e("v_lshl_add_u32 v%d, v%d, 3, v%d" % (vC1a, x_, vC1a))
    for ks in range(4):
        for u in range(2):
            e("ds_read_b64_tr_b16 %s, v%d offset:%d" % (vr(vBUV + 4 * ks + 2 * u, 2), vC1a, L_WUV + (64 * (ks >> 1) + 8 * (ks & 1) + u) * 256))
    e("v_lshl_add_u32 v%d, v%d, 3, v%d" % (vC2a, vG, r_))
    e("v_lshlrev_b32 v%d, 7, v%d" % (vC2a, vC2a))
    e("v_lshl_add_u32 v%d, v%d, 3, v%d" % (vC2a, x_, vC2a))
    e("s_lshl_b32 s%d, s%d, 12" % (sF + 5, sW))
    e("s_add_u32 s%d, s%d, %d" % (sF + 5, sF + 5, L_WO))
    e("v_add_u32 v%d, s%d, v%d" % (vC2a, sF + 5, vC2a))
    e("v_lshrrev_b32 v%d, 1, v%d" % (r_, r_))
    e("v_lshl_or_b32 v%d, v%d, 1, v%d" % (r_, vG, r_))
    e("v_xor_b32 v%d, v%d, v%d" % (r_, r_, q_))
    e("s_waitcnt lgkmcnt(0)")
    for t in range(4):
        e("v_xor_b32 v%d, %d, v%d" % (x_, 2 * t, r_))
        e("v_lshl_add_u32 v%d, v%d, 4, v%d" % (x_, x_, vC2a))
        for j in range(2):
            for u in range(2):
                e("ds_read_b64_tr_b16 %s, v%d offset:%d" % (vr(vBO + 16 * j + 4 * t + 2 * u, 2), x_, 32768 * j + 512 * u))
        if t == 1: e("s_waitcnt lgkmcnt(0)")
    e("s_waitcnt lgkmcnt(0)")
lc1 = e.newlabel("L_c1"); lS = e.newlabel("L_S")
for k in range(16): e("v_mov_b32 v%d, 0" % (vQF + k))
e("v_lshlrev_b32 v%d, 4, v%d" % (vQLw, vN))
e("v_lshl_add_u32 v%d, v%d, 2, v%d" % (vQLw, vG, vQLw))
e("v_mul_u32_u24 v%d, 272, v%d" % (vQLr, vN))
e("v_lshl_add_u32 v%d, v%d, 4, v%d" % (vQLr, vG, vQLr))
e("v_add_u32 v%d, %d, v%d" % (vQLr, L_QL, vQLr))
e("v_lshlrev_b32 v%d, 1, v%d" % (vOutA, vN))
e("v_lshlrev_b32 v%d, 2, v%d" % (vA0, vLANE))
e("v_lshlrev_b32 v%d, 1, v%d" % (vA1, vLANE))
e("s_mul_i32 s%d, s%d, 160" % (sT0, sCQ))
e("s_mul_i32 s%d, s%d, 40" % (sT1, sW))
e("s_add_u32 s%d, s%d, s%d" % (sT0, sT0, sT1))
e("s_lshl_b32 s%d, s%d, 1" % (sT1, sT0))
e("v_lshlrev_b32 v%d, 13, v%d" % (vA2, vG))
e("v_lshl_add_u32 v%d, v%d, 4, v%d" % (vA2, vN, vA2))
e("s_lshl_b32 s%d, s%d, 13" % (sT0, sT0))
e("s_lshl_b32 s%d, s%d, 8" % (sT2, sH))
e("s_add_u32 s%d, s%d, s%d" % (sT0, sT0, sT2))
srds()
e("s_cmp_ge_u32 s%d, 4" % sW)
e("s_cbranch_scc1 %s" % lS)
for i in range(5):
    e("buffer_load_dword v%d, v%d, %s, 0 offen offset:%d" % (vXF + i, vA0, srd(S_X), 256 * i))
e("buffer_load_ushort v%d, v%d, %s, s%d offen" % (vXR, vA1, srd(S_X), sT1))
e("s_barrier")
for i in range(10):
    e("buffer_load_dwordx4 %s, v%d, %s, s%d offen%s" % (vr(vWQ + 4 * i, 4), vA2, srd(S_WQ), sT0, NT))
    if i < 9: e("s_add_u32 s%d, s%d, 32768" % (sT0, sT0))
e("s_barrier")
e("s_waitcnt vmcnt(10)")
stamp(1)
a, b_, vM, vS = vT + 10, vT + 11, vT + 12, vT + 13
e("v_readfirstlane_b32 s%d, v%d" % (sT0, vXF))
unpack(vT, vXF, 5)
e("s_lshl_b32 s%d, s%d, 16" % (sT0, sT0))
e("s_mov_b32 s%d, s%d" % (sT1, sT0))
for k in range(5):
    e("v_pk_add_f32 %s, %s, %s neg_lo:[0,1] neg_hi:[0,1]" % (vr(vT + 2 * k, 2), vr(vT + 2 * k, 2), sp(sT0)))
e("v_pk_add_f32 %s, %s, %s" % (vr(vT + 14, 2), vr(vT, 2), vr(vT + 2, 2)))
e("v_pk_mul_f32 %s, %s, %s" % (vr(vT + 16, 2), vr(vT, 2), vr(vT, 2)))
e("v_pk_fma_f32 %s, %s, %s, %s" % (vr(vT + 16, 2), vr(vT + 2, 2), vr(vT + 2, 2), vr(vT + 16, 2)))
for k in range(2, 5):
    e("v_pk_add_f32 %s, %s, %s" % (vr(vT + 14, 2), vr(vT + 14, 2), vr(vT + 2 * k, 2)))
    e("v_pk_fma_f32 %s, %s, %s, %s" % (vr(vT + 16, 2), vr(vT + 2 * k, 2), vr(vT + 2 * k, 2), vr(vT + 16, 2)))
e("v_add_f32 v%d, v%d, v%d" % (a, vT + 14, vT + 15))
e("v_add_f32 v%d, v%d, v%d" % (b_, vT + 16, vT + 17))
wave_red([a, b_], [sT2, sT3])
e("s_mov_b32 s%d, 0x3acccccd" % sT1)
e("v_mov_b32 v%d, s%d" % (vM, sT2))
e("v_mov_b32 v%d, s%d" % (vS, sT3))
e("v_mul_f32 v%d, s%d, v%d" % (vM, sT1, vM))
e("v_mul_f32 v%d, s%d, v%d" % (vS, sT1, vS))
e("v_fma_f32 v%d, -v%d, v%d, v%d" % (vS, vM, vM, vS))
e("v_max_f32 v%d, 0, v%d" % (vS, vS))
e("v_add_f32 v%d, s%d, v%d" % (vM, sT0, vM))
rbf(vM, vM); rbf(vS, vS)
e("v_add_f32 v%d, 0x3727c5ac, v%d" % (vS, vS))
rbf(vS, vS)
e("v_sqrt_f32 v%d, v%d" % (vS, vS))
rbf(vS, vS)
e("v_rcp_f32 v%d, v%d" % (vS + 1, vS))
v = vXR
e("v_lshlrev_b32 v%d, 16, v%d" % (v, v))
e("v_sub_f32 v%d, v%d, v%d" % (v, v, vM))
rbf(v, v)
e("v_mul_f32 v%d, v%d, v%d" % (b_, v, vS + 1))
e("v_fma_f32 v%d, -v%d, v%d, v%d" % (a, b_, vS, v))
e("v_fmac_f32 v%d, v%d, v%d" % (b_, a, vS + 1))
rbf(v, b_)
e("v_and_b32 v%d, 3, v%d" % (vA0, vLANE))
e("v_lshlrev_b32 v%d, 6, v%d" % (vA0, vA0))
e("v_and_b32 v%d, 0x3c, v%d" % (vA1, vLANE))
e("v_add_u32 v%d, v%d, v%d" % (vA0, vA0, vA1))
e("s_lshl_b32 s%d, s%d, 8" % (sT0, sW))
e("v_add_u32 v%d, s%d, v%d" % (vA0, sT0, vA0))
e("ds_write_b32 v%d, v%d offset:%d" % (vA0, vXR, L_LN))
e("v_lshlrev_b32 v%d, 6, v%d" % (vA1, vG))
e("v_add_u32 v%d, s%d, v%d" % (vA1, sT0, vA1))
e("s_waitcnt lgkmcnt(0)")
for k in range(3):
    e("ds_read_b128 %s, v%d offset:%d" % (vr(vL1 + 4 * k, 4), vA1, L_LN + 16 * k))
e("s_lshl_b32 s%d, s%d, 5" % (sF + 3, sB))
e("v_mov_b32 v%d, 0" % (vT + 20))
lf0 = e.newlabel("L_f0")
e("s_cmp_lg_u32 s%d, 0" % sW)
e("s_cbranch_scc1 %s" % lf0)
setexec(1)
e("buffer_load_dword v%d, v%d, %s, s%d offen sc1" % (vL16 + 1, vT + 20, srd(S_DBG), sF + 3))
setexec(-1)
e(lf0 + ":")
e("v_lshlrev_b32 v%d, 1, v%d" % (vA1, vQLw))
e("s_lshl_b32 s%d, s%d, 9" % (sT0, sW))
e("v_add_u32 v%d, s%d, v%d" % (vA1, sT0, vA1))
e("s_mul_i32 s%d, s%d, 544" % (sT0, sW))
e("s_add_u32 s%d, s%d, %d" % (sT0, sT0, L_QL))
e("v_add_u32 v%d, s%d, v%d" % (vQLw, sT0, vQLw))
e("v_lshlrev_b32 v%d, 3, v%d" % (vA2, vLANE))
e("v_lshlrev_b32 v%d, 2, v%d" % (vT + 29, vLANE))
e("s_lshl_b32 s%d, s%d, 13" % (sT0, sW))
e("s_add_u32 s%d, s%d, %d" % (sT0, sT0, L_WUK))
e("v_xor_b32 v%d, v%d, v%d" % (vA0, vN, vG))
for ks in range(4):
    e("v_xor_b32 v%d, %d, v%d" % (vUKa + ks, 4 * ks, vA0))
    e("v_lshlrev_b32 v%d, 4, v%d" % (vUKa + ks, vUKa + ks))
    e("v_lshl_add_u32 v%d, v%d, 8, v%d" % (vUKa + ks, vN, vUKa + ks))
    e("v_add_u32 v%d, s%d, v%d" % (vUKa + ks, sT0, vUKa + ks))
e("v_lshlrev_b32 v%d, 8, v%d" % (vA0, vN))
e("v_lshl_add_u32 v%d, v%d, 4, v%d" % (vA0, vG, vA0))
for k in range(8): e("v_mov_b32 v%d, 0" % (vT + k))
e("s_mov_b32 s%d, 0x00ff00ff" % sE0)
e("s_mov_b32 s%d, 0x00ff00ff" % (sE0 + 1))
e("s_lshl_b32 s%d, s%d, 9" % (sT2, sXI))
e("s_add_u32 s%d, s%d, %d" % (sT2, sT2, QP))
e("s_lshl_b32 s%d, s%d, 11" % (sT3, sH))
e("s_add_u32 s%d, s%d, %d" % (sT3, sT3, QP))
e("s_waitcnt lgkmcnt(0)")
for k in range(10): e("v_lshrrev_b32 v%d, 16, v%d" % (vL0 + k, vL1 + k))
stamp(2)
def a1(extra):
    for i in range(10):
        e("s_waitcnt vmcnt(%d)" % (9 - i + extra))
        for k in range(4):
            e("v_dot2c_f32_bf16 v%d, v%d, v%d" % (vT + 2 * k, vWQ + 4 * i + k, vL0 + i))
            e("v_dot2c_f32_bf16 v%d, v%d, v%d" % (vT + 2 * k + 1, vWQ + 4 * i + k, vL1 + i))
    e("s_nop 3")
la_ = e.newlabel("L_a1"); lb_ = e.newlabel("L_a1")
e("s_cmp_eq_u32 s%d, 0" % sW)
e("s_cbranch_scc1 %s" % la_)
a1(0)
e("s_branch %s" % lb_)
e(la_ + ":")
a1(1)
e(lb_ + ":")
rs_8to2(vT)
e("ds_write_b64 v%d, %s offset:%d" % (vA1, vr(vT, 2), L_RED))
lfo = e.newlabel("L_fo"); lfp = e.newlabel("L_fp"); lf1 = e.newlabel("L_f1")
e("s_mov_b32 s%d, 0" % sCNT)
e("s_cmp_lg_u32 s%d, 0" % sW)
e("s_cbranch_scc1 %s" % lfo)
setexec(1)
e("s_branch %s" % lf1)
e(lfp + ":")
setexec(1)
e("buffer_load_dword v%d, v%d, %s, s%d offen sc1" % (vL16 + 1, vT + 20, srd(S_DBG), sF + 3))
e(lf1 + ":")
e("s_waitcnt vmcnt(0)")
e("v_cmp_eq_u32 vcc, 0, v%d" % (vL16 + 1))
setexec(-1)
e("s_cbranch_vccz %s" % lfo)
e("s_add_u32 s%d, s%d, 1" % (sCNT, sCNT))
e("s_cmp_gt_u32 s%d, %d" % (sCNT, SPIN))
e("s_cbranch_scc1 %s" % lfo)
e("s_sleep 2")
e("s_branch %s" % lfp)
e(lfo + ":")
e("s_waitcnt lgkmcnt(0)")
e("s_barrier")
stamp(3)
lw = e.newlabel("L_a1w")
e("s_cmp_lg_u32 s%d, 0" % sW)
e("s_cbranch_scc1 %s" % lw)
for i in range(4):
    e("ds_read_b64 %s, v%d offset:%d" % (vr(vG0 + 2 * i, 2), vA2, L_RED + 512 * i))
e(lw + ":")
stamp(14)
if DIAG: e("v_writelane_b32 v%d, s%d, 20" % (vTSV, sCNT))
lw = e.newlabel("L_a1w")
e("s_cmp_lg_u32 s%d, 0" % sW)
e("s_cbranch_scc1 %s" % lw)
e("s_waitcnt lgkmcnt(0)")
v = vG0
e("v_pk_add_f32 %s, %s, %s" % (vr(v, 2), vr(v, 2), vr(v + 2, 2)))
e("v_pk_add_f32 %s, %s, %s" % (vr(v + 4, 2), vr(v + 4, 2), vr(v + 6, 2)))
e("v_pk_add_f32 %s, %s, %s" % (vr(v, 2), vr(v, 2), vr(v + 4, 2)))
e("v_min_u32 v%d, -2, v%d" % (v, v))
e("v_min_u32 v%d, -2, v%d" % (v + 1, v + 1))
e("buffer_store_dwordx2 %s, v%d, %s, s%d offen sc1" % (vr(v, 2), vA2, srd(S_WS), sT2))
e(lw + ":")
stamp(16)
if opt("d1", 4): e("s_sleep %d" % opt("d1", 4))
vQ8 = 100
e("s_lshl_b32 s%d, s%d, 8" % (sT0, sW))
e("v_add_u32 v%d, s%d, v%d" % (vT + 28, sT0, vT + 29))
e("v_lshlrev_b32 v%d, 4, v%d" % (vA0, vG))
e("v_add_u32 v%d, s%d, v%d" % (vA0, sT0, vA0))
poll([("buffer_load_dwordx2 %s, v%d, %s, s%d offen offset:%d sc1\nbuffer_load_dwordx2 %s, v%d, %s, s%d offen offset:%d sc1" % (vr(vQ8 + 4 * k, 2), vA2, srd(S_WS), sT3, 1024 * k, vr(vQ8 + 4 * k + 2, 2), vA2, srd(S_WS), sT3, 1024 * k + 512), vQ8 + 4 * k, 4) for k in range(2)], sleep=1)
stamp(15)
if DIAG: e("v_writelane_b32 v%d, s%d, 21" % (vTSV, sCNT))
e("v_pk_add_f32 %s, %s, %s" % (vr(vT, 2), vr(vQ8, 2), vr(vQ8 + 2, 2)))
e("v_pk_add_f32 %s, %s, %s" % (vr(vT + 2, 2), vr(vQ8 + 4, 2), vr(vQ8 + 6, 2)))
e("v_pk_add_f32 %s, %s, %s" % (vr(vT, 2), vr(vT, 2), vr(vT + 2, 2)))
e("v_cvt_pk_bf16_f32 v%d, v%d, v%d" % (vT, vT, vT + 1))
e("ds_write_b32 v%d, v%d offset:%d" % (vT + 28, vT, L_LN))
e("s_waitcnt lgkmcnt(0)")
vQA = 204
for ks in range(4):
    e("ds_read_b128 %s, v%d offset:%d" % (vr(vQA + 4 * ks, 4), vA0, L_LN + 64 * ks))
lr = e.newlabel("L_ew")
e("s_cmp_lg_u32 s%d, 1" % sW)
e("s_cbranch_scc1 %s" % lr)
e("s_lshl_b32 s%d, s%d, 6" % (sT0, sXI))
e("s_add_u32 s%d, s%d, %d" % (sT0, sT0, EWA))
store1(sT0)
e(lr + ":")
e("s_barrier")
vUK = 48
for t in range(2):
    for ks in range(4):
        e("ds_read_b128 %s, v%d offset:%d" % (vr(vUK + 16 * t + 4 * ks, 4), vUKa + ks, 4096 * t))
e("s_lshl_b32 s%d, s%d, 8" % (sT0, sXI))
e("s_lshl_b32 s%d, s%d, 6" % (sT1, sW))
e("s_add_u32 s%d, s%d, s%d" % (sT0, sT0, sT1))
e("v_lshlrev_b32 v%d, 1, v%d" % (vA1, vLANE))
for t in range(2):
    for ks in range(4):
        e("s_waitcnt lgkmcnt(%d)" % (7 - 4 * t - ks))
        e("v_mfma_f32_16x16x32_bf16 %s, %s, %s, %s" % (vr(vT + 4 * t, 4), vr(vQA + 4 * ks, 4), vr(vUK + 16 * t + 4 * ks, 4), "0" if ks == 0 else vr(vT + 4 * t, 4)))
e("v_mov_b32_dpp v%d, v%d quad_perm:[0,1,2,3] row_mask:0x2 bank_mask:0xf" % (vT, vT + 4))
e("v_mov_b32_dpp v%d, v%d row_shl:1 row_mask:0xf bank_mask:0xf bound_ctrl:0" % (vT + 1, vT))
e("v_cvt_pk_bf16_f32 v%d, v%d, v%d" % (vT, vT, vT + 1))
e("v_min_u32 v%d, -2, v%d" % (vT, vT))
setexec(0x55555555)
e("buffer_store_dword v%d, v%d, %s, s%d offen sc1" % (vT, vA1, srd(S_WS), sT0))
setexec(-1)
stamp(4)
e("s_barrier")
e("s_lshr_b32 s%d, s%d, 4" % (sT0, sH))
e("s_lshl_b32 s%d, s%d, 7" % (sT0, sT0))
e("s_and_b32 s%d, s%d, 15" % (sT1, sH))
e("s_lshl_b32 s%d, s%d, 3" % (sT1, sT1))
e("s_add_u32 s%d, s%d, s%d" % (sT0, sT0, sT1))
e("s_add_u32 s%d, s%d, %d" % (sT0, sT0, STAT))
e("s_lshl_b32 s%d, s%d, 12" % (sT1, sW))
e("s_add_u32 s%d, s%d, s%d" % (sT1, sT1, sT0))
e("v_lshlrev_b32 v%d, 8, v%d" % (vA1, vLANE))
e("v_lshlrev_b32 v%d, 15, v%d" % (vA2, vG))
e("v_lshl_add_u32 v%d, v%d, 4, v%d" % (vA2, vN, vA2))
e("s_lshl_b32 s%d, s%d, 19" % (sT2, sW))
e("s_lshl_b32 s%d, s%d, 8" % (sT3, sXI))
e("s_add_u32 s%d, s%d, s%d" % (sT2, sT2, sT3))
e("s_add_u32 s%d, s%d, %d" % (sT2, sT2, PART))
e("s_add_u32 s%d, s%d, 0x20000" % (sT3, sT2))
e("s_add_u32 s%d, s%d, 0x40000" % (sT4, sT2))
e("s_add_u32 s%d, s%d, 0x60000" % (sF, sT2))
e("s_lshl_b32 s%d, s%d, 6" % (sF + 1, sW))
e("v_lshlrev_b32 v%d, 2, v%d" % (vA0, vG))
e("v_add_u32 v%d, s%d, v%d" % (vA0, sF + 1, vA0))
vSo, vSa, vD = vG0, vG0 + 8, vG0 + 12
e("s_barrier")
frag_prep()
stamp(5)
NH3 = opt("nh3", 4)
e("s_and_b32 s%d, s%d, 15" % (sF + 2, sXI))
hint_addr(sF + 2, 16 // NH3 if NH3 > 1 else 1, 16, vA3)
e("v_lshlrev_b32 v%d, 1, v%d" % (vA3, vA3))
e("s_lshl_b32 s%d, s%d, 11" % (sF + 3, sW))
e("s_lshr_b32 s%d, s%d, 4" % (sF + 2, sH))
e("s_lshl_b32 s%d, s%d, 6" % (sF + 2, sF + 2))
e("s_add_u32 s%d, s%d, s%d" % (sF + 3, sF + 3, sF + 2))
e("s_add_u32 s%d, s%d, %d" % (sF + 3, sF + 3, EWB + 32))
poll([("buffer_load_dword v%d, v%d, %s, s%d offen offset:4 sc1" % (vSo, vA1, srd(S_WS), sT1), vSo, 1),
      ("buffer_load_dword v%d, v%d, %s, s%d offen sc1" % (vSo + 1, vA3, srd(S_WS), sF + 3), vSo + 1, 1)], sleep=opt("sl3", 3), init_masks=["0xffff", "0x%x" % ((1 << NH3) - 1)])
stamp(6)
if opt("d3", 0): e("s_sleep %d" % opt("d3", 0))
poll([("buffer_load_dwordx4 %s, v%d, %s, s%d offen sc1" % (vr(vD + 4 * i, 4), vA2, srd(S_WS), [sT2, sT3, sT4, sF][i]), vD + 4 * i, 4) for i in range(4)]
     + [("buffer_load_dwordx2 %s, v%d, %s, s%d offen sc1" % (vr(vSa, 2), vA1, srd(S_WS), sT0), vSa, -2)], sleep=opt("sl3b", 1))
stamp(7)
if DIAG: e("v_writelane_b32 v%d, s%d, 22" % (vTSV, sCNT))
e("v_mov_b32 v%d, v%d" % (vT + 8, vSa))
wave_red([vT + 8], [sT0], "v_max_f32")
e("v_mov_b32 v%d, s%d" % (vT + 9, sT0))
e("v_mul_f32 v%d, s%d, v%d" % (vT + 9, sL2E, vT + 9))
wv = vT + 12
e("v_fma_f32 v%d, v%d, s%d, -v%d" % (wv, vSa, sL2E, vT + 9))
e("v_exp_f32 v%d, v%d" % (wv, wv))
e("v_cvt_pk_bf16_f32 v%d, v%d, v%d" % (wv, wv, wv))
e("v_lshlrev_b32 v%d, 16, v%d" % (wv, wv))
for i in range(4):
    e("ds_bpermute_b32 v%d, v%d, v%d offset:%d" % (vSo + 2 * i + 1, vA0, wv, 16 * i))
e("v_mul_f32 v%d, v%d, v%d" % (wv + 1, wv, vSa + 1))
for k in range(8): e("v_mov_b32 v%d, 0" % (vT + k))
wave_red([wv + 1], [sT0])
for i in range(4):
    e("s_waitcnt lgkmcnt(%d)" % (3 - i))
    e("v_lshrrev_b32 v%d, 16, v%d" % (vSo + 2 * i, vSo + 2 * i + 1))
    for k in range(4):
        e("v_dot2c_f32_bf16 v%d, v%d, v%d" % (vT + 2 * k + 1, vD + 4 * i + k, vSo + 2 * i + 1))
    for k in range(4):
        e("v_dot2c_f32_bf16 v%d, v%d, v%d" % (vT + 2 * k, vD + 4 * i + k, vSo + 2 * i))
e("v_rcp_f32 v%d, s%d" % (vT + 8, sT0))
rs_8to2(vT)
e("v_mul_f32 v%d, v%d, v%d" % (vT, vT, vT + 8))
e("v_mul_f32 v%d, v%d, v%d" % (vT + 1, vT + 1, vT + 8))
hilo_write(vT, vQLw)
e("s_branch %s" % lc1)
e(lS + ":")
e("s_sub_u32 s%d, s%d, 4" % (sT3, sW))
if opt("xl", 0):
    lxl = e.newlabel("L_xl"); lx6 = e.newlabel("L_x6")
    e("s_cmp_lg_u32 s%d, 15" % sA)
    e("s_cbranch_scc1 %s" % lxl)
    e("s_lshl_b32 s%d, s%d, 13" % (sT2, sB))
    e("s_lshl_b32 s%d, s%d, 11" % (sT0, sT3))
    e("s_add_u32 s%d, s%d, s%d" % (sT2, sT2, sT0))
    e("s_add_u32 s%d, s%d, %d" % (sT2, sT2, QP))
    for k in range(2):
        e("buffer_store_dwordx4 %s, v%d, %s, s%d offen offset:%d sc1" % (vr(vCL, 4), vL16, srd(S_WS), sT2, 1024 * k))
    e("s_lshl_b32 s%d, s%d, 12" % (sT2, sB))
    e("s_lshl_b32 s%d, s%d, 10" % (sT0, sT3))
    e("s_add_u32 s%d, s%d, s%d" % (sT2, sT2, sT0))
    e("buffer_store_dwordx4 %s, v%d, %s, s%d offen sc1" % (vr(vCL, 4), vL16, srd(S_WS), sT2))
    e("s_add_u32 s%d, s%d, %d" % (sT2, sT2, CP))
    e("buffer_store_dwordx4 %s, v%d, %s, s%d offen sc1" % (vr(vCL, 4), vL16, srd(S_WS), sT2))
    e("s_cmp_ge_u32 s%d, 2" % sT3)
    e("s_cbranch_scc1 %s" % lx6)
    e("s_lshl_b32 s%d, s%d, 10" % (sT2, sB))
    e("s_mov_b32 s%d, %d" % (sT0, EWA))
    e("s_cmp_eq_u32 s%d, 1" % sT3)
    e("s_cselect_b32 s%d, %d, s%d" % (sT0, EWB, sT0))
    e("s_add_u32 s%d, s%d, s%d" % (sT2, sT2, sT0))
    e("buffer_store_dwordx4 %s, v%d, %s, s%d offen sc1" % (vr(vCL, 4), vL16, srd(S_WS), sT2))
    e(lx6 + ":")
    e("v_mov_b32 v%d, 0" % vA1)
    e("ds_write_b32 v%d, v%d offset:%d" % (vA1, vA1, L_QL))
    e("s_waitcnt lgkmcnt(0)")
    e(lxl + ":")
l1 = e.newlabel("L_c")
e("s_cmp_lg_u32 s%d, 4" % sW)
e("s_cbranch_scc1 %s" % l1)
e("s_lshl_b32 s%d, s2, 7" % sT0)
e("s_add_u32 s%d, s%d, %d" % (sT0, sT0, HP))
setexec(0xff)
e("buffer_store_dwordx4 %s, v%d, %s, s%d offen sc1" % (vr(vCL, 4), vL16, srd(S_WS), sT0))
e("s_lshl_b32 s%d, s2, 6" % sT0)
e("s_add_u32 s%d, s%d, %d" % (sT0, sT0, EWC))
setexec(0xf)
e("buffer_store_dwordx4 %s, v%d, %s, s%d offen sc1" % (vr(vCL, 4), vL16, srd(S_WS), sT0))
e("s_lshr_b32 s%d, s%d, 4" % (sT0, sH))
e("s_lshl_b32 s%d, s%d, 7" % (sT0, sT0))
e("s_and_b32 s%d, s%d, 15" % (sT1, sH))
e("s_lshl_b32 s%d, s%d, 3" % (sT1, sT1))
e("s_add_u32 s%d, s%d, s%d" % (sT0, sT0, sT1))
e("s_lshl_b32 s%d, s%d, 12" % (sT1, sCQ))
e("s_add_u32 s%d, s%d, s%d" % (sT0, sT0, sT1))
e("s_add_u32 s%d, s%d, %d" % (sT0, sT0, STAT))
setexec(0xffff)
e("v_lshlrev_b32 v%d, 8, v%d" % (vA0, vLANE))
e("buffer_store_dwordx2 %s, v%d, %s, s%d offen sc1" % (vr(vCL, 2), vA0, srd(S_WS), sT0))
setexec(-1)
e(l1 + ":")
e("s_lshl_b32 s%d, s%d, 7" % (sF, sCQ))
e("s_lshl_b32 s%d, s%d, 5" % (sT1, sT3))
e("s_add_u32 s%d, s%d, s%d" % (sF, sF, sT1))
e("s_lshl_b32 s%d, s%d, 13" % (sF, sF))
e("s_lshl_b32 s%d, s%d, 8" % (sT1, sH))
e("s_add_u32 s%d, s%d, s%d" % (sF, sF, sT1))
e("v_xor_b32 v%d, v%d, v%d" % (vA2, vN, vG))
for k in range(4):
    e("v_xor_b32 v%d, %d, v%d" % (vT + k, 4 * k, vA2))
    e("v_lshlrev_b32 v%d, 4, v%d" % (vT + k, vT + k))
    e("v_lshl_add_u32 v%d, v%d, 13, v%d" % (vT + k, vG, vT + k))
e("s_mov_b32 s%d, s%d" % (sT0, sF))
e("s_lshl_b32 s%d, s%d, 13" % (sT2, sT3))
e("s_add_u32 s%d, s%d, %d" % (sT2, sT2, L_WUK))
e("s_barrier")
e("s_barrier")
if opt("xl", 0):
    lxm = e.newlabel("L_xm"); lx7 = e.newlabel("L_x7")
    e("s_cmp_lg_u32 s%d, 15" % sA)
    e("s_cbranch_scc1 %s" % lxm)
    e("s_waitcnt vmcnt(0)")
    e("v_mov_b32 v%d, 1" % vA3)
    e("v_mov_b32 v%d, 0" % vA1)
    setexec(1)
    e("ds_add_rtn_u32 v%d, v%d, v%d offset:%d" % (vA0, vA1, vA3, L_QL))
    e("s_waitcnt lgkmcnt(0)")
    e("v_cmp_eq_u32 vcc, 3, v%d" % vA0)
    e("s_mov_b64 exec, vcc")
    e("s_lshl_b32 s%d, s%d, 5" % (sT1, sB))
    e("s_cbranch_execz %s" % lx7)
    e("buffer_store_dword v%d, v%d, %s, s%d offen sc1" % (vA3, vA1, srd(S_DBG), sT1))
    e(lx7 + ":")
    setexec(-1)
    stamp(17)
    e(lxm + ":")
for k in range(8):
    e("s_mov_b32 m0, s%d" % sT2)
    e("buffer_load_dwordx4 v%d, %s, s%d offen%s lds" % (vT + (k & 3), srd(S_WUK), sT0, NT))
    if k < 7:
        e("s_add_u32 s%d, s%d, 32768" % (sT0, sT0))
        e("s_add_u32 s%d, s%d, 1024" % (sT2, sT2))
e("s_waitcnt vmcnt(8)")
e("s_barrier")
e("s_waitcnt vmcnt(0)")
stamp(12)
def uv_dma():
    e("v_lshrrev_b32 v%d, 1, v%d" % (vA2, vG))
    e("v_lshlrev_b32 v%d, 2, v%d" % (vA2, vA2))
    e("v_xor_b32 v%d, v%d, v%d" % (vA2, vA2, vN))
    e("s_and_b32 s%d, s%d, 1" % (sT0, sT3))
    e("s_lshl_b32 s%d, s%d, 1" % (sT0, sT0))
    e("v_xor_b32 v%d, s%d, v%d" % (vA2, sT0, vA2))
    for c, cv in enumerate((0, 8, 1, 9)):
        e("v_xor_b32 v%d, %d, v%d" % (vT + c, cv, vA2))
        e("v_lshlrev_b32 v%d, 4, v%d" % (vT + c, vT + c))
        e("v_lshl_add_u32 v%d, v%d, 13, v%d" % (vT + c, vG, vT + c))
    e("s_mov_b32 s%d, s%d" % (sT0, sF))
    e("s_lshl_b32 s%d, s%d, 13" % (sT2, sT3))
    e("s_add_u32 s%d, s%d, %d" % (sT2, sT2, L_WUV))
    for k in range(8):
        e("s_mov_b32 m0, s%d" % sT2)
        e("buffer_load_dwordx4 v%d, %s, s%d offen%s lds" % (vT + 2 * (k >> 2) + (k & 1), srd(S_WUV), sT0, NT))
        if k < 7:
            e("s_add_u32 s%d, s%d, 32768" % (sT0, sT0))
            e("s_add_u32 s%d, s%d, 1024" % (sT2, sT2))
if opt("uve", 0): uv_dma()
e("s_barrier")
e("s_barrier")
if not opt("uve", 0): uv_dma()
lno = e.newlabel("L_no")
e("s_cmp_ge_u32 s2, 120")
e("s_cbranch_scc1 %s" % lno)
e("v_lshrrev_b32 v%d, 3, v%d" % (vA0, vLANE))
e("v_mul_u32_u24 v%d, 1280, v%d" % (vA0, vA0))
e("v_and_b32 v%d, 7, v%d" % (vA1, vLANE))
e("v_and_b32 v%d, 1, v%d" % (vA2, vG))
e("v_xor_b32 v%d, v%d, v%d" % (vA1, vA1, vA2))
e("s_lshl_b32 s%d, s%d, 1" % (sT0, sT3))
e("v_xor_b32 v%d, s%d, v%d" % (vA1, sT0, vA1))
e("v_lshl_add_u32 v%d, v%d, 4, v%d" % (vA0, vA1, vA0))
e("s_lshl_b32 s%d, s%d, 2" % (sT0, sUS))
e("s_add_u32 s%d, s%d, s%d" % (sT0, sT0, sT3))
e("s_mul_i32 s%d, s%d, 10240" % (sT0, sT0))
e("s_lshl_b32 s%d, s%d, 7" % (sT1, sST))
e("s_add_u32 s%d, s%d, s%d" % (sT0, sT0, sT1))
e("s_lshl_b32 s%d, s%d, 10" % (sT2, sT3))
e("s_add_u32 s%d, s%d, %d" % (sT2, sT2, L_WO))
for k in range(11):
    if k == 10:
        e("s_cmp_lt_u32 s%d, 11" % sNU)
        e("s_cbranch_scc1 %s" % lno)
    e("s_mov_b32 m0, s%d" % sT2)
    e("buffer_load_dwordx4 v%d, %s, s%d offen%s lds" % (vA0, srd(S_WO), sT0, NT))
    if k < 10:
        e("s_add_u32 s%d, s%d, 40960" % (sT0, sT0))
        e("s_add_u32 s%d, s%d, 4096" % (sT2, sT2))
e(lno + ":")
e("s_waitcnt vmcnt(0)")
stamp(11)
e("s_barrier")
frag_prep()
e(lc1 + ":")
e("s_lshl_b32 s%d, s%d, 5" % (sT1, sW))
e("s_lshl_b32 s%d, s%d, 8" % (sT0, sXI))
e("s_add_u32 s%d, s%d, s%d" % (sT0, sT0, sT1))
e("s_add_u32 s%d, s%d, %d" % (sT0, sT0, CP))
e("s_waitcnt lgkmcnt(0)")
e("s_barrier")
setexec(0x00ff00ff00ff00ff)
for ks in range(4):
    e("ds_read_b128 %s, v%d offset:%d" % (vr(vCF + 4 * ks, 4), vQLr, 64 * ks))
setexec(-1)
for ks in range(4):
    e("s_waitcnt lgkmcnt(%d)" % (3 - ks))
    e("v_mfma_f32_16x16x32_bf16 %s, %s, %s, %s" % (vr(vT, 4), vr(vCF + 4 * ks, 4), vr(vBUV + 4 * ks, 4), "0" if ks == 0 else vr(vT, 4)))
e("v_add_f32 v%d, v%d, v%d" % (vT, vT, vT + 1))
e("v_add_f32 v%d, v%d, v%d" % (vT + 2, vT + 2, vT + 3))
e("v_add_f32 v%d, v%d, v%d" % (vT, vT, vT + 2))
e("v_mov_b32 v%d, v%d" % (vT + 1, vT))
e("v_permlane16_swap_b32 v%d, v%d" % (vT, vT + 1))
e("v_add_f32 v%d, v%d, v%d" % (vT, vT, vT + 1))
e("v_mov_b32_dpp v%d, v%d row_shl:1 row_mask:0xf bank_mask:0xf bound_ctrl:0" % (vT + 1, vT))
e("v_cvt_pk_bf16_f32 v%d, v%d, v%d" % (vT, vT, vT + 1))
e("v_min_u32 v%d, -2, v%d" % (vT, vT))
setexec(0x5555)
e("buffer_store_dword v%d, v%d, %s, s%d offen sc1" % (vT, vOutA, srd(S_WS), sT0))
setexec(-1)
stamp(8)
e("s_cmp_ge_u32 s2, 120")
e("s_cbranch_scc1 L_fin")
vG2 = 204
e("v_lshlrev_b32 v%d, 8, v%d" % (vA0, vN))
e("v_lshl_add_u32 v%d, v%d, 4, v%d" % (vA0, vG, vA0))
e("s_add_u32 s%d, s%d, s%d" % (sT1, sUS, sW))
e("s_lshr_b32 s%d, s%d, 2" % (sT0, sT1))
e("s_lshl_b32 s%d, s%d, 10" % (sT0, sT0))
e("s_and_b32 s%d, s%d, 3" % (sT1, sT1))
e("s_lshl_b32 s%d, s%d, 6" % (sT1, sT1))
e("s_add_u32 s%d, s%d, s%d" % (sT0, sT0, sT1))
e("s_add_u32 s%d, s%d, %d" % (sT0, sT0, CP))
for k in range(8): e("v_mov_b32 v%d, 0" % (vG2 + k))
e("s_mov_b32 s%d, 0x000f000f" % sE0)
e("s_mov_b32 s%d, 0x000f000f" % (sE0 + 1))
e("s_add_u32 s%d, s%d, 8" % (sT1, sW))
e("s_cmp_lt_u32 s%d, s%d" % (sT1, sNU))
e("s_cselect_b64 %s, %s, 0" % (sp(sE1), sp(sE0)))
e("s_cselect_b32 s%d, 1, 0" % sT4)
e("v_lshlrev_b32 v%d, 2, v%d" % (vA1, vLANE))
e("s_lshl_b32 s%d, s%d, 8" % (sT1, sW))
e("v_add_u32 v%d, s%d, v%d" % (vA2, sT1, vA1))
e("s_lshl_b32 s%d, s2, 6" % sT2)
e("s_add_u32 s%d, s%d, %d" % (sT2, sT2, EWC))
if opt("d4", 4): e("s_sleep %d" % opt("d4", 4))
poll([("buffer_load_dwordx4 %s, v%d, %s, s%d offen offset:%d sc1" % (vr(vG2 + 4 * j, 4), vA0, srd(S_WS), sT0, 2048 * j), vG2 + 4 * j, 4) for j in range(2)], sleep=1, init_masks=[sp(sE0), sp(sE1)])
lr = e.newlabel("L_ew")
e("s_cmp_lg_u32 s%d, 0" % sW)
e("s_cbranch_scc1 %s" % lr)
store1(sT2)
e(lr + ":")
stamp(9)
e("s_waitcnt lgkmcnt(0)")
for t in range(4):
    e("v_mfma_f32_16x16x32_bf16 %s, %s, %s, 0" % (vr(vT + 4 * t, 4), vr(vG2, 4), vr(vBO + 4 * t, 4)))
l2u = e.newlabel("L_2u")
e("s_cmp_eq_u32 s%d, 0" % sT4)
e("s_cbranch_scc1 %s" % l2u)
for t in range(4):
    e("v_mfma_f32_16x16x32_bf16 %s, %s, %s, %s" % (vr(vT + 4 * t, 4), vr(vG2 + 4, 4), vr(vBO + 16 + 4 * t, 4), vr(vT + 4 * t, 4)))
e(l2u + ":")
e("s_lshl_b32 s%d, s2, 7" % sT0)
e("s_add_u32 s%d, s%d, %d" % (sT0, sT0, HP))
setexec(0xffff)
e("s_nop 4")
for t in range(4):
    b = vT + 4 * t
    e("v_add_f32 v%d, v%d, v%d" % (b, b, b + 1))
    e("v_add_f32 v%d, v%d, v%d" % (b + 2, b + 2, b + 3))
    e("v_add_f32 v%d, v%d, v%d" % (b, b, b + 2))
    e("ds_write_b32 v%d, v%d offset:%d" % (vA2, b, L_RED + 64 * t))
setexec(-1)
e("s_waitcnt lgkmcnt(0)")
e("s_barrier")
e("s_cmp_lg_u32 s%d, 0" % sW)
e("s_cbranch_scc1 L_fin")
e("v_lshlrev_b32 v%d, 3, v%d" % (vA2, vLANE))
setexec(0xffffffff)
for i in range(8):
    e("ds_read_b64 %s, v%d offset:%d" % (vr(vG2 + 8 + 2 * i, 2), vA2, L_RED + 256 * i))
e("s_waitcnt lgkmcnt(0)")
for st in (4, 2, 1):
    for i in range(st):
        e("v_pk_add_f32 %s, %s, %s" % (vr(vG2 + 8 + 2 * i, 2), vr(vG2 + 8 + 2 * i, 2), vr(vG2 + 8 + 2 * (i + st), 2)))
e("v_cvt_pk_bf16_f32 v%d, v%d, v%d" % (vG2 + 8, vG2 + 8, vG2 + 9))
e("v_min_u32 v%d, -2, v%d" % (vG2 + 8, vG2 + 8))
e("buffer_store_dword v%d, v%d, %s, s%d offen sc1" % (vG2 + 8, vA1, srd(S_WS), sT0))
setexec(-1)
stamp(10)
e("s_branch L_fin")

vCA, vCB, vGQ, vACC, vP = 48, 112, 176, 208, 224
e("L_Y:")
e("s_lshl_b32 s%d, s%d, 3" % (sKS, sB))
e("s_lshr_b32 s%d, s%d, 1" % (sT0, sA))
e("s_add_u32 s%d, s%d, s%d" % (sKS, sKS, sT0))
e("s_and_b32 s%d, s%d, 1" % (sHF, sA))
e("s_lshl_b32 s%d, s%d, 1" % (sYI, sKS))
e("s_add_u32 s%d, s%d, s%d" % (sYI, sYI, sHF))
e("s_lshr_b32 s%d, s%d, 1" % (sT1, sA))
e("s_lshl_b32 s%d, s%d, 3" % (sT1, sT1))
e("s_add_u32 s%d, s%d, s%d" % (sT1, sT1, sB))
e("s_and_b32 s%d, s%d, 1" % (sT0, sA))
e("s_lshl_b32 s%d, s%d, 1" % (sRD, sT1))
e("s_add_u32 s%d, s%d, s%d" % (sRD, sRD, sT0))
e("s_cmp_lt_u32 s%d, 27" % sT1)
e("s_cselect_b32 s%d, 1, 0" % sISD)
e("s_cmp_lt_u32 s%d, 20" % sT1)
e("s_cselect_b32 s%d, 1, 0" % sFIN)
e("s_cmp_eq_u32 s%d, 0" % sT0)
e("s_cselect_b32 s%d, s%d, 0" % (sFIN, sFIN))
srds()
if opt("cpf", 0):
    lp_ = e.newlabel("L_cpf")
    e("s_cmp_lg_u32 s%d, 14" % sA)
    e("s_cbranch_scc1 %s" % lp_)
    e("s_getpc_b64 s[%d:%d]" % (sTM, sTM + 1))
    e.raw("L_pcref:")
    e.raw("    s_sub_u32 s%d, s%d, (L_pcref - %s)" % (sTM, sTM, KN))
    e.raw("    s_subb_u32 s%d, s%d, 0" % (sTM + 1, sTM + 1))
    e("v_lshlrev_b32 v%d, 4, v0" % vA0)
    for k in range(opt("cpf", 0)):
        e("global_load_dwordx4 %s, v%d, s[%d:%d]" % (vr(48 + 4 * k, 4), vA0, sTM, sTM + 1))
        e("v_add_u32 v%d, 8192, v%d" % (vA0, vA0))
    e(lp_ + ":")
l5 = e.newlabel("L_c"); l6 = e.newlabel("L_c"); l7 = e.newlabel("L_c")
e("s_cmp_lt_u32 s2, %d" % (248 if not opt("xl", 0) else 1000))
e("s_cbranch_scc1 %s" % l5)
e("s_lshl_b32 s%d, s%d, 13" % (sT2, sB))
e("s_lshl_b32 s%d, s%d, 10" % (sT3, sW))
e("s_add_u32 s%d, s%d, s%d" % (sT2, sT2, sT3))
e("s_add_u32 s%d, s%d, %d" % (sT2, sT2, QP))
e("buffer_store_dwordx4 %s, v%d, %s, s%d offen sc1" % (vr(vCL, 4), vL16, srd(S_WS), sT2))
e("s_lshl_b32 s%d, s%d, 12" % (sT2, sB))
e("s_and_b32 s%d, s%d, 3" % (sT3, sW))
e("s_lshl_b32 s%d, s%d, 10" % (sT3, sT3))
e("s_add_u32 s%d, s%d, s%d" % (sT2, sT2, sT3))
e("s_lshr_b32 s%d, s%d, 2" % (sT3, sW))
e("s_lshl_b32 s%d, s%d, 15" % (sT3, sT3))
e("s_add_u32 s%d, s%d, s%d" % (sT2, sT2, sT3))
e("buffer_store_dwordx4 %s, v%d, %s, s%d offen sc1" % (vr(vCL, 4), vL16, srd(S_WS), sT2))
e("s_cmp_lt_u32 s%d, 6" % sW)
e("s_cbranch_scc1 %s" % l6)
e("s_lshl_b32 s%d, s%d, 10" % (sT2, sB))
e("s_mov_b32 s%d, %d" % (sT3, EWA))
e("s_cmp_eq_u32 s%d, 6" % sW)
e("s_cselect_b32 s%d, %d, s%d" % (sT3, EWB, sT3))
e("s_add_u32 s%d, s%d, s%d" % (sT2, sT2, sT3))
e("buffer_store_dwordx4 %s, v%d, %s, s%d offen sc1" % (vr(vCL, 4), vL16, srd(S_WS), sT2))
e(l6 + ":")
e("s_waitcnt vmcnt(0)")
e("s_barrier")
e("s_cmp_lg_u32 s%d, 0" % sW)
e("s_cbranch_scc1 %s" % l7)
e("s_lshl_b32 s%d, s%d, 5" % (sT2, sB))
e("v_mov_b32 v%d, 1" % vA3)
setexec(1)
e("buffer_store_dword v%d, v%d, %s, s%d offen sc1" % (vA3, vL16, srd(S_DBG), sT2))
setexec(-1)
stamp(17)
e(l7 + ":")
e("s_barrier")
e(l5 + ":")
def y_dma():
    e("s_lshl_b32 s%d, s%d, 7" % (sT0, sKS))
    e("s_lshl_b32 s%d, s%d, 4" % (sT2, sW))
    e("s_add_u32 s%d, s%d, s%d" % (sT0, sT0, sT2))
    e("s_lshl_b32 s%d, s%d, 10" % (sT0, sT0))
    e("s_mul_i32 s%d, s%d, %d" % (sT2, sT2, RS))
    e("s_add_u32 s%d, s%d, %d" % (sT2, sT2, L_CK))
    for j in range(2):
        e("s_xor_b32 s%d, s%d, %d" % (sT3, sHF, j))
        e("s_lshl_b32 s%d, s%d, 13" % (sT1, sT3))
        e("s_add_u32 s%d, s%d, s%d" % (sT1, sT1, sT0))
        e("s_mul_i32 s%d, s%d, %d" % (sT3, sT3, 8 * RS))
        e("s_add_u32 s%d, s%d, s%d" % (sT3, sT3, sT2))
        for i in range(8):
            e("s_mov_b32 m0, s%d" % sT3)
            e("buffer_load_dwordx4 v%d, %s, s%d offen%s lds" % (vL16, srd(S_CKV), sT1, NTC))
            if i < 7:
                e("s_add_u32 s%d, s%d, 1024" % (sT1, sT1))
                e("s_add_u32 s%d, s%d, %d" % (sT3, sT3, RS))
def y_pclr():
    e("s_lshl_b32 s%d, s%d, 14" % (sT0, sYI))
    e("s_lshl_b32 s%d, s%d, 11" % (sT1, sW))
    e("s_add_u32 s%d, s%d, s%d" % (sT0, sT0, sT1))
    e("s_add_u32 s%d, s%d, %d" % (sT0, sT0, PART))
    for i in range(2):
        e("buffer_store_dwordx4 %s, v%d, %s, s%d offen offset:%d sc1" % (vr(vCL, 4), vL16, srd(S_WS), sT0, 1024 * i))
def y_clr():
    if not opt("ypc", 1): y_pclr()
    l3 = e.newlabel("L_c")
    e("s_cmp_eq_u32 s%d, 0" % sISD)
    e("s_cbranch_scc1 %s" % l3)
    e("s_cmp_gt_u32 s%d, 2" % sW)
    e("s_cbranch_scc1 %s" % l3)
    e("s_mul_i32 s%d, s%d, 2560" % (sT0, sRD))
    e("s_add_u32 s%d, s%d, %d" % (sT0, sT0, OP))
    e("v_lshlrev_b32 v%d, 4, v0" % vA3)
    e("v_cmp_gt_u32 vcc, 160, v0")
    e("s_mov_b64 exec, vcc")
    e("buffer_store_dwordx4 %s, v%d, %s, s%d offen sc1" % (vr(vCL, 4), vA3, srd(S_WS), sT0))
    setexec(-1)
    e(l3 + ":")
if opt("yord", 0):
    y_clr()
    e("s_waitcnt vmcnt(0)")
    for _ in range(opt("ydel", 0)): e("s_sleep 16")
    y_dma()
else:
    for _ in range(opt("ydel", 0)): e("s_sleep 16")
    y_dma()
    y_clr()
vFr = 43
e("v_mul_u32_u24 v%d, %d, v%d" % (vFr, RS, vN))
e("v_lshl_add_u32 v%d, v%d, 4, v%d" % (vFr, vG, vFr))
e("s_mul_i32 s%d, s%d, %d" % (sT0, sW, 16 * RS))
e("s_add_u32 s%d, s%d, %d" % (sT0, sT0, L_CK))
e("v_add_u32 v%d, s%d, v%d" % (vA1, sT0, vFr))
lr = e.newlabel("L_r")
e("s_cmp_lg_u32 s%d, 0" % sW)
e("s_cbranch_scc1 %s" % lr)
flag_check()
e(lr + ":")
e("s_waitcnt vmcnt(0)")
stamp(1)
if opt("ypc", 1): y_pclr()
for ks in range(16):
    e("ds_read_b128 %s, v%d offset:%d" % (vr(vCA + 4 * ks, 4), vA1, 64 * ks))
    if ks == 7: e("s_waitcnt lgkmcnt(0)")
e("s_barrier")
stamp(2)
e("s_lshl_b32 s%d, s%d, 4" % (sT0, sHF))
e("s_lshl_b32 s%d, s%d, 1" % (sT1, sW))
e("s_add_u32 s%d, s%d, s%d" % (sT0, sT0, sT1))
e("s_lshl_b32 s%d, s%d, 10" % (sT2, sT0))
vQG = 240
for k in range(2):
    e("buffer_load_dwordx4 %s, v%d, %s, s%d offen offset:%d sc1" % (vr(vQG + 4 * k, 4), vL16, srd(S_WS), sT2, 1024 * k))
e("v_lshrrev_b32 v%d, 2, v%d" % (vA1, vN))
e("v_lshl_add_u32 v%d, v%d, 3, v%d" % (vA1, vG, vA1))
e("v_mul_u32_u24 v%d, %d, v%d" % (vA1, RS, vA1))
e("v_and_b32 v%d, 3, v%d" % (vA3, vN))
e("v_lshl_add_u32 v%d, v%d, 3, v%d" % (vA1, vA3, vA1))
e("s_lshl_b32 s%d, s%d, 7" % (sT0, sW))
e("s_add_u32 s%d, s%d, %d" % (sT0, sT0, L_CK))
e("v_add_u32 v%d, s%d, v%d" % (vA1, sT0, vA1))
e("v_add_u32 v%d, %d, v%d" % (vA2, 64 * RS, vA1))
e("s_waitcnt lgkmcnt(0)")
cnt = 0
for t in range(4):
    for kk in range(4):
        for u in range(2):
            e("ds_read_b64_tr_b16 %s, v%d offset:%d" % (vr(vCB + 16 * t + 4 * kk + 2 * u, 2), vA1 if kk < 2 else vA2, (32 * (kk & 1) + 4 * u) * RS + 32 * t))
            cnt += 1
            if cnt % 8 == 0: e("s_waitcnt lgkmcnt(0)")
vQSw, vQSr, vMXa, vPw, vPr, vPo = 240 - 16 + 16, 0, 0, 0, 0, 0
vQSw, vQSr, vMXa, vPw, vPr, vPo = vT + 20, vT + 21, vT + 22, vT + 23, vT + 24, vT + 25
e("s_mul_i32 s%d, s%d, %d" % (sT0, sW, 2 * RS))
e("s_add_u32 s%d, s%d, %d" % (sT0, sT0, L_QS))
e("v_add_u32 v%d, s%d, v%d" % (vQSw, sT0, vL16))
e("v_add_u32 v%d, %d, v%d" % (vQSr, L_QS, vFr))
e("v_lshlrev_b32 v%d, 5, v%d" % (vMXa, vN))
e("v_mul_u32_u24 v%d, %d, v%d" % (vPr, PRS, vN))
e("v_lshl_add_u32 v%d, v%d, 3, v%d" % (vPw, vG, vPr))
e("s_lshl_b32 s%d, s%d, 5" % (sT0, sW))
e("v_add_u32 v%d, s%d, v%d" % (vPw, sT0, vPw))
e("v_lshl_add_u32 v%d, v%d, 4, v%d" % (vPr, vG, vPr))
e("v_lshlrev_b32 v%d, 12, v%d" % (vPo, vG))
e("v_lshl_add_u32 v%d, v%d, 3, v%d" % (vPo, vN, vPo))
e("s_lshl_b32 s%d, s%d, 2" % (sT4, sW))
e("v_add_u32 v%d, s%d, v%d" % (vT + 26, sT4, vMXa))
e("v_lshlrev_b32 v%d, 7, v%d" % (vT + 27, vN))
e("v_lshl_add_u32 v%d, v%d, 2, v%d" % (vT + 27, vG, vT + 27))
e("s_lshl_b32 s%d, s%d, 4" % (sT4, sW))
e("v_add_u32 v%d, s%d, v%d" % (vT + 27, sT4, vT + 27))
e("s_lshl_b32 s%d, s%d, 4" % (sT0, sHF))
e("s_lshl_b32 s%d, s%d, 1" % (sT1, sW))
e("s_add_u32 s%d, s%d, s%d" % (sT0, sT0, sT1))
e("s_lshl_b32 s%d, s%d, 10" % (sT2, sT0))
NH2 = opt("nh2", 4)
e("s_lshl_b32 s%d, s%d, 8" % (sT0, sT0))
e("s_add_u32 s%d, s%d, %d" % (sT0, sT0, EWA))
e("s_and_b32 s%d, s%d, 7" % (sT1, sKS))
hint_addr(sT1, 8 // NH2 if NH2 > 1 else 1, 8, vA3)
lq = e.newlabel("L_qok")
e("s_waitcnt vmcnt(0)")
e("v_max3_u32 v%d, v%d, v%d, v%d" % (vT, vQG, vQG + 1, vQG + 2))
e("v_max3_u32 v%d, v%d, v%d, v%d" % (vT, vT, vQG + 3, vQG + 4))
e("v_max3_u32 v%d, v%d, v%d, v%d" % (vT, vT, vQG + 5, vQG + 6))
e("v_max_u32 v%d, v%d, v%d" % (vT, vT, vQG + 7))
e("v_cmp_eq_u32 vcc, -1, v%d" % vT)
e("s_cbranch_vccz %s" % lq)
poll([("buffer_load_dword v%d, v%d, %s, s%d offen sc1" % (vGQ, vA3, srd(S_WS), sT0), vGQ, 1)], sleep=opt("sl2", 3), init_masks=["0x%x" % ((1 << NH2) - 1)])
stamp(3)
poll([("buffer_load_dwordx4 %s, v%d, %s, s%d offen offset:%d sc1" % (vr(vQG + 4 * k, 4), vL16, srd(S_WS), sT2, 1024 * k), vQG + 4 * k, 4) for k in range(2)], sleep=1)
e(lq + ":")
stamp(4)
for k in range(2):
    e("ds_write_b128 v%d, %s offset:%d" % (vQSw, vr(vQG + 4 * k, 4), RS * k))
e("s_waitcnt lgkmcnt(0)")
e("s_barrier")
lmk = e.newlabel("L_mk")
e("s_cmp_lg_u32 s%d, 7" % sW)
e("s_cbranch_scc1 %s" % lmk)
e("s_lshl_b32 s%d, s%d, 7" % (sT0, sYI))
e("s_add_u32 s%d, s%d, %d" % (sT0, sT0, STAT))
e("v_lshlrev_b32 v%d, 3, v%d" % (vA1, vN))
e("v_mov_b32 v%d, 0" % (vT + 8))
e("v_mov_b32 v%d, -1.0" % (vT + 9))
setexec(0xffff)
e("buffer_store_dwordx2 %s, v%d, %s, s%d offen sc1" % (vr(vT + 8, 2), vA1, srd(S_WS), sT0))
setexec(-1)
e("s_lshl_b32 s%d, s%d, 6" % (sT0, sYI))
e("s_add_u32 s%d, s%d, %d" % (sT0, sT0, EWB))
store1(sT0)
e(lmk + ":")
L_W2 = L_W1 + 43008
if opt("w2e", 0):
    lwe = e.newlabel("L_w2e")
    e("s_cmp_eq_u32 s%d, 0" % sISD)
    e("s_cbranch_scc1 %s" % lwe)
    e("s_mul_i32 s%d, s%d, 5120" % (sF + 1, sW))
    e("s_mul_i32 s%d, s%d, 40960" % (sF, sRD))
    e("s_add_u32 s%d, s%d, s%d" % (sF, sF, sF + 1))
    e("s_add_u32 s%d, s%d, %d" % (sF + 1, sF + 1, L_W2))
    for k in range(5):
        e("s_mov_b32 m0, s%d" % (sF + 1))
        e("buffer_load_dwordx4 v%d, %s, s%d offen nt lds" % (vL16, srd(S_W2), sF))
        if k < 4:
            e("s_add_u32 s%d, s%d, 1024" % (sF, sF))
            e("s_add_u32 s%d, s%d, 1024" % (sF + 1, sF + 1))
    e(lwe + ":")
sacc = vT
for half in range(2):
    for k in range(8):
        e("ds_read_b128 %s, v%d offset:%d" % (vr(vGQ + 4 * k, 4), vQSr, 64 * (8 * half + k)))
    for k in range(8):
        ks = 8 * half + k
        e("s_waitcnt lgkmcnt(%d)" % (7 - k))
        e("v_mfma_f32_16x16x32_bf16 %s, %s, %s, %s" % (vr(sacc, 4), vr(vCA + 4 * ks, 4), vr(vGQ + 4 * k, 4), "0" if ks == 0 else vr(sacc, 4)))
if opt('mk', 0) == 0:
    lh1 = e.newlabel("L_h1")
    e("s_cmp_lg_u32 s%d, 6" % sW)
    e("s_cbranch_scc1 %s" % lh1)
    e("s_lshl_b32 s%d, s%d, 6" % (sT0, sYI))
    e("s_add_u32 s%d, s%d, %d" % (sT0, sT0, EWB + 32))
    store1(sT0)
    e(lh1 + ":")
e("s_mov_b32 s%d, 0x3db504f3" % sT0)
e("v_cvt_pk_bf16_f32 v%d, v%d, v%d" % (vT + 4, sacc, sacc + 1))
e("v_cvt_pk_bf16_f32 v%d, v%d, v%d" % (vT + 5, sacc + 2, sacc + 3))
unpack(sacc, vT + 4, 2)
for i in range(4): e("v_mul_f32 v%d, s%d, v%d" % (sacc + i, sT0, sacc + i))
e("v_cvt_pk_bf16_f32 v%d, v%d, v%d" % (vT + 4, sacc, sacc + 1))
e("v_cvt_pk_bf16_f32 v%d, v%d, v%d" % (vT + 5, sacc + 2, sacc + 3))
unpack(sacc, vT + 4, 2)
mx = vT + 4
e("v_max3_f32 v%d, v%d, v%d, v%d" % (mx, sacc, sacc + 1, sacc + 2))
e("v_max_f32 v%d, v%d, v%d" % (mx, mx, sacc + 3))
allred_g(mx, vT + 5, "v_max_f32")
e("ds_write_b32 v%d, v%d offset:%d" % (vT + 26, mx, L_MX))
if opt('mk', 0) == 1:
    lh1 = e.newlabel("L_h1")
    e("s_cmp_lg_u32 s%d, 6" % sW)
    e("s_cbranch_scc1 %s" % lh1)
    e("s_lshl_b32 s%d, s%d, 6" % (sT0, sYI))
    e("s_add_u32 s%d, s%d, %d" % (sT0, sT0, EWB + 32))
    store1(sT0)
    e(lh1 + ":")
e("s_waitcnt lgkmcnt(0)")
e("s_barrier")
stamp(5)
e("ds_read_b128 %s, v%d offset:%d" % (vr(vT + 8, 4), vMXa, L_MX))
e("ds_read_b128 %s, v%d offset:%d" % (vr(vT + 12, 4), vMXa, L_MX + 16))
e("s_waitcnt lgkmcnt(0)")
e("v_max3_f32 v%d, v%d, v%d, v%d" % (mx, vT + 8, vT + 9, vT + 10))
e("v_max3_f32 v%d, v%d, v%d, v%d" % (vT + 5, vT + 11, vT + 12, vT + 13))
e("v_max3_f32 v%d, v%d, v%d, v%d" % (mx, mx, vT + 14, vT + 15))
e("v_max_f32 v%d, v%d, v%d" % (mx, mx, vT + 5))
e("v_mul_f32 v%d, s%d, v%d" % (vT + 6, sL2E, mx))
for i in range(4): e("v_fma_f32 v%d, v%d, s%d, -v%d" % (sacc + i, sacc + i, sL2E, vT + 6))
for i in range(4): e("v_exp_f32 v%d, v%d" % (sacc + i, sacc + i))
e("v_cvt_pk_bf16_f32 v%d, v%d, v%d" % (vT + 8, sacc, sacc + 1))
e("v_cvt_pk_bf16_f32 v%d, v%d, v%d" % (vT + 9, sacc + 2, sacc + 3))
e("ds_write_b64 v%d, %s offset:%d" % (vPw, vr(vT + 8, 2), L_P))
e("v_add_f32 v%d, v%d, v%d" % (sacc, sacc, sacc + 1))
e("v_add_f32 v%d, v%d, v%d" % (sacc + 2, sacc + 2, sacc + 3))
e("v_add_f32 v%d, v%d, v%d" % (sacc, sacc, sacc + 2))
e("ds_write_b32 v%d, v%d offset:%d" % (vT + 27, sacc, L_SUM))
e("s_waitcnt lgkmcnt(0)")
e("s_barrier")
for kk in range(4):
    e("ds_read_b128 %s, v%d offset:%d" % (vr(vP + 4 * kk, 4), vPr, L_P + 64 * kk))
ls_ = e.newlabel("L_st")
e("s_cmp_lg_u32 s%d, 7" % sW)
e("s_cbranch_scc1 %s" % ls_)
e("v_lshlrev_b32 v%d, 7, v%d" % (vA1, vN))
e("v_lshl_add_u32 v%d, v%d, 5, v%d" % (vA1, vG, vA1))
e("ds_read_b128 %s, v%d offset:%d" % (vr(vT + 8, 4), vA1, L_SUM))
e("ds_read_b128 %s, v%d offset:%d" % (vr(vT + 12, 4), vA1, L_SUM + 16))
e("s_lshl_b32 s%d, s%d, 7" % (sT0, sYI))
e("s_add_u32 s%d, s%d, %d" % (sT0, sT0, STAT))
e("v_lshlrev_b32 v%d, 3, v%d" % (vA1, vN))
e("s_waitcnt lgkmcnt(0)")
for st in (4, 2, 1):
    for i in range(st): e("v_add_f32 v%d, v%d, v%d" % (vT + 8 + i, vT + 8 + i, vT + 8 + i + st))
allred_g(vT + 8, vT + 9)
e("v_min_u32 v%d, -2, v%d" % (mx, mx))
e("v_and_b32 v%d, 0x7fffffff, v%d" % (mx + 1, vT + 8))
setexec(0xffff)
e("buffer_store_dwordx2 %s, v%d, %s, s%d offen sc1" % (vr(mx, 2), vA1, srd(S_WS), sT0))
setexec(-1)
e(ls_ + ":")
e("s_lshl_b32 s%d, s%d, 14" % (sT0, sYI))
e("s_lshl_b32 s%d, s%d, 7" % (sT1, sW))
e("s_add_u32 s%d, s%d, s%d" % (sT0, sT0, sT1))
e("s_add_u32 s%d, s%d, %d" % (sT0, sT0, PART))
for kk in range(4):
    e("s_waitcnt lgkmcnt(%d)" % (3 - kk))
    for t in range(4):
        a = vACC + 4 * t
        e("v_mfma_f32_16x16x32_bf16 %s, %s, %s, %s" % (vr(a, 4), vr(vP + 4 * kk, 4), vr(vCB + 16 * t + 4 * kk, 4), "0" if kk == 0 else vr(a, 4)))
for i in range(4):
    o = vT + 8 + 2 * i
    e("v_cvt_pk_bf16_f32 v%d, v%d, v%d" % (o, vACC + i, vACC + 4 + i))
    e("v_cvt_pk_bf16_f32 v%d, v%d, v%d" % (o + 1, vACC + 8 + i, vACC + 12 + i))
    e("v_min_u32 v%d, -2, v%d" % (o, o))
    e("v_min_u32 v%d, -2, v%d" % (o + 1, o + 1))
    e("buffer_store_dwordx2 %s, v%d, %s, s%d offen offset:%d sc1" % (vr(o, 2), vPo, srd(S_WS), sT0, 1024 * i))
stamp(6)
e("s_cmp_eq_u32 s%d, 0" % sISD)
e("s_cbranch_scc1 L_fin")
vW2, vW2p, vB1, vXD, vGH, vH2 = 48, 80, 48, 112, 116, 140
if opt("dack", 0): e("s_waitcnt vmcnt(0)")
e("s_barrier")
L_W2 = L_W1 + 43008
DD = opt("dd", 10)
e("v_lshrrev_b32 v%d, 2, v%d" % (vA0, vLANE))
e("v_mul_u32_u24 v%d, 3456, v%d" % (vA0, vA0))
e("v_and_b32 v%d, 3, v%d" % (vA1, vLANE))
e("v_lshl_add_u32 v%d, v%d, 4, v%d" % (vA0, vA1, vA0))
e("s_mul_i32 s%d, s%d, %d" % (sT0, sW, 80 * 3456))
e("s_lshl_b32 s%d, s%d, 6" % (sT1, sRD))
e("s_add_u32 s%d, s%d, s%d" % (sT0, sT0, sT1))
e("s_mul_i32 s%d, s%d, 5120" % (sT2, sW))
e("s_mul_i32 s%d, s%d, 40960" % (sT1, sRD))
e("s_add_u32 s%d, s%d, s%d" % (sT1, sT1, sT2))
e("s_add_u32 s%d, s%d, %d" % (sT3, sT2, L_W2))
e("s_add_u32 s%d, s%d, %d" % (sT2, sT2, L_W1))
n_ = 0
for k in range(5):
    if n_ >= DD: e("s_waitcnt vmcnt(%d)" % (DD - 1))
    e("s_mov_b32 m0, s%d" % sT2)
    e("buffer_load_dwordx4 v%d, %s, s%d offen%s lds" % (vA0, srd(S_W1), sT0, " nt" if opt("nt1", 1) else "")); n_ += 1
    if not opt("w2e", 0):
        if n_ >= DD: e("s_waitcnt vmcnt(%d)" % (DD - 1))
        e("s_mov_b32 m0, s%d" % sT3)
        e("buffer_load_dwordx4 v%d, %s, s%d offen nt lds" % (vL16, srd(S_W2), sT1)); n_ += 1
    if k < 4:
        e("s_add_u32 s%d, s%d, %d" % (sT0, sT0, 16 * 3456))
        e("s_add_u32 s%d, s%d, 1024" % (sT2, sT2))
        e("s_add_u32 s%d, s%d, 1024" % (sT1, sT1))
        e("s_add_u32 s%d, s%d, 1024" % (sT3, sT3))
lw2 = e.newlabel("L_w2")
e("v_lshlrev_b32 v%d, 2, v0" % vA0)
e("s_cmp_ge_u32 s%d, 5" % sW)
e("s_cbranch_scc1 %s" % lw2)
e("buffer_load_dword v%d, v%d, %s, 0 offen" % (vXD, vA0, srd(S_X)))
e("v_mov_b32 v%d, 0x3f803f80" % vA1)
e("ds_write_b32 v%d, v%d offset:%d" % (vA0, vA1, L_ONES))
e(lw2 + ":")
lo = e.newlabel("L_oh")
e("s_cmp_lg_u32 s%d, 7" % sW)
e("s_cbranch_scc1 %s" % lo)
e("v_lshlrev_b32 v%d, 8, v%d" % (vA1, vLANE))
e("s_xor_b32 s%d, s%d, 1" % (sT0, sHF))
e("s_lshl_b32 s%d, s%d, 14" % (sT0, sT0))
poll([("buffer_load_dword v%d, v%d, %s, s%d offen sc1" % (vGH, vA1, srd(S_WS), sT0), vGH, 1)], sleep=8, depth=1)
e(lo + ":")
e("s_waitcnt vmcnt(0) lgkmcnt(0)")
e("s_barrier")
lp5 = e.newlabel("L_p5"); lpd = e.newlabel("L_pd")
e("s_cmp_ge_u32 s%d, 5" % sW)
e("s_cbranch_scc1 %s" % lp5)
e("v_add_u32 v%d, %d, v%d" % (vA1, L_W2, vA0))
for r in range(32):
    e("ds_read_b32 v%d, v%d offset:%d" % (vW2 + r, vA1, 1280 * r))
    if r % 8 == 7: e("s_waitcnt lgkmcnt(0)")
e("s_mov_b32 s%d, 0x05040100" % sT0)
e("s_mov_b32 s%d, 0x07060302" % sT1)
for j in range(16):
    e("v_perm_b32 v%d, v%d, v%d, s%d" % (vW2p + 2 * j, vW2 + 2 * j + 1, vW2 + 2 * j, sT0))
    e("v_perm_b32 v%d, v%d, v%d, s%d" % (vW2p + 2 * j + 1, vW2 + 2 * j + 1, vW2 + 2 * j, sT1))
e("v_and_b32 v%d, 0xffff0000, v%d" % (vXD + 1, vXD))
e("v_lshlrev_b32 v%d, 16, v%d" % (vXD, vXD))
e("v_mov_b32 v%d, 0x3f80" % (vXD + 2))
e("v_mov_b32 v%d, 1.0" % (vXD + 3))
e("s_branch %s" % lpd)
e(lp5 + ":")
e("v_lshrrev_b32 v%d, 2, v%d" % (vA1, vN))
e("v_lshl_add_u32 v%d, v%d, 3, v%d" % (vA1, vG, vA1))
e("v_lshlrev_b32 v%d, 6, v%d" % (vA1, vA1))
e("v_and_b32 v%d, 3, v%d" % (vA2, vN))
e("v_lshl_add_u32 v%d, v%d, 3, v%d" % (vA1, vA2, vA1))
e("s_sub_u32 s%d, s%d, 5" % (sT0, sW))
e("s_mul_i32 s%d, s%d, 14336" % (sT1, sT0))
e("v_add_u32 v%d, s%d, v%d" % (vA1, sT1, vA1))
for j in range(7):
    for t in range(2):
        for u in range(2):
            e("ds_read_b64_tr_b16 %s, v%d offset:%d" % (vr(vB1 + 8 * j + 4 * t + 2 * u, 2), vA1, L_W1 + 2048 * j + 256 * u + 32 * t))
    if j % 2 == 1: e("s_waitcnt lgkmcnt(0)")
e("v_lshlrev_b32 v%d, 4, v%d" % (vA2, vG))
e("s_mul_i32 s%d, s%d, 448" % (sT1, sT0))
e("v_add_u32 v%d, s%d, v%d" % (vA2, sT1, vA2))
e("v_add_u32 v%d, %d, v%d" % (vA3, L_ONES - L_HB, vA2))
e("v_cmp_eq_u32 vcc, 1, v%d" % vN)
e("v_cndmask_b32 v%d, v%d, v%d, vcc" % (vA2, vA2, vA3))
e("s_waitcnt lgkmcnt(0)")
e(lpd + ":")
stamp(7)
lh = e.newlabel("L_dh")
e("s_cmp_ge_u32 s%d, 5" % sW)
e("s_cbranch_scc1 %s" % lh)
NH5 = opt("nh5", 4)
e("s_lshl_b32 s%d, s%d, 1" % (sT0, sRD))
hint_addr(sT0, 120 // NH5 - 1 if NH5 > 1 else 1, 120, vA3)
e("s_mov_b32 s%d, %d" % (sT0, EWC))
poll([("buffer_load_dword v%d, v%d, %s, s%d offen sc1" % (vGH, vA3, srd(S_WS), sT0), vGH, 1)], sleep=opt("sl5", 4), init_masks=["0x%x" % ((1 << NH5) - 1)])
stamp(8)
e("v_lshlrev_b32 v%d, 3, v0" % vA1)
for k in range(3): e("s_mov_b32 s%d, %d" % (sF + k, HP + 5120 * k))
e("v_mov_b32 v%d, 0" % vH2)
e("v_mov_b32 v%d, 0" % (vH2 + 1))
if opt("d5", 0): e("s_sleep %d" % opt("d5", 0))
poll([("\n".join("buffer_load_dword v%d, v%d, %s, s%d offen offset:%d sc1" % (vGH + 4 * k + q, vA0, srd(S_WS), sF + k, 1280 * q) for q in range(3)) + "\nbuffer_load_dword v%d, v%d, %s, s%d offen offset:3840 sc1" % (vGH + 4 * k + 3, vA0, srd(S_WS), sF + k), vGH + 4 * k, 4) for k in range(3)], sleep=1)
stamp(9)
for k in range(12):
    e("v_dot2c_f32_bf16 v%d, v%d, v%d" % (vH2, vGH + k, vXD + 2))
    e("v_dot2c_f32_bf16 v%d, v%d, v%d" % (vH2 + 1, vGH + k, vXD + 3))
e("v_cvt_pk_bf16_f32 v%d, v%d, v%d" % (vT, vH2, vH2 + 1))
unpack(vH2, vT, 1)
e("v_pk_add_f32 %s, %s, %s" % (vr(vH2, 2), vr(vH2, 2), vr(vXD, 2)))
e("v_cvt_pk_bf16_f32 v%d, v%d, v%d" % (vT, vH2, vH2 + 1))
e("ds_write_b32 v%d, v%d offset:%d" % (vA0, vT, L_HB))
unpack(vH2, vT, 1)
e("s_waitcnt lgkmcnt(0)")
e(lh + ":")
e("s_barrier")
lm = e.newlabel("L_dm"); lj = e.newlabel("L_dj")
e("s_cmp_ge_u32 s%d, 5" % sW)
e("s_cbranch_scc1 %s" % lm)
e("ds_write_b64 v%d, %s offset:%d" % (vA1, vr(vH2, 2), L_HF))
e("v_add_f32 v%d, v%d, v%d" % (vT, vH2, vH2 + 1))
wave_red([vT], [sT0])
e("v_mov_b32 v%d, s%d" % (vT + 2, sT0))
e("v_mul_f32 v%d, 0x3c000000, v%d" % (vT + 2, vT + 2))
e("v_sub_f32 v%d, v%d, v%d" % (vT, vH2, vT + 2))
e("v_sub_f32 v%d, v%d, v%d" % (vT + 1, vH2 + 1, vT + 2))
e("v_mul_f32 v%d, v%d, v%d" % (vT, vT, vT))
e("v_fmac_f32 v%d, v%d, v%d" % (vT, vT + 1, vT + 1))
wave_red([vT], [sT0])
e("v_mov_b32 v%d, s%d" % (vT + 3, sT0))
e("s_lshl_b32 s%d, s%d, 3" % (sT0, sW))
e("v_mov_b32 v%d, s%d" % (vT + 4, sT0))
setexec(1)
e("ds_write_b64 v%d, %s offset:%d" % (vT + 4, vr(vT + 2, 2), L_ST))
setexec(-1)
e("s_branch %s" % lj)
e(lm + ":")
for j in range(7):
    e("ds_read_b128 %s, v%d offset:%d" % (vr(vGH + 4 * j, 4), vA2, L_HB + 64 * j))
lz = e.newlabel("L_z")
for j in range(7):
    if j == 6:
        e("s_cmp_eq_u32 s%d, 7" % sW)
        e("s_cbranch_scc1 %s" % lz)
    e("s_waitcnt lgkmcnt(%d)" % (6 - j))
    for t in range(2):
        e("v_mfma_f32_16x16x32_bf16 %s, %s, %s, %s" % (vr(vT + 4 * t, 4), vr(vGH + 4 * j, 4), vr(vB1 + 8 * j + 4 * t, 4), "0" if j == 0 else vr(vT + 4 * t, 4)))
e(lz + ":")
e("v_lshlrev_b32 v%d, 3, v%d" % (vA1, vN))
e("s_sub_u32 s%d, s%d, 5" % (sT0, sW))
e("s_lshl_b32 s%d, s%d, 8" % (sT0, sT0))
e("v_add_u32 v%d, s%d, v%d" % (vA1, sT0, vA1))
setexec(0xffff)
e("s_nop 2")
e("ds_write_b64 v%d, %s offset:%d" % (vA1, vr(vT, 2), L_RED))
e("ds_write_b64 v%d, %s offset:%d" % (vA1, vr(vT + 4, 2), L_RED + 128))
setexec(-1)
e(lj + ":")
e("s_waitcnt lgkmcnt(0)")
e("s_barrier")
stamp(10)
ld2 = e.newlabel("L_d2")
e("s_cmp_ge_u32 s%d, 5" % sW)
e("s_cbranch_scc1 %s" % ld2)
e("v_mov_b32 v%d, 0" % vA2)
e("v_and_b32 v%d, 31, v%d" % (vA3, vLANE))
e("v_lshlrev_b32 v%d, 3, v%d" % (vA3, vA3))
st_ = vT + 8
e("ds_read_b128 %s, v%d offset:%d" % (vr(st_, 4), vA2, L_ST))
e("ds_read_b128 %s, v%d offset:%d" % (vr(st_ + 4, 4), vA2, L_ST + 16))
e("ds_read_b64 %s, v%d offset:%d" % (vr(st_ + 8, 2), vA2, L_ST + 32))
for k in range(3):
    e("ds_read_b64 %s, v%d offset:%d" % (vr(vT + 20 + 2 * k, 2), vA3, L_RED + 256 * k))
e("s_waitcnt lgkmcnt(3)")
mean, m2 = vT, vT + 1
e("v_pk_add_f32 %s, %s, %s" % (vr(vT, 2), vr(st_, 2), vr(st_ + 2, 2)))
e("v_pk_add_f32 %s, %s, %s" % (vr(vT + 2, 2), vr(st_ + 4, 2), vr(st_ + 6, 2)))
e("v_pk_add_f32 %s, %s, %s" % (vr(vT, 2), vr(vT, 2), vr(st_ + 8, 2)))
e("v_pk_add_f32 %s, %s, %s" % (vr(vT, 2), vr(vT, 2), vr(vT + 2, 2)))
e("v_mul_f32 v%d, 0x3e4ccccd, v%d" % (mean, mean))
e("v_mov_b32 v%d, 0" % (vT + 2))
for k in range(5):
    e("v_sub_f32 v%d, v%d, v%d" % (vT + 3, st_ + 2 * k, mean))
    e("v_fmac_f32 v%d, v%d, v%d" % (vT + 2, vT + 3, vT + 3))
e("v_fmac_f32 v%d, 0x43000000, v%d" % (m2, vT + 2))
e("v_mul_f32 v%d, 0x3acccccd, v%d" % (m2, m2))
rbf(mean, mean); rbf(m2, m2)
e("v_add_f32 v%d, 0x3727c5ac, v%d" % (m2, m2))
rbf(m2, m2)
e("v_sqrt_f32 v%d, v%d" % (m2, m2))
rbf(m2, m2)
e("v_rcp_f32 v%d, v%d" % (m2, m2))
e("s_waitcnt lgkmcnt(0)")
e("v_pk_add_f32 %s, %s, %s" % (vr(vT + 20, 2), vr(vT + 20, 2), vr(vT + 22, 2)))
e("v_pk_add_f32 %s, %s, %s" % (vr(vT + 20, 2), vr(vT + 20, 2), vr(vT + 24, 2)))
e("v_fma_f32 v%d, -v%d, v%d, v%d" % (vT + 20, mean, vT + 21, vT + 20))
e("v_mul_f32 v%d, v%d, v%d" % (vT + 20, vT + 20, m2))
e("v_max_f32 v%d, 0, v%d" % (vT + 20, vT + 20))
e("v_mov_b32_dpp v%d, v%d row_shl:1 row_mask:0xf bank_mask:0xf bound_ctrl:0" % (vT + 21, vT + 20))
e("v_cvt_pk_bf16_f32 v%d, v%d, v%d" % (vT + 20, vT + 20, vT + 21))
sF2 = 60
for j in range(16):
    e("v_readlane_b32 s%d, v%d, %d" % (sF2 + j, vT + 20, 2 * j))
for k in range(4): e("v_mov_b32 v%d, 0" % (vT + 2 + k))
for j in range(16):
    for k in range(2):
        e("v_dot2c_f32_bf16 v%d, s%d, v%d" % (vT + 2 + k + 2 * (j & 1), sF2 + j, vW2p + 2 * j + k))
e("s_mul_i32 s%d, s%d, 2560" % (sT0, sRD))
e("s_add_u32 s%d, s%d, %d" % (sT0, sT0, OP))
e("v_pk_add_f32 %s, %s, %s" % (vr(vT + 2, 2), vr(vT + 2, 2), vr(vT + 4, 2)))
e("v_min_u32 v%d, -2, v%d" % (vT + 2, vT + 2))
e("v_min_u32 v%d, -2, v%d" % (vT + 3, vT + 3))
e("buffer_store_dwordx2 %s, v%d, %s, s%d offen sc1" % (vr(vT + 2, 2), vA1, srd(S_WS), sT0))
e(ld2 + ":")
stamp(11)
vGF, vGE = 144, 156
e("s_cmp_eq_u32 s%d, 0" % sFIN)
e("s_cbranch_scc1 L_fin")
e("v_lshrrev_b32 v%d, 3, v%d" % (vA1, vLANE))
e("v_mul_u32_u24 v%d, 2560, v%d" % (vA0, vA1))
e("v_and_b32 v%d, 7, v%d" % (vA3, vLANE))
e("v_lshl_add_u32 v%d, v%d, 4, v%d" % (vA0, vA3, vA0))
e("s_mul_i32 s%d, s%d, %d" % (sT0, sW, 8 * 2560))
e("s_lshl_b32 s%d, s%d, 6" % (sT1, sRD))
e("s_add_u32 s%d, s%d, s%d" % (sT0, sT0, sT1))
e("s_add_u32 s%d, s%d, %d" % (sT0, sT0, OP))
e("s_lshl_b32 s%d, s%d, 3" % (sT3, sW))
e("v_add_u32 v%d, s%d, v%d" % (vA1, sT3, vA1))
for k in range(4): e("v_mov_b32 v%d, 0" % (vGF + k))
e("v_cmp_gt_u32 vcc, 54, v%d" % vA1)
e("s_mov_b64 %s, vcc" % sp(sE0))
e("v_lshlrev_b32 v%d, 4, v%d" % (vA1, vA3))
e("v_lshl_add_u32 v%d, v%d, 2, v%d" % (vA1, vG, vA1))
e("s_lshl_b32 s%d, s%d, 7" % (sT3, sW))
e("v_add_u32 v%d, s%d, v%d" % (vA1, sT3, vA1))
if opt("d6", 4): e("s_sleep %d" % opt("d6", 4))
poll([("buffer_load_dwordx4 %s, v%d, %s, s%d offen sc1" % (vr(vGF, 4), vA0, srd(S_WS), sT0), vGF, 4)], sleep=1, init_masks=[sp(sE0)])
stamp(12)
for k in range(4): e("v_mov_b32 v%d, v%d" % (vT + k, vGF + k))
rs_4to1(vT)
e("v_add_f32_dpp v%d, v%d, v%d row_ror:8 row_mask:0xf bank_mask:0xf" % (vT + 1, vT, vT))
setexec(0x00ff00ff00ff00ff)
e("ds_write_b32 v%d, v%d offset:%d" % (vA1, vT + 1, L_RED + 1024))
setexec(-1)
e("s_waitcnt lgkmcnt(0)")
e("s_barrier")
e("s_cmp_lg_u32 s%d, 0" % sW)
e("s_cbranch_scc1 L_fin")
e("v_lshlrev_b32 v%d, 2, v%d" % (vA0, vLANE))
e("v_add_u32 v%d, s%d, v%d" % (vA1, sT1, vA0))
setexec(0xffffffff)
for i in range(8):
    e("ds_read_b32 v%d, v%d offset:%d" % (vGE + i, vA0, L_RED + 1024 + 128 * i))
e("ds_read_b32 v%d, v%d offset:%d" % (vGE + 8, vA1, L_HF))
e("s_waitcnt lgkmcnt(0)")
for st in (4, 2, 1):
    for i in range(st):
        e("v_add_f32 v%d, v%d, v%d" % (vGE + i, vGE + i, vGE + i + st))
rbf(vGE, vGE)
e("v_add_f32 v%d, v%d, v%d" % (vGE, vGE, vGE + 8))
e("v_cvt_pk_bf16_f32 v%d, v%d, v%d" % (vGE, vGE, vGE))
e("v_lshrrev_b32 v%d, 1, v%d" % (vA1, vA1))
e("buffer_store_short v%d, v%d, %s, 0 offen" % (vGE, vA1, srd(S_OUT)))
setexec(-1)
e("L_fin:")
if DIAG:
    stamp(13)
    if opt("dbg", 0):
        for wgid, base, idxs in ((128, 1, (2, 4, 6, 8, 9, 11, 13)), (0, 9, (1, 3, 4, 6, 7, 8, 10))):
            l = e.newlabel("L_dbg")
            e("s_cmp_lg_u32 s2, %d" % wgid)
            e("s_cbranch_scc1 %s" % l)
            e("s_cmp_lg_u32 s%d, 0" % sW)
            e("s_cbranch_scc1 %s" % l)
            e("v_readlane_b32 s%d, v%d, 0" % (sT0, vTSV))
            for k, ix in enumerate(idxs):
                e("v_readlane_b32 s%d, v%d, %d" % (sT1, vTSV, ix))
                e("s_sub_u32 s%d, s%d, s%d" % (sT1, sT1, sT0))
                e("v_mov_b32 v%d, s%d" % (vA1, sT1))
                e("v_mov_b32 v%d, %d" % (vA0, 4 * (base + k)))
                setexec(1)
                e("buffer_store_dword v%d, v%d, %s, 0 offen" % (vA1, vA0, srd(S_DBG)))
                setexec(-1)
            e(l + ":")
    e("v_lshlrev_b32 v%d, 2, v%d" % (vA0, vLANE))
    e("s_lshl_b32 s%d, s2, 3" % sT0)
    e("s_add_u32 s%d, s%d, s%d" % (sT0, sT0, sW))
    e("s_lshl_b32 s%d, s%d, 8" % (sT0, sT0))
    e("s_add_u32 s%d, s%d, %d" % (sT0, sT0, DIAGO))
    e("buffer_store_dword v%d, v%d, %s, s%d offen" % (vTSV, vA0, srd(S_WS), sT0))
e("L_end:")
e("s_endpgm")
e.raw(""".section .rodata,"a"
.p2align 6
.amdhsa_kernel %s
  .amdhsa_next_free_vgpr %d
  .amdhsa_next_free_sgpr 102
  .amdhsa_accum_offset %d
  .amdhsa_group_segment_fixed_size 0
  .amdhsa_kernarg_size 96
  .amdhsa_user_sgpr_count 2
  .amdhsa_user_sgpr_kernarg_segment_ptr 1
  .amdhsa_system_sgpr_workgroup_id_x 1
.end_amdhsa_kernel""" % (KN, NVGPR, NVGPR))
open(OUTF, "w").write(e.text())
```
